```python
import torch

def _softmax(x, axis=-1):
    return torch.softmax(x, dim=axis)
def _gelu(x):
    return torch.nn.functional.gelu(x, approximate="tanh")
def _silu(x):
    return torch.nn.functional.silu(x)
def _sigmoid(x):
    return torch.sigmoid(x)
def _layernorm(x, axis=-1, eps=1e-5):
    m = x.mean(dim=axis, keepdim=True)
    v = x.var(dim=axis, keepdim=True, unbiased=False)
    return (x - m) / torch.sqrt(v + eps)
def _scatter_add(tgt, idx, src, axis=0):
    return tgt.clone().index_add_(axis, idx, src)
def _segment_sum(src, seg, n):
    out = torch.zeros((n,) + src.shape[1:], dtype=src.dtype)
    return out.index_add_(0, seg, src)
def _pad(x, pw):
    flat = tuple(v for pair in reversed(pw) for v in pair)
    return torch.nn.functional.pad(x, flat)

kernel_name = 'gated_mix__linear_attn_block__ssm_conv_s5__prompt'

def setup_inputs():

    _w = (lambda a: (lambda t: t.to(torch.bfloat16) if t.is_floating_point() else t)(torch.as_tensor(a)))
    def _A_setup():
        B, S, D = 1, 2048, 512
        return {
            "x": _w((lambda *s: torch.randn(*s, dtype=torch.bfloat16) * 0.05)(B, S, D)),
            "wqkv": _w((lambda *s: torch.randn(*s, dtype=torch.bfloat16) * 0.8)(D, 3 * D)),
            "wo": _w((lambda *s: torch.randn(*s, dtype=torch.bfloat16) * 0.05)(D, D)),
        }
    _A_in = _A_setup()

    def _B_setup():
        B, S, D = 1, 2048, 512
        P = D
        Lambda_re = -0.5 * (lambda _x: torch.exp(torch.as_tensor(_x)))((lambda *s: torch.randn(*s, dtype=torch.bfloat16) * 0.2)(P))
        Lambda_im = (lambda *s: torch.randn(*s, dtype=torch.bfloat16) * 0.8)(P) * 1.0
        B_re = (lambda *s: torch.randn(*s, dtype=torch.bfloat16) * 0.4)(P, D) * (D ** -0.5)
        B_im = (lambda *s: torch.randn(*s, dtype=torch.bfloat16) * 0.4)(P, D) * (D ** -0.5)
        C_re = (lambda *s: torch.randn(*s, dtype=torch.bfloat16) * 0.4)(D, P) * (P ** -0.5)
        C_im = (lambda *s: torch.randn(*s, dtype=torch.bfloat16) * 0.4)(D, P) * (P ** -0.5)
        log_dt = (lambda *s: torch.randn(*s, dtype=torch.bfloat16) * 0.2)(P) * 0.3 - 2.0
        Dskip = (lambda *s: torch.randn(*s, dtype=torch.bfloat16) * 0.05)(D)
        return {
            "x": _w((lambda *s: torch.randn(*s, dtype=torch.bfloat16) * 0.05)(B, S, D)),
            "Lambda_re": _w(Lambda_re),
            "Lambda_im": _w(Lambda_im),
            "B_re": _w(B_re),
            "B_im": _w(B_im),
            "C_re": _w(C_re),
            "C_im": _w(C_im),
            "log_dt": _w(log_dt),
            "Dskip": _w(Dskip),
        }
    _B_in = _B_setup()

    return {
        "A_x": _A_in["x"],
        "A_wqkv": _A_in["wqkv"],
        "A_wo": _A_in["wo"],
        "B_x": _B_in["x"],
        "B_Lambda_re": _B_in["Lambda_re"],
        "B_Lambda_im": _B_in["Lambda_im"],
        "B_B_re": _B_in["B_re"],
        "B_B_im": _B_in["B_im"],
        "B_C_re": _B_in["C_re"],
        "B_C_im": _B_in["C_im"],
        "B_log_dt": _B_in["log_dt"],
        "B_Dskip": _B_in["Dskip"],
        "gate_w": _w((lambda *s: torch.randn(*s, dtype=torch.bfloat16) * 0.05)(512) * 16.0),
    }

def reference(A_x, A_wqkv, A_wo, B_x, B_Lambda_re, B_Lambda_im, B_B_re, B_B_im, B_C_re, B_C_im, B_log_dt, B_Dskip, gate_w):
    def _A_ref(x, wqkv, wo):
        B, S, D = x.shape
        H = 32; Dh = D // H
        qkv = (lambda x, *d: x.permute(*d))((x @ wqkv).reshape(B, S, 3, H, Dh), 2, 0, 3, 1, 4)
        q, k, v = qkv[0], qkv[1], qkv[2]
        phi = lambda t: torch.where(t > 0, t + 1, torch.exp(t)) + 1e-6
        pq, pk = phi(q), phi(k)
        kv = torch.einsum("bhsd,bhse->bhde", pk, v)
        z = torch.einsum("bhsd->bhd", pk)
        num = torch.einsum("bhqd,bhde->bhqe", pq, kv)
        den = torch.einsum("bhqd,bhd->bhq", pq, z)[..., None] + 1e-6
        o = num / den
        return (lambda x, *d: x.permute(*d))(o, 0, 2, 1, 3).reshape(B, S, D) @ wo

    def _B_ref(x, Lambda_re, Lambda_im, B_re, B_im, C_re, C_im, log_dt, Dskip):
        Bsz, L, H = x.shape
        Lam = Lambda_re + 1j * Lambda_im
        Bmat = B_re + 1j * B_im
        Cmat = C_re + 1j * C_im
        dt = torch.exp(log_dt)
        Lam_bar = torch.exp(dt * Lam)
        B_bar = ((Lam_bar - 1.0) / Lam)[:, None] * Bmat
        Bu = torch.einsum("bld,pd->blp", x + 0j, B_bar)
        h = torch.zeros_like(Bu[:, 0, :])
        hs = []
        for t in range(L):
            h = Lam_bar[None, :] * h + Bu[:, t, :]
            hs.append(h)
        hseq = torch.stack(hs, 1)
        y = 2.0 * torch.einsum("blp,dp->bld", hseq, Cmat).real + x * Dskip[None, None, :]
        return y

    x = A_x
    g = _sigmoid((x * gate_w).sum(-1, keepdims=True))
    a = _A_ref(x, A_wqkv, A_wo)
    b = _B_ref(x, B_Lambda_re, B_Lambda_im, B_B_re, B_B_im, B_C_re, B_C_im, B_log_dt, B_Dskip)
    return g * a + (1 - g) * b
```

```python
class Asm:
    def __init__(self):
        self.l = []
        self.nlab = 0
    def __call__(self, s=""):
        for x in s.split("\n"):
            self.l.append("    " + x.strip() if x.strip() and not x.strip().endswith(":") else x.strip())
    def raw(self, s):
        self.l.append(s)
    def label(self, n):
        self.l.append(n + ":")
    def newlabel(self, p="L"):
        self.nlab += 1
        return "%s_%d" % (p, self.nlab)
    def text(self):
        return "\n".join(self.l) + "\n"

def v(n, c=1):
    return "v%d" % n if c == 1 else "v[%d:%d]" % (n, n + c - 1)
def a(n, c=1):
    return "a%d" % n if c == 1 else "a[%d:%d]" % (n, n + c - 1)
def s(n, c=1):
    return "s%d" % n if c == 1 else "s[%d:%d]" % (n, n + c - 1)

def kernel_head(A, name):
    A.raw(".globl %s" % name)
    A.raw(".p2align 8")
    A.raw(".type %s,@function" % name)
    A.label(name)

def kernel_desc(name, nvgpr, accum, nsgpr=102):
    return """.amdhsa_kernel %s
  .amdhsa_next_free_vgpr %d
  .amdhsa_next_free_sgpr %d
  .amdhsa_accum_offset %d
  .amdhsa_group_segment_fixed_size 0
  .amdhsa_kernarg_size 128
  .amdhsa_user_sgpr_count 2
  .amdhsa_user_sgpr_kernarg_segment_ptr 1
  .amdhsa_system_sgpr_workgroup_id_x 1
  .amdhsa_float_denorm_mode_32 3
.end_amdhsa_kernel
""" % (name, nvgpr, nsgpr, accum)
```

```python
import sys
from asmlib import *
WT1, WT2, Y1, A2, KV, G = 0, 4 << 20, 8 << 20, 32 << 20, 40 << 20, 41 << 20
ARG = dict(x=0, wqkv=8, wo=16, lre=32, lim=40, bre=48, bim=56, cre=64, cim=72, ldt=80, dsk=88, gw=96, out=104, dbg=112, ws=120)
SZ = dict(x=2097152, wqkv=1572864, wo=524288, lre=1024, lim=1024, bre=524288, bim=524288, cre=524288, cim=524288, ldt=1024, dsk=1024, gw=1024, out=4194304, dbg=256, ws=268435456)

def srds(A, names, base=8):
    r = {}
    for i, n in enumerate(names):
        d = base + 4 * i
        A("s_load_dwordx2 s[%d:%d], s[0:1], %d" % (d, d + 1, ARG[n]))
        r[n] = "s[%d:%d]" % (d, d + 3)
    A("s_waitcnt lgkmcnt(0)")
    for i, n in enumerate(names):
        d = base + 4 * i
        A("s_mov_b32 s%d, %d\ns_mov_b32 s%d, 0x20000" % (d + 2, SZ[n], d + 3))
    return r

def guard(A, n, lab):
    A("s_cmp_ge_u32 s2, %d\ns_cbranch_scc1 %s" % (n, lab))

def phi(A, d, s_, t):
    A("v_mul_f32 v%d, 0x3fb8aa3b, v%d" % (t, s_))
    A("v_exp_f32 v%d, v%d" % (t, t))
    A("v_cmp_lt_f32 vcc, 0, v%d" % s_)
    A("v_add_f32 v%d, 1.0, v%d" % (d, s_))
    A("s_nop 0")
    A("v_cndmask_b32 v%d, v%d, v%d, vcc" % (d, t, d))
    A("v_add_f32 v%d, 0x358637bd, v%d" % (d, d))

def rbf(A, r):
    A("v_cvt_pk_bf16_f32 v%d, v%d, v%d\nv_lshlrev_b32 v%d, 16, v%d" % (r, r, r, r, r))

def k0(A):
    kernel_head(A, "b0_kernel")
    guard(A, 8192, "L0_end")
    R = srds(A, ["wqkv", "wo", "bre", "bim", "cre", "cim", "ws"])
    A("s_lshl_b32 s3, s2, 8\nv_add_u32 v1, s3, v0")
    A("s_cmp_lt_u32 s2, 3072\ns_cbranch_scc0 L0_a")
    A("v_lshrrev_b32 v2, 9, v1\nv_and_b32 v3, 511, v1\nv_mul_u32_u24 v3, 1536, v3\nv_add_u32 v3, v3, v2\nv_lshlrev_b32 v3, 1, v3")
    A("buffer_load_ushort v4, v3, %s, 0 offen" % R["wqkv"])
    A("v_lshlrev_b32 v5, 1, v1\ns_branch L0_st")
    A.label("L0_a")
    A("s_cmp_lt_u32 s2, 4096\ns_cbranch_scc0 L0_b")
    A("v_subrev_u32 v3, %d, v1\nv_lshlrev_b32 v3, 1, v3" % (3072 * 256))
    A("buffer_load_ushort v4, v3, %s, 0 offen" % R["bre"])
    A("v_lshlrev_b32 v5, 1, v1\ns_branch L0_st")
    A.label("L0_b")
    A("s_cmp_lt_u32 s2, 5120\ns_cbranch_scc0 L0_c")
    A("v_subrev_u32 v3, %d, v1\nv_lshlrev_b32 v3, 1, v3" % (4096 * 256))
    A("buffer_load_ushort v4, v3, %s, 0 offen" % R["bim"])
    A("v_lshlrev_b32 v5, 1, v1\ns_branch L0_st")
    A.label("L0_c")
    A("v_and_b32 v6, 0x3ffff, v1\nv_lshrrev_b32 v2, 9, v6\nv_and_b32 v7, 511, v6")
    A("v_mul_u32_u24 v5, 1536, v2\nv_add_u32 v5, v5, v7\nv_lshlrev_b32 v5, 1, v5\nv_add_u32 v5, %d, v5" % WT2)
    A("s_cmp_lt_u32 s2, 6144\ns_cbranch_scc0 L0_d")
    A("v_lshlrev_b32 v3, 9, v7\nv_add_u32 v3, v3, v2\nv_lshlrev_b32 v3, 1, v3")
    A("buffer_load_ushort v4, v3, %s, 0 offen" % R["wo"])
    A("s_branch L0_st")
    A.label("L0_d")
    A("v_lshlrev_b32 v3, 1, v6")
    A("s_cmp_lt_u32 s2, 7168\ns_cbranch_scc0 L0_e")
    A("buffer_load_ushort v4, v3, %s, 0 offen" % R["cre"])
    A("v_add_u32 v5, 1024, v5\ns_branch L0_st")
    A.label("L0_e")
    A("buffer_load_ushort v4, v3, %s, 0 offen" % R["cim"])
    A("v_add_u32 v5, 2048, v5")
    A.label("L0_st")
    A("s_waitcnt vmcnt(0)")
    A("buffer_store_short v4, v5, %s, 0 offen" % R["ws"])
    A.label("L0_end")
    A("s_endpgm")

def kg(A):
    kernel_head(A, "bg_kernel")
    guard(A, 2048, "Lg_end")
    R = srds(A, ["x", "gw", "ws"])
    A("v_lshlrev_b32 v1, 4, v0\ns_lshl_b32 s3, s2, 10")
    A("buffer_load_dwordx4 v[4:7], v1, %s, s3 offen" % R["x"])
    A("buffer_load_dwordx4 v[8:11], v1, %s, 0 offen" % R["gw"])
    A("v_mov_b32 v2, 0\ns_waitcnt vmcnt(0)")
    for i in range(4):
        A("v_dot2_f32_bf16 v2, v%d, v%d, v2" % (4 + i, 8 + i))
    A("s_nop 4")
    for off in (0x041F, 0x081F, 0x101F, 0x201F, 0x401F):
        A("ds_swizzle_b32 v3, v2 offset:0x%x\ns_waitcnt lgkmcnt(0)\nv_add_f32 v2, v2, v3" % off)
    A("s_nop 1\nv_readlane_b32 s4, v2, 32\ns_nop 2\nv_add_f32 v2, s4, v2")
    A("v_mul_f32 v2, 0xbfb8aa3b, v2\nv_exp_f32 v2, v2\ns_nop 0\nv_add_f32 v2, 1.0, v2\nv_rcp_f32 v2, v2\ns_nop 0")
    rbf(A, 2)
    A("s_lshl_b32 s3, s2, 2\ns_add_u32 s3, s3, %d\nv_mov_b32 v3, 0" % G)
    A("v_cmp_eq_u32 vcc, 0, v0\ns_and_saveexec_b64 s[6:7], vcc")
    A("buffer_store_dword v2, v3, %s, s3 offen" % R["ws"])
    A.label("Lg_end")
    A("s_endpgm")

def gemm(A, name, nblk_n, K, asrc, aoff, boff, final):
    kernel_head(A, name)
    L = name
    guard(A, 64 * nblk_n, L + "_end")
    R = srds(A, ["x", "ws", "out", "dsk"])
    A("s_and_b32 s3, s2, 63\ns_lshr_b32 s4, s2, 6")
    A("v_and_b32 v1, 31, v0\nv_lshrrev_b32 v2, 5, v0")
    A("v_mul_u32_u24 v3, %d, v1\nv_lshl_add_u32 v3, v2, 4, v3" % (K * 2))
    A("s_mul_i32 s5, s3, %d\ns_add_u32 s5, s5, %d" % (32 * K * 2, aoff))
    A("s_mul_i32 s6, s4, %d\ns_add_u32 s6, s6, %d" % (32 * K * 2, boff))
    for i in range(16): A("v_mov_b32 v%d, 0" % (16 + i))
    A("s_mov_b32 s7, 0")
    A.label(L + "_k")
    for u in range(4):
        A("buffer_load_dwordx4 v[%d:%d], v3, %s, s5 offen offset:%d" % (32 + 8 * u, 35 + 8 * u, R[asrc], 32 * u))
        A("buffer_load_dwordx4 v[%d:%d], v3, %s, s6 offen offset:%d" % (36 + 8 * u, 39 + 8 * u, R["ws"], 32 * u))
    for u in range(4):
        A("s_waitcnt vmcnt(%d)" % (6 - 2 * u))
        A("v_mfma_f32_32x32x16_bf16 v[16:31], v[%d:%d], v[%d:%d], v[16:31]" % (32 + 8 * u, 35 + 8 * u, 36 + 8 * u, 39 + 8 * u))
    A("s_add_u32 s5, s5, 128\ns_add_u32 s6, s6, 128\ns_add_u32 s7, s7, 64\ns_cmp_lt_u32 s7, %d\ns_cbranch_scc1 %s_k" % (K, L))
    A("s_nop 15")
    N = nblk_n * 32
    A("s_lshl_b32 s3, s3, 5\ns_lshl_b32 s4, s4, 5")
    A("v_lshl_add_u32 v4, v2, 2, s3\nv_add_u32 v5, s4, v1")
    if not final:
        A("v_mul_u32_u24 v6, %d, v4\nv_lshl_add_u32 v6, v5, 2, v6" % (N * 4))
        for i in range(16):
            A("s_mov_b32 s5, %d" % (Y1 + (8 * (i // 4) + i % 4) * N * 4))
            A("buffer_store_dword v%d, v6, %s, s5 offen" % (16 + i, R["ws"]))
    else:
        A("v_lshlrev_b32 v7, 1, v5\nbuffer_load_ushort v8, v7, %s, 0 offen" % R["dsk"])
        A("v_lshl_add_u32 v7, v4, 10, v7\nv_lshlrev_b32 v9, 2, v4")
        for i in range(16):
            rr = 8 * (i // 4) + i % 4
            A("s_mov_b32 s5, %d\ns_mov_b32 s6, %d" % (rr * 1024, G + rr * 4))
            A("buffer_load_ushort v%d, v7, %s, s5 offen" % (32 + i, R["x"]))
            A("buffer_load_dword v%d, v9, %s, s6 offen" % (48 + i, R["ws"]))
        A("s_waitcnt vmcnt(0)\nv_lshlrev_b32 v8, 16, v8\nv_lshlrev_b32 v6, 1, v7")
        for i in range(16):
            rr = 8 * (i // 4) + i % 4
            A("v_lshlrev_b32 v%d, 16, v%d\nv_mul_f32 v%d, v%d, v8\nv_sub_f32 v%d, 1.0, v%d" % (32 + i, 32 + i, 32 + i, 32 + i, 48 + i, 48 + i))
            rbf(A, 48 + i)
            A("v_fmac_f32 v%d, v%d, v%d" % (16 + i, 32 + i, 48 + i))
            A("s_mov_b32 s5, %d" % (rr * 2048))
            A("buffer_store_dword v%d, v6, %s, s5 offen" % (16 + i, R["out"]))
    A.label(L + "_end")
    A("s_endpgm")

def k2(A):
    kernel_head(A, "b2_kernel")
    guard(A, 34, "L2_end")
    R = srds(A, ["ws", "lre", "lim", "ldt"])
    A("s_cmp_lt_u32 s2, 32\ns_cbranch_scc0 L2_scan")
    A("v_lshrrev_b32 v1, 4, v0\nv_and_b32 v2, 15, v0\ns_lshl_b32 s3, s2, 6")
    A("v_lshl_add_u32 v3, v1, 2, s3\nv_add_u32 v3, 2048, v3\nv_lshl_add_u32 v4, v2, 2, s3\nv_add_u32 v4, 4096, v4")
    A("v_mov_b32 v5, 0\nv_mov_b32 v6, 0\ns_mov_b32 s4, %d\ns_mov_b32 s5, 0" % Y1)
    A.label("L2_kv")
    for u in range(16):
        A("buffer_load_dword v%d, v3, %s, s4 offen\nbuffer_load_dword v%d, v4, %s, s4 offen\ns_add_u32 s4, s4, 10240" % (16 + u, R["ws"], 32 + u, R["ws"]))
    A("s_waitcnt vmcnt(0)")
    for u in range(16):
        phi(A, 16 + u, 16 + u, 7); rbf(A, 16 + u); rbf(A, 32 + u)
        A("v_fmac_f32 v5, v%d, v%d\nv_add_f32 v6, v6, v%d" % (16 + u, 32 + u, 16 + u))
    A("s_add_u32 s5, s5, 16\ns_cmp_lt_u32 s5, 2048\ns_cbranch_scc1 L2_kv")
    rbf(A, 5); rbf(A, 6)
    A("s_mul_i32 s3, s2, %d\ns_add_u32 s3, s3, %d" % (16 * 17 * 4, KV))
    A("v_mul_u32_u24 v3, 68, v1\nv_lshl_add_u32 v4, v2, 2, v3")
    A("buffer_store_dword v5, v4, %s, s3 offen\nbuffer_store_dword v6, v3, %s, s3 offen offset:64" % (R["ws"], R["ws"]))
    A("s_endpgm")
    A.label("L2_scan")
    A("s_sub_u32 s3, s2, 32\ns_lshl_b32 s3, s3, 8\nv_add_u32 v1, s3, v0\nv_lshlrev_b32 v2, 1, v1")
    A("buffer_load_ushort v4, v2, %s, 0 offen\nbuffer_load_ushort v5, v2, %s, 0 offen\nbuffer_load_ushort v6, v2, %s, 0 offen" % (R["lre"], R["lim"], R["ldt"]))
    A("s_waitcnt vmcnt(0)\nv_lshlrev_b32 v4, 16, v4\nv_lshlrev_b32 v5, 16, v5\nv_lshlrev_b32 v6, 16, v6")
    A("v_mul_f32 v6, 0x3fb8aa3b, v6\nv_exp_f32 v6, v6\ns_nop 0")
    rbf(A, 6)
    A("v_mul_f32 v7, v6, v4\nv_mul_f32 v8, v6, v5")
    A("v_mul_f32 v7, 0x3fb8aa3b, v7\nv_exp_f32 v7, v7\nv_mul_f32 v8, 0.15915494, v8\nv_fract_f32 v8, v8\nv_sin_f32 v9, v8\nv_cos_f32 v8, v8\ns_nop 0")
    A("v_mul_f32 v8, v7, v8\nv_mul_f32 v9, v7, v9")
    A("v_add_f32 v10, -1.0, v8\nv_mul_f32 v11, v4, v4\nv_fmac_f32 v11, v5, v5\nv_rcp_f32 v11, v11\ns_nop 0\nv_add_f32 v11, v11, v11")
    A("v_mul_f32 v12, v10, v4\nv_fmac_f32 v12, v9, v5\nv_mul_f32 v12, v12, v11")
    A("v_mul_f32 v13, v9, v4\nv_fma_f32 v13, -v10, v5, v13\nv_mul_f32 v13, v13, v11")
    A("v_lshlrev_b32 v3, 2, v1\nv_add_u32 v3, 6144, v3\nv_mov_b32 v14, 0\nv_mov_b32 v15, 0\nv_mov_b32 v7, 0")
    A("s_mov_b32 s4, %d\ns_mov_b32 s5, 0\ns_mov_b32 s6, %d\ns_mov_b32 s7, %d" % (Y1, A2 + 1024, G))
    A.label("L2_sc")
    for u in range(16):
        A("buffer_load_dword v%d, v3, %s, s4 offen\nbuffer_load_dword v%d, v3, %s, s4 offen offset:2048\ns_add_u32 s4, s4, 10240" % (16 + u, R["ws"], 32 + u, R["ws"]))
        A("buffer_load_dword v%d, v7, %s, s7 offen offset:%d" % (48 + u, R["ws"], 4 * u))
    A("s_add_u32 s7, s7, 64\ns_waitcnt vmcnt(0)")
    for u in range(16):
        A("v_fmac_f32 v%d, v8, v14\nv_fmac_f32 v%d, v8, v15" % (16 + u, 32 + u))
        A("v_fma_f32 v%d, -v9, v15, v%d\nv_fmac_f32 v%d, v9, v14" % (16 + u, 16 + u, 32 + u))
        A("v_mov_b32 v14, v%d\nv_mov_b32 v15, v%d" % (16 + u, 32 + u))
        A("v_mul_f32 v64, v12, v14\nv_fma_f32 v64, -v13, v15, v64\nv_mul_f32 v65, v12, v15\nv_fmac_f32 v65, v13, v14")
        rbf(A, 64); rbf(A, 65)
        A("v_sub_f32 v66, 1.0, v%d" % (48 + u)); rbf(A, 66)
        A("v_mul_f32 v64, v64, v66\nv_mul_f32 v65, v65, v66\nv_cvt_pk_bf16_f32 v%d, v64, -v65" % (48 + u))
        A("buffer_store_short v%d, v2, %s, s6 offen\nbuffer_store_short_d16_hi v%d, v2, %s, s6 offen offset:1024\ns_add_u32 s6, s6, 3072" % (48 + u, R["ws"], 48 + u, R["ws"]))
    A("s_add_u32 s5, s5, 16\ns_cmp_lt_u32 s5, 2048\ns_waitcnt vmcnt(0)\ns_cbranch_scc1 L2_sc")
    A.label("L2_end")
    A("s_endpgm")

def k3(A):
    kernel_head(A, "b3_kernel")
    guard(A, 4096, "L3_end")
    R = srds(A, ["ws"])
    A("s_lshr_b32 s3, s2, 1\ns_and_b32 s4, s2, 1\ns_lshl_b32 s4, s4, 8\nv_add_u32 v1, s4, v0")
    A("v_lshrrev_b32 v2, 4, v1\nv_and_b32 v3, 15, v1")
    A("v_lshlrev_b32 v4, 6, v2\nv_mul_u32_u24 v5, 1088, v2\nv_lshl_add_u32 v6, v3, 2, v5")
    A("s_mul_i32 s5, s3, 10240\ns_add_u32 s5, s5, %d\ns_mov_b32 s6, %d\ns_lshl_b32 s7, s3, 2\ns_add_u32 s7, s7, %d" % (Y1, KV, G))
    for d in range(16):
        A("buffer_load_dword v%d, v4, %s, s5 offen offset:%d" % (16 + d, R["ws"], 4 * d))
        A("buffer_load_dword v%d, v6, %s, s6 offen offset:%d" % (32 + d, R["ws"], 68 * d))
        A("buffer_load_dword v%d, v5, %s, s6 offen offset:%d" % (48 + d, R["ws"], 68 * d + 64))
    A("v_mov_b32 v8, 0\nbuffer_load_dword v10, v8, %s, s7 offen\nv_mov_b32 v9, 0x358637bd\ns_waitcnt vmcnt(0)" % R["ws"])
    for d in range(16):
        phi(A, 16 + d, 16 + d, 7); rbf(A, 16 + d)
        A("v_fmac_f32 v8, v%d, v%d\nv_fmac_f32 v9, v%d, v%d" % (16 + d, 32 + d, 16 + d, 48 + d))
    A("v_rcp_f32 v9, v9\ns_nop 0\nv_mul_f32 v9, v9, v10\nv_mul_f32 v8, v8, v9\nv_cvt_pk_bf16_f32 v8, v8, v8")
    A("s_mul_i32 s5, s3, 3072\ns_add_u32 s5, s5, %d\nv_lshlrev_b32 v1, 1, v1" % A2)
    A("buffer_store_short v8, v1, %s, s5 offen" % R["ws"])
    A.label("L3_end")
    A("s_endpgm")

BASE_LAUNCH = [("b0_kernel", 8192, 256, 0), ("bg_kernel", 2048, 64, 0), ("b1_kernel", 5120, 64, 0), ("b2_kernel", 34, 256, 0), ("b3_kernel", 4096, 256, 0), ("b4_kernel", 1024, 64, 0)]

def gen(pre=(), post=(), extra_code=None, extra_desc=""):
    A = Asm()
    for (n, g, b, l) in list(pre) + BASE_LAUNCH + list(post):
        A.raw("; @launch kernel=%s grid=(%d,1,1) block=(%d,1,1) lds=%d" % (n, g, b, l))
    A.raw('.amdgcn_target "amdgcn-amd-amdhsa--gfx950"')
    A.raw(".text")
    k0(A); kg(A)
    gemm(A, "b1_kernel", 80, 512, "x", 0, WT1, False)
    k2(A); k3(A)
    gemm(A, "b4_kernel", 16, 1536, "ws", A2, WT2, True)
    if extra_code: extra_code(A)
    A.raw('.section .rodata,"a"')
    for n in ("b0_kernel", "bg_kernel", "b1_kernel", "b2_kernel", "b3_kernel", "b4_kernel"):
        A.raw(".p2align 6")
        A.raw(kernel_desc(n, 72, 72, 64))
    A.raw(extra_desc)
    return A.text()

if __name__ == "__main__":
    open("base.s", "w").write(gen())
```

```python
import sys
from asmlib import *
NAME = "gated_mix__linear_attn_block__ssm_conv_s5__prompt_kernel"

def gen(mapping="M2", rot=1, nw=4, depth=4, pretouch=0):
    A = Asm()
    A.raw("; @launch grid=(256,1,1) block=(%d,1,1) lds=163840" % (nw * 64))
    A.raw('.amdgcn_target "amdgcn-amd-amdhsa--gfx950"')
    A.raw(".text")
    kernel_head(A, NAME)
    A("s_cmp_ge_u32 s2, 256")
    A("s_cbranch_scc1 L_end")
    A("s_memrealtime s[60:61]")
    A("s_memtime s[64:65]")
    A("s_load_dwordx4 s[4:7], s[0:1], 0")
    A("s_load_dwordx4 s[8:11], s[0:1], 48")
    A("s_load_dwordx2 s[12:13], s[0:1], 120")
    A("s_and_b32 s20, s2, 7")
    A("s_lshr_b32 s21, s2, 3")
    if mapping == "M1":
        A("s_lshr_b32 s22, s21, 4\ns_lshl_b32 s23, s20, 1\ns_add_u32 s22, s22, s23\ns_and_b32 s23, s21, 7\ns_bfe_u32 s24, s21, 0x10003")
        A("s_lshl_b32 s26, s22, 2\ns_add_u32 s26, s26, s23")
    elif mapping == "M2":
        A("s_lshr_b32 s22, s21, 3\ns_lshr_b32 s23, s20, 1\ns_lshl_b32 s23, s23, 2\ns_add_u32 s22, s22, s23")
        A("s_and_b32 s23, s21, 3\ns_and_b32 s24, s20, 1\ns_lshl_b32 s24, s24, 2\ns_add_u32 s23, s23, s24\ns_bfe_u32 s24, s21, 0x10002")
        A("s_lshl_b32 s26, s22, 1\ns_and_b32 s27, s21, 7\ns_add_u32 s26, s26, s27")
    elif mapping == "M3":
        A("s_lshr_b32 s22, s21, 3\ns_lshr_b32 s23, s20, 1\ns_lshl_b32 s23, s23, 2\ns_add_u32 s22, s22, s23")
        A("s_and_b32 s23, s21, 7\ns_and_b32 s24, s20, 1")
        A("s_lshl_b32 s26, s22, 1\ns_add_u32 s26, s26, s23")
    elif mapping == "M4":
        A("s_lshr_b32 s22, s21, 2\ns_lshr_b32 s23, s20, 2\ns_lshl_b32 s23, s23, 3\ns_add_u32 s22, s22, s23")
        A("s_and_b32 s23, s21, 1\ns_and_b32 s24, s20, 3\ns_lshl_b32 s24, s24, 1\ns_add_u32 s23, s23, s24\ns_bfe_u32 s24, s21, 0x10001")
        A("s_and_b32 s27, s21, 3\ns_lshl_b32 s27, s27, 1\ns_add_u32 s26, s22, s27")
    if rot == 0:
        A("s_mov_b32 s26, 0")
    A("s_and_b32 s26, s26, 7")
    A("v_lshrrev_b32 v1, 6, v0")
    A("s_nop 0")
    A("v_readfirstlane_b32 s25, v1")
    A("v_and_b32 v2, 63, v0")
    A("v_lshrrev_b32 v4, 3, v2\nv_and_b32 v5, 7, v2\nv_lshlrev_b32 v5, 4, v5")
    A("v_lshl_add_u32 v3, v4, 10, v5")
    A("v_mul_u32_u24 v4, 3072, v4\nv_add_u32 v4, v4, v5")
    A("s_waitcnt lgkmcnt(0)")
    A("s_memtime s[66:67]")
    for (d, b, n) in ((28, 4, 2097152), (32, 6, 1572864), (36, 8, 524288), (40, 10, 524288), (44, 12, 268435456)):
        A("s_mov_b32 s%d, s%d\ns_mov_b32 s%d, s%d\ns_mov_b32 s%d, %d\ns_mov_b32 s%d, 0x20000" % (d, b, d + 1, b + 1, d + 2, n, d + 3))
    A("s_lshl_b32 s48, s22, 17")
    A("s_mul_i32 s49, s25, %d" % (128 // nw * 1024))
    A("s_add_u32 s48, s48, s49")
    A("s_lshl_b32 s50, s23, 16")
    A("s_mul_i32 s49, s25, %d" % (64 // nw * 1024))
    A("s_add_u32 s50, s50, s49")
    A("s_lshl_b32 s51, s23, 7")
    A("s_mul_i32 s49, s25, %d" % (64 // nw * 3072))
    A("s_add_u32 s51, s51, s49")
    A("s_mul_i32 s52, s25, %d" % (163840 // nw))
    A("s_memtime s[68:69]")
    A("s_cmp_eq_u32 s24, 1")
    A("s_cbranch_scc1 L_att")
    slots = (163840 // nw) // 1024
    for role in (0, 1):
        if role == 1: A.label("L_att")
        cnt = 0
        per = (128 // nw // 8) + ((128 // nw // 8) if role == 0 else (192 // nw // 8))
        for c in range(8):
            A("s_lshl_b32 s56, s26, 7")
            A("s_mul_i32 s57, s26, %d" % (64 * 3072))
            A("s_add_u32 s26, s26, 1\ns_and_b32 s26, s26, 7")
            A("s_add_u32 s54, s48, s56\ns_add_u32 s55, s50, s56\ns_add_u32 s57, s57, s51")
            ld = []
            for i in range(128 // nw // 8): ld.append((28, 3, 54, i * 8192))
            if role == 0:
                for i in range(64 // nw // 8):
                    ld.append((36, 3, 55, i * 8192)); ld.append((40, 3, 55, i * 8192))
            else:
                for m in range(3):
                    for i in range(64 // nw // 8): ld.append((32, 4, 57, m * 1024 + i * 8 * 3072))
            if c >= depth:
                A("s_waitcnt vmcnt(%d)" % (per * (depth - 1)))
                A("s_memtime s[%d:%d]" % (70 + 2 * (c - depth), 71 + 2 * (c - depth)))
                A("s_barrier")
            for (srd, vo, sb, off) in ld:
                A("s_add_u32 s53, s%d, %d" % (sb, off))
                A("s_add_u32 m0, s52, %d" % ((cnt % slots) * 1024))
                A("s_nop 0")
                A("buffer_load_dwordx4 v%d, s[%d:%d], s53 offen lds" % (vo, srd, srd + 3))
                cnt += 1
        for c in range(8, 8 + depth):
            A("s_waitcnt vmcnt(%d)" % (per * (8 + depth - 1 - c)))
            A("s_memtime s[%d:%d]" % (70 + 2 * (c - depth), 71 + 2 * (c - depth)))
            A("s_barrier")
        if role == 0: A("s_branch L_join")
    A.label("L_join")
    A("s_memtime s[86:87]")
    A("s_memrealtime s[62:63]")
    A("s_waitcnt lgkmcnt(0)")
    A("v_mov_b32 v8, s60\nv_mov_b32 v9, s62")
    for i in range(11):
        A("s_sub_u32 s%d, s%d, s64" % (66 + 2 * i, 66 + 2 * i))
        A("v_mov_b32 v%d, s%d" % (10 + i, 66 + 2 * i))
    A("v_mov_b32 v21, s24")
    A("s_lshl_b32 s54, s2, 10\ns_lshl_b32 s55, s25, 6\ns_add_u32 s54, s54, s55")
    A("v_mov_b32 v30, s54")
    A("v_cmp_eq_u32 vcc, 0, v2")
    A("s_and_saveexec_b64 s[58:59], vcc")
    for i in range(4):
        A("buffer_store_dwordx4 v[%d:%d], v30, s[44:47], 0 offen offset:%d" % (8 + 4 * i, 11 + 4 * i, 16 * i))
    A("s_waitcnt vmcnt(0)")
    A.label("L_end")
    A("s_endpgm")
    A.raw('.section .rodata,"a"')
    A.raw(".p2align 6")
    A.raw(kernel_desc(NAME, 128, 128))
    return A.text()

if __name__ == "__main__":
    for m in ("M1", "M2", "M3", "M4"):
        for rot in (0, 1):
            open("mb3_%s_r%d.s" % (m, rot), "w").write(gen(m, rot))
    open("mb3_M2_r1_d2.s", "w").write(gen("M2", 1, depth=2))
    open("mb3_M2_r1_d3.s", "w").write(gen("M2", 1, depth=3))
    open("mb3_M2_r1_w8.s", "w").write(gen("M2", 1, nw=8))
```

```python
import re
from base_gen import *
import mb3_gen
ST = 64 << 20

def mb3_body(name, off, **kw):
    s = mb3_gen.gen(**kw)
    body = s[s.index(".globl"):s.index('.section .rodata')]
    body = body.replace(mb3_gen.NAME, name)
    body = re.sub(r"\bL_(\w+)", lambda m: "L%s_%s" % (name, m.group(1)), body)
    body = body.replace("v_mov_b32 v30, s54", "s_add_u32 s54, s54, %d\n    v_mov_b32 v30, s54" % off)
    return body

def stamp_kernel(A, name, off):
    kernel_head(A, name)
    guard(A, 256, "L%s_end" % name)
    A("s_memrealtime s[60:61]")
    R = srds(A, ["ws"])
    A("s_memrealtime s[62:63]\ns_waitcnt lgkmcnt(0)")
    A("v_mov_b32 v8, s60\nv_mov_b32 v9, s62\ns_lshl_b32 s3, s2, 10\ns_add_u32 s3, s3, %d\nv_mov_b32 v1, 0" % off)
    A("buffer_store_dwordx2 v[8:9], v1, %s, s3 offen" % R["ws"])
    A.label("L%s_end" % name)
    A("s_endpgm")

def amp_kernel(A, mode, offa, offb, mult):
    kernel_head(A, "amp_kernel")
    guard(A, 1, "Lamp_end")
    R = srds(A, ["ws"])
    A("v_lshlrev_b32 v1, 10, v0")
    for i in range(4):
        A("s_mov_b32 s3, %d" % (offa + i * 65536))
        A("buffer_load_dwordx2 v[%d:%d], v1, %s, s3 offen" % (8 + 2 * i, 9 + 2 * i, R["ws"]))
        A("s_mov_b32 s3, %d" % (offb + i * 65536))
        A("buffer_load_dwordx2 v[%d:%d], v1, %s, s3 offen" % (16 + 2 * i, 17 + 2 * i, R["ws"]))
    A("s_waitcnt vmcnt(0)")
    A("v_min_u32 v2, v8, v10\nv_min3_u32 v2, v2, v12, v14")
    A("v_max_u32 v3, v9, v11\nv_max3_u32 v3, v3, v13, v15")
    A("v_min_u32 v4, v16, v18\nv_min3_u32 v4, v4, v20, v22")
    A("v_max_u32 v5, v16, v18\nv_max3_u32 v5, v5, v20, v22")
    A("s_nop 1")
    A("s_mov_b32 s20, -1\ns_mov_b32 s21, 0\ns_mov_b32 s22, -1\ns_mov_b32 s26, 0")
    for l in range(64):
        A("v_readlane_b32 s23, v2, %d\nv_readlane_b32 s24, v3, %d\nv_readlane_b32 s25, v4, %d\nv_readlane_b32 s27, v5, %d" % (l, l, l, l))
        A("s_min_u32 s20, s20, s23\ns_max_u32 s21, s21, s24\ns_min_u32 s22, s22, s25\ns_max_u32 s26, s26, s27")
    A("s_memrealtime s[30:31]\ns_waitcnt lgkmcnt(0)")
    if mode == "span":
        A("s_sub_u32 s23, s21, s20\ns_mul_i32 s23, s23, %d" % mult)
    elif mode == "gap":
        A("s_sub_u32 s23, s22, s21\ns_mul_i32 s23, s23, %d" % mult)
    elif mode == "skew":
        A("s_sub_u32 s23, s26, s22\ns_mul_i32 s23, s23, %d" % mult)
    else:
        A("s_mov_b32 s23, 0")
    A("s_min_u32 s23, s23, 200000")
    A("s_add_u32 s23, s23, 40000\ns_mov_b32 s30, s20")
    A.label("Lamp_spin")
    A("s_memrealtime s[32:33]\ns_waitcnt lgkmcnt(0)\ns_sub_u32 s34, s32, s30\ns_cmp_lt_u32 s34, s23\ns_cbranch_scc1 Lamp_spin")
    A.label("Lamp_end")
    A("s_endpgm")

def desc(n, v=128):
    return ".p2align 6\n" + kernel_desc(n, v, v, 102)

def mk(fn, mode, pre_kind, **kw):
    def code(A):
        if pre_kind == "mb3":
            A.raw(mb3_body("pa_kernel", ST, **kw))
        else:
            stamp_kernel(A, "pa_kernel", ST)
        stamp_kernel(A, "pb_kernel", ST + (1 << 20))
        if mode == "skew":
            amp_kernel(A, mode, ST, ST, 100)
        else:
            amp_kernel(A, mode, ST, ST + (1 << 20), 100)
    s = gen(pre=[("pa_kernel", 256, 256, 163840), ("pb_kernel", 256, 256, 163840)], post=[("amp_kernel", 1, 64, 0)], extra_code=code,
            extra_desc=desc("pa_kernel") + desc("pb_kernel") + desc("amp_kernel"))
    open(fn, "w").write(s)

mk("diag_fixed.s", "fixed", "stamp")
mk("diag_gap.s", "gap", "stamp")
mk("diag_r0.s", "span", "mb3", mapping="M2", rot=0)
mk("diag_r1.s", "span", "mb3", mapping="M2", rot=1)
mk("diag_skew.s", "skew", "stamp")
mk("diag_gap2.s", "gap", "mb3", mapping="M2", rot=1)
```

```python
import re

REG = re.compile(r"^(-|\|)?(abs\()?([vas])(\d+|\[(\d+):(\d+)\])\)?\|?$")

def regs(tok):
    tok = tok.strip()
    if tok in ("vcc",): return {("s", "vcc")}
    if tok in ("vcc_lo", "vcc_hi"): return {("s", "vcc")}
    if tok in ("exec", "exec_lo", "exec_hi"): return {("s", "exec")}
    if tok == "m0": return {("s", "m0")}
    m = REG.match(tok)
    if not m: return set()
    k = m.group(3)
    if m.group(5) is not None:
        return {(k, i) for i in range(int(m.group(5)), int(m.group(6)) + 1)}
    return {(k, int(m.group(4)))}

TRANS = ("v_exp_", "v_log_", "v_rcp_", "v_rsq_", "v_sqrt_", "v_sin_", "v_cos_")

class I:
    def __init__(self, text):
        self.text = text
        t = text.split(";")[0].strip()
        self.op = t.split()[0] if t else ""
        rest = t[len(self.op):].strip()
        parts = [p.strip() for p in rest.split(",")] if rest else []
        ops = []
        self.mods = ""
        depth_join = []
        for n, p in enumerate(parts):
            w = p.split()
            if not w: continue
            ops.append(w[0])
            if len(w) > 1:
                self.mods = " ".join(w[1:]) + "," + ",".join(parts[n + 1:])
                break
        self.ops = ops
        op = self.op
        self.mfma = op.startswith("v_mfma")
        self.valu = op.startswith("v_") and not self.mfma
        self.trans = op.startswith(TRANS)
        self.dot = op.startswith("v_dot")
        self.dpp = ("row_" in self.mods) or ("quad_perm" in self.mods) or op.endswith("_dpp")
        self.perml = op.startswith("v_permlane")
        self.lane = op.startswith(("v_readlane", "v_readfirstlane", "v_writelane"))
        self.vmem = op.startswith(("buffer_", "global_", "flat_"))
        self.ds = op.startswith("ds_")
        self.salu = op.startswith("s_") and not op.startswith(("s_waitcnt", "s_nop", "s_barrier", "s_branch", "s_cbranch", "s_endpgm", "s_sleep", "s_setprio", "s_load", "s_memtime", "s_memrealtime"))
        self.ldsdma = self.vmem and (" lds" in (" " + self.mods) or "_lds_" in op)
        W = set(); R = set()
        self.A = self.B = self.C = self.D = set()
        self.wide_data = set()
        if self.mfma:
            self.D = regs(ops[0]); self.A = regs(ops[1]); self.B = regs(ops[2]); self.C = regs(ops[3])
            W = set(self.D); R = self.A | self.B | self.C
            self.passes = 8 if "32x32x16" in op else 4
        elif self.valu:
            if self.perml:
                W = regs(ops[0]) | regs(ops[1]); R = set(W)
            else:
                W = regs(ops[0])
                srcs = ops[1:]
                if op.startswith(("v_add_co", "v_sub_co", "v_addc_co", "v_subb_co")):
                    W |= regs(ops[1]); srcs = ops[2:]
                for o in srcs: R |= regs(o)
                if op.startswith(("v_fmac", "v_dot2c", "v_writelane")) or self.dpp: R |= regs(ops[0])
                if op.startswith("v_cmpx"): W |= {("s", "exec")}
        elif self.vmem:
            if self.ldsdma:
                for o in ops: R |= regs(o)
                R |= {("s", "m0")}
            elif "load" in op:
                W = regs(ops[0])
                for o in ops[1:]: R |= regs(o)
                if "d16" in op: R |= regs(ops[0])
            else:
                for o in ops: R |= regs(o)
                if "x3" in op or "x4" in op:
                    self.wide_data = regs(ops[0]) if op.startswith("buffer_") else regs(ops[1])
        elif self.ds:
            if op.startswith(("ds_read", "ds_bpermute", "ds_permute", "ds_swizzle")):
                W = regs(ops[0])
                for o in ops[1:]: R |= regs(o)
            else:
                for o in ops: R |= regs(o)
        elif op.startswith("s_"):
            if op.startswith(("s_cmp", "s_cbranch", "s_branch", "s_waitcnt", "s_nop", "s_barrier", "s_endpgm", "s_sleep", "s_setprio")):
                for o in ops: R |= regs(o)
            else:
                if ops: W = regs(ops[0])
                for o in ops[1:]: R |= regs(o)
                if "saveexec" in op: W |= {("s", "exec")}
        self.W = W; self.R = R
        self.states = 1
        if op == "s_nop": self.states = int(ops[0], 0) + 1

def isv(S): return {x for x in S if x[0] in "va"}
def iss(S): return {x for x in S if x[0] == "s"}

def need(p, c):
    n = 0
    if p.valu:
        wv = isv(p.W); ws = iss(p.W)
        if c.mfma and wv & c.R: n = max(n, 2)
        if c.valu and (c.dpp or c.perml) and wv & c.R: n = max(n, 2)
        if c.lane and wv & c.R: n = max(n, 1)
        if p.trans and wv & c.R and not (c.valu and c.trans): n = max(n, 1)
        if p.dot and wv & (c.R | c.W):
            same_c = c.op == p.op and not (wv & (regs(c.ops[1]) | regs(c.ops[2])))
            if not same_c: n = max(n, 3)
        if ws:
            if c.valu and ws & c.R: n = max(n, 4 if c.lane else 2)
            if c.vmem and ws & c.R: n = max(n, 5)
            if ("s", "exec") in ws and (c.mfma or c.perml or c.lane): n = max(n, 4)
            if ("s", "exec") in ws and c.dpp: n = max(n, 5)
    if p.mfma:
        big = {8: 12, 4: 8}[p.passes]
        if c.mfma:
            if p.D & (c.A | c.B): n = max(n, big)
            if p.D & c.C and not (p.D == c.C and p.passes == c.passes): n = max(n, big - 2)
            if p.D & c.D and not (p.D == c.D): n = max(n, big)
            if p.D & c.D and p.D == c.D and not (c.C == c.D): n = max(n, big)
        else:
            if p.D & (c.R | c.W): n = max(n, big)
            if c.valu and p.C & c.W: n = max(n, {8: 7, 4: 3}[p.passes])
    if p.salu and ("s", "m0") in p.W and c.ldsdma: n = max(n, 1)
    if p.wide_data and p.wide_data & c.W: n = max(n, 2)
    return n

def fix(lines, window=14):
    out = []
    hist = []
    labels = {}
    nins = 0
    def dist_need(c, h):
        req = 0; d = 0
        for p in reversed(h):
            n = need(p, c)
            if n > d: req = max(req, n - d)
            d += p.states
            if d >= window: break
        return req
    parsed = []
    for l in lines:
        s = l.strip()
        if not s or s.startswith((";", ".")) or s.endswith(":"):
            parsed.append(None)
        else:
            parsed.append(I(s))
    pending = {}
    for idx, (l, c) in enumerate(zip(lines, parsed)):
        s = l.strip()
        if c is None:
            out.append(l)
            if s.endswith(":"):
                lab = s[:-1]
                labels[lab] = idx
                alts = pending.pop(lab, [])
                hist_alts = alts
                if alts:
                    req = 0
                    for h in alts:
                        hh = list(h); k = idx + 1; cnt = 0
                        while k < len(lines) and cnt < window:
                            if parsed[k] is not None:
                                d = sum(x.states for x in hh[len(h):])
                                for p in reversed(h):
                                    n = need(p, parsed[k])
                                    if n > d: req = max(req, n - d)
                                    d += p.states
                                    if d >= window: break
                                hh.append(parsed[k]); cnt += 1
                            k += 1
                    if req:
                        out.append("    s_nop %d" % (req - 1)); hist.append(I("s_nop %d" % (req - 1))); nins += 1
            continue
        req = dist_need(c, hist)
        if req:
            out.append("    s_nop %d" % (req - 1)); hist.append(I("s_nop %d" % (req - 1))); nins += 1
        if c.op.startswith(("s_branch", "s_cbranch")):
            tgt = c.ops[0]
            if tgt in labels:
                req = 0; k = labels[tgt] + 1; cnt = 0; extra = 1
                while k < len(lines) and cnt < window:
                    if parsed[k] is not None:
                        d = extra
                        for p in reversed(hist):
                            n = need(p, parsed[k])
                            if n > d: req = max(req, n - d)
                            d += p.states
                            if d >= window: break
                        extra += parsed[k].states; cnt += 1
                    k += 1
                if req:
                    out.append("    s_nop %d" % (req - 1)); hist.append(I("s_nop %d" % (req - 1))); nins += 1
            else:
                pending.setdefault(tgt, []).append(list(hist[-window:]) + [c])
        out.append(l)
        hist.append(c)
        if c.op in ("s_branch", "s_endpgm"): hist = []
        hist = hist[-2 * window:]
    return out, nins
```

```python
import sys
from asmlib import Asm, v, a, s, kernel_head, kernel_desc
import hazard

NAME = "gated_mix__linear_attn_block__ssm_conv_s5__prompt_kernel"
WS_EPOCH, WS_G, WS_FH, WS_FO, WS_E, WS_KV, WS_A = 0, 0x1000, 0x10000, 0x20000, 0x30000, 0x40000, 0x100000
WS_STAMP = 0x800000
RT_STRIDE = 98304
HUGE = 0x20000000
L_C0, L_RED, L_WO, L_MISC = 0, 65536, 81920, 147456
LOG2E = "0x3fb8aa3b"

class Alloc:
    def __init__(self, n, lo=0):
        self.free = set(range(lo, n))
    def __call__(self, n=1, al=1):
        if n > 1 and al == 1: al = 2
        for b in sorted(self.free, reverse=(n <= 2)):
            if b % al == 0 and all(b + i in self.free for i in range(n)):
                for i in range(n): self.free.discard(b + i)
                return b
        raise RuntimeError("out of registers")
    def rel(self, b, n=1):
        for i in range(n):
            assert b + i not in self.free
            self.free.add(b + i)
    def clone(self):
        c = Alloc(0); c.free = set(self.free); return c

class Cnt:
    def __init__(self, A, name, mx):
        self.A = A; self.name = name; self.mx = mx; self.q = []
    def issue(self, tag): self.q.append(tag)
    def need(self, tag):
        idx = [i for i, t in enumerate(self.q) if t == tag]
        if not idx: return None
        n = len(self.q) - 1 - idx[-1]
        self.q = self.q[idx[-1] + 1:]
        return min(n, self.mx)
    def wait(self, tag):
        n = self.need(tag)
        if n is not None: self.A("s_waitcnt %s(%d)" % (self.name, n))
    def zero(self, emit=True):
        if emit: self.A("s_waitcnt %s(0)" % self.name)
        self.q = []

class K:
    def __init__(self, **opt):
        self.o = dict(stamps=False, rot=(2, 1, 7), att_early=True, ssm_early=False, pollcap=400000)
        self.o.update(opt)
        self.A = Asm()
        self.vm = Cnt(self.A, "vmcnt", 63)
        self.lg = Cnt(self.A, "lgkmcnt", 15)
        self.V = Alloc(256, 1)
        self.S = Alloc(100, 50)
        self.fill = []
        self.nstamp = 0

    def stamp(self, idx):
        if not self.o["stamps"]: return
        A = self.A
        A("s_memrealtime s[%d:%d]" % (self.sT, self.sT + 1))
        A("s_waitcnt lgkmcnt(0)")
        self.lg.zero(False)
        A("v_writelane_b32 v%d, s%d, %d" % (self.vStamp, self.sT, idx))
    def dma(self, vo, srd, so, imm, tag):
        self.A("buffer_load_dwordx4 v%d, %s, %s offen%s lds" % (vo, srd, so, " offset:%d" % imm if imm else ""))
        self.vm.issue(tag)
    def m0(self, sreg, const):
        self.A("s_add_u32 m0, s%d, %d" % (sreg, const))
    def pop(self, n):
        while n > 0 and self.fill:
            f = self.fill.pop(0)
            if callable(f): f()
            else: self.A(f)
            n -= 1
    def mfma(self, d, x, y, c=None):
        self.A("v_mfma_f32_32x32x16_bf16 %s, %s, %s, %s" % (v(d, 16), x, y, v(d, 16) if c is None else c))
    def cmul(self, out, dr, di, ar, ai, br, bi, cr=None, ci=None):
        if cr is None:
            out.append("v_mul_f32 v%d, v%d, v%d" % (dr, ar, br))
            out.append("v_mul_f32 v%d, v%d, v%d" % (di, ar, bi))
        else:
            out.append("v_fma_f32 v%d, v%d, v%d, v%d" % (dr, ar, br, cr))
            out.append("v_fma_f32 v%d, v%d, v%d, v%d" % (di, ar, bi, ci))
        out.append("v_fma_f32 v%d, -v%d, v%d, v%d" % (dr, ai, bi, dr))
        out.append("v_fmac_f32 v%d, v%d, v%d" % (di, ai, br))
    def emit(self, lst):
        for x in lst:
            if callable(x): x()
            else: self.A(x)
    def poll_tail(self, lab):
        A = self.A
        A("s_sub_u32 s%d, s%d, 1" % (self.sCap, self.sCap))
        A("s_cselect_b64 vcc, 0, vcc")
        A("s_cselect_b32 s%d, 0, s%d" % (self.sCap, self.sCap))
        A("s_cmp_lg_u64 vcc, 0")
        A("s_cbranch_scc1 %s" % lab)

    def prologue(self):
        A, V, S = self.A, self.V, self.S
        self.X, self.WA, self.WB, self.WS = "s[4:7]", "s[8:11]", "s[12:15]", "s[16:19]"
        self.CRE, self.CIM, self.WO, self.OUT, self.ER = "s[20:23]", "s[24:27]", "s[28:31]", "s[32:35]", "s[36:39]"
        self.sR, self.sJ, self.sRole, self.sW, self.sCT, self.sRH = [S() for _ in range(6)]
        self.sM, self.sCh, self.sO1, self.sO2, self.sTag, self.sE, self.sCap = [S() for _ in range(7)]
        self.t0, self.t1, self.t2, self.t3 = [S() for _ in range(4)]
        self.sT = S(2, 2); self.sP = S(2, 2); self.sMk = S(2, 2)
        self.sLoc = S()
        t0, t1, t2 = self.t0, self.t1, self.t2
        A("s_cmp_ge_u32 s2, 256")
        A("s_cbranch_scc1 L_end")
        A("s_load_dwordx2 s[4:5], s[0:1], 0")
        A("s_bfe_u32 s%d, s2, 0x10005" % self.sRole)
        A("s_cmp_eq_u32 s%d, 0" % self.sRole)
        A("s_cselect_b32 s%d, 48, 8" % t2)
        A("s_load_dwordx2 s[8:9], s[0:1], s%d" % t2)
        A("s_load_dwordx2 s[12:13], s[0:1], 56")
        A("s_load_dwordx2 s[16:17], s[0:1], 120")
        A("s_cselect_b32 s10, 0x80000, 0")
        A("s_cselect_b32 s%d, 0, 0x180000" % t1)
        A("s_add_u32 s10, s10, s%d" % t1)
        if self.o["stamps"]:
            self.vStamp = V()
            A("s_memrealtime s[%d:%d]" % (self.sT, self.sT + 1))
        A("s_lshr_b32 s%d, s2, 3" % self.sLoc)
        vt = V(); vu = V()
        A("s_getpc_b64 s[%d:%d]" % (self.sP, self.sP + 1))
        A.label("L_pc")
        A("v_lshrrev_b32 v%d, 5, v0" % vt)
        A("v_lshl_add_u32 v%d, s%d, 3, v%d" % (vt, self.sLoc, vt))
        A("v_lshlrev_b32 v%d, 7, v%d" % (vt, vt))
        A("v_min_u32 v%d, L_end-L_pc, v%d" % (vt, vt))
        self.vJunk = V()
        A("global_load_dword v%d, v%d, s[%d:%d]" % (self.vJunk, vt, self.sP, self.sP + 1))
        self.vm.issue("junk")
        A("v_lshrrev_b32 v%d, 6, v0" % vu)
        A("s_and_b32 s%d, s2, 1" % self.sRH)
        A("v_readfirstlane_b32 s%d, v%d" % (self.sW, vu))
        A("s_bfe_u32 s%d, s2, 0x20001" % t0)
        A("s_lshr_b32 s%d, s2, 6" % t1)
        A("s_lshl_b32 s%d, s%d, 2" % (self.sR, t0))
        A("s_add_u32 s%d, s%d, s%d" % (self.sR, self.sR, t1))
        A("s_and_b32 s%d, s%d, 3" % (t0, self.sLoc))
        A("s_lshl_b32 s%d, s%d, 2" % (self.sJ, self.sRH))
        A("s_add_u32 s%d, s%d, s%d" % (self.sJ, self.sJ, t0))
        A("s_and_b32 s%d, s%d, 7" % (self.sCT, self.sLoc))
        ra, rb, rm = self.o["rot"]
        A("s_mul_i32 s%d, s%d, %d" % (self.sCh, t1, ra))
        A("s_mul_i32 s%d, s%d, %d" % (t0, self.sCT, rb))
        A("s_add_u32 s%d, s%d, s%d" % (self.sCh, self.sCh, t0))
        A("s_and_b32 s%d, s%d, %d" % (self.sCh, self.sCh, rm))
        for b, n in ((4, 0x200000), (12, 0x80000), (16, 0x10000000), (20, 0x80000), (24, 0x80000), (28, 0x80000), (32, 0x400000), (36, 4096)):
            A("s_mov_b32 s%d, 0x%x" % (b + 2, n))
        for b in range(4, 40, 4): A("s_mov_b32 s%d, 0x20000" % (b + 3))
        A("s_mov_b32 s%d, %d" % (self.sCap, self.o["pollcap"]))
        A("s_lshr_b32 s%d, s%d, 1" % (t0, self.sW))
        A("s_lshl_b32 s%d, s%d, 13" % (t0, t0))
        A("s_and_b32 s%d, s%d, 1" % (t1, self.sW))
        A("s_lshl_b32 s%d, s%d, 10" % (t1, t1))
        A("s_add_u32 s%d, s%d, s%d" % (self.sM, t0, t1))
        self.vUA = V(); self.vUT = V()
        A("v_lshrrev_b32 v%d, 4, v0" % vt)
        A("v_xor_b32 v%d, v0, v%d" % (vu, vt))
        A("v_and_b32 v%d, 7, v%d" % (vu, vu))
        A("v_lshlrev_b32 v%d, 4, v%d" % (self.vUA, vu))
        self.vx = [V() for _ in range(4)]
        x0 = self.vx[0]
        A("v_and_b32 v%d, 1, v%d" % (x0, vt))
        A("v_and_b32 v%d, 32, v0" % vu)
        A("v_or_b32 v%d, v%d, v%d" % (x0, x0, vu))
        A("v_bfe_u32 v%d, v0, 3, 1" % vu)
        A("v_lshl_or_b32 v%d, v%d, 4, v%d" % (x0, vu, x0))
        A("v_bfe_u32 v%d, v0, 6, 1" % vu)
        A("v_lshl_or_b32 v%d, v%d, 1, v%d" % (x0, vu, x0))
        A("v_lshrrev_b32 v%d, 7, v0" % vu)
        A("v_lshl_or_b32 v%d, v%d, 6, v%d" % (x0, vu, x0))
        A("s_lshl_b32 s%d, s%d, 7" % (t0, self.sR))
        A("v_add_u32 v%d, s%d, v%d" % (x0, t0, x0))
        A("v_lshl_add_u32 v%d, v%d, 10, v%d" % (x0, x0, self.vUA))
        for i, d in ((1, 2048), (2, 8192), (3, 10240)):
            A("v_add_u32 v%d, %d, v%d" % (self.vx[i], d, x0))
        A("v_lshrrev_b32 v%d, 2, v0" % vt)
        A("v_and_b32 v%d, 4, v%d" % (vt, vt))
        A("v_and_b32 v%d, 7, v0" % vu)
        A("v_xor_b32 v%d, v%d, v%d" % (vu, vu, vt))
        A("v_lshlrev_b32 v%d, 4, v%d" % (self.vUT, vu))
        V.rel(vt); V.rel(vu)
        self.vL = V(); self.vL16 = V(); self.vTag = V()
        self.vBase0 = V()
        self.vo = [V() for _ in range(4)]
        self.vc = [V() for _ in range(2)]
        self.vG2 = V(2); self.vG2a = V()
        self.vXD = V(16, 4); self.vDs = V()
        self.vFlag = V()
        self.sRT = S(); self.sK32 = [S() for _ in range(3)]
        A("s_cmp_eq_u32 s%d, 0" % self.sRole)
        A("s_cbranch_scc0 L_att")

    def second_batch(self):
        A = self.A
        A("s_load_dwordx2 s[20:21], s[0:1], 64")
        A("s_load_dwordx2 s[24:25], s[0:1], 72")
        A("s_load_dwordx2 s[28:29], s[0:1], 16")
        A("s_load_dwordx2 s[32:33], s[0:1], 104")
        A("s_load_dwordx4 s[40:43], s[0:1], 32")
        A("s_load_dwordx4 s[44:47], s[0:1], 80")
        A("s_load_dwordx2 s[48:49], s[0:1], 96")

    def next_chunk(self, att):
        A = self.A
        A("s_lshl_b32 s%d, s%d, 7" % (self.sO1, self.sCh))
        if att: A("s_mul_i32 s%d, s%d, %d" % (self.sO2, self.sCh, 64 * 3072))
        A("s_add_u32 s%d, s%d, 1" % (self.sCh, self.sCh))
        A("s_and_b32 s%d, s%d, 7" % (self.sCh, self.sCh))

    def chunk_dmas(self, c, att):
        slot = (c % 3) * (40960 if att else 32768)
        tag = "ch%d" % c
        o1 = "s%d" % self.sO1; o2 = "s%d" % self.sO2
        L = []
        def mk(pre, vo, srd, so, imm):
            def f():
                for p in pre: p()
                self.dma(vo, srd, so, imm, tag)
            return f
        first = [lambda: self.next_chunk(att)]
        W = []
        if att:
            for m in (1, 2, 0):
                for i in range(2):
                    pre = [] if i else [(lambda m=m: self.m0(self.sM2, slot + 16384 + m * 8192))]
                    W.append((pre, self.vw[m][i], self.WA, o2, 1024 * i))
        else:
            for comp in range(2):
                for i in range(2):
                    pre = [] if i else [(lambda comp=comp: self.m0(self.sM, slot + 16384 + comp * 4096))]
                    W.append((pre, self.vb[i], (self.WA, self.WB)[comp], o1, 2048 * i))
        Xl = []
        for i in range(4):
            pre = [] if i & 1 else [(lambda i=i: self.m0(self.sM, slot + (i >> 1) * 4096))]
            Xl.append((pre, self.vx[i], self.X, o1, 2048 * (i & 1)))
        allv = W + Xl
        for n, (pre, vo, srd, so, imm) in enumerate(allv):
            L.append(mk((first if n == 0 else []) + pre, vo, srd, so, imm))
        return L

    def wo_dmas(self):
        L = []
        for n in range(16):
            aa, b = n >> 2, n & 3
            def f(aa=aa, b=b):
                if b == 0: self.m0(self.sMW, L_WO + aa * 4096)
                self.dma(self.vo[b], self.WO, "0" if aa == 0 else "s%d" % self.sK32[aa - 1], 1024 * b, "wo")
            L.append(f)
        return L

    def c_dmas(self, kap):
        L = []
        for cc in range(4):
            for comp in range(2):
                for i in range(2):
                    def f(cc=cc, comp=comp, i=i):
                        if i == 0:
                            if comp == 0: self.A("s_mov_b32 s%d, %d" % (self.sO1, kap * 512 + cc * 128))
                            self.m0(self.sMC, (L_WO if kap else L_C0) + comp * 32768 + cc * 8192)
                        self.dma(self.vc[i], (self.CRE, self.CIM)[comp], "s%d" % self.sO1, 2048 * i, "c%d" % kap)
                    L.append(f)
        return L

    def common_addr(self):
        A, V, S = self.A, self.V, self.S
        t0, t1, t2 = self.t0, self.t1, self.t2
        vt = V(); vu = V()
        A("v_and_b32 v%d, 63, v0" % self.vL)
        A("v_lshlrev_b32 v%d, 4, v%d" % (self.vL16, self.vL))
        A("v_bfe_u32 v%d, v0, 1, 3" % vt)
        A("v_bfe_u32 v%d, v0, 5, 1" % vu)
        A("v_xor_b32 v%d, v%d, v%d" % (vt, vt, vu))
        A("v_and_b32 v%d, 31, v0" % vu)
        A("v_lshlrev_b32 v%d, 7, v%d" % (vu, vu))
        A("v_lshl_add_u32 v%d, v%d, 4, v%d" % (self.vBase0, vt, vu))
        self.ax = [[V() for _ in range(4)] for _ in range(2)]
        A("s_lshr_b32 s%d, s%d, 1" % (t0, self.sW))
        A("s_lshl_b32 s%d, s%d, 13" % (t0, t0))
        A("v_add_u32 v%d, s%d, v%d" % (self.ax[0][0], t0, self.vBase0))
        for sx in range(1, 4): A("v_xor_b32 v%d, %d, v%d" % (self.ax[0][sx], 32 * sx, self.ax[0][0]))
        for sx in range(4): A("v_add_u32 v%d, 0x10000, v%d" % (self.ax[1][sx], self.ax[0][sx]))
        self.sN2 = S()
        A("s_lshl_b32 s%d, s%d, 3" % (t0, self.sRole))
        A("s_add_u32 s%d, s%d, s%d" % (t0, t0, self.sJ))
        A("s_lshl_b32 s%d, s%d, 2" % (t0, t0))
        A("s_add_u32 s%d, s%d, s%d" % (self.sN2, t0, self.sW))
        n2 = self.sN2
        A("s_lshl_b32 s%d, s%d, 7" % (t0, self.sR))
        for bit, w_, sh in ((5, 1, 6), (2, 1, 5), (0, 1, 4), (3, 2, 1), (1, 1, 0)):
            A("s_bfe_u32 s%d, s%d, 0x%x" % (t1, n2, (w_ << 16) | bit))
            if sh: A("s_lshl_b32 s%d, s%d, %d" % (t1, t1, sh))
            A("s_add_u32 s%d, s%d, s%d" % (t0, t0, t1))
        A("s_lshl_b32 s%d, s%d, 10" % (t0, t0))
        A("s_add_u32 s%d, s%d, 8192" % (t1, t0))
        self.gx = V(12, 4)
        A("buffer_load_dwordx4 %s, v%d, %s, s%d offen" % (v(self.gx, 4), self.vL16, self.X, t0)); self.vm.issue("ex")
        A("buffer_load_dwordx4 %s, v%d, %s, s%d offen" % (v(self.gx + 4, 4), self.vL16, self.X, t1)); self.vm.issue("ex")
        A("s_waitcnt lgkmcnt(0)")
        A("s_load_dword s%d, s[16:17], 0" % self.sE)
        A("global_load_dwordx4 %s, v%d, s[48:49]" % (v(self.gx + 8, 4), self.vL16)); self.vm.issue("ex")
        A("v_lshrrev_b32 v%d, 4, v0" % vt)
        A("v_lshl_add_u32 v%d, s2, 4, v%d" % (vt, vt))
        A("v_lshlrev_b32 v%d, 7, v%d" % (vt, vt))
        for srd in (self.WO, self.CRE, self.CIM):
            A("buffer_load_dword v%d, v%d, %s, 0 offen" % (self.vJunk, vt, srd)); self.vm.issue("ex")
        V.rel(vt); V.rel(vu)

    def common_fill(self):
        V, S = self.V, self.S
        F = []
        t0, t1 = self.t2, self.t3
        g = V(4, 4); gx = self.gx; vt = V()
        F.append("s_add_u32 s%d, s%d, 1" % (self.sE, self.sE))
        F.append("s_mul_i32 s%d, s%d, 0x9e3779b1" % (self.sTag, self.sE))
        F.append("v_mov_b32 v%d, s%d" % (self.vTag, self.sTag))
        F.append("v_mov_b32 v%d, 0" % g); F.append("v_mov_b32 v%d, 0" % (g + 2))
        for i in range(4):
            F.append("v_dot2c_f32_bf16 v%d, v%d, v%d" % (g, gx + i, gx + 8 + i))
            F.append("v_dot2c_f32_bf16 v%d, v%d, v%d" % (g + 2, gx + 4 + i, gx + 8 + i))
        F.append("v_mov_b32 v%d, v%d" % (g + 1, self.vTag)); F.append("v_mov_b32 v%d, v%d" % (g + 3, self.vTag))
        F.append("v_cmp_eq_u32 vcc, 63, v%d" % self.vL)
        for md in ("row_shr:1 row_mask:0xf", "row_shr:2 row_mask:0xf", "row_shr:4 row_mask:0xf", "row_shr:8 row_mask:0xf", "row_bcast:15 row_mask:0xa", "row_bcast:31 row_mask:0xc"):
            for q in (g, g + 2):
                F.append("v_add_f32_dpp v%d, v%d, v%d %s bank_mask:0xf" % (q, q, q, md))
            if md.startswith("row_shr:1"):
                F.append("v_mov_b32 v%d, 0x%x" % (vt, HUGE))
            elif md.startswith("row_shr:2"):
                F.append("v_cndmask_b32 v%d, v%d, 0, vcc" % (vt, vt))
            else:
                F.append("s_nop 0")
        for q in (g, g + 2): F.append("v_mul_f32 v%d, 0xbfb8aa3b, v%d" % (q, q))
        for q in (g, g + 2): F.append("v_exp_f32 v%d, v%d" % (q, q))
        for q in (g, g + 2): F.append("v_add_f32 v%d, 1.0, v%d" % (q, q))
        for q in (g, g + 2): F.append("v_rcp_f32 v%d, v%d" % (q, q))
        F.append("s_lshl_b32 s%d, s%d, 6" % (t0, self.sR))
        F.append("s_add_u32 s%d, s%d, s%d" % (t0, t0, self.sN2))
        for q in (g, g + 2): F.append("v_cvt_pk_bf16_f32 v%d, 0, v%d" % (q, q))
        F.append("s_lshl_b32 s%d, s%d, 4" % (t0, t0))
        F.append("s_add_u32 s%d, s%d, %d" % (t0, t0, WS_G))
        def st():
            self.A("buffer_store_dwordx4 %s, v%d, %s, s%d offen sc1" % (v(g, 4), vt, self.WS, t0)); self.vm.issue("gst")
        F.append(st)
        self.sMW = S(); self.sMC = S()
        vu = V()
        F.append("s_lshl_b32 s%d, s%d, 14" % (self.sMW, self.sW))
        F.append("v_bfe_u32 v%d, v0, 3, 3" % vu)
        F.append("v_lshl_add_u32 v%d, s%d, 7, v%d" % (vu, self.sW, vu))
        F.append("v_lshl_add_u32 v%d, v%d, 10, v%d" % (vu, vu, self.vUT))
        F.append("v_lshl_add_u32 v%d, s%d, 7, v%d" % (self.vo[0], self.sCT, vu))
        for b in range(1, 4): F.append("v_add_u32 v%d, %d, v%d" % (self.vo[b], 7168 * b, self.vo[0]))
        for i in range(3): F.append("s_mov_b32 s%d, %d" % (self.sK32[i], 32768 * (i + 1)))
        F.append("s_lshr_b32 s%d, s%d, 1" % (t1, self.sW))
        F.append("s_lshl_b32 s%d, s%d, 12" % (t1, t1))
        F.append("s_and_b32 s%d, s%d, 0x400" % (self.sMC, self.sM))
        F.append("s_add_u32 s%d, s%d, s%d" % (self.sMC, self.sMC, t1))
        F.append("v_bfe_u32 v%d, v0, 3, 4" % vu)
        F.append("v_lshrrev_b32 v%d, 7, v0" % self.vc[1])
        F.append("v_lshl_or_b32 v%d, v%d, 5, v%d" % (vu, self.vc[1], vu))
        F.append("v_lshl_add_u32 v%d, s%d, 6, v%d" % (vu, self.sCT, vu))
        F.append("v_lshl_add_u32 v%d, v%d, 10, v%d" % (self.vc[0], vu, self.vUA))
        F.append("v_add_u32 v%d, %d, v%d" % (self.vc[1], 16384 - 2048, self.vc[0]))
        self.vG1 = V(4, 4); self.vG1a = V()
        F.append("v_and_b32 v%d, 31, v0" % vu)
        F.append("s_lshl_b32 s%d, s%d, 1" % (t1, self.sR))
        F.append("s_add_u32 s%d, s%d, s%d" % (t1, t1, self.sRH))
        F.append("v_lshl_add_u32 v%d, s%d, 5, v%d" % (self.vG2a, t1, vu))
        F.append("v_lshlrev_b32 v%d, 4, v%d" % (self.vG2a, self.vG2a))
        F.append("s_lshl_b32 s%d, s%d, 1" % (self.sRT, t1))
        F.append("s_and_b32 s%d, s%d, 1" % (t1, self.sW))
        F.append("s_add_u32 s%d, s%d, s%d" % (self.sRT, self.sRT, t1))
        F.append("s_lshl_b32 s%d, s%d, 3" % (t1, t1))
        F.append("s_add_u32 s%d, s%d, %d" % (t1, t1, WS_G))
        F.append("v_add_u32 v%d, s%d, v%d" % (self.vG2a, t1, self.vG2a))
        self.sRW = S()
        F.append("s_lshr_b32 s%d, s%d, 1" % (t1, self.sW))
        F.append("s_lshl_b32 s%d, s%d, 1" % (self.sRW, self.sR))
        F.append("s_add_u32 s%d, s%d, s%d" % (self.sRW, self.sRW, t1))
        F.append("v_lshl_add_u32 v%d, s%d, 5, v%d" % (self.vG1a, self.sRW, vu))
        F.append("v_lshlrev_b32 v%d, 4, v%d" % (self.vG1a, self.vG1a))
        F.append("v_add_u32 v%d, %d, v%d" % (self.vG1a, WS_G, self.vG1a))
        F.append("s_lshl_b32 s%d, s%d, 3" % (t1, self.sRW))
        F.append("s_add_u32 s%d, s%d, s%d" % (t1, t1, self.sJ))
        F.append("s_lshl_b32 s%d, s%d, 8" % (t1, t1))
        F.append("v_bfe_u32 v%d, v0, 6, 1" % vu)
        F.append("v_lshl_add_u32 v%d, v%d, 7, s%d" % (self.vFlag, vu, t1))
        F.append("s_lshl_b32 s%d, s%d, 16" % (t1, self.sRole))
        F.append("s_add_u32 s%d, s%d, %d" % (t1, t1, WS_FH))
        F.append("v_add_u32 v%d, s%d, v%d" % (self.vFlag, t1, self.vFlag))
        def rel():
            V.rel(g, 4); V.rel(vt); V.rel(vu); V.rel(gx, 12)
        self._rel_fill = rel
        return F

    def g_loads(self):
        self.A("buffer_load_dwordx4 %s, v%d, %s, 0 offen sc1" % (v(self.vG1, 4), self.vG1a, self.WS)); self.vm.issue("g")
        self.A("buffer_load_dwordx2 %s, v%d, %s, 0 offen sc1" % (v(self.vG2, 2), self.vG2a, self.WS)); self.vm.issue("g")

    def g_check(self, name):
        A, V = self.A, self.V
        vt = V()
        self.vm.wait("g")
        A.label("L_gchk_" + name)
        A("v_xor_b32 v%d, v%d, v%d" % (vt, self.vG1 + 1, self.vTag))
        A("v_bitop3_b32 v%d, v%d, v%d, v%d bitop3:0xf6" % (vt, vt, self.vG1 + 3, self.vTag))
        A("v_bitop3_b32 v%d, v%d, v%d, v%d bitop3:0xf6" % (vt, vt, self.vG2 + 1, self.vTag))
        A("v_cmp_ne_u32 vcc, 0, v%d" % vt)
        A("s_sub_u32 s%d, s%d, 1" % (self.sCap, self.sCap))
        A("s_cselect_b64 vcc, 0, vcc")
        A("s_cselect_b32 s%d, 0, s%d" % (self.sCap, self.sCap))
        A("s_cmp_eq_u64 vcc, 0")
        A("s_cbranch_scc1 L_gok_" + name)
        q = list(self.vm.q)
        self.g_loads(); A("s_waitcnt vmcnt(0)")
        self.vm.q = q
        A("s_branch L_gchk_" + name)
        A.label("L_gok_" + name)
        V.rel(vt)

    def p1_loop(self, att, reads, mfmas, acc_init, nfill):
        A = self.A
        wo = self.wo_dmas()
        started = [False]
        def run_step(buf, rd, dm, first):
            ms = mfmas(buf, first)
            n = len(ms)
            rd = list(rd); dm = list(dm)
            per = -(-len(rd) // 2) if not att else 3
            for k, (f, tags) in enumerate(ms):
                for t in tags: self.lg.wait(t)
                f()
                for _ in range(per):
                    if rd:
                        t, tg = rd.pop(0); A(t); self.lg.issue(tg)
                left = n - k
                if dm and (len(dm) >= left or (not rd and k >= n - 2 * len(dm) and (n - k) % 2 == 0) ):
                    dm.pop(0)()
                elif started[0]:
                    self.pop(nfill)
            assert not rd
            for f in dm: f()
        for c in range(8):
            if c + 2 < 8: dm = self.chunk_dmas(c + 2, att)
            else: dm = wo[(c - 6) * 8:(c - 5) * 8]
            if c == 7: dm = dm + [self.g_loads]
            n1 = self.vm.need("ch%d" % c)
            A("s_waitcnt vmcnt(%d) lgkmcnt(0)" % n1); self.lg.zero(False)
            if c in (0, 1, 2, 4, 7): self.stamp({0: 1, 1: 2, 2: 3, 4: 4, 7: 5}[c])
            A("s_barrier")
            if c == 1: started[0] = True
            if c == 6:
                self.pop(10 ** 6)
            q = [dm[(len(dm) * i) // 4:(len(dm) * (i + 1)) // 4] for i in range(4)]
            for t, tg in reads(c, 0, 0):
                A(t); self.lg.issue(tg)
            if c > 0: run_step(1, [], q[0], False)
            else:
                for f in q[0]: f()
            for sx in range(3):
                run_step(sx & 1, reads(c, sx + 1, (sx + 1) & 1), q[sx + 1], c == 0 and sx == 0)
        run_step(1, [], [], False)

    def lds_off(self, total):
        return (total >> 16, total & 0xffff)

    def w2_block(self):
        A, V = self.A, self.V
        t0, t1 = self.t0, self.t1
        aw = [V(), V()]; vt = V(); vu = V()
        self.vm.wait("wo")
        A("s_barrier")
        A("v_bfe_u32 v%d, v0, 2, 2" % vt)
        A("v_bfe_u32 v%d, v0, 5, 1" % vu)
        A("v_lshl_add_u32 v%d, v%d, 2, v%d" % (vt, vu, vt))
        A("v_lshlrev_b32 v%d, 7, v%d" % (vt, vt))
        A("v_and_b32 v%d, 3, v0" % vu)
        A("v_lshl_add_u32 v%d, v%d, 3, v%d" % (vt, vu, vt))
        A("v_bfe_u32 v%d, v0, 4, 1" % vu)
        A("v_lshl_add_u32 v%d, v%d, 5, v%d" % (vt, vu, vt))
        A("v_bfe_u32 v%d, v0, 3, 1" % vu)
        A("v_lshl_add_u32 v%d, v%d, 6, v%d" % (vt, vu, vt))
        A("s_lshr_b32 s%d, s%d, 1" % (t0, self.sW))
        A("s_mul_i32 s%d, s%d, %d" % (t1, t0, 32768 + 64))
        A("v_xor_b32 v%d, s%d, v%d" % (vt, t1, vt))
        A("v_add_u32 v%d, %d, v%d" % (aw[0], L_WO, vt))
        A("v_xor_b32 v%d, 64, v%d" % (aw[1], aw[0]))
        for n in range(16):
            for lt in range(2):
                for h in range(2):
                    A("ds_read_b64_tr_b16 %s, v%d offset:%d" % (a(8 * n + 4 * lt + 2 * h, 2), aw[lt], n * 2048 + h * 1024))
        A("s_lshr_b32 s%d, s%d, 1" % (t1, self.sRT))
        A("s_lshl_b32 s%d, s%d, 6" % (t1, t1))
        A("v_and_b32 v%d, 32, v0" % vt)
        A("v_bfe_u32 v%d, v0, 6, 1" % vu)
        A("v_lshl_add_u32 v%d, v%d, 3, v%d" % (vt, vu, vt))
        A("v_add_u32 v%d, s%d, v%d" % (vt, t1, vt))
        A("s_lshl_b32 s%d, s%d, 1" % (t1, self.sCT))
        A("s_add_u32 s%d, s%d, s%d" % (t1, t1, t0))
        A("v_and_b32 v%d, 31, v0" % vu)
        A("v_lshl_add_u32 v%d, s%d, 5, v%d" % (vu, t1, vu))
        A("v_lshlrev_b32 v%d, 1, v%d" % (vu, vu))
        A("v_lshl_add_u32 v%d, v%d, 10, v%d" % (self.vXa, vt, vu))
        A("s_waitcnt lgkmcnt(0)"); self.lg.zero(False)
        A("s_barrier")
        self.emit(self.c_dmas(1))
        A("global_load_ushort v%d, v%d, s[46:47]" % (self.vDs, vu)); self.vm.issue("xd")
        A("s_mov_b32 s%d, 4096" % t0); A("s_mov_b32 s%d, 16384" % t1); A("s_mov_b32 s%d, 20480" % self.t2)
        for i in range(16):
            so = {(0, 0): "0", (0, 1): "s%d" % t0, (1, 0): "s%d" % t1, (1, 1): "s%d" % self.t2}[(i & 1, i >> 3)]
            imm = ((i >> 1) & 3) * 1024
            A("buffer_load_ushort v%d, v%d, %s, %s offen%s" % (self.vXD + i, self.vXa, self.X, so, " offset:%d" % imm if imm else "")); self.vm.issue("xd")
        for r_ in aw + [vt, vu]: V.rel(r_)

    def ssm(self):
        A, V, S = self.A, self.V, self.S
        t0, t1 = self.t0, self.t1
        vt = V(); vu = V()
        self.vb = [V(), V()]
        A("v_bfe_u32 v%d, v0, 3, 2" % vt)
        A("v_bfe_u32 v%d, v0, 6, 1" % vu)
        A("v_lshl_or_b32 v%d, v%d, 2, v%d" % (vt, vu, vt))
        A("v_bfe_u32 v%d, v0, 5, 1" % vu)
        A("v_lshl_or_b32 v%d, v%d, 3, v%d" % (vt, vu, vt))
        A("v_lshrrev_b32 v%d, 7, v0" % vu)
        A("v_lshl_or_b32 v%d, v%d, 5, v%d" % (vt, vu, vt))
        A("v_lshl_add_u32 v%d, s%d, 6, v%d" % (vt, self.sJ, vt))
        A("v_lshl_add_u32 v%d, v%d, 10, v%d" % (self.vb[0], vt, self.vUA))
        A("v_add_u32 v%d, %d, v%d" % (self.vb[1], 16384 - 2048, self.vb[0]))
        A("s_waitcnt lgkmcnt(0)")
        if self.o["stamps"]: A("v_writelane_b32 v%d, s%d, 0" % (self.vStamp, self.sT))
        self.second_batch()
        self.emit(self.chunk_dmas(0, False))
        self.common_addr()
        pre, pim, pdt = V(), V(), V()
        A("v_and_b32 v%d, 0x13, v0" % vt)
        A("v_bfe_u32 v%d, v0, 2, 1" % vu)
        A("v_lshl_or_b32 v%d, v%d, 3, v%d" % (vt, vu, vt))
        A("v_bfe_u32 v%d, v0, 3, 1" % vu)
        A("v_lshl_or_b32 v%d, v%d, 2, v%d" % (vt, vu, vt))
        A("v_bfe_u32 v%d, v0, 6, 1" % vu)
        A("v_lshl_or_b32 v%d, v%d, 5, v%d" % (vt, vu, vt))
        A("v_lshl_add_u32 v%d, s%d, 6, v%d" % (vt, self.sJ, vt))
        A("v_lshlrev_b32 v%d, 1, v%d" % (vt, vt))
        A("global_load_ushort v%d, v%d, s[40:41]" % (pre, vt)); self.vm.issue("ex")
        A("global_load_ushort v%d, v%d, s[42:43]" % (pim, vt)); self.vm.issue("ex")
        A("global_load_ushort v%d, v%d, s[44:45]" % (pdt, vt)); self.vm.issue("ex")
        ab = [[V() for _ in range(4)] for _ in range(2)]
        A("s_and_b32 s%d, s%d, 1" % (t0, self.sW))
        A("s_lshl_b32 s%d, s%d, 13" % (t0, t0))
        A("v_add_u32 v%d, s%d, v%d" % (ab[0][0], t0, self.vBase0))
        for sx in range(1, 4): A("v_xor_b32 v%d, %d, v%d" % (ab[0][sx], 32 * sx, ab[0][0]))
        for sx in range(4): A("v_add_u32 v%d, 0x10000, v%d" % (ab[1][sx], ab[0][sx]))
        self.emit(self.chunk_dmas(1, False))
        F = self.common_fill()
        lam = V(2); cf = V(2); mu = V(2); l32 = V(2); l64 = V(2); L1 = V(2); L2 = V(4, 2); ta = V(2); tb = V(2)
        for q in (pre, pim, pdt): F.append("v_lshlrev_b32 v%d, 16, v%d" % (q, q))
        F.append("v_mul_f32 v%d, %s, v%d" % (pdt, LOG2E, pdt))
        F.append("v_exp_f32 v%d, v%d" % (pdt, pdt))
        F.append("v_mul_f32 v%d, v%d, v%d" % (tb, pre, pre))
        F.append("v_cvt_pk_bf16_f32 v%d, 0, v%d" % (pdt, pdt))
        F.append("v_fmac_f32 v%d, v%d, v%d" % (tb, pim, pim))
        F.append("v_mul_f32 v%d, v%d, v%d" % (ta, pdt, pre))
        F.append("v_mul_f32 v%d, v%d, v%d" % (ta + 1, pdt, pim))
        F.append("v_mul_f32 v%d, %s, v%d" % (ta, LOG2E, ta))
        F.append("v_mul_f32 v%d, 0.15915494, v%d" % (ta + 1, ta + 1))
        F.append("v_exp_f32 v%d, v%d" % (ta, ta))
        F.append("v_rndne_f32 v%d, v%d" % (tb + 1, ta + 1))
        F.append("v_sub_f32 v%d, v%d, v%d" % (ta + 1, ta + 1, tb + 1))
        F.append("v_rcp_f32 v%d, v%d" % (tb, tb))
        F.append("v_cos_f32 v%d, v%d" % (lam, ta + 1))
        F.append("v_sin_f32 v%d, v%d" % (lam + 1, ta + 1))
        F.append("v_add_f32 v%d, v%d, v%d" % (tb, tb, tb))
        F.append("v_mul_f32 v%d, v%d, v%d" % (lam, lam, ta))
        F.append("v_mul_f32 v%d, v%d, v%d" % (lam + 1, lam + 1, ta))
        F.append("v_add_f32 v%d, -1.0, v%d" % (ta, lam))
        F.append("v_mul_f32 v%d, v%d, v%d" % (cf, ta, pre))
        F.append("v_mul_f32 v%d, v%d, v%d" % (cf + 1, lam + 1, pre))
        F.append("v_fmac_f32 v%d, v%d, v%d" % (cf, lam + 1, pim))
        F.append("v_fma_f32 v%d, -v%d, v%d, v%d" % (cf + 1, ta, pim, cf + 1))
        F.append("v_mul_f32 v%d, v%d, v%d" % (cf, cf, tb))
        F.append("v_mul_f32 v%d, v%d, v%d" % (cf + 1, cf + 1, tb))
        chain = [lam, ta, tb, ta, mu, l32, l64, L1, L2]
        for x_, y_ in zip(chain, chain[1:]):
            F.append("v_mul_f32 v%d, v%d, v%d" % (y_, x_, x_))
            F.append("v_mul_f32 v%d, v%d, v%d" % (y_ + 1, x_, x_ + 1))
            F.append("v_fma_f32 v%d, -v%d, v%d, v%d" % (y_, x_ + 1, x_ + 1, y_))
            F.append("v_add_f32 v%d, v%d, v%d" % (y_ + 1, y_ + 1, y_ + 1))
        vEs = V(); vXa = V(); ea = [V() for _ in range(8)]; et = [V() for _ in range(8)]
        t2, t3 = self.t2, self.t3
        F.append("s_lshl_b32 s%d, s%d, 1" % (t2, self.sJ))
        F.append("s_and_b32 s%d, s%d, 1" % (t3, self.sW))
        F.append("s_add_u32 s%d, s%d, s%d" % (t2, t2, t3))
        F.append("s_lshl_b32 s%d, s%d, 12" % (t2, t2))
        F.append("s_add_u32 s%d, s%d, %d" % (t2, t2, WS_E))
        F.append(lambda: (A("s_add_u32 s36, s16, s%d" % t2), A("s_addc_u32 s37, s17, 0")))
        F.append("v_and_b32 v%d, 31, v0" % vt)
        F.append("v_lshlrev_b32 v%d, 3, v%d" % (vt, vt))
        F.append("v_lshl_add_u32 v%d, s%d, 8, v%d" % (vEs, self.sR, vt))
        F.append("v_lshl_add_u32 v%d, s%d, 8, v%d" % (vXa, self.sW, vt))
        F.append("v_add_u32 v%d, %d, v%d" % (vXa, L_MISC, vXa))
        F.append("v_bfe_u32 v%d, v0, 5, 1" % vu)
        F.append("v_lshlrev_b32 v%d, 8, v%d" % (ea[0], vu))
        F.append("v_sub_u32 v%d, v%d, v%d" % (ea[0], vEs, ea[0]))
        F.append("v_subrev_u32 v%d, 256, v%d" % (ea[0], ea[0]))
        for i in range(1, 8): F.append("v_subrev_u32 v%d, %d, v%d" % (ea[i], 512 * i, ea[0]))
        for i in range(8):
            F.append("v_ashrrev_i32 v%d, 31, v%d" % (et[i], ea[i]))
            F.append("v_bfi_b32 v%d, v%d, 0, v%d" % (et[i], et[i], self.vTag))
        F.append("v_and_b32 v%d, 0xa0, v0" % vt)
        F.append("v_cmp_eq_u32 vcc, 0x80, v%d" % vt)
        F.append("v_mov_b32 v%d, 0x%x" % (vt, HUGE))
        F.append("s_nop 0")
        F.append("v_cndmask_b32 v%d, v%d, v%d, vcc" % (vEs, vt, vEs))
        self.fill = F
        U = [[V(16, 4), V(16, 4)], [V(16, 4), V(16, 4)]]
        fr = [V(16, 4), V(16, 4)]
        def reads(c, sx, buf):
            slot = (c % 3) * 32768
            out = []
            for k, (fam, off) in enumerate(((self.ax, 0), (ab, 16384), (ab, 16384 + 4096), (self.ax, 4096))):
                hi, lo = self.lds_off(slot + off)
                out.append(("ds_read_b128 %s, v%d offset:%d" % (v(fr[buf] + 4 * k, 4), fam[hi][sx], lo), "f%d_%d" % (buf, k)))
            return out
        def mfmas(buf, first):
            out = []
            for (tau, comp) in ((0, 0), (0, 1), (1, 0), (1, 1)):
                ka = 0 if tau == 0 else 3; kb = 1 + comp
                out.append(((lambda tau=tau, comp=comp, ka=ka, kb=kb: self.mfma(U[comp][tau], v(fr[buf] + 4 * ka, 4), v(fr[buf] + 4 * kb, 4), "0" if first else None)),
                            ["f%d_%d" % (buf, max(ka, kb))]))
            return out
        self.p1_loop(False, reads, mfmas, None, 4)
        self._rel_fill()
        self.stamp(6)
        for q in fr: V.rel(q, 16)
        for fam in (self.ax, ab):
            for row in fam:
                for q in row: V.rel(q)
        for q in self.vb + self.vx + [pre, pim, pdt]: V.rel(q)
        pr = lambda comp, m: v(U[comp][m >> 3] + 2 * (m & 7), 2)
        E = [V(4, 2), V(4, 2)]
        SR = " op_sel_hi:[0,1,1]"; SI = " op_sel:[1,0,0]"; NG = " neg_lo:[1,0,0] neg_hi:[1,0,0]"
        L = v(lam, 2)
        cur = (pr(0, 0), pr(1, 0))
        for m in range(1, 16):
            d = E[m & 1]; dr, di = v(d, 2), v(d + 2, 2)
            A("v_pk_fma_f32 %s, %s, %s, %s%s" % (dr, L, cur[0], pr(0, m), SR))
            A("v_pk_fma_f32 %s, %s, %s, %s%s" % (di, L, cur[1], pr(1, m), SR))
            A("v_pk_fma_f32 %s, %s, %s, %s%s%s" % (dr, L, cur[1], dr, SI, NG))
            A("v_pk_fma_f32 %s, %s, %s, %s%s" % (di, L, cur[0], di, SI))
            cur = (dr, di)
        Ev = E[1]
        F0 = V(2); F1 = V(2); G = V(2); G0 = V(2); e = V(2)
        o = []
        self.cmul(o, F0, F0 + 1, mu, mu + 1, Ev, Ev + 2, Ev + 1, Ev + 3)
        o.append("v_mov_b32 v%d, v%d" % (F1, F0)); o.append("v_mov_b32 v%d, v%d" % (F1 + 1, F0 + 1))
        o.append("v_permlane32_swap_b32 v%d, v%d" % (F0, F1)); o.append("v_permlane32_swap_b32 v%d, v%d" % (F0 + 1, F1 + 1))
        self.cmul(o, G, G + 1, l32, l32 + 1, F0, F0 + 1, F1, F1 + 1)
        self.emit(o)
        A("ds_write_b64 v%d, %s" % (vXa, v(G, 2)))
        A("v_and_b32 v%d, 0xfffffdff, v%d" % (vXa, vXa))
        A("s_movk_i32 s%d, 0xff" % t0)
        A("s_waitcnt lgkmcnt(0)")
        A("s_barrier")
        A("ds_read_b64 %s, v%d" % (v(G0, 2), vXa))
        A("s_waitcnt lgkmcnt(0)"); self.lg.zero(False)
        o = []
        self.cmul(o, e, e + 1, l64, l64 + 1, G0, G0 + 1, G, G + 1)
        self.emit(o)
        A("v_bfi_b32 v%d, s%d, v%d, v%d" % (e, t0, self.vTag, e))
        A("v_bfi_b32 v%d, s%d, v%d, v%d" % (e + 1, t0, self.vTag, e + 1))
        A("buffer_store_dwordx2 %s, v%d, %s, 0 offen sc1" % (v(e, 2), vEs, self.ER)); self.vm.issue("est")
        self.stamp(7)
        self.fill = self.c_dmas(0)
        W = []
        al = V(4, 2); be = V(4, 2); x1 = V(2); x2 = V(2); x3 = V(2)
        hm = self.sMk
        W.append("s_mov_b32 s%d, 0" % hm); W.append("s_mov_b32 s%d, -1" % (hm + 1))
        W.append("v_cmp_le_u32 vcc, 0x80, v0")
        for (d, src, one) in ((x1, l32, 1), (F0, F0, 0), (L1, L1, 1)):
            W.append("v_cndmask_b32 v%d, %s, v%d, s[%d:%d]" % (d, "1.0" if one else "0", src, hm, hm + 1))
            W.append("v_cndmask_b32 v%d, 0, v%d, s[%d:%d]" % (d + 1, src + 1, hm, hm + 1))
        for (d, src, one) in ((x2, l64, 1), (G0, G0, 0)):
            W.append("v_cndmask_b32 v%d, %s, v%d, vcc" % (d, "1.0" if one else "0", src))
            W.append("v_cndmask_b32 v%d, 0, v%d, vcc" % (d + 1, src + 1))
        self.cmul(W, x3, x3 + 1, x1, x1 + 1, x2, x2 + 1)
        self.cmul(W, al, al + 2, cf, cf + 1, x3, x3 + 1)
        self.cmul(W, al + 1, al + 3, mu, mu + 1, al, al + 2)
        self.cmul(W, x3, x3 + 1, x1, x1 + 1, G0, G0 + 1, F0, F0 + 1)
        self.cmul(W, be, be + 2, cf, cf + 1, x3, x3 + 1)
        self.cmul(W, x2, x2 + 1, mu, mu + 1, x3, x3 + 1, Ev, Ev + 2)
        self.cmul(W, be + 1, be + 3, cf, cf + 1, x2, x2 + 1)
        W.append("v_sub_f32 v%d, 0, v%d" % (L2 + 2, L2 + 1)); W.append("v_mov_b32 v%d, v%d" % (L2 + 3, L2 + 1))
        C = v(cf, 2); T = v(x1, 2)
        for m in range(16):
            W.append("v_pk_mul_f32 %s, %s, %s op_sel:[1,0]" % (T, C, pr(0, m)))
            W.append("v_pk_mul_f32 %s, %s, %s op_sel_hi:[0,1]" % (pr(0, m), C, pr(0, m)))
            W.append("v_pk_fma_f32 %s, %s, %s, %s%s%s" % (pr(0, m), C, pr(1, m), pr(0, m), SI, NG))
            W.append("v_pk_fma_f32 %s, %s, %s, %s%s" % (pr(1, m), C, pr(1, m), T, SR))
        for n, x_ in enumerate(W):
            A(x_)
            if n % 6 == 5: self.pop(1)
        self.pop(100)
        self.g_check("ssm")
        Sm = V(16, 4); og = V(2); sel = V()
        for tau in range(2):
            A("v_sub_f32 v%d, 1.0, v%d" % (og + tau, self.vG1 + 2 * tau))
            A("v_cvt_pk_bf16_f32 v%d, v%d, v%d" % (og + tau, og + tau, og + tau))
        A("v_and_b32 v%d, 1, v0" % vt)
        A("v_cmp_eq_u32 vcc, 0, v%d" % vt)
        A("v_mov_b32 v%d, 0xffff0000" % vt); A("v_mov_b32 v%d, 0xffff" % vu)
        A("v_cndmask_b32 v%d, v%d, v%d, vcc" % (vt, vt, vu))
        for tau in range(2): A("v_and_b32 v%d, v%d, v%d" % (og + tau, og + tau, vt))
        A("v_bfe_u32 v%d, v0, 3, 2" % sel)
        A("v_bfe_u32 v%d, v0, 1, 1" % vt)
        A("v_lshl_or_b32 v%d, v%d, 1, v%d" % (sel, sel, vt))
        A("v_lshrrev_b32 v%d, 3, v0" % vt)
        A("v_xor_b32 v%d, v0, v%d" % (vt, vt))
        A("v_and_b32 v%d, 4, v%d" % (vt, vt))
        A("v_lshl_or_b32 v%d, v%d, 1, v%d" % (sel, vt, sel))
        for k in range(8):
            A("v_cmp_eq_u32 vcc, %d, v%d" % (k, sel))
            for tau in range(2): A("v_cndmask_b32 v%d, 0, v%d, vcc" % (Sm + 8 * tau + k, og + tau))
        sH = [S() for _ in range(4)]
        A("s_mul_i32 s%d, s%d, %d" % (t0, self.sRW, 2 * RT_STRIDE))
        A("s_lshr_b32 s%d, s%d, 2" % (t1, self.sJ)); A("s_lshl_b32 s%d, s%d, 15" % (t1, t1)); A("s_add_u32 s%d, s%d, s%d" % (t0, t0, t1))
        A("s_and_b32 s%d, s%d, 3" % (t1, self.sJ)); A("s_lshl_b32 s%d, s%d, 12" % (t1, t1)); A("s_add_u32 s%d, s%d, s%d" % (t0, t0, t1))
        A("s_and_b32 s%d, s%d, 1" % (t1, self.sW)); A("s_lshl_b32 s%d, s%d, 11" % (t1, t1)); A("s_add_u32 s%d, s%d, s%d" % (t0, t0, t1))
        for tau in range(2):
            for comp in range(2):
                A("s_add_u32 s%d, s%d, %d" % (sH[2 * tau + comp], t0, WS_A + tau * RT_STRIDE + comp * 16384))
        if self.o["ssm_early"]: self.w2_block()
        self.stamp(8)
        er = V(16, 2)
        A.label("L_epoll")
        for i in range(8):
            A("buffer_load_dwordx2 %s, v%d, %s, 0 offen sc1" % (v(er + 2 * i, 2), ea[i], self.ER))
        for i in range(8):
            A("s_waitcnt vmcnt(%d)" % (7 - i))
            if i == 0: A("v_xor_b32 v%d, v%d, v%d" % (vt, er, et[0]))
            else: A("v_bitop3_b32 v%d, v%d, v%d, v%d bitop3:0xf6" % (vt, vt, er + 2 * i, et[i]))
            A("v_bitop3_b32 v%d, v%d, v%d, v%d bitop3:0xf6" % (vt, vt, er + 2 * i + 1, et[i]))
        self.vm.zero(False)
        A("v_and_b32 v%d, 0xff, v%d" % (vt, vt))
        A("v_cmp_ne_u32 vcc, 0, v%d" % vt)
        self.poll_tail("L_epoll")
        self.stamp(9)
        for i in range(6, -1, -1):
            d = v(er + 2 * i, 2); p_ = v(er + 2 * i + 2, 2)
            A("v_pk_fma_f32 %s, %s, %s, %s op_sel_hi:[0,1,1]" % (d, v(L2, 2), p_, d))
            A("v_pk_fma_f32 %s, %s, %s, %s op_sel:[0,1,0] op_sel_hi:[1,0,1]" % (d, v(L2 + 2, 2), p_, d))
        o = []
        self.cmul(o, x1, x1 + 1, L1, L1 + 1, er, er + 1)
        o.append("v_mov_b32 v%d, v%d" % (x2, x1)); o.append("v_mov_b32 v%d, v%d" % (x2 + 1, x1 + 1))
        o.append("v_permlane32_swap_b32 v%d, v%d" % (x1, x2)); o.append("v_permlane32_swap_b32 v%d, v%d" % (x1 + 1, x2 + 1))
        o.append("v_pk_add_f32 %s, %s, %s" % (v(x1, 2), v(x1, 2), v(x2, 2)))
        c_ = v(x1, 2); br, bi, ar_, ai_ = v(be, 2), v(be + 2, 2), v(al, 2), v(al + 2, 2)
        o.append("v_pk_fma_f32 %s, %s, %s, %s%s" % (br, c_, ar_, br, SR))
        o.append("v_pk_fma_f32 %s, %s, %s, %s%s" % (bi, c_, ai_, bi, SR))
        o.append("v_pk_fma_f32 %s, %s, %s, %s%s%s" % (br, c_, ai_, br, SI, NG))
        o.append("v_pk_fma_f32 %s, %s, %s, %s%s" % (bi, c_, ar_, bi, SI))
        self.emit(o)
        V.rel(er, 16)
        for q in ea + et + [vEs, vXa, sel]: V.rel(q)
        for q in (F0, F1, G, G0, e, mu, l32, l64, L1, ta, tb, cf, x1, x2, x3, og): V.rel(q, 2)
        for q in (E[0], E[1], L2, al): V.rel(q, 4)
        D = [V(16, 4), V(16, 4)]
        P = [[V(8, 4), V(8, 4)], [V(8, 4), V(8, 4)]]
        cur = (br, bi)
        def finish(tau, dsts):
            out = []
            for comp in range(2):
                q = P[comp][tau]
                for k in range(8):
                    out.append("v_cvt_pk_bf16_f32 v%d, v%d, v%d" % (q + k, dsts[comp] + 2 * k, dsts[comp] + 2 * k + 1))
                    if k & 3 == 3:
                        def st(q=q, k=k, comp=comp):
                            A("buffer_store_dwordx4 %s, v%d, %s, s%d offen%s sc1" % (v(q + k - 3, 4), self.vL16, self.WS, sH[2 * tau + comp], " offset:1024" if k == 7 else ""))
                            self.vm.issue("ast")
                        out.append(st)
            return out
        for m in range(16):
            tau, k = m >> 3, m & 7
            dr, di = pr(0, m), pr(1, m)
            A("v_pk_fma_f32 %s, %s, %s, %s%s" % (dr, L, cur[0], dr, SR))
            A("v_pk_fma_f32 %s, %s, %s, %s%s" % (di, L, cur[1], di, SR))
            A("v_pk_fma_f32 %s, %s, %s, %s%s%s" % (dr, L, cur[1], dr, SI, NG))
            A("v_pk_fma_f32 %s, %s, %s, %s%s" % (di, L, cur[0], di, SI))
            cur = (dr, di)
            b0 = U[0][tau] + 2 * k; b1 = U[1][tau] + 2 * k
            A("v_cvt_pk_bf16_f32 v%d, v%d, v%d" % (P[0][tau] + k, b0, b0 + 1))
            A("v_cvt_pk_bf16_f32 v%d, -v%d, -v%d" % (P[1][tau] + k, b1, b1 + 1))
            if k & 3 == 3:
                kk = k >> 2
                dst = D if tau == 0 else [U[0][0], U[1][0]]
                for comp in range(2):
                    self.mfma(dst[comp], v(P[comp][tau] + 4 * kk, 4), v(Sm + 8 * tau + 4 * kk, 4), "0" if kk == 0 else None)
        self.emit(finish(0, D))
        self.emit(finish(1, [U[0][0], U[1][0]]))
        self.stamp(10)
        if not self.o["ssm_early"]: self.w2_block()

    def att(self):
        A, V, S = self.A, self.V, self.S
        t0, t1 = self.t0, self.t1
        vt = V(); vu = V()
        self.vw = [[V(), V()] for _ in range(3)]
        self.sM2 = S()
        A("v_bfe_u32 v%d, v0, 3, 3" % vt)
        A("v_lshrrev_b32 v%d, 6, v0" % vu)
        A("v_lshl_add_u32 v%d, v%d, 4, v%d" % (vt, vu, vt))
        A("v_mul_u32_u24 v%d, 3072, v%d" % (vt, vt))
        A("v_lshl_add_u32 v%d, s%d, 7, v%d" % (vt, self.sJ, vt))
        A("v_add_u32 v%d, v%d, v%d" % (self.vw[0][0], vt, self.vUT))
        for m in range(3):
            for i in range(2):
                if m or i: A("v_add_u32 v%d, %d, v%d" % (self.vw[m][i], m * 1024 + i * (8 * 3072 - 1024), self.vw[0][0]))
        A("s_lshl_b32 s%d, s%d, 11" % (self.sM2, self.sW))
        A("s_waitcnt lgkmcnt(0)")
        if self.o["stamps"]: A("v_writelane_b32 v%d, s%d, 0" % (self.vStamp, self.sT))
        self.second_batch()
        self.emit(self.chunk_dmas(0, True))
        self.common_addr()
        aw = [V(), V()]
        A("v_bfe_u32 v%d, v0, 2, 2" % vt)
        A("v_bfe_u32 v%d, v0, 5, 1" % vu)
        A("v_lshl_add_u32 v%d, v%d, 3, v%d" % (vt, vu, vt))
        A("v_lshlrev_b32 v%d, 7, v%d" % (vt, vt))
        A("v_and_b32 v%d, 3, v0" % vu)
        A("v_lshl_add_u32 v%d, v%d, 3, v%d" % (vt, vu, vt))
        A("v_bfe_u32 v%d, v0, 4, 1" % vu)
        A("v_lshl_add_u32 v%d, v%d, 5, v%d" % (vt, vu, vt))
        A("v_lshlrev_b32 v%d, 3, v0" % vu)
        A("v_xor_b32 v%d, v0, v%d" % (vu, vu))
        A("v_and_b32 v%d, 64, v%d" % (vu, vu))
        A("v_add_u32 v%d, v%d, v%d" % (aw[0], vt, vu))
        A("v_add_u32 v%d, 0x10000, v%d" % (aw[1], aw[0]))
        self.emit(self.chunk_dmas(1, True))
        F = self.common_fill()
        t2, t3 = self.t2, self.t3
        sKV = S(); vKs = V(); vKp = V(); xw = V(); xr = V(); xz = V(); c10 = V(); c01 = V(); ones = V(4, 4)
        F.append("s_lshl_b32 s%d, s%d, 2" % (t2, self.sJ))
        F.append("s_add_u32 s%d, s%d, s%d" % (t2, t2, self.sW))
        F.append("s_lshl_b32 s%d, s%d, 14" % (t2, t2))
        F.append("s_add_u32 s%d, s%d, %d" % (sKV, t2, WS_KV))
        F.append("v_lshl_add_u32 v%d, s%d, 10, v%d" % (vKs, self.sR, self.vL16))
        F.append("v_and_b32 v%d, 15, v0" % vKp)
        F.append("v_lshlrev_b32 v%d, 10, v%d" % (vKp, vKp))
        F.append("v_lshl_add_u32 v%d, s%d, 11, v%d" % (xw, self.sW, self.vL16))
        F.append("v_add_u32 v%d, %d, v%d" % (xw, L_MISC, xw))
        F.append("v_lshrrev_b32 v%d, 7, v0" % xr)
        F.append("v_lshl_add_u32 v%d, v%d, 10, v%d" % (xr, xr, xw))
        F.append("v_and_b32 v%d, 0xffffefff, v%d" % (xr, xr))
        F.append("v_lshlrev_b32 v%d, 2, v0" % xz)
        F.append("v_add_u32 v%d, %d, v%d" % (xz, L_MISC + 8192, xz))
        F.append("v_mov_b32 v%d, 0x3f80" % c10); F.append("v_mov_b32 v%d, 0x3f800000" % c01)
        for i in range(4): F.append("v_mov_b32 v%d, 0x3f803f80" % (ones + i))
        self.fill = F
        Kt = [V(16, 4), V(16, 4)]; Vt = [V(16, 4), V(16, 4)]; Qt = [V(16, 4), V(16, 4)]
        fr = [V(20, 4), V(20, 4)]
        def reads(c, sx, buf):
            slot = (c % 3) * 40960
            out = []
            def rx(tau):
                hi, lo = self.lds_off(slot + tau * 4096)
                out.append(("ds_read_b128 %s, v%d offset:%d" % (v(fr[buf] + 4 * tau, 4), self.ax[hi][sx], lo), "x%d_%d" % (buf, tau)))
            def rw(m):
                for h in range(2):
                    hi, lo = self.lds_off(slot + 16384 + m * 8192 + sx * 2048 + h * 512)
                    out.append(("ds_read_b64_tr_b16 %s, v%d offset:%d" % (v(fr[buf] + 8 + 4 * m + 2 * h, 2), aw[hi], lo), "w%d_%d" % (buf, m)))
            rx(0); rw(1); rx(1); rw(2); rw(0)
            return out
        def mfmas(buf, first):
            out = []
            z = "0" if first else None
            for (m, tau) in ((1, 0), (1, 1), (2, 0), (2, 1), (0, 0), (0, 1)):
                xf = v(fr[buf] + 4 * tau, 4); wf = v(fr[buf] + 8 + 4 * m, 4)
                if m == 0: f = (lambda tau=tau, xf=xf, wf=wf: self.mfma(Qt[tau], wf, xf, z))
                else: f = (lambda m=m, tau=tau, xf=xf, wf=wf: self.mfma((Kt, Vt)[m - 1][tau], xf, wf, z))
                out.append((f, ["w%d_%d" % (buf, m), "x%d_%d" % (buf, tau)]))
            return out
        self.p1_loop(True, reads, mfmas, None, 3)
        self._rel_fill()
        self.stamp(6)
        for q in fr: V.rel(q, 20)
        for row in self.ax:
            for q in row: V.rel(q)
        for q in aw + self.vx + [x_ for r_ in self.vw for x_ in r_]: V.rel(q)
        cl = V(2); tmp = V(8, 2)
        A("v_mov_b32 v%d, %s" % (cl, LOG2E))
        A("s_mov_b32 s%d, 0x358637bd" % t0)
        def phi(src, dst):
            out = []
            for k0 in range(0, 8, 4):
                for k in range(k0, k0 + 4):
                    out.append("v_pk_mul_f32 %s, %s, %s op_sel_hi:[0,1]" % (v(tmp + 2 * (k & 3), 2), v(cl, 2), v(src + 2 * k, 2)))
                for k in range(k0, k0 + 4):
                    for h in range(2):
                        out.append("v_exp_f32 v%d, v%d clamp" % (tmp + 2 * (k & 3) + h, tmp + 2 * (k & 3) + h))
                        out.append("v_max_f32 v%d, s%d, v%d" % (src + 2 * k + h, t0, src + 2 * k + h))
                for k in range(k0, k0 + 4):
                    out.append("v_pk_add_f32 %s, %s, %s" % (v(src + 2 * k, 2), v(src + 2 * k, 2), v(tmp + 2 * (k & 3), 2)))
                for k in range(k0, k0 + 4):
                    out.append("v_cvt_pk_bf16_f32 v%d, v%d, v%d" % (dst + k, src + 2 * k, src + 2 * k + 1))
            return out
        pk = V(8, 4); pv = V(8, 4); Tk = V(16, 4); Tz = V(16, 4); pk2 = V(8, 4); pv2 = V(8, 4)
        for tau in range(2):
            a_, b_ = (pk, pv) if tau == 0 else (pk2, pv2)
            self.emit(phi(Kt[tau], a_))
            for k in range(8): A("v_cvt_pk_bf16_f32 v%d, v%d, v%d" % (b_ + k, Vt[tau] + 2 * k, Vt[tau] + 2 * k + 1))
            for kk in range(2):
                z = "0" if (tau == 0 and kk == 0) else None
                self.mfma(Tk, v(a_ + 4 * kk, 4), v(b_ + 4 * kk, 4), z)
                self.mfma(Tz, v(ones, 4), v(a_ + 4 * kk, 4), z)
        A("v_and_b32 v%d, 16, v0" % vt)
        A("v_cmp_ne_u32 s[%d:%d], 0, v%d" % (self.sMk, self.sMk + 1, vt))
        Uu = Kt[0]
        for i in range(8): A("v_cndmask_b32 v%d, v%d, v%d, s[%d:%d]" % (Uu + i, Tk + i, Tk + 8 + i, self.sMk, self.sMk + 1))
        A("ds_write_b128 v%d, %s" % (xw, v(Uu, 4)))
        A("ds_write_b128 v%d, %s offset:1024" % (xw, v(Uu + 4, 4)))
        A("ds_write_b32 v%d, v%d" % (xz, Tz))
        A("v_xor_b32 v%d, 512, v%d" % (xz, xz))
        A("s_waitcnt lgkmcnt(0)")
        A("s_barrier")
        A("ds_read_b128 %s, v%d" % (v(Uu, 4), xr))
        A("ds_read_b128 %s, v%d offset:4096" % (v(Uu + 4, 4), xr))
        A("ds_read_b32 v%d, v%d" % (Uu + 14, xz))
        A("v_mov_b32 v%d, v%d" % (Uu + 11, self.vTag))
        A("s_waitcnt lgkmcnt(0)"); self.lg.zero(False)
        A("v_pk_add_f32 %s, %s, %s" % (v(Uu, 2), v(Uu, 2), v(Uu + 4, 2)))
        A("v_pk_add_f32 %s, %s, %s" % (v(Uu + 2, 2), v(Uu + 2, 2), v(Uu + 6, 2)))
        A("v_add_f32 v%d, v%d, v%d" % (Uu + 10, Uu + 14, Tz))
        A("v_cvt_pk_bf16_f32 v%d, v%d, v%d" % (Uu + 8, Uu, Uu + 1))
        A("v_cvt_pk_bf16_f32 v%d, v%d, v%d" % (Uu + 9, Uu + 2, Uu + 3))
        A("buffer_store_dwordx4 %s, v%d, %s, s%d offen sc1" % (v(Uu + 8, 4), vKs, self.WS, sKV)); self.vm.issue("kst")
        self.stamp(7)
        self.fill = self.c_dmas(0)
        pq = [pk, pk2]
        W = phi(Qt[0], pq[0]) + phi(Qt[1], pq[1])
        for n, x_ in enumerate(W):
            A(x_)
            if n % 6 == 5: self.pop(1)
        self.pop(100)
        self.g_check("att")
        KB = L_MISC + 10240; ZB = L_MISC + 12288
        kw = V(); zw = V(); r0 = V(); r1 = V()
        A("v_bfe_u32 v%d, v0, 6, 1" % vt)
        A("v_lshl_add_u32 v%d, v%d, 10, v%d" % (r0, vt, self.vL16))
        A("v_add_u32 v%d, %d, v%d" % (r0, KB, r0))
        A("v_lshrrev_b32 v%d, 7, v0" % vu)
        A("v_lshl_add_u32 v%d, v%d, 3, v%d" % (kw, vu, r0))
        A("v_and_b32 v%d, 64, v0" % zw)
        for bit, sh in ((4, 5), (2, 4), (3, 3)):
            A("v_bfe_u32 v%d, v0, %d, 1" % (vt, bit)); A("v_lshl_or_b32 v%d, v%d, %d, v%d" % (zw, vt, sh, zw))
        A("v_and_b32 v%d, 3, v0" % vt); A("v_lshl_or_b32 v%d, v%d, 1, v%d" % (zw, vt, zw))
        A("v_add_u32 v%d, %d, v%d" % (zw, ZB, zw))
        A("v_and_b32 v%d, 64, v0" % vu)
        A("v_bfe_u32 v%d, v0, 5, 1" % vt); A("v_lshl_or_b32 v%d, v%d, 4, v%d" % (vu, vt, vu))
        A("v_add_u32 v%d, %d, v%d" % (vu, ZB, vu))
        A("v_add_u32 v%d, 32, v%d" % (vt, vu))
        A("v_cndmask_b32 v%d, v%d, v%d, s[%d:%d]" % (r1, vt, r0, self.sMk, self.sMk + 1))
        A("v_cndmask_b32 v%d, v%d, v%d, s[%d:%d]" % (r0, r0, vu, self.sMk, self.sMk + 1))
        sOo = [S(), S()]
        A("s_mul_i32 s%d, s%d, %d" % (t0, self.sRW, 2 * RT_STRIDE))
        A("s_lshl_b32 s%d, s%d, 12" % (t1, self.sJ)); A("s_add_u32 s%d, s%d, s%d" % (t0, t0, t1))
        A("s_and_b32 s%d, s%d, 1" % (t1, self.sW)); A("s_lshl_b32 s%d, s%d, 11" % (t1, t1)); A("s_add_u32 s%d, s%d, s%d" % (t0, t0, t1))
        for tau in range(2): A("s_add_u32 s%d, s%d, %d" % (sOo[tau], t0, WS_A + 65536 + tau * RT_STRIDE))
        if self.o["att_early"]: self.w2_block()
        sK4 = [S() for _ in range(3)]
        for i in range(3): A("s_add_u32 s%d, s%d, %d" % (sK4[i], sKV, 4096 * (i + 1)))
        self.stamp(8)
        for q in (Tk, Tz): V.rel(q, 16)
        rec = [Kt[0], Kt[1], Vt[0], Vt[1]]
        acc = V(6, 2)
        A.label("L_kpoll")
        A("buffer_load_dword v%d, v%d, %s, s%d offen offset:1020 sc1" % (vt, vKp, self.WS, sKV))
        A("s_waitcnt vmcnt(0)")
        A("v_cmp_ne_u32 vcc, s%d, v%d" % (self.sTag, vt))
        self.poll_tail("L_kpoll")
        for n in range(16):
            A("buffer_load_dwordx4 %s, v%d, %s, s%d offen%s sc1" % (v(rec[n >> 2] + 4 * (n & 3), 4), self.vL16, self.WS, ([sKV] + sK4)[n >> 2], " offset:%d" % (1024 * (n & 3)) if n & 3 else ""))
        for i in range(6): A("v_mov_b32 v%d, 0" % (acc + i))
        for n in range(16):
            q = rec[n >> 2] + 4 * (n & 3)
            A("s_waitcnt vmcnt(%d)" % (15 - n))
            A("v_dot2c_f32_bf16 v%d, v%d, v%d" % (acc, q, c10))
            A("v_dot2c_f32_bf16 v%d, v%d, v%d" % (acc + 1, q, c01))
            A("v_dot2c_f32_bf16 v%d, v%d, v%d" % (acc + 2, q + 1, c10))
            A("v_dot2c_f32_bf16 v%d, v%d, v%d" % (acc + 3, q + 1, c01))
            A("v_add_f32 v%d, v%d, v%d" % (acc + 4, acc + 4, q + 2))
            A("v_bitop3_b32 v%d, v%d, v%d, v%d bitop3:0xf6" % (acc + 5, acc + 5, q + 3, self.vTag))
        self.vm.zero(False)
        A("v_cmp_ne_u32 vcc, 0, v%d" % (acc + 5))
        self.poll_tail("L_kpoll")
        self.stamp(9)
        A("v_cvt_pk_bf16_f32 v%d, v%d, v%d" % (acc, acc, acc + 1))
        A("v_cvt_pk_bf16_f32 v%d, v%d, v%d" % (acc + 1, acc + 2, acc + 3))
        A("v_cvt_pk_bf16_f32 v%d, v%d, v%d" % (acc + 4, acc + 4, acc + 4))
        A("ds_write_b64 v%d, %s" % (kw, v(acc, 2)))
        A("ds_write_b16 v%d, v%d" % (zw, acc + 4))
        A("s_waitcnt lgkmcnt(0)")
        A("s_barrier")
        Ah = [pv, pv + 4]
        A("ds_read_b128 %s, v%d" % (v(Ah[0], 4), r0))
        A("ds_read_b128 %s, v%d" % (v(Ah[1], 4), r1))
        for h in range(2):
            A("s_waitcnt lgkmcnt(%d)" % (1 - h))
            for tau in range(2):
                self.mfma(rec[2 * h + tau], v(Ah[h], 4), v(pq[tau] + 4 * h, 4), "0")
        self.lg.zero(False)
        for h in range(2):
            for tau in range(2):
                d = rec[2 * h + tau]; num = d + 8 * h; den = d + 8 * (1 - h)
                A("v_add_f32 v%d, 0x358637bd, v%d" % (den, den))
                A("v_rcp_f32 v%d, v%d" % (den, den))
                A("v_mul_f32 v%d, v%d, v%d" % (den, den, self.vG1 + 2 * tau))
                for k in range(4): A("v_pk_mul_f32 %s, %s, %s op_sel_hi:[0,1]" % (v(num + 2 * k, 2), v(den, 2), v(num + 2 * k, 2)))
                for k in range(4): A("v_cvt_pk_bf16_f32 v%d, v%d, v%d" % (den + 4 + k, num + 2 * k, num + 2 * k + 1))
                A("buffer_store_dwordx4 %s, v%d, %s, s%d offen%s sc1" % (v(den + 4, 4), self.vL16, self.WS, sOo[tau], " offset:1024" if h else "")); self.vm.issue("ast")
        self.stamp(10)
        if not self.o["att_early"]: self.w2_block()

    def publish(self):
        self.vm.wait("ast")
        self.A("buffer_store_dword v%d, v%d, %s, 0 offen sc1" % (self.vTag, self.vFlag, self.WS)); self.vm.issue("flag")
        self.stamp(11)
        self.vm.wait("xd")

    def p2(self):
        A, V, S = self.A, self.V, self.S
        t0, t1 = self.t0, self.t1
        vt = V(); vu = V()
        acc = [self.vXD, V(16, 4)]
        og = V(16, 4)
        A("v_sub_f32 v%d, 1.0, v%d" % (vt, self.vG2))
        A("v_cvt_pk_bf16_f32 v%d, 0, v%d" % (vt, vt))
        A("v_lshlrev_b32 v%d, 2, v0" % vu)
        A("v_add_u32 v%d, %d, v%d" % (vu, L_MISC + 14336, vu))
        A("ds_write_b32 v%d, v%d" % (vu, vt))
        A("v_and_b32 v%d, 0xffffff00, v%d" % (vu, vu))
        A("v_bfe_u32 v%d, v0, 5, 1" % vt)
        A("v_lshl_add_u32 v%d, v%d, 4, v%d" % (vu, vt, vu))
        A("s_waitcnt lgkmcnt(0)")
        for q in range(4): A("ds_read_b128 %s, v%d offset:%d" % (v(og + 4 * q, 4), vu, 32 * q))
        A("v_lshlrev_b32 v%d, 16, v%d" % (self.vDs, self.vDs))
        for i in range(16): A("v_lshlrev_b32 v%d, 16, v%d" % (acc[0] + i, acc[0] + i))
        ac = [[V() for _ in range(4)] for _ in range(2)]
        A("s_lshr_b32 s%d, s%d, 1" % (t0, self.sW))
        A("s_mul_i32 s%d, s%d, %d" % (t1, t0, L_WO + 4096))
        A("v_add_u32 v%d, s%d, v%d" % (ac[0][0], t1, self.vBase0))
        for sx in range(1, 4): A("v_xor_b32 v%d, %d, v%d" % (ac[0][sx], 32 * sx, ac[0][0]))
        for sx in range(4): A("v_xor_b32 v%d, 4096, v%d" % (ac[1][sx], ac[0][sx]))
        for i in range(16): A("v_mul_f32 v%d, v%d, v%d" % (acc[0] + i, acc[0] + i, self.vDs))
        vf = V()
        A("s_lshr_b32 s%d, s%d, 1" % (t1, self.sRT)); A("s_lshl_b32 s%d, s%d, 1" % (t1, t1)); A("s_add_u32 s%d, s%d, s%d" % (t1, t1, t0))
        A("v_and_b32 v%d, 7, v0" % vf)
        A("v_lshl_add_u32 v%d, s%d, 3, v%d" % (vf, t1, vf))
        A("v_lshlrev_b32 v%d, 7, v%d" % (vf, vf))
        sFH, sFO, sH, sO = S(), S(), S(), S()
        A("s_mov_b32 s%d, %d" % (sFH, WS_FH)); A("s_mov_b32 s%d, %d" % (sFO, WS_FO))
        A("s_mul_i32 s%d, s%d, %d" % (t1, self.sRT, RT_STRIDE))
        A("s_lshl_b32 s%d, s%d, 15" % (sH, t0)); A("s_add_u32 s%d, s%d, s%d" % (sH, sH, t1)); A("s_add_u32 s%d, s%d, %d" % (sH, sH, WS_A))
        A("s_lshl_b32 s%d, s%d, 14" % (sO, t0)); A("s_add_u32 s%d, s%d, s%d" % (sO, sO, t1)); A("s_add_u32 s%d, s%d, %d" % (sO, sO, WS_A + 65536))
        A("s_waitcnt lgkmcnt(0)"); self.lg.zero(False)
        for k in range(8): A("v_pk_mul_f32 %s, %s, %s" % (v(acc[0] + 2 * k, 2), v(acc[0] + 2 * k, 2), v(og + 2 * k, 2)))
        A("s_barrier")
        cb = [V(8, 4) for _ in range(3)]
        def crd(f):
            for lt in range(2):
                A("ds_read_b128 %s, v%d offset:%d" % (v(cb[f % 3] + 4 * lt, 4), ac[lt][f & 3], (f >> 4) * 32768 + ((f >> 2) & 3) * 8192)); self.lg.issue("c%d" % f)
        crd(0); crd(1)
        self.stamp(12)
        A.label("L_hpoll")
        A("buffer_load_dword v%d, v%d, %s, s%d offen sc1" % (vt, vf, self.WS, sFH))
        A("s_waitcnt vmcnt(0)")
        A("v_cmp_ne_u32 vcc, s%d, v%d" % (self.sTag, vt))
        self.poll_tail("L_hpoll")
        self.vm.zero(False)
        self.stamp(13)
        of = V(64, 4)
        def hld(f):
            if f and f & 3 == 0: A("s_add_u32 s%d, s%d, 4096" % (sH, sH))
            A("buffer_load_dwordx4 %s, v%d, %s, s%d offen%s sc1" % (a(128 + 4 * f, 4), self.vL16, self.WS, sH, " offset:%d" % (1024 * (f & 3)) if f & 3 else "")); self.vm.issue("h%d" % f)
        def old(n):
            if n and n & 3 == 0: A("s_add_u32 s%d, s%d, 4096" % (sO, sO))
            A("buffer_load_dwordx4 %s, v%d, %s, s%d offen%s sc1" % (v(of + 4 * n, 4), self.vL16, self.WS, sO, " offset:%d" % (1024 * (n & 3)) if n & 3 else "")); self.vm.issue("o%d" % n)
        LA = 10
        for f in range(LA): hld(f)
        for f in range(32):
            n1 = self.vm.need("h%d" % f); n2 = self.lg.need("c%d" % f)
            A("s_waitcnt vmcnt(%d)%s" % (n1, "" if n2 is None else " lgkmcnt(%d)" % n2))
            self.mfma(acc[0], a(128 + 4 * f, 4), v(cb[f % 3], 4))
            if f + LA < 32: hld(f + LA)
            self.mfma(acc[1], a(128 + 4 * f, 4), v(cb[f % 3] + 4, 4), "0" if f == 0 else None)
            if f + 2 < 32: crd(f + 2)
        self.stamp(14)
        A.label("L_opoll")
        A("buffer_load_dword v%d, v%d, %s, s%d offen sc1" % (vt, vf, self.WS, sFO))
        A("s_waitcnt vmcnt(0)")
        A("v_cmp_ne_u32 vcc, s%d, v%d" % (self.sTag, vt))
        self.poll_tail("L_opoll")
        self.vm.zero(False)
        self.stamp(15)
        for n in range(LA): old(n)
        vr = V(); vo_ = V()
        A("v_lshl_add_u32 v%d, s%d, 12, v%d" % (vr, self.sW, self.vL16))
        A("v_add_u32 v%d, %d, v%d" % (vr, L_RED, vr))
        A("v_lshlrev_b32 v%d, 1, v%d" % (vo_, self.vXa))
        so = [S() for _ in range(7)]
        for k in range(1, 8): A("s_mov_b32 s%d, %d" % (so[k - 1], (k & 1) * 32768 + (k >> 1) * 4096))
        for n in range(16):
            self.vm.wait("o%d" % n)
            self.mfma(acc[1], v(of + 4 * n, 4), a(8 * n + 4, 4))
            if n + LA < 16: old(n + LA)
            self.mfma(acc[0], v(of + 4 * n, 4), a(8 * n, 4))
        self.stamp(16)
        for q in range(4): A("ds_write_b128 v%d, %s offset:%d" % (vr, v(acc[1] + 4 * q, 4), 1024 * q))
        A("v_xor_b32 v%d, 8192, v%d" % (vr, vr))
        A("s_waitcnt lgkmcnt(0)")
        A("s_barrier")
        for q in range(4): A("ds_read_b128 %s, v%d offset:%d" % (v(og + 4 * q, 4), vr, 1024 * q))
        for q in range(4):
            A("s_waitcnt lgkmcnt(%d)" % (3 - q))
            for k in range(2): A("v_pk_add_f32 %s, %s, %s" % (v(acc[0] + 4 * q + 2 * k, 2), v(acc[0] + 4 * q + 2 * k, 2), v(og + 4 * q + 2 * k, 2)))
            for i in range(4 * q, 4 * q + 4):
                k = (i & 1) + 2 * (i >> 2); b = (i >> 1) & 1
                A("buffer_store_dword v%d, v%d, %s, %s offen%s" % (acc[0] + i, vo_, self.OUT, "0" if k == 0 else "s%d" % so[k - 1], " offset:2048" if b else ""))
        A("s_cmp_eq_u32 s2, 255")
        A("s_cbranch_scc0 L_fin")
        A("v_mov_b32 v%d, s%d" % (vt, self.sE))
        A("v_mov_b32 v%d, 0" % vu)
        A("buffer_store_dword v%d, v%d, %s, 0 offen" % (vt, vu, self.WS))
        A.label("L_fin")
        if self.o["stamps"]:
            A("s_waitcnt vmcnt(0)")
            self.stamp(17)
            A("v_lshlrev_b32 v%d, 2, v0" % vu)
            A("s_lshl_b32 s%d, s2, 10" % t0); A("s_add_u32 s%d, s%d, %d" % (t0, t0, WS_STAMP))
            A("buffer_store_dword v%d, v%d, %s, s%d offen" % (self.vStamp, vu, self.WS, t0))

    def gen(self):
        A = self.A
        kernel_head(A, NAME)
        self.prologue()
        self.vXa = self.V()
        V0, S0, q0 = self.V.clone(), self.S.clone(), list(self.vm.q)
        self.ssm(); self.publish()
        A("s_branch L_p2")
        keep = (self.sMW, self.sMC)
        A.label("L_att")
        self.V, self.S, self.vm.q, self.lg.q = V0.clone(), S0.clone(), list(q0), []
        self.att(); self.publish()
        A.label("L_p2")
        self.V, self.S, self.lg.q = V0.clone(), S0.clone(), []
        for q in self.vx + self.vo + self.vc + [self.vUA, self.vUT]: self.V.rel(q)
        self.vm.q = ["flag"]
        self.p2()
        A.label("L_end")
        A("s_endpgm")
        body, n = hazard.fix(A.l)
        head = open("cdna_kernels/%s.s.ref" % NAME[:-7]).read().split("; Override launch")[0] if self.o.get("head", True) else ""
        out = head + "; @launch grid=(256,1,1) block=(256,1,1) lds=163840\n"
        out += '.amdgcn_target "amdgcn-amd-amdhsa--gfx950"\n.text\n' + "\n".join(body) + "\n"
        out += '.section .rodata,"a"\n.p2align 6\n' + kernel_desc(NAME, 512, 256)
        return out

if __name__ == "__main__":
    open("k.s", "w").write(K().gen())
    open("k_st.s", "w").write(K(stamps=True).gen())
```

```python
import sys
from asmlib import Asm, v, a, s, kernel_head, kernel_desc
import hazard

NAME = "gated_mix__linear_attn_block__ssm_conv_s5__prompt_kernel"
WS_EPOCH, WS_G, WS_FH, WS_FO, WS_E, WS_KV, WS_A = 0, 0x1000, 0x10000, 0x20000, 0x30000, 0x40000, 0x100000
WS_STAMP = 0x1000000
SPILL = 0x800000
RT_STRIDE = 98304
HUGE = 0x20000000
L_R0, L_R1, L_SP = 0, 65536, 131072
LOG2E = "0x3fb8aa3b"
P_X, P_WQKV, P_WO, P_LRE, P_LIM, P_BRE, P_BIM = 4, 6, 8, 12, 14, 16, 18
P_CRE, P_CIM, P_LDT, P_DSK, P_GW, P_OUT, P_WS = 20, 22, 24, 26, 28, 30, 34

class Alloc:
    def __init__(self, regs):
        self.free = set(regs)
    def __call__(self, n=1, al=1):
        if n > 1 and al == 1: al = 2
        for b in sorted(self.free, reverse=(n <= 2)):
            if b % al == 0 and all(b + i in self.free for i in range(n)):
                for i in range(n): self.free.discard(b + i)
                return b
        raise RuntimeError("out of registers")
    def rel(self, b, n=1):
        for i in range(n):
            assert b + i not in self.free
            self.free.add(b + i)
    def clone(self):
        return Alloc(self.free)

class Cnt:
    def __init__(self, A, name, mx):
        self.A = A; self.name = name; self.mx = mx; self.q = []
    def issue(self, tag): self.q.append(tag)
    def need(self, tag):
        idx = [i for i, t in enumerate(self.q) if t == tag]
        if not idx: return None
        n = len(self.q) - 1 - idx[-1]
        self.q = self.q[idx[-1] + 1:]
        return min(n, self.mx)
    def wait(self, tag):
        n = self.need(tag)
        if n is not None: self.A("s_waitcnt %s(%d)" % (self.name, n))
    def zero(self, emit=True):
        if emit: self.A("s_waitcnt %s(0)" % self.name)
        self.q = []

def weave(main, *side):
    out = [[x] for x in main]
    for sd in side:
        n = len(sd)
        for k, x in enumerate(sd):
            out[min(len(main) - 1, (k * len(main)) // n)].append(x)
    return [y for x in out for y in x]

class K:
    def __init__(self, **opt):
        self.o = dict(stamps=False, rot=(0, 0, 0), pollcap=400000, map=2, first=0, second=4, pf=(1, 0, 0, 0, 0, 0, 0, 0, 0), fline=1, selft=0, espec=0, tlb=0, wt=0, xrot=6, pf0=0, late7=0, la='sc1', ha='sc1', fa='sc1', skip3=1, glate=0, warm=1, pa='sc1', pe='sc1', hpw=1, j3=1, att_hp=1, wsoff=0, ssm_c=0, ssm_d=8, ssm_e=8, ssm_n=200, att_n=200, att_b=8, att_g=33, att_c1=8, outaux=' nt', LA=10, olook=14)
        self.o.update(opt)
        self.A = Asm()
        self.vm = Cnt(self.A, "vmcnt", 63)
        self.lg = Cnt(self.A, "lgkmcnt", 15)
        self.V = Alloc(range(1, 256))
        self.S = Alloc([3] + list(range(72, 102)))
        self.fill = []

    def stamp(self, idx):
        if not self.o["stamps"]: return
        if self.o["stamps"] == 2 and idx != 17: return
        A = self.A
        A("s_memrealtime s[%d:%d]" % (self.sT, self.sT + 1))
        A("s_memtime s[%d:%d]" % (self.sT2, self.sT2 + 1))
        A("s_waitcnt lgkmcnt(0)")
        self.lg.zero(False)
        A("v_writelane_b32 v%d, s%d, %d" % (self.vStamp, self.sT, idx))
        A("v_writelane_b32 v%d, s%d, %d" % (self.vStamp, self.sT2, 32 + idx))
    def dma(self, vo, srd, so, imm, tag):
        self.A("buffer_load_dwordx4 v%d, %s, %s offen%s lds" % (vo, srd, so, " offset:%d" % imm if imm else ""))
        self.vm.issue(tag)
    def pop(self, n):
        while n > 0 and self.fill:
            f = self.fill.pop(0)
            if callable(f): f()
            else: self.A(f)
            n -= 1
    def mfma(self, d, x, y, c=None):
        self.A("v_mfma_f32_32x32x16_bf16 %s, %s, %s, %s" % (v(d, 16), x, y, v(d, 16) if c is None else c))
    def cmul(self, out, dr, di, ar, ai, br, bi, cr=None, ci=None):
        if cr is None:
            out.append("v_mul_f32 v%d, v%d, v%d" % (dr, ar, br))
            out.append("v_mul_f32 v%d, v%d, v%d" % (di, ar, bi))
        else:
            out.append("v_fma_f32 v%d, v%d, v%d, v%d" % (dr, ar, br, cr))
            out.append("v_fma_f32 v%d, v%d, v%d, v%d" % (di, ar, bi, ci))
        out.append("v_fma_f32 v%d, -v%d, v%d, v%d" % (dr, ai, bi, dr))
        out.append("v_fmac_f32 v%d, v%d, v%d" % (di, ai, br))
    def emit(self, lst):
        for x in lst:
            if isinstance(x, tuple):
                self.emit(x[0]); x[1]()
            elif callable(x): x()
            else: self.A(x)
    def cap(self):
        A = self.A
        A("s_sub_u32 s%d, s%d, 1" % (self.sCap, self.sCap))
        A("s_cselect_b64 vcc, 0, vcc")
        A("s_cselect_b32 s%d, 0, s%d" % (self.sCap, self.sCap))
        A("s_cmp_lg_u64 vcc, 0")
    def poll_tail(self, lab):
        self.cap()
        self.A("s_cbranch_scc1 %s" % lab)
    def bits(self, out, d, tmp, spec, src="v0"):
        for n, (bit, w, sh) in enumerate(spec):
            if n == 0:
                if bit == sh: out.append("v_and_b32 v%d, 0x%x, %s" % (d, ((1 << w) - 1) << bit, src))
                else:
                    out.append("v_bfe_u32 v%d, %s, %d, %d" % (d, src, bit, w))
                    if sh: out.append("v_lshlrev_b32 v%d, %d, v%d" % (d, sh, d))
            else:
                out.append("v_bfe_u32 v%d, %s, %d, %d" % (tmp, src, bit, w))
                out.append("v_lshl_or_b32 v%d, v%d, %d, v%d" % (d, tmp, sh, d))

    def chunk_dmas(self, c):
        slot = (c % 3) * 32768
        tag = "ch%d" % c
        L = []
        nxt = ["s_lshl_b32 s%d, s%d, 7" % (self.sO1, self.sCh), "s_mul_i32 s%d, s%d, s%d" % (self.sO2, self.sCh, self.sWst),
               "s_add_u32 s%d, s%d, 1" % (self.sCh, self.sCh), "s_and_b32 s%d, s%d, 7" % (self.sCh, self.sCh)]
        for n in range(4):
            pre = (nxt if n == 0 else []) + ([] if n & 1 else ["s_add_u32 m0, s%d, %d" % (self.sM, slot + 16384 + (n >> 1) * 4096)])
            L.append((pre, (lambda n=n: self.dma(self.vw[n], (self.WA, self.WB)[n >> 1], "s%d" % self.sO2, 2048 * (n & 1), tag))))
        for n in range(4):
            pre = [] if n & 1 else ["s_add_u32 m0, s%d, %d" % (self.sM, slot + (n >> 1) * 4096)]
            L.append((pre, (lambda n=n: self.dma(self.vx[n], self.X, "s%d" % self.sO1, 2048 * (n & 1), tag))))
        return L
    def wo_dmas(self, half):
        L = []
        for n in range(8):
            aa, b = n >> 2, n & 3
            pre = [] if b else ["s_add_u32 m0, s%d, %d" % (self.sMW, L_SP + aa * 4096), "s_xor_b32 s%d, s%d, %d" % (self.sO1, self.sP17, (half * 128 + aa * 32) * 1024)]
            L.append((pre, (lambda b=b: self.dma(self.vo[b], self.WO, "s%d" % self.sO1, 1024 * b, "wo%d" % half))))
        return L
    def c_dmas(self, comp, region):
        L = []
        for idx in range(8):
            for i in range(2):
                pre = [] if i else ["s_xor_b32 m0, s%d, %d" % (self.sMC, region + idx * 8192), "s_xor_b32 s%d, s%d, %d" % (self.sO1, self.sP9, idx * 128)]
                L.append((pre, (lambda i=i: self.dma(self.vc[i], (self.CRE, self.CIM)[comp], "s%d" % self.sO1, 2048 * i, "c%d" % comp))))
        return L

    def prologue(self):
        A, V, S = self.A, self.V, self.S
        self.X, self.WA, self.WB, self.WS = "s[36:39]", "s[40:43]", "s[44:47]", "s[48:51]"
        self.CRE, self.CIM, self.WO, self.OUT, self.ER = "s[52:55]", "s[56:59]", "s[60:63]", "s[64:67]", "s[68:71]"
        self.sT = S(2, 2); self.sT2 = S(2, 2); self.sMk = S(2, 2)
        self.sR, self.sJ, self.sRole, self.sW, self.sPar = [S() for _ in range(5)]
        M1 = self.o["map"] == 1
        if M1: self.sCT, self.sRH = self.sJ, self.sRole
        else: self.sCT, self.sRH = S(), S()
        self.sM, self.sCh, self.sO1, self.sO2, self.sTag, self.sE, self.sWst, self.sN2 = [S() for _ in range(8)]
        self.t0, self.t1, self.t2, self.t3 = [S() for _ in range(4)]
        t0, t1, t2, t3 = self.t0, self.t1, self.t2, self.t3
        sR, sJ, sW, sCT, sRH, sRole = self.sR, self.sJ, self.sW, self.sCT, self.sRH, self.sRole
        vt = V(); vu = V()
        self.vJunk = V(); self.vL16 = V()
        vp = V(); vd = V(); vg = V(); vq = V()
        A("s_cmp_ge_u32 s2, 256")
        A("s_cbranch_scc1 L_end")
        A("s_load_dwordx16 s[4:19], s[0:1], 0")
        A("s_load_dwordx16 s[20:35], s[0:1], 64")
        if self.o["stamps"]:
            self.vStamp = V()
            A("s_memrealtime s[%d:%d]" % (self.sT, self.sT + 1))
            A("s_memtime s[%d:%d]" % (self.sT2, self.sT2 + 1))
        A("s_getpc_b64 s[%d:%d]" % (self.sMk, self.sMk + 1))
        A.label("L_pc")
        A("s_and_b32 s%d, s2, 0xf8" % t0)
        A("v_lshrrev_b32 v%d, 5, v0" % vt)
        A("v_add_lshl_u32 v%d, s%d, v%d, 7" % (vt, t0, vt))
        A("v_min_u32 v%d, L_end-L_pc, v%d" % (vt, vt))
        A("v_lshrrev_b32 v%d, 6, v0" % vu)
        A("global_load_dword v%d, v%d, s[%d:%d]" % (self.vJunk, vt, self.sMk, self.sMk + 1)); self.vm.issue("junk")
        A("v_readfirstlane_b32 s%d, v%d" % (sW, vu))
        if M1:
            A("s_and_b32 s%d, s2, 7" % t0)
            A("s_lshr_b32 s%d, s2, 7" % self.sPar)
            A("s_lshl1_add_u32 s%d, s%d, s%d" % (sR, t0, self.sPar))
            A("s_bfe_u32 s%d, s2, 0x30003" % sJ)
            A("s_bfe_u32 s%d, s2, 0x10006" % sRole)
        else:
            A("s_and_b32 s%d, s2, 1" % sRH)
            A("s_bfe_u32 s%d, s2, 0x20001" % t0)
            A("s_lshr_b32 s%d, s2, 6" % t1)
            A("s_lshl2_add_u32 s%d, s%d, s%d" % (sR, t0, t1))
            A("s_bfe_u32 s%d, s2, 0x20003" % t0)
            A("s_lshl2_add_u32 s%d, s%d, s%d" % (sJ, sRH, t0))
            A("s_bfe_u32 s%d, s2, 0x10005" % sRole)
        A("v_and_b32 v%d, 63, v0" % self.vL16)
        A("v_lshlrev_b32 v%d, 4, v%d" % (self.vL16, self.vL16))
        A("s_lshl3_add_u32 s%d, s%d, s%d" % (t0, sRole, sJ))
        A("s_lshl2_add_u32 s%d, s%d, s%d" % (self.sN2, t0, sW))
        A("s_and_b32 s%d, s%d, 0x38" % (t0, self.sN2))
        A("s_add_u32 s%d, s%d, s%d" % (t0, t0, self.sN2))
        A("s_lshl_b32 s%d, s%d, 7" % (t1, sR))
        A("s_add_u32 s%d, s%d, s%d" % (t0, t0, t1))
        A("v_lshl_add_u32 v%d, s%d, 10, v%d" % (vg, t0, self.vL16))
        A("v_add_u32 v%d, 8192, v%d" % (vq, vg))
        wt = self.o["wt"]
        if wt:
            A("s_lshl2_add_u32 s%d, s%d, s%d" % (t1, sR, sW))
            A("s_lshl_b32 s%d, s%d, 9" % (t0, sJ))
            A("s_lshl3_add_u32 s%d, s%d, s%d" % (t0, t1, t0))
            A("s_mulk_i32 s%d, 192" % t1)
            A("s_add_u32 s%d, s%d, s%d" % (t1, t1, sJ))
        A("s_cmp_eq_u32 s%d, 0" % sRole)
        if wt:
            A("s_cselect_b32 s%d, s%d, s%d" % (t0, t0, t1))
            A("s_cselect_b32 s%d, 1, 24" % t1)
            A("s_cselect_b32 s%d, 0, 16" % t2)
            A("v_and_b32 v%d, 7, v0" % vt)
            A("v_and_b32 v%d, 24, v0" % vu)
            A("v_min_u32 v%d, s%d, v%d" % (vu, t2, vu))
            A("v_mad_u32_u24 v%d, v%d, s%d, v%d" % (vt, vt, t1, vu))
            A("v_add_lshl_u32 v%d, v%d, s%d, 7" % (vt, vt, t0))
        self.ppar = [V(), V(), V()]; self.vDs = V(); self.gx = V(12, 4)
        A("s_waitcnt lgkmcnt(0)")
        A("s_cselect_b64 s[40:41], s[%d:%d], s[%d:%d]" % (P_BRE, P_BRE + 1, P_WQKV, P_WQKV + 1))
        A("s_cselect_b64 s[44:45], s[%d:%d], s[%d:%d]" % (P_BIM, P_BIM + 1, P_WQKV, P_WQKV + 1))
        A("global_load_dwordx4 %s, v%d, s[%d:%d]" % (v(self.gx, 4), vg, P_X, P_X + 1)); self.vm.issue("gx")
        A("global_load_dwordx4 %s, v%d, s[%d:%d]" % (v(self.gx + 4, 4), vq, P_X, P_X + 1)); self.vm.issue("gx")
        if wt:
            A("global_load_dword v%d, v%d, s[40:41]" % (self.vJunk, vt)); self.vm.issue("junk")
            A("s_cselect_b64 exec, -1, 1")
            A("global_load_dword v%d, v%d, s[44:45]" % (self.vJunk, vt)); self.vm.issue("junk")
            A("s_mov_b64 exec, -1")
        A("global_load_dwordx4 %s, v%d, s[%d:%d]" % (v(self.gx + 8, 4), self.vL16, P_GW, P_GW + 1)); self.vm.issue("gx")
        if self.o["stamps"]: A("v_writelane_b32 v%d, s%d, 0\nv_writelane_b32 v%d, s%d, 32" % (self.vStamp, self.sT, self.vStamp, self.sT2))
        self.stamp(18)
        A("s_cselect_b32 s42, 0x80000, 0")
        A("s_cselect_b32 s%d, 0, 0x180000" % t0)
        A("s_cselect_b32 s%d, 0x80, 0" % self.sWst)
        A("s_cselect_b32 s%d, 0, %d" % (t1, 64 * 3072))
        A("s_cselect_b64 s[%d:%d], -1, 0" % (self.sMk, self.sMk + 1))
        A("s_cselect_b32 s%d, 0, %d" % (t2, 32 * 3072))
        A("s_cselect_b32 s%d, 0, %d" % (t3, 16 * 3072 - 16384))
        A("s_add_u32 s42, s42, s%d" % t0)
        A("s_add_u32 s%d, s%d, s%d" % (self.sWst, self.sWst, t1))
        A("s_add_u32 s%d, s%d, %d" % (t3, t3, 16384 - 2048))
        A("s_mov_b32 s46, s42")
        if not M1:
            A("s_bfe_u32 s%d, s2, 0x30003" % sCT)
            A("s_bfe_u32 s%d, s2, 0x10006" % t0)
            A("s_lshl_b32 s%d, s%d, 2" % (t0, t0))
            A("s_xor_b32 s%d, s%d, s%d" % (sCT, sCT, t0))
            A("s_lshr_b32 s%d, s2, 7" % self.sPar)
        o = []
        self.bits(o, vp, vu, ((0, 2, 1), (2, 1, 4), (3, 1, 3), (4, 1, 5), (6, 1, 6)))
        o.append("v_lshl_add_u32 v%d, s%d, 7, v%d" % (vp, sJ, vp))
        self.bits(o, vd, vu, ((0, 5, 1), (7, 1, 6)))
        o.append("v_lshl_add_u32 v%d, s%d, 7, v%d" % (vd, sCT, vd))
        self.emit(o)
        for q, p in zip(self.ppar, (P_LRE, P_LIM, P_LDT)):
            A("global_load_ushort v%d, v%d, s[%d:%d]" % (q, vp, p, p + 1)); self.vm.issue("par")
        A("global_load_ushort v%d, v%d, s[%d:%d]" % (self.vDs, vd, P_DSK, P_DSK + 1)); self.vm.issue("par")
        if self.o["tlb"]:
            A("v_mov_b32 v%d, 0" % vt)
            for p in (P_WO, P_CRE, P_CIM):
                A("global_load_dword v%d, v%d, s[%d:%d]" % (self.vJunk, vt, p, p + 1)); self.vm.issue("junk")
            if self.o["tlb"] & 2:
                A("v_and_b32 v%d, 7, v0" % vt); A("v_lshlrev_b32 v%d, 21, v%d" % (vt, vt))
                A("global_load_dword v%d, v%d, s[%d:%d] offset:128" % (self.vJunk, vt, P_WS, P_WS + 1)); self.vm.issue("junk")
            if self.o["tlb"] & 4:
                A("s_lshl_b32 s%d, s%d, 18" % (t0, sR)); A("v_mov_b32 v%d, s%d" % (vt, t0))
                A("global_load_dword v%d, v%d, s[%d:%d]" % (self.vJunk, vt, P_OUT, P_OUT + 1)); self.vm.issue("junk")
        A("s_mov_b64 s[36:37], s[%d:%d]" % (P_X, P_X + 1))
        A("s_mov_b32 s38, 0x200000")
        for b in (36, 40, 44): A("s_mov_b32 s%d, 0x20000" % (b + 3))
        ra, rb, rm = self.o["rot"]
        if rm:
            A("s_mul_i32 s%d, s%d, %d" % (self.sCh, sR, ra))
            A("s_mul_i32 s%d, s%d, %d" % (t0, sCT, rb))
            A("s_add_u32 s%d, s%d, s%d" % (self.sCh, self.sCh, t0))
            A("s_and_b32 s%d, s%d, %d" % (self.sCh, self.sCh, rm))
        elif self.o["j3"]:
            A("s_and_b32 s%d, s%d, 3" % (t0, sR))
            A("s_lshl_b32 s%d, s%d, 1" % (t0, t0))
            A("s_lshr_b32 s%d, s%d, 2" % (t1, self.sN2))
            A("s_cmp_eq_u32 s%d, 11" % t1)
            A("s_cselect_b32 s%d, s%d, 0" % (self.sCh, t0))
        else:
            A("s_mov_b32 s%d, 0" % self.sCh)
        if self.o["xrot"]:
            A("s_and_b32 s%d, s2, %d" % (t0, self.o["xrot"]))
            A("s_add_u32 s%d, s%d, s%d" % (self.sCh, self.sCh, t0))
            A("s_and_b32 s%d, s%d, 7" % (self.sCh, self.sCh))
        self.sCX = S()
        A("s_sub_u32 s%d, s%d, s%d" % (self.sCX, sCT, self.sCh))
        A("s_and_b32 s%d, s%d, 7" % (self.sCX, self.sCX))
        A("s_mul_i32 s%d, s%d, 0x1400" % (self.sM, sW))
        A("s_and_b32 s%d, s%d, 0x2400" % (self.sM, self.sM))
        vUA = vp; vUT = vg
        self.vx = [V() for _ in range(4)]; self.vw = [V() for _ in range(4)]
        o = []
        o.append("v_lshrrev_b32 v%d, 4, v0" % vt)
        o.append("v_xor_b32 v%d, v0, v%d" % (vt, vt))
        self.bits(o, vUA, vu, ((0, 3, 4),), "v%d" % vt)
        o.append("v_lshrrev_b32 v%d, 2, v0" % vt)
        o.append("v_and_b32 v%d, 4, v%d" % (vt, vt))
        o.append("v_xor_b32 v%d, v0, v%d" % (vt, vt))
        self.bits(o, vUT, vu, ((0, 3, 4),), "v%d" % vt)
        w0 = self.vw[0]
        self.bits(o, vt, vu, ((3, 2, 0), (6, 1, 2), (5, 1, 3), (7, 1, 5)))
        o.append("v_lshl_add_u32 v%d, s%d, 6, v%d" % (vt, sJ, vt))
        o.append("v_lshl_add_u32 v%d, v%d, 10, v%d" % (w0, vt, vUA))
        o.append("v_bfe_u32 v%d, v0, 3, 4" % vt)
        o.append("v_mul_u32_u24 v%d, 3072, v%d" % (vt, vt))
        o.append("v_lshrrev_b32 v%d, 7, v0" % vu)
        o.append("v_lshl_add_u32 v%d, v%d, 10, v%d" % (vt, vu, vt))
        o.append("s_lshl_b32 s%d, s%d, 7" % (t0, sJ))
        o.append("s_add_u32 s%d, s%d, 1024" % (t0, t0))
        o.append("v_add3_u32 v%d, v%d, s%d, v%d" % (vt, vt, t0, vUT))
        o.append("v_cndmask_b32 v%d, v%d, v%d, s[%d:%d]" % (w0, vt, w0, self.sMk, self.sMk + 1))
        o.append("v_add_u32 v%d, s%d, v%d" % (self.vw[1], t3, w0))
        o.append("v_add_u32 v%d, s%d, v%d" % (self.vw[2], t2, w0))
        o.append("v_add_u32 v%d, s%d, v%d" % (self.vw[3], t2, self.vw[1]))
        self.emit(o)
        self.early = self.chunk_dmas(0) + self.chunk_dmas(1)
        self.emit(self.early[:4]); self.early = self.early[4:]
        self.stamp(19)
        if self.o["wsoff"]:
            A("s_add_u32 s%d, s%d, 0x%x" % (P_WS, P_WS, self.o["wsoff"] << 20)); A("s_addc_u32 s%d, s%d, 0" % (P_WS + 1, P_WS + 1))
        A("s_load_dword s%d, s[%d:%d], 0" % (self.sE, P_WS, P_WS + 1))
        o = []
        x0 = self.vx[0]
        self.bits(o, x0, vu, ((5, 1, 5), (4, 1, 0), (3, 1, 4), (6, 1, 1), (7, 1, 6)))
        o.append("v_lshl_add_u32 v%d, s%d, 7, v%d" % (x0, sR, x0))
        o.append("v_lshl_add_u32 v%d, v%d, 10, v%d" % (x0, x0, vUA))
        for i, d in ((1, 2048), (2, 8192), (3, 10240)): o.append("v_add_u32 v%d, %d, v%d" % (self.vx[i], d, x0))
        for b, p, n in ((48, P_WS, 0x10000000 - (self.o["wsoff"] << 20)), (52, P_CRE, 0x80000), (56, P_CIM, 0x80000), (60, P_WO, 0x80000), (64, P_OUT, 0x400000)):
            o.append("s_mov_b64 s[%d:%d], s[%d:%d]" % (b, b + 1, p, p + 1))
            o.append("s_mov_b32 s%d, 0x%x" % (b + 2, n))
        o.append("s_mov_b32 s70, 4096")
        for b in range(48, 72, 4): o.append("s_mov_b32 s%d, 0x20000" % (b + 3))
        self.emit(o)
        n = self.o["first"]
        self.emit(self.early[:n]); self.early = self.early[n:]
        for q in range(4, 36): S.rel(q) if q not in (P_WS, P_WS + 1) else None
        self.vTag, self.vBase0, self.vFlag, self.vG1a, self.vG2a, self.vf, self.vr, self.vOut, self.vOg, self.vHm, self.vPf, self.vFr = [V() for _ in range(12)]
        self.vo = [V() for _ in range(4)]; self.vc = [V() for _ in range(2)]
        self.aw = [V(), V()]; self.ac = [[V() for _ in range(4)] for _ in range(2)]
        self.axd = [[V(), V()], [V(), V()]]
        self.vG2 = V(2); self.xdf = V(8, 4); self.acc = [V(16, 4), V(16, 4)]
        self.sPf = S(2, 2)
        self.sMW, self.sMC, self.sRT, self.sRW, self.sH, self.sO, self.sFH, self.sFO, self.sCap, self.sP9, self.sP17 = [S() for _ in range(11)]
        self.so = [S() for _ in range(7)]
        o = []
        o.append("s_mov_b32 s%d, %d" % (self.sCap, self.o["pollcap"]))
        o.append("s_lshr_b32 s%d, s%d, 1" % (t3, sW))
        o.append("s_and_b32 s%d, s%d, 1" % (t2, sW))
        o.append("v_bfe_u32 v%d, v0, 1, 3" % vt)
        o.append("v_bfe_u32 v%d, v0, 5, 1" % vu)
        o.append("v_xor_b32 v%d, v%d, v%d" % (vt, vt, vu))
        self.bits(o, vu, None, ((0, 5, 7),))
        o.append("v_lshl_add_u32 v%d, v%d, 4, v%d" % (self.vBase0, vt, vu))
        o.append("s_cmp_eq_u32 s%d, 0" % sW)
        o.append("s_cselect_b64 s[%d:%d], s[60:61], s[52:53]" % (self.sPf, self.sPf + 1))
        o.append("s_cmp_eq_u32 s%d, 2" % sW)
        o.append("s_cselect_b64 s[%d:%d], s[56:57], s[%d:%d]" % (self.sPf, self.sPf + 1, self.sPf, self.sPf + 1))
        o.append("s_cmp_eq_u32 s%d, 3" % sW)
        o.append("s_cselect_b32 s%d, 0, 15" % t0)
        o.append("v_and_b32 v%d, s%d, v0" % (self.vPf, t0))
        o.append("s_and_b32 s%d, s2, 7" % t0)
        o.append("s_lshl_b32 s%d, s%d, 8" % (t0, t0))
        o.append("s_and_b32 s%d, s2, 0xf8" % t1)
        o.append("s_add_u32 s%d, s%d, s%d" % (t0, t0, t1))
        o.append("v_lshl_add_u32 v%d, s%d, 1, v%d" % (self.vPf, t0, self.vPf))
        o.append("v_lshlrev_b32 v%d, 7, v%d" % (self.vPf, self.vPf))
        o.append("s_lshl1_add_u32 s%d, s%d, s%d" % (self.sRW, sR, t3))
        o.append("s_lshl1_add_u32 s%d, s%d, s%d" % (t1, sR, sRH))
        o.append("s_lshl1_add_u32 s%d, s%d, s%d" % (self.sRT, t1, t2))
        o.append("s_and_b32 s%d, s%d, 3" % (t0, self.sRT))
        o.append("s_lshl_b32 s%d, s%d, 6" % (t0, t0))
        o.append("s_add_u32 s%d, s%d, s%d" % (t0, t0, t3))
        o.append("s_lshl_b32 s%d, s%d, 6" % (t0, t0))
        o.append("v_xor_b32 v%d, s%d, v%d" % (self.axd[0][0], t0, self.vBase0))
        o.append("v_xor_b32 v%d, 32, v%d" % (self.axd[0][1], self.axd[0][0]))
        for e in range(2): o.append("v_add_u32 v%d, 0x10000, v%d" % (self.axd[1][e], self.axd[0][e]))
        self.vTr = vq
        self.bits(o, self.vTr, vu, ((2, 2, 7), (0, 2, 3), (4, 1, 5), (3, 1, 6)))
        o.append("v_bfe_u32 v%d, v0, 5, 1" % vu)
        o.append("v_lshl_or_b32 v%d, v%d, 9, v%d" % (vt, vu, self.vTr))
        o.append("s_mul_i32 s%d, s%d, %d" % (t0, t3, 16384 + 64))
        o.append("s_add_u32 s%d, s%d, %d" % (t0, t0, L_SP))
        o.append("v_xor_b32 v%d, s%d, v%d" % (self.aw[0], t0, vt))
        o.append("v_xor_b32 v%d, 64, v%d" % (self.aw[1], self.aw[0]))
        o.append("v_lshl_or_b32 v%d, v%d, 10, v%d" % (self.vTr, vu, self.vTr))
        o.append("s_lshl_b32 s%d, s%d, 13" % (self.sMW, sW))
        o.append("s_andn2_b32 s%d, s%d, s%d" % (self.sP9, self.sPar, sRole))
        o.append("s_lshl_b32 s%d, s%d, 9" % (self.sP9, self.sP9))
        o.append("s_lshl_b32 s%d, s%d, 8" % (self.sP17, self.sP9))
        self.bits(o, vu, vt, ((3, 3, 0), (6, 1, 6), (7, 1, 8)))
        o.append("v_lshl_add_u32 v%d, v%d, 10, v%d" % (vu, vu, vUT))
        o.append("v_lshl_add_u32 v%d, s%d, 7, v%d" % (self.vo[0], sCT, vu))
        for b in range(1, 4): o.append("v_add_u32 v%d, %d, v%d" % (self.vo[b], 7168 * b, self.vo[0]))
        o.append("s_lshl2_add_u32 s%d, s%d, s%d" % (self.sMC, t3, t2))
        o.append("s_lshl_b32 s%d, s%d, 10" % (self.sMC, self.sMC))
        o.append("s_lshl_b32 s%d, s%d, 6" % (t0, self.sP9))
        o.append("s_add_u32 s%d, s%d, s%d" % (self.sMC, self.sMC, t0))
        self.bits(o, vt, vu, ((3, 4, 0), (7, 1, 5)))
        o.append("v_lshl_add_u32 v%d, s%d, 6, v%d" % (vt, sCT, vt))
        o.append("v_lshl_add_u32 v%d, v%d, 10, v%d" % (self.vc[0], vt, vUA))
        o.append("v_add_u32 v%d, %d, v%d" % (self.vc[1], 16384 - 2048, self.vc[0]))
        self.bits(o, vu, None, ((0, 5, 4),))
        o.append("v_add_u32 v%d, %d, v%d" % (vu, WS_G, vu))
        o.append("v_lshl_add_u32 v%d, s%d, 9, v%d" % (self.vG1a, self.sRW, vu))
        o.append("v_lshl_add_u32 v%d, s%d, 9, v%d" % (self.vG2a, t1, vu))
        o.append("v_lshl_add_u32 v%d, s%d, 3, v%d" % (self.vG2a, t2, self.vG2a))
        if self.o["skip3"]:
            o.append("v_and_b32 v%d, 56, v0" % vt)
            o.append("v_cmp_eq_u32 vcc, 24, v%d" % vt)
            o.append("v_add_u32 v%d, %d, v%d" % (vt, SPILL - 384, self.vL16))
            o.append("s_nop 0")
            o.append("v_cndmask_b32 v%d, v%d, v%d, vcc" % (self.vFr, self.vL16, vt))
        else:
            o.append("v_mov_b32 v%d, v%d" % (self.vFr, self.vL16))
        o.append("v_bfe_i32 v%d, v0, 0, 1" % self.vHm)
        o.append("v_xor_b32 v%d, 0xffff, v%d" % (self.vHm, self.vHm))
        self.emit(o)
        n = self.o["second"]
        self.emit(self.early[:n]); self.early = self.early[n:]
        self.vUT = vUT; self.vd = vd
        for q in (vt, vu, vUA): V.rel(q)
        A("s_cmp_eq_u32 s%d, 0" % sRole)
        A("s_cbranch_scc0 L_att")

    def warm(self, F, vt, vu, rec):
        if not self.o["warm"]: return
        t0, t1 = self.t0, self.t1
        F.append("s_lshl4_add_u32 s%d, s%d, s%d" % (t0, self.sR, self.sJ))
        F.append("s_lshl_b32 s%d, s%d, 8" % (t0, t0))
        F.append("s_add_u32 s%d, s%d, %d" % (t0, t0, rec))
        tmp = self.V()
        self.bits(F, vu, tmp, ((0, 1, 7), (1, 1, 11)))
        self.V.rel(tmp)
        F.append("v_add_u32 v%d, s%d, v%d" % (vu, t0, vu))
        F.append("v_cmp_le_u32 vcc, 0xe0, v0")
        F.append("s_cmp_eq_u32 s%d, 3" % self.sW)
        F.append("s_cselect_b64 s[%d:%d], s[48:49], s[%d:%d]" % (self.sPf, self.sPf + 1, self.sPf, self.sPf + 1))
        F.append("v_cndmask_b32 v%d, v%d, v%d, vcc" % (vt, vt, vu))
        F.append("v_cmp_le_u32 vcc, 0xc0, v0")
        F.append("s_nop 1")
        F.append("v_cndmask_b32 v%d, v%d, v%d, vcc" % (self.vPf, self.vPf, vt))

    def fpoll(self, d, va, so):
        A = self.A
        if self.o["pa"] == "atomic":
            A("v_mov_b32 v%d, s%d" % (d, self.sTag))
            A("s_mov_b64 exec, 0xff")
            A("v_mov_b32 v%d, 0" % d)
            A("buffer_atomic_or v%d, v%d, %s, s%d offen sc0 sc1" % (d, va, self.WS, so))
            A("s_mov_b64 exec, -1")
        else:
            A("buffer_load_dword v%d, v%d, %s, s%d offen %s" % (d, va, self.WS, so, self.o["pa"]))

    def pf(self):
        self.A("global_load_dword v%d, v%d, s[%d:%d]" % (self.vJunk, self.vPf, self.sPf, self.sPf + 1)); self.vm.issue("junk")
        self.A("v_add_u32 v%d, 0x10000, v%d" % (self.vPf, self.vPf))
        self.A("v_and_b32 v%d, 0x7ffff, v%d" % (self.vPf, self.vPf))

    def p2_setup(self, dg, first):
        V = self.V
        t0, t1, t2, t3 = self.t0, self.t1, self.t2, self.t3
        vt = V(); vu = V()
        o = []
        o.append("s_lshr_b32 s%d, s%d, 1" % (t3, self.sW))
        o.append("s_and_b32 s%d, s%d, 1" % (t2, self.sW))
        o.append("s_lshr_b32 s%d, s%d, 1" % (t1, self.sRT))
        self.bits(o, vt, vu, ((1, 2, 0), (4, 1, 2)))
        o.append("v_lshrrev_b32 v%d, 2, v0" % vu)
        o.append("v_xor_b32 v%d, v0, v%d" % (vu, vu))
        o.append("v_and_or_b32 v%d, v%d, 8, v%d" % (vt, vu, vt))
        o.append("v_lshl_or_b32 v%d, v%d, 16, v%d" % (self.vDs, self.vDs, self.vDs))
        o.append("v_and_b32 v%d, v%d, v%d" % (self.vDs, self.vDs, self.vHm))
        sd = ["s_mov_b32 s%d, %d" % (self.so[k - 1], (k & 1) * 32768 + (k >> 1) * 4096) for k in range(1, 8)] + ["s_nop 0"]
        for k in range(0, 8, 2):
            o.append("v_cmp_eq_u32 vcc, %d, v%d" % (k, vt))
            o.append("v_cmp_eq_u32 s[%d:%d], %d, v%d" % (self.sMk, self.sMk + 1, k + 1, vt))
            o += sd[k:k + 2]
            o.append("v_cndmask_b32 v%d, 0, v%d, vcc" % (dg + k, self.vDs))
            o.append("v_cndmask_b32 v%d, 0, v%d, s[%d:%d]" % (dg + k + 1, self.vDs, self.sMk, self.sMk + 1))
        n1 = len(o)
        o.append("s_lshl3_add_u32 s%d, s%d, s%d" % (t0, self.sRW, self.sJ))
        o.append("s_lshl1_add_u32 s%d, s%d, s%d" % (t0, t0, t2))
        o.append("s_lshl_b32 s%d, s%d, 7" % (t0, t0))
        o.append("s_add_u32 s%d, s%d, %d" % (t0, t0, WS_FH))
        self.bits(o, self.vFlag, None, ((0, 5 if self.o["fline"] else 0, 2),))
        o.append("v_add_u32 v%d, s%d, v%d" % (self.vFlag, t0, self.vFlag))
        o.append("v_lshl_add_u32 v%d, s%d, 16, v%d" % (self.vFlag, self.sRole, self.vFlag))
        o.append("s_lshl1_add_u32 s%d, s%d, s%d" % (t0, t1, t3))
        self.bits(o, self.vf, None, ((0, 3, 7),))
        o.append("v_lshl_add_u32 v%d, s%d, 10, v%d" % (self.vf, t0, self.vf))
        o.append("s_mov_b32 s%d, %d" % (self.sFO, WS_FO)); o.append("s_mov_b32 s%d, %d" % (self.sFH, WS_FH))
        o.append("s_mul_i32 s%d, s%d, %d" % (t0, self.sRT, RT_STRIDE))
        o.append("s_lshl_b32 s%d, s%d, 14" % (self.sO, t3))
        o.append("s_lshl1_add_u32 s%d, s%d, s%d" % (self.sH, self.sO, t0))
        o.append("s_add_u32 s%d, s%d, %d" % (self.sH, self.sH, WS_A))
        o.append("s_add_u32 s%d, s%d, s%d" % (self.sO, self.sO, t0))
        o.append("s_add_u32 s%d, s%d, %d" % (self.sO, self.sO, WS_A + 65536))
        o.append("s_lshl4_add_u32 s%d, s%d, s%d" % (self.sO, self.sP9, self.sO))
        o.append("s_mul_i32 s%d, s%d, %d" % (t0, t3, 32768 + 4096))
        if first: o.append("s_add_u32 s%d, s%d, %d" % (t0, t0, first))
        o.append("v_add_u32 v%d, s%d, v%d" % (self.ac[0][0], t0, self.vBase0))
        for sx in range(1, 4): o.append("v_xor_b32 v%d, %d, v%d" % (self.ac[0][sx], 32 * sx, self.ac[0][0]))
        for sx in range(4): o.append("v_xor_b32 v%d, 4096, v%d" % (self.ac[1][sx], self.ac[0][sx]))
        o.append("v_lshl_add_u32 v%d, s%d, 12, v%d" % (self.vr, self.sW, self.vL16))
        if first: o.append("v_add_u32 v%d, %d, v%d" % (self.vr, first, self.vr))
        self.bits(o, vt, vu, ((5, 1, 5), (6, 1, 3)))
        o.append("v_lshl_add_u32 v%d, s%d, 6, v%d" % (vt, t1, vt))
        o.append("v_lshl_add_u32 v%d, v%d, 10, v%d" % (vt, vt, self.vd))
        o.append("v_lshlrev_b32 v%d, 1, v%d" % (self.vOut, vt))
        V.rel(vt); V.rel(vu)
        return o[:n1], o[n1:]

    def gate_fill(self):
        V = self.V
        F = []
        t0, t1 = self.S(), self.t3
        g = V(4, 4); gx = self.gx; vt = V()
        F.append("s_add_u32 s%d, s%d, 1" % (self.sE, self.sE))
        F.append("s_mul_i32 s%d, s%d, 0x9e3779b1" % (self.sTag, self.sE))
        F.append("v_mov_b32 v%d, s%d" % (self.vTag, self.sTag))
        F.append("v_mov_b32 v%d, 0" % g); F.append("v_mov_b32 v%d, 0" % (g + 2))
        for i in range(4):
            F.append("v_dot2c_f32_bf16 v%d, v%d, v%d" % (g, gx + i, gx + 8 + i))
            F.append("v_dot2c_f32_bf16 v%d, v%d, v%d" % (g + 2, gx + 4 + i, gx + 8 + i))
        side = ["v_mov_b32 v%d, v%d" % (g + 1, self.vTag), "v_mov_b32 v%d, v%d" % (g + 3, self.vTag), "v_cmp_eq_u32 vcc, 0x3f0, v%d" % self.vL16,
                "v_mov_b32 v%d, 0x%x" % (vt, HUGE)]
        side.append("s_and_b32 s%d, s%d, 32" % (t0, self.sN2))
        for bit, w_, sh in ((1, 2, 3), (4, 1, 2), (0, 1, 1), (3, 1, 0)):
            side.append("s_bfe_u32 s%d, s%d, 0x%x" % (t1, self.sN2, (w_ << 16) | bit))
            side.append(("s_lshl%d_add_u32" % sh if sh else "s_add_u32") + " s%d, s%d, s%d" % (t0, t1, t0))
        side.append("v_cndmask_b32 v%d, v%d, 0, vcc" % (vt, vt))
        side.append("s_lshl_b32 s%d, s%d, 10" % (t1, self.sR))
        side.append("s_lshl4_add_u32 s%d, s%d, s%d" % (t0, t0, t1))
        side.append("s_add_u32 s%d, s%d, %d" % (t0, t0, WS_G))
        F += side[:3]; side = side[3:]
        for md in ("row_shr:1 row_mask:0xf", "row_shr:2 row_mask:0xf", "row_shr:4 row_mask:0xf", "row_shr:8 row_mask:0xf", "row_bcast:15 row_mask:0xa", "row_bcast:31 row_mask:0xc"):
            for q in (g, g + 2): F.append("v_add_f32_dpp v%d, v%d, v%d %s bank_mask:0xf" % (q, q, q, md))
            F += side[:2]; side = side[2:]
        for q in (g, g + 2): F.append("v_mul_f32 v%d, 0xbfb8aa3b, v%d" % (q, q))
        for q in (g, g + 2): F.append("v_exp_f32 v%d, v%d" % (q, q))
        for q in (g, g + 2): F.append("v_add_f32 v%d, 1.0, v%d" % (q, q))
        for q in (g, g + 2): F.append("v_rcp_f32 v%d, v%d" % (q, q))
        F += side
        for q in (g, g + 2): F.append("v_cvt_pk_bf16_f32 v%d, 0, v%d" % (q, q))
        def st():
            self.A("buffer_store_dwordx4 %s, v%d, %s, s%d offen sc1" % (v(g, 4), vt, self.WS, t0)); self.vm.issue("gst")
        if self.o["glate"]: self.gst = st
        else: F.append(st)
        def rel():
            V.rel(g, 4); V.rel(vt); V.rel(gx, 12)
        self._rel_fill = rel
        return F

    def g_loads(self):
        n = self.nG1
        self.A("buffer_load_dwordx%d %s, v%d, %s, 0 offen sc1" % (n, v(self.vG1, n), self.vG1a, self.WS)); self.vm.issue("g")
        self.A("buffer_load_dwordx2 %s, v%d, %s, 0 offen sc1" % (v(self.vG2, 2), self.vG2a, self.WS)); self.vm.issue("g")

    def g_check(self, name):
        A, V = self.A, self.V
        vt = V()
        self.vm.wait("g")
        A.label("L_gchk_" + name)
        A("v_xor_b32 v%d, v%d, v%d" % (vt, self.vG1 + 1, self.vTag))
        if self.nG1 == 4: A("v_bitop3_b32 v%d, v%d, v%d, v%d bitop3:0xf6" % (vt, vt, self.vG1 + 3, self.vTag))
        A("v_bitop3_b32 v%d, v%d, v%d, v%d bitop3:0xf6" % (vt, vt, self.vG2 + 1, self.vTag))
        A("v_cmp_ne_u32 vcc, 0, v%d" % vt)
        self.cap()
        A("s_cbranch_scc0 L_gok_" + name)
        q = list(self.vm.q)
        self.g_loads(); A("s_waitcnt vmcnt(0)")
        self.vm.q = q
        A("s_branch L_gchk_" + name)
        A.label("L_gok_" + name)
        V.rel(vt)

    def step(self, ms, rd, dm, nfill):
        A = self.A
        n = len(ms); rd = list(rd); dm = list(dm)
        per = -(-len(rd) // max(1, n // 2))
        slots = set(range(n - min(len(dm), n), n)) if rd else set(range(0, n, max(1, n // max(1, len(dm)))))
        for k, (f, tags) in enumerate(ms):
            cur = dm.pop(0) if (dm and k in slots) else None
            if isinstance(cur, tuple): self.emit(cur[0])
            for t in tags: self.lg.wait(t)
            f()
            got = 0
            for _ in range(per):
                if rd:
                    t, tg = rd.pop(0); A(t); self.lg.issue(tg); got += 1
            if cur is not None: (cur[1] if isinstance(cur, tuple) else cur)()
            self.pop(max(0, nfill - got - (2 if cur is not None else 0)))
        assert not rd
        self.emit(dm)

    def p1_loop(self, name, reads, mfmas, tail, fill):
        A = self.A
        self.stamp(20)
        early = list(self.early)
        if self.o["pf0"]: early.insert(len(early) - 8, self.pf)
        self.emit(early)
        npf = self.o["pf"]
        for _ in range(npf[0]): self.pf()
        self.stamp(21)
        self.fill = self.gate_fill() + fill
        for c in range(8):
            dm = self.chunk_dmas(c + 2) if c + 2 < 8 else tail[c - 6]
            dm = dm + [self.pf] * npf[c + 1]
            if c == 5 and self.o["glate"]: dm = dm + [self.gst]
            n1 = self.vm.need("ch%d" % c)
            A("s_waitcnt vmcnt(%d) lgkmcnt(0)" % n1); self.lg.zero(False)
            if c in (0, 1, 2, 4, 7): self.stamp({0: 1, 1: 2, 2: 3, 4: 4, 7: 5}[c])
            A("s_cmp_eq_u32 s%d, %d" % (self.sCX, c))
            A("s_barrier")
            A("s_cbranch_scc0 L_nx_%s%d" % (name, c))
            hi, lo = self.lds_off((c % 3) * 32768)
            for e in range(2): A("ds_read_b128 %s, v%d offset:%d" % (v(self.xdf + 4 * e, 4), self.axd[hi][e], lo))
            A.label("L_nx_%s%d" % (name, c))
            q = [dm[(len(dm) * i) // 4:(len(dm) * (i + 1)) // 4] for i in range(4)]
            last = []
            if c == 7 and self.o["late7"]:
                q = [[], [], [], dm[:4]]; last = dm[4:]
            for t, tg in reads(c, 0, 0):
                A(t); self.lg.issue(tg)
            if c > 0: self.step(mfmas(c - 1, 3, 1), [], q[0], 4)
            else: self.emit(q[0])
            for sx in range(3):
                self.step(mfmas(c, sx, sx & 1), reads(c, sx + 1, (sx + 1) & 1), q[sx + 1], 4)
        self.step(mfmas(7, 3, 1), [], last, 0)
        assert not self.fill
        self._rel_fill()
        self.stamp(6)

    def lds_off(self, total):
        return (total >> 16, total & 0xffff)

    def wo_reads(self, half):
        L = []
        for n in range(8):
            for lt in range(2):
                for h in range(2):
                    L.append("ds_read_b64_tr_b16 %s, v%d offset:%d" % (a(64 * half + 8 * n + 4 * lt + 2 * h, 2), self.aw[lt], n * 2048 + h * 1024))
        return L

    def ssm(self):
        A, V, S = self.A, self.V, self.S
        t0, t1, t2, t3 = self.t0, self.t1, self.t2, self.t3
        vt = V(); vu = V()
        for q in (self.vUT, self.vTr): V.rel(q)
        self.nG1 = 4; self.vG1 = V(4, 4)
        ax = [[V() for _ in range(4)] for _ in range(2)]; ab = [[V() for _ in range(4)] for _ in range(2)]
        F = []
        for fam, sel in ((ax, t3), (ab, t2)):
            F.append("v_lshl_add_u32 v%d, s%d, 13, v%d" % (fam[0][0], sel, self.vBase0))
            for sx in range(1, 4): F.append("v_xor_b32 v%d, %d, v%d" % (fam[0][sx], 32 * sx, fam[0][0]))
            for sx in range(4): F.append("v_add_u32 v%d, 0x10000, v%d" % (fam[1][sx], fam[0][sx]))
        pre, pim, pdt = self.ppar
        lam = V(2); cf = V(2); mu = V(2); l32 = V(2); l64 = V(2); L1 = V(2); L2 = V(4, 2); ta = V(2); tb = V(2)
        F1 = F; F = []
        for q in (pre, pim, pdt): F.append("v_lshlrev_b32 v%d, 16, v%d" % (q, q))
        F.append("v_mul_f32 v%d, %s, v%d" % (pdt, LOG2E, pdt))
        F.append("v_exp_f32 v%d, v%d" % (pdt, pdt))
        F.append("v_mul_f32 v%d, v%d, v%d" % (tb, pre, pre))
        F.append("v_cvt_pk_bf16_f32 v%d, 0, v%d" % (pdt, pdt))
        F.append("v_fmac_f32 v%d, v%d, v%d" % (tb, pim, pim))
        F.append("v_mul_f32 v%d, v%d, v%d" % (ta, pdt, pre))
        F.append("v_mul_f32 v%d, v%d, v%d" % (ta + 1, pdt, pim))
        F.append("v_mul_f32 v%d, %s, v%d" % (ta, LOG2E, ta))
        F.append("v_mul_f32 v%d, 0.15915494, v%d" % (ta + 1, ta + 1))
        F.append("v_exp_f32 v%d, v%d" % (ta, ta))
        F.append("v_rndne_f32 v%d, v%d" % (tb + 1, ta + 1))
        F.append("v_sub_f32 v%d, v%d, v%d" % (ta + 1, ta + 1, tb + 1))
        F.append("v_rcp_f32 v%d, v%d" % (tb, tb))
        F.append("v_cos_f32 v%d, v%d" % (lam, ta + 1))
        F.append("v_sin_f32 v%d, v%d" % (lam + 1, ta + 1))
        F.append("v_add_f32 v%d, v%d, v%d" % (tb, tb, tb))
        F.append("v_mul_f32 v%d, v%d, v%d" % (lam, lam, ta))
        F.append("v_mul_f32 v%d, v%d, v%d" % (lam + 1, lam + 1, ta))
        F.append("v_add_f32 v%d, -1.0, v%d" % (ta, lam))
        F.append("v_mul_f32 v%d, v%d, v%d" % (cf, ta, pre))
        F.append("v_mul_f32 v%d, v%d, v%d" % (cf + 1, lam + 1, pre))
        F.append("v_fmac_f32 v%d, v%d, v%d" % (cf, lam + 1, pim))
        F.append("v_fma_f32 v%d, -v%d, v%d, v%d" % (cf + 1, ta, pim, cf + 1))
        F.append("v_mul_f32 v%d, v%d, v%d" % (cf, cf, tb))
        F.append("v_mul_f32 v%d, v%d, v%d" % (cf + 1, cf + 1, tb))
        chain = [lam, ta, tb, ta, mu, l32, l64, L1, L2]
        for x_, y_ in zip(chain, chain[1:]):
            F.append("v_mul_f32 v%d, v%d, v%d" % (y_, x_, x_))
            F.append("v_mul_f32 v%d, v%d, v%d" % (y_ + 1, x_, x_ + 1))
            F.append("v_fma_f32 v%d, -v%d, v%d, v%d" % (y_, x_ + 1, x_ + 1, y_))
            F.append("v_add_f32 v%d, v%d, v%d" % (y_ + 1, y_ + 1, y_ + 1))
        F.append("v_sub_f32 v%d, 0, v%d" % (L2 + 2, L2 + 1)); F.append("v_mov_b32 v%d, v%d" % (L2 + 3, L2 + 1))
        al = V(4, 2); x1 = V(2); hm = S(2, 2); wm = S(2, 2)
        for (d, src, mk) in ((x1, l32, hm), (ta, l64, wm), (L1, L1, hm)):
            F.append("v_cndmask_b32 v%d, 1.0, v%d, s[%d:%d]" % (d, src, mk, mk + 1))
            F.append("v_cndmask_b32 v%d, 0, v%d, s[%d:%d]" % (d + 1, src + 1, mk, mk + 1))
        self.cmul(F, tb, tb + 1, x1, x1 + 1, ta, ta + 1)
        self.cmul(F, al, al + 2, cf, cf + 1, tb, tb + 1)
        self.cmul(F, al + 1, al + 3, mu, mu + 1, al, al + 2)
        ea = [V() for _ in range(8)]; et = [V() for _ in range(8)]; ea0 = ea[0]
        F.append("v_and_b32 v%d, 0xff, v%d" % (ta, self.vTag))
        for k in range(8): F.append("v_bfi_b32 v%d, v%d, 0, v%d" % (et[k], et[k], ta))
        F2 = F; F = F1
        F.append("s_mov_b32 s%d, 0" % hm); F.append("s_mov_b32 s%d, -1" % (hm + 1))
        F.append("s_sub_u32 s%d, 0, s%d" % (wm, t3)); F.append("s_mov_b32 s%d, s%d" % (wm + 1, wm))
        Sk = V(8, 4)
        self.bits(F, vu, vt, ((1, 1, 0), (3, 2, 1)))
        F.append("v_lshlrev_b32 v%d, 3, v0" % vt)
        F.append("v_xor_b32 v%d, v0, v%d" % (vt, vt))
        F.append("v_and_or_b32 v%d, v%d, 32, v%d" % (vu, vt, vu))
        for k in range(0, 8, 2):
            F.append("v_cmp_eq_u32 vcc, %d, v%d" % (k, vu))
            F.append("v_cmp_eq_u32 s[%d:%d], %d, v%d" % (self.sMk, self.sMk + 1, k + 1, vu))
            F.append("v_cndmask_b32 v%d, 0, v%d, vcc" % (Sk + k, self.vHm))
            F.append("v_cndmask_b32 v%d, 0, v%d, s[%d:%d]" % (Sk + k + 1, self.vHm, self.sMk, self.sMk + 1))
        vEs = V(); vXa = V()
        F.append("s_lshl1_add_u32 s%d, s%d, s%d" % (t0, self.sJ, t2))
        F.append("s_lshl_b32 s%d, s%d, 12" % (t0, t0))
        F.append("s_add_u32 s%d, s%d, %d" % (t0, t0, WS_E))
        F.append("s_add_u32 s68, s48, s%d" % t0); F.append("s_addc_u32 s69, s49, 0")
        self.bits(F, vt, None, ((0, 5, 3),))
        F.append("v_lshl_add_u32 v%d, s%d, 8, v%d" % (vEs, self.sR, vt))
        F.append("v_lshl_add_u32 v%d, s%d, 8, v%d" % (vXa, self.sW, vt))
        F.append("v_lshl_add_u32 v%d, s%d, 6, v%d" % (vXa, self.sP9, vXa))
        F.append("v_xor_b32 v%d, %d, v%d" % (vXa, L_R1 + 32768, vXa))
        self.bits(F, ea0, None, ((5, 1, 8),))
        F.append("v_sub_u32 v%d, v%d, v%d" % (ea0, vEs, ea0))
        F.append("v_subrev_u32 v%d, 256, v%d" % (ea0, ea0))
        F.append("v_and_b32 v%d, 0xa0, v0" % vt)
        F.append("v_cmp_eq_u32 vcc, 0x80, v%d" % vt)
        F.append("v_mov_b32 v%d, 0x%x" % (vt, HUGE))
        for k in range(1, 8): F.append("v_subrev_u32 v%d, %d, v%d" % (ea[k], 512 * k, ea0))
        for k in range(8): F.append("v_ashrrev_i32 v%d, 31, v%d" % (et[k], ea[k]))
        F.append("v_cndmask_b32 v%d, v%d, v%d, vcc" % (vEs, vt, vEs))
        self.bits(F, vt, vu, ((0, 1, 7), (1, 1, 12)))
        F.append("v_lshl_add_u32 v%d, s%d, 13, v%d" % (vt, self.sJ, vt))
        F.append("v_lshl_add_u32 v%d, s%d, 8, v%d" % (vt, self.sR, vt))
        F.append("v_add_u32 v%d, %d, v%d" % (vt, WS_E, vt))
        self.warm(F, vt, vu, WS_FH)
        sH = [S() for _ in range(4)]
        F.append("s_mul_i32 s%d, s%d, %d" % (t0, self.sRW, 2 * RT_STRIDE))
        F.append("s_and_b32 s%d, s%d, 4" % (t1, self.sJ)); F.append("s_add_u32 s%d, s%d, s%d" % (t1, t1, self.sJ))
        F.append("s_lshl1_add_u32 s%d, s%d, s%d" % (t1, t1, t2)); F.append("s_lshl_b32 s%d, s%d, 11" % (t1, t1))
        F.append("s_add_u32 s%d, s%d, s%d" % (t0, t0, t1))
        for tau in range(2):
            for comp in range(2):
                F.append("s_add_u32 s%d, s%d, %d" % (sH[2 * tau + comp], t0, WS_A + tau * RT_STRIDE + comp * 16384))
        self.emit(F)
        U = [[V(16, 4), V(16, 4)], [V(16, 4), V(16, 4)]]
        fr = self.acc
        def reads(c, sx, buf):
            slot = (c % 3) * 32768
            out = []
            for k, (fam, off) in enumerate(((ax, 0), (ab, 16384), (ab, 16384 + 4096), (ax, 4096))):
                hi, lo = self.lds_off(slot + off)
                out.append(("ds_read_b128 %s, v%d offset:%d" % (v(fr[buf] + 4 * k, 4), fam[hi][sx], lo), "f%d_%d" % (buf, k)))
            return out
        def mfmas(c, sx, buf):
            out = []
            z = "0" if (c == 0 and sx == 0) else None
            for (tau, comp) in ((0, 0), (0, 1), (1, 0), (1, 1)):
                ka = 0 if tau == 0 else 3; kb = 1 + comp
                out.append(((lambda tau=tau, comp=comp, ka=ka, kb=kb: self.mfma(U[comp][tau], v(fr[buf] + 4 * ka, 4), v(fr[buf] + 4 * kb, 4), z)),
                            ["f%d_%d" % (buf, max(ka, kb))]))
            return out
        c1 = self.c_dmas(1, L_R1)
        self.p1_loop("s", reads, mfmas, [self.wo_dmas(0), c1[:8] + ([] if self.o["glate"] else [self.g_loads])], F2)
        for q in self.ppar: V.rel(q)
        for q in (ta, tb): V.rel(q, 2)
        for fam in (ax, ab):
            for row in fam:
                for q in row: V.rel(q)
        for q in self.vw + self.vx: V.rel(q)
        pr = lambda comp, m: v(U[comp][m >> 3] + 2 * (m & 7), 2)
        E = [V(4, 2), V(4, 2)]
        SR = " op_sel_hi:[0,1,1]"; SI = " op_sel:[1,0,0]"; NG = " neg_lo:[1,0,0] neg_hi:[1,0,0]"
        L = v(lam, 2)
        cur = (pr(0, 0), pr(1, 0))
        for m in range(1, 16):
            d = E[m & 1]; dr, di = v(d, 2), v(d + 2, 2)
            A("v_pk_fma_f32 %s, %s, %s, %s%s" % (dr, L, cur[0], pr(0, m), SR))
            A("v_pk_fma_f32 %s, %s, %s, %s%s" % (di, L, cur[1], pr(1, m), SR))
            A("v_pk_fma_f32 %s, %s, %s, %s%s%s" % (dr, L, cur[1], dr, SI, NG))
            A("v_pk_fma_f32 %s, %s, %s, %s%s" % (di, L, cur[0], di, SI))
            cur = (dr, di)
        Ev = E[1]
        F0 = V(2); F1 = V(2); G = V(2); G0 = V(2); e = V(2)
        o = []
        self.cmul(o, F0, F0 + 1, mu, mu + 1, Ev, Ev + 2, Ev + 1, Ev + 3)
        o.append("v_mov_b32 v%d, v%d" % (F1, F0)); o.append("v_mov_b32 v%d, v%d" % (F1 + 1, F0 + 1))
        o.append("s_movk_i32 s%d, 0xff" % t0)
        o.append("v_permlane32_swap_b32 v%d, v%d" % (F0, F1)); o.append("v_permlane32_swap_b32 v%d, v%d" % (F0 + 1, F1 + 1))
        self.cmul(o, G, G + 1, l32, l32 + 1, F0, F0 + 1, F1, F1 + 1)
        self.emit(o)
        A("ds_write_b64 v%d, %s" % (vXa, v(G, 2)))
        A("v_and_b32 v%d, 0xfffffdff, v%d" % (vXa, vXa))
        A("s_waitcnt vmcnt(%d) lgkmcnt(0)" % self.vm.need("wo0"))
        A("s_barrier")
        A("ds_read_b64 %s, v%d" % (v(G0, 2), vXa))
        A("s_waitcnt lgkmcnt(0)"); self.lg.zero(False)
        o = []
        self.cmul(o, e, e + 1, l64, l64 + 1, G0, G0 + 1, G, G + 1)
        self.emit(o)
        er = self.acc[1]
        def eloads():
            for i in range(8):
                A("buffer_load_dwordx2 %s, v%d, %s, 0 offen %s" % (v(er + 2 * i, 2), ea[i], self.ER, self.o["pe"])); self.vm.issue("er")
        A("v_bfi_b32 v%d, s%d, v%d, v%d" % (e, t0, self.vTag, e))
        A("v_bfi_b32 v%d, s%d, v%d, v%d" % (e + 1, t0, self.vTag, e + 1))
        if self.o["espec"] == 1: eloads()
        A("buffer_store_dwordx2 %s, v%d, %s, 0 offen sc1" % (v(e, 2), vEs, self.ER)); self.vm.issue("est")
        if self.o["espec"] == 2: eloads()
        if self.o["glate"]: self.g_loads()
        self.stamp(7)
        W = []
        be = V(4, 2); x2 = V(2); x3 = V(2)
        for (d, mk) in ((F0, hm), (G0, wm)):
            for h in range(2): W.append("v_cndmask_b32 v%d, 0, v%d, s[%d:%d]" % (d + h, d + h, mk, mk + 1))
        self.cmul(W, x3, x3 + 1, x1, x1 + 1, G0, G0 + 1, F0, F0 + 1)
        self.cmul(W, be, be + 2, cf, cf + 1, x3, x3 + 1)
        self.cmul(W, x2, x2 + 1, mu, mu + 1, x3, x3 + 1, Ev, Ev + 2)
        self.cmul(W, be + 1, be + 3, cf, cf + 1, x2, x2 + 1)
        C = v(cf, 2); T = v(x1, 2)
        for m in range(16):
            W.append("v_pk_mul_f32 %s, %s, %s op_sel:[1,0]" % (T, C, pr(0, m)))
            W.append("v_pk_mul_f32 %s, %s, %s op_sel_hi:[0,1]" % (pr(0, m), C, pr(0, m)))
            W.append("v_pk_fma_f32 %s, %s, %s, %s%s%s" % (pr(0, m), C, pr(1, m), pr(0, m), SI, NG))
            W.append("v_pk_fma_f32 %s, %s, %s, %s%s" % (pr(1, m), C, pr(1, m), T, SR))
        for q in (F1, G, G0, e, l32, l64): V.rel(q, 2)
        V.rel(E[0], 4)
        c0 = self.c_dmas(0, L_R0)
        self.emit(weave(W, c0[:8], self.wo_reads(0)))
        self.g_check("ssm")
        Sm = [V(8, 4), Sk]; og = V(2)
        for tau in range(2): A("v_sub_f32 v%d, 1.0, v%d" % (og + tau, self.vG1 + 2 * tau))
        for tau in range(2): A("v_cvt_pk_bf16_f32 v%d, v%d, v%d" % (og + tau, og + tau, og + tau))
        for tau in range(2):
            for k in range(8): A("v_and_b32 v%d, v%d, v%d" % (Sm[tau] + k, Sk + k, og + tau))
        A("s_waitcnt lgkmcnt(0)")
        A("s_barrier")
        ld = c1[8:] + self.wo_dmas(1) + c0[8:]; n = self.o["ssm_c"]
        self.emit(ld[:n]); ld = ld[n:]
        self.stamp(8); self.stamp(24)
        if self.o["espec"]:
            self.vm.wait("er")
            A("s_branch L_echk")
        q = list(self.vm.q)
        A.label("L_epoll")
        eloads()
        A("s_waitcnt vmcnt(0)")
        self.vm.q = q if self.o["espec"] else []
        A.label("L_echk")
        for i in range(8):
            for h in range(2): A("v_xor_b32 v%d, v%d, v%d" % (er + 2 * i + h, er + 2 * i + h, et[i]))
            if i == 0: A("v_or_b32 v%d, v%d, v%d" % (vt, er, er + 1))
            else: A("v_or3_b32 v%d, v%d, v%d, v%d" % (vt, vt, er + 2 * i, er + 2 * i + 1))
        A("v_and_b32 v%d, 0xff, v%d" % (vt, vt))
        A("v_cmp_ne_u32 vcc, 0, v%d" % vt)
        self.poll_tail("L_epoll")
        self.stamp(9)
        n = self.o["ssm_d"]
        self.emit(ld[:n]); ld = ld[n:]
        for i in range(6, -1, -1):
            d = v(er + 2 * i, 2); p_ = v(er + 2 * i + 2, 2)
            A("v_pk_fma_f32 %s, %s, %s, %s op_sel_hi:[0,1,1]" % (d, v(L2, 2), p_, d))
            A("v_pk_fma_f32 %s, %s, %s, %s op_sel:[0,1,0] op_sel_hi:[1,0,1]" % (d, v(L2 + 2, 2), p_, d))
        o = []
        self.cmul(o, x1, x1 + 1, L1, L1 + 1, er, er + 1)
        o.append("v_mov_b32 v%d, v%d" % (x2, x1)); o.append("v_mov_b32 v%d, v%d" % (x2 + 1, x1 + 1))
        o.append("v_permlane32_swap_b32 v%d, v%d" % (x1, x2)); o.append("v_permlane32_swap_b32 v%d, v%d" % (x1 + 1, x2 + 1))
        o.append("v_pk_add_f32 %s, %s, %s" % (v(x1, 2), v(x1, 2), v(x2, 2)))
        c_ = v(x1, 2); br, bi, ar_, ai_ = v(be, 2), v(be + 2, 2), v(al, 2), v(al + 2, 2)
        o.append("v_pk_fma_f32 %s, %s, %s, %s%s" % (br, c_, ar_, br, SR))
        o.append("v_pk_fma_f32 %s, %s, %s, %s%s" % (bi, c_, ai_, bi, SR))
        o.append("v_pk_fma_f32 %s, %s, %s, %s%s%s" % (br, c_, ai_, br, SI, NG))
        o.append("v_pk_fma_f32 %s, %s, %s, %s%s" % (bi, c_, ar_, bi, SI))
        self.emit(o)
        for q in ea + et + [vEs, vXa]: V.rel(q)
        for q in (F0, mu, L1, cf, x1, x2, x3, og): V.rel(q, 2)
        for q in (E[1], L2, al): V.rel(q, 4)
        D = self.acc
        P = [[[V(4, 4), V(4, 4)] for _ in range(2)] for _ in range(2)]
        cur = (br, bi)
        def finish(tau, dsts):
            out = []
            for comp in range(2):
                for k in range(8):
                    q = P[comp][tau][k >> 2]
                    out.append("v_cvt_pk_bf16_f32 v%d, v%d, v%d" % (q + (k & 3), dsts[comp] + 2 * k, dsts[comp] + 2 * k + 1))
                    if k & 3 == 3:
                        def st(q=q, k=k, comp=comp):
                            A("buffer_store_dwordx4 %s, v%d, %s, s%d offen%s %s" % (v(q, 4), self.vFr, self.WS, sH[2 * tau + comp], " offset:1024" if k == 7 else "", self.o["ha"]))
                            self.vm.issue("ast")
                        out.append(st)
            return out
        pend = []
        fin0 = finish(0, D)
        for m in range(16):
            tau, k = m >> 3, m & 7
            dr, di = pr(0, m), pr(1, m)
            A("v_pk_fma_f32 %s, %s, %s, %s%s" % (dr, L, cur[0], dr, SR))
            A("v_pk_fma_f32 %s, %s, %s, %s%s" % (di, L, cur[1], di, SR))
            if pend: pend.pop(0)()
            A("v_pk_fma_f32 %s, %s, %s, %s%s%s" % (dr, L, cur[1], dr, SI, NG))
            A("v_pk_fma_f32 %s, %s, %s, %s%s" % (di, L, cur[0], di, SI))
            cur = (dr, di)
            b0 = U[0][tau] + 2 * k; b1 = U[1][tau] + 2 * k
            A("v_cvt_pk_bf16_f32 v%d, v%d, v%d" % (P[0][tau][k >> 2] + (k & 3), b0, b0 + 1))
            A("v_cvt_pk_bf16_f32 v%d, -v%d, -v%d" % (P[1][tau][k >> 2] + (k & 3), b1, b1 + 1))
            if k & 3 == 3:
                kk = k >> 2
                dst = D if tau == 0 else [U[0][0], U[1][0]]
                for comp in range(2):
                    pend.append(lambda comp=comp, dst=dst, tau=tau, kk=kk: self.mfma(dst[comp], v(P[comp][tau][kk], 4), v(Sm[tau] + 4 * kk, 4), "0" if kk == 0 else None))
            if m >= 11: self.emit(fin0[:4]); fin0 = fin0[4:]
        for f in pend: f()
        self.emit(fin0)
        self.emit(finish(1, [U[0][0], U[1][0]]))
        self.stamp(10)
        self.dg = U[1][1]; self.og = U[0][1]
        n = self.o["ssm_e"]
        self.lateE, self.lateF = ld[:n], ld[n:]
        assert len(self.lateF) >= 2
        self.ogbase = ["s_xor_b32 s%d, s%d, %d" % (t0, self.sMC, L_R0 + 7 * 8192)]

    def att(self):
        A, V, S = self.A, self.V, self.S
        t0, t1, t2, t3 = self.t0, self.t1, self.t2, self.t3
        vt = V(); vu = V()
        self.nG1 = 2; self.vG1 = V(2)
        ax = [[[V() for _ in range(4)] for _ in range(2)] for _ in range(2)]
        akv = [V(), V()]; aq = [V(), V()]; vq = [V(), V()]
        sM2 = S(); sKV = [S() for _ in range(4)]; sOo = S(); sEps = S()
        vKs = V(); vKp = V(); xw = V(); xr = V(); xz = V(); c10 = V(); c01 = V(); ones = V(4, 4); cl = V(2)
        kw = V(); zw = V(); r0 = V(); r1 = V()
        F = []
        F.append("v_lshl_add_u32 v%d, s%d, 3, v%d" % (self.vG1a, t2, self.vG1a))
        F.append("v_lshl_add_u32 v%d, s%d, 12, v%d" % (ax[0][0][0], self.sW, self.vBase0))
        for sx in range(1, 4): F.append("v_xor_b32 v%d, %d, v%d" % (ax[0][0][sx], 32 * sx, ax[0][0][0]))
        for sx in range(4): F.append("v_xor_b32 v%d, 4096, v%d" % (ax[1][0][sx], ax[0][0][sx]))
        for lt in range(2):
            for sx in range(4): F.append("v_add_u32 v%d, 0x10000, v%d" % (ax[lt][1][sx], ax[lt][0][sx]))
        F.append("v_and_b32 v%d, 64, v0" % vt)
        F.append("v_xor_b32 v%d, v%d, v%d" % (akv[0], vt, self.vTr))
        F.append("v_add_u32 v%d, 0x10000, v%d" % (akv[1], akv[0]))
        F.append("v_add_u32 v%d, %d, v%d" % (aq[0], L_R1, self.vTr))
        F.append("v_xor_b32 v%d, 64, v%d" % (aq[1], aq[0]))
        self.bits(F, vt, vu, ((3, 3, 0), (6, 2, 4)))
        F.append("v_mul_u32_u24 v%d, 3072, v%d" % (vt, vt))
        F.append("v_lshl_add_u32 v%d, s%d, 7, v%d" % (vt, self.sJ, vt))
        F.append("v_add_u32 v%d, v%d, v%d" % (vq[0], vt, self.vUT))
        F.append("v_add_u32 v%d, %d, v%d" % (vq[1], 8 * 3072 - 1024, vq[0]))
        F.append("s_lshl_b32 s%d, s%d, 11" % (sM2, self.sW))
        F.append("s_add_u32 s%d, s%d, %d" % (sM2, sM2, L_R1))
        sPq = S()
        F.append("s_lshl_b32 s%d, s%d, 2" % (sPq, self.sPar) if not self.o["rot"][2] else "s_mov_b32 s%d, 0" % sPq)
        F.append("s_lshl2_add_u32 s%d, s%d, s%d" % (t0, self.sJ, self.sW))
        F.append("s_lshl_b32 s%d, s%d, 14" % (t0, t0))
        for i in range(4): F.append("s_add_u32 s%d, s%d, %d" % (sKV[i], t0, WS_KV + 4096 * i))
        F.append("v_lshl_add_u32 v%d, s%d, 10, v%d" % (vKs, self.sR, self.vFr))
        self.bits(F, vKp, None, ((0, 4, 10),))
        F.append("v_lshl_add_u32 v%d, s%d, 11, v%d" % (xw, self.sW, self.vL16))
        F.append("v_add_u32 v%d, %d, v%d" % (xw, L_SP, xw))
        F.append("v_lshl_add_u32 v%d, s%d, 10, v%d" % (xr, t3, xw))
        F.append("v_and_b32 v%d, 0xffffefff, v%d" % (xr, xr))
        F.append("v_lshlrev_b32 v%d, 2, v0" % xz)
        F.append("v_add_u32 v%d, %d, v%d" % (xz, L_SP + 8192, xz))
        F.append("v_mov_b32 v%d, 0x3f80" % c10); F.append("v_mov_b32 v%d, 0x3f800000" % c01)
        for i in range(4): F.append("v_mov_b32 v%d, 0x3f803f80" % (ones + i))
        F.append("v_mov_b32 v%d, %s" % (cl, LOG2E))
        F.append("s_mov_b32 s%d, 0x358637bd" % sEps)
        KB = L_SP + 10240; ZB = L_SP + 12288
        F.append("v_and_b32 v%d, 16, v0" % vt)
        F.append("v_cmp_ne_u32 s[%d:%d], 0, v%d" % (self.sMk, self.sMk + 1, vt))
        F.append("v_add_u32 v%d, %d, v%d" % (r0, KB, self.vL16))
        F.append("v_lshl_add_u32 v%d, s%d, 10, v%d" % (kw, t2, r0))
        F.append("v_lshl_add_u32 v%d, s%d, 3, v%d" % (kw, t3, kw))
        self.bits(F, zw, vt, ((0, 2, 1), (4, 1, 5), (2, 1, 4), (3, 1, 3), (6, 1, 10)))
        F.append("v_add_u32 v%d, %d, v%d" % (zw, ZB, zw))
        self.bits(F, vu, None, ((5, 1, 4),))
        F.append("v_add_u32 v%d, %d, v%d" % (vu, ZB, vu))
        F.append("v_add_u32 v%d, 32, v%d" % (vt, vu))
        F.append("v_cndmask_b32 v%d, v%d, v%d, s[%d:%d]" % (r1, vt, r0, self.sMk, self.sMk + 1))
        F.append("v_cndmask_b32 v%d, v%d, v%d, s[%d:%d]" % (r0, r0, vu, self.sMk, self.sMk + 1))
        self.bits(F, vt, vu, ((0, 3, 7), (3, 2, 14)) if self.o["warm"] == 2 else ((0, 0, 7), (3, 0, 14)))
        F.append("v_lshl_add_u32 v%d, s%d, 16, v%d" % (vt, self.sJ, vt))
        F.append("v_lshl_add_u32 v%d, s%d, 10, v%d" % (vt, self.sR, vt))
        F.append("v_add_u32 v%d, %d, v%d" % (vt, WS_KV, vt))
        self.warm(F, vt, vu, WS_FO)
        F.append("s_lshl1_add_u32 s%d, s%d, s%d" % (t0, self.sRW, t2))
        F.append("s_mul_i32 s%d, s%d, %d" % (t0, t0, RT_STRIDE))
        F.append("s_lshl_b32 s%d, s%d, 12" % (t1, self.sJ)); F.append("s_add_u32 s%d, s%d, s%d" % (t0, t0, t1))
        F.append("s_add_u32 s%d, s%d, %d" % (sOo, t0, WS_A + 65536))
        self.emit(F)
        for q in (self.vUT, self.vTr): V.rel(q)
        Kt = [V(16, 4), V(16, 4)]; Vt = [V(16, 4), V(16, 4)]
        fr = self.acc
        xk = lambda c, sx: a(128 + 16 * c + 4 * sx, 4)
        def reads(c, sx, buf):
            slot = (c % 3) * 32768
            out = []
            hi, lo = self.lds_off(slot)
            def rw(m):
                for h in range(2):
                    h2, l2 = self.lds_off(slot + 16384 + m * 8192 + sx * 2048 + h * 512)
                    out.append(("ds_read_b64_tr_b16 %s, v%d offset:%d" % (v(fr[buf] + 4 + 4 * m + 2 * h, 2), akv[h2], l2), "w%d_%d" % (buf, m)))
            out.append(("ds_read_b128 %s, v%d offset:%d" % (xk(c, sx), ax[0][hi][sx], lo), "x%d_0" % buf))
            rw(0)
            out.append(("ds_read_b128 %s, v%d offset:%d" % (v(fr[buf], 4), ax[1][hi][sx], lo), "x%d_1" % buf))
            rw(1)
            return out
        def mfmas(c, sx, buf):
            out = []
            z = "0" if (c == 0 and sx == 0) else None
            for (m, lt) in ((0, 0), (0, 1), (1, 0), (1, 1)):
                xf = xk(c, sx) if lt == 0 else v(fr[buf], 4); wf = v(fr[buf] + 4 + 4 * m, 4)
                out.append(((lambda m=m, lt=lt, xf=xf, wf=wf: self.mfma((Kt, Vt)[m][lt], xf, wf, z)), ["w%d_%d" % (buf, m), "x%d_%d" % (buf, lt)]))
            return out
        wq = []
        for c in range(8):
            for i in range(2):
                pre = [] if i else ["s_xor_b32 s%d, s%d, %d" % (self.sO1, sPq, c), "s_add_u32 s%d, s%d, s%d" % (self.sO2, self.sO1, self.sCh),
                                    "s_and_b32 s%d, s%d, 7" % (self.sO2, self.sO2), "s_mul_i32 s%d, s%d, s%d" % (self.sO2, self.sO2, self.sWst),
                                    "s_lshl_b32 s%d, s%d, 13" % (self.sO1, self.sO1), "s_add_u32 m0, s%d, s%d" % (sM2, self.sO1)]
                wq.append((pre, (lambda i=i: self.dma(vq[i], self.WA, "s%d" % self.sO2, 1024 * i, "wq"))))
        self.p1_loop("a", reads, mfmas, [wq[:8], wq[8:] + ([] if self.o["glate"] else [self.g_loads])], [])
        for lt in range(2):
            for row in ax[lt]:
                for q in row: V.rel(q)
        for q in akv + vq + self.vx + self.vw + self.ppar: V.rel(q)
        tmp = V(8, 4)
        def phi(src, dst):
            out = []
            for k0 in range(0, 8, 4):
                for k in range(k0, k0 + 4):
                    out.append("v_pk_mul_f32 %s, %s, %s op_sel_hi:[0,1]" % (v(tmp + 2 * (k & 3), 2), v(cl, 2), v(src + 2 * k, 2)))
                for k in range(k0, k0 + 4):
                    for h in range(2):
                        out.append("v_exp_f32 v%d, v%d clamp" % (tmp + 2 * (k & 3) + h, tmp + 2 * (k & 3) + h))
                        out.append("v_max_f32 v%d, s%d, v%d" % (src + 2 * k + h, sEps, src + 2 * k + h))
                for k in range(k0, k0 + 4):
                    out.append("v_pk_add_f32 %s, %s, %s" % (v(src + 2 * k, 2), v(src + 2 * k, 2), v(tmp + 2 * (k & 3), 2)))
                for k in range(k0, k0 + 4):
                    out.append("v_cvt_pk_bf16_f32 v%d, v%d, v%d" % (dst + k, src + 2 * k, src + 2 * k + 1))
            return out
        pk = [V(8, 4), V(8, 4)]; pv = [V(8, 4), V(8, 4)]; Tk, Tz = self.acc
        W = []
        for lt in range(2):
            ph = phi(Kt[lt], pk[lt])
            for kk in range(2):
                W += ph[28 * kk:28 * kk + 28]
                for k in range(4 * kk, 4 * kk + 4): W.append("v_cvt_pk_bf16_f32 v%d, v%d, v%d" % (pv[lt] + k, Vt[lt] + 2 * k, Vt[lt] + 2 * k + 1))
                z = "0" if (lt == 0 and kk == 0) else None
                W.append(lambda lt=lt, kk=kk, z=z: self.mfma(Tz, v(ones, 4), v(pk[lt] + 4 * kk, 4), z))
                W.append(lambda lt=lt, kk=kk, z=z: self.mfma(Tk, v(pk[lt] + 4 * kk, 4), v(pv[lt] + 4 * kk, 4), z))
        cf_ = self.c_dmas(1, L_R0); n = self.o["att_b"]
        self.emit(weave(W[:100], cf_[:n]) + W[100:] if n else W); cf_ = cf_[n:]
        Uu = Kt[0]
        A("ds_write_b32 v%d, v%d" % (xz, Tz))
        for i in range(8):
            A("v_cndmask_b32 v%d, v%d, v%d, s[%d:%d]" % (Uu + i, Tk + i, Tk + 8 + i, self.sMk, self.sMk + 1))
            if i & 3 == 3: A("ds_write_b128 v%d, %s offset:%d" % (xw, v(Uu + i - 3, 4), 256 * (i - 3)))
        A("v_xor_b32 v%d, 512, v%d" % (xz, xz))
        A("s_waitcnt lgkmcnt(0)")
        A("s_barrier")
        A("ds_read_b128 %s, v%d" % (v(Uu, 4), xr))
        A("ds_read_b128 %s, v%d offset:4096" % (v(Uu + 4, 4), xr))
        A("ds_read_b32 v%d, v%d" % (Uu + 14, xz))
        A("v_mov_b32 v%d, v%d" % (Uu + 11, self.vTag))
        A("s_waitcnt lgkmcnt(0)"); self.lg.zero(False)
        A("v_pk_add_f32 %s, %s, %s" % (v(Uu, 2), v(Uu, 2), v(Uu + 4, 2)))
        A("v_pk_add_f32 %s, %s, %s" % (v(Uu + 2, 2), v(Uu + 2, 2), v(Uu + 6, 2)))
        A("v_add_f32 v%d, v%d, v%d" % (Uu + 10, Uu + 14, Tz))
        A("v_cvt_pk_bf16_f32 v%d, v%d, v%d" % (Uu + 8, Uu, Uu + 1))
        A("v_cvt_pk_bf16_f32 v%d, v%d, v%d" % (Uu + 9, Uu + 2, Uu + 3))
        A("buffer_store_dwordx4 %s, v%d, %s, s%d offen sc1" % (v(Uu + 8, 4), vKs, self.WS, sKV[0])); self.vm.issue("kst")
        self.stamp(7)
        if self.o["glate"]:
            self.g_loads(); self.vm.wait("wq")
        else: self.g_check("att")
        A("s_barrier")
        Qt = self.acc
        qf = [pv[0], pv[0] + 4, pv[1], pv[1] + 4]
        rec = [Kt[0], Kt[1], Vt[0], Vt[1]]
        acc = V(6, 2)
        def qreads(n):
            gm, k = n >> 5, n & 31
            return [("ds_read_b64_tr_b16 %s, v%d offset:%d" % (v(qf[n % 4] + 2 * h, 2), aq[gm], k * 2048 + h * 512), "q%d" % n) for h in range(2)]
        def gl(n):
            A("buffer_load_dwordx4 %s, v%d, %s, s%d offen%s sc1" % (v(rec[n >> 2] + 4 * (n & 3), 4), self.vFr, self.WS, sKV[n >> 2], " offset:%d" % (1024 * (n & 3)) if n & 3 else ""))
            self.vm.issue("r%d" % n)
        def gsum():
            for i in range(6): A("v_mov_b32 v%d, 0" % (acc + i))
            for n in range(16):
                q = rec[n >> 2] + 4 * (n & 3)
                self.vm.wait("r%d" % n)
                A("v_dot2c_f32_bf16 v%d, v%d, v%d" % (acc, q, c10))
                A("v_dot2c_f32_bf16 v%d, v%d, v%d" % (acc + 1, q, c01))
                A("v_dot2c_f32_bf16 v%d, v%d, v%d" % (acc + 2, q + 1, c10))
                A("v_dot2c_f32_bf16 v%d, v%d, v%d" % (acc + 3, q + 1, c01))
                A("v_add_f32 v%d, v%d, v%d" % (acc + 4, acc + 4, q + 2))
                A("v_bitop3_b32 v%d, v%d, v%d, v%d bitop3:0xf6" % (acc + 5, acc + 5, q + 3, self.vTag))
        wr_ = self.wo_reads(0)
        ld = self.wo_dmas(0) + cf_
        gls = [([], (lambda n=n: gl(n))) for n in range(16)]
        g0 = self.o["att_g"]
        ph0 = phi(Qt[0], pk[0])
        for n in range(3):
            for t, tg in qreads(n): A(t); self.lg.issue(tg)
        for n in range(64):
            if n == 32:
                self.vm.wait("wo0")
                A("s_barrier")
            cur = None
            if n & 1 and ld: cur = ld.pop(0)
            elif n & 1 and n >= g0 and gls: cur = gls.pop(0)
            if cur: self.emit(cur[0])
            self.lg.wait("q%d" % n)
            self.mfma(Qt[n >> 5], v(qf[n % 4], 4), a(128 + 4 * (n & 31), 4), "0" if n & 31 == 0 else None)
            if n + 3 < 64:
                for t, tg in qreads(n + 3): A(t); self.lg.issue(tg)
            if n >= 32: A(wr_.pop(0)); self.lg.issue("wor")
            if cur: cur[1]()
            if n >= 35: self.emit(ph0[:2]); ph0 = ph0[2:]
        assert not ld and not wr_ and not ph0
        A("s_waitcnt lgkmcnt(0)"); self.lg.zero(False)
        A("s_barrier")
        self.stamp(8)
        if self.o["glate"]: self.g_check("att")
        late = self.c_dmas(0, L_R1); nc = self.o["att_c1"]
        self.emit(weave(phi(Qt[1], pk[1]), gls + late[:nc])); late = late[nc:]
        self.stamp(24)
        A.label("L_ksum")
        gsum()
        A("v_cmp_ne_u32 vcc, 0, v%d" % (acc + 5))
        self.cap()
        A("s_cbranch_scc0 L_kok")
        q = list(self.vm.q)
        A.label("L_kpoll")
        A("buffer_load_dword v%d, v%d, %s, s%d offen offset:1020 sc1" % (vt, vKp, self.WS, sKV[0]))
        A("s_waitcnt vmcnt(0)")
        A("v_cmp_ne_u32 vcc, s%d, v%d" % (self.sTag, vt))
        self.poll_tail("L_kpoll")
        for n in range(16): gl(n)
        A("s_waitcnt vmcnt(0)")
        self.vm.q = q
        A("s_branch L_ksum")
        A.label("L_kok")
        self.stamp(9)
        A("v_cvt_pk_bf16_f32 v%d, v%d, v%d" % (acc, acc, acc + 1))
        A("v_cvt_pk_bf16_f32 v%d, v%d, v%d" % (acc + 1, acc + 2, acc + 3))
        A("v_cvt_pk_bf16_f32 v%d, v%d, v%d" % (acc + 4, acc + 4, acc + 4))
        A("ds_write_b64 v%d, %s" % (kw, v(acc, 2)))
        A("ds_write_b16 v%d, v%d" % (zw, acc + 4))
        A("s_waitcnt lgkmcnt(0)")
        A("s_barrier")
        Ah = [pv[0], pv[0] + 4, pv[1], pv[1] + 4]
        for h in range(4): A("ds_read_b128 %s, v%d offset:%d" % (v(Ah[h], 4), (r0, r1)[h & 1], 1024 * (h >> 1)))
        for h in range(4):
            A("s_waitcnt lgkmcnt(%d)" % (3 - h))
            self.mfma(rec[h], v(Ah[h], 4), v(pk[h >> 1] + 4 * (h & 1), 4), "0")
        self.lg.zero(False)
        for h in range(4):
            d = rec[h]; num = d + 8 * (h & 1); den = d + 8 * (1 - (h & 1))
            A("v_add_f32 v%d, s%d, v%d" % (den, sEps, den))
            A("v_rcp_f32 v%d, v%d" % (den, den))
            A("v_mul_f32 v%d, v%d, v%d" % (den, den, self.vG1))
            for k in range(4): A("v_pk_mul_f32 %s, %s, %s op_sel_hi:[0,1]" % (v(num + 2 * k, 2), v(den, 2), v(num + 2 * k, 2)))
            for k in range(4): A("v_cvt_pk_bf16_f32 v%d, v%d, v%d" % (den + 4 + k, num + 2 * k, num + 2 * k + 1))
            A("buffer_store_dwordx4 %s, v%d, %s, s%d offen%s %s" % (v(den + 4, 4), self.vFr, self.WS, sOo, " offset:%d" % (1024 * h) if h else "", self.o["ha"])); self.vm.issue("ast")
        self.dg = pv[0]; self.og = self.acc[1]
        self.stamp(10)
        self.lateE, self.lateF = late, self.wo_dmas(1)
        self.ogbase = ["s_add_u32 s%d, s%d, %d" % (t0, self.sMW, L_SP)]

    def publish(self, first, hp, n1):
        A, V = self.A, self.V
        vt = V(); og = self.og; acc = self.acc[0]; dg = self.dg
        s1, s2 = self.p2_setup(dg, first)
        W = s1[:3] + s2 + s1[3:]
        W.append(lambda: self.mfma(acc, v(self.xdf, 4), v(dg, 4), "0"))
        W.append("v_sub_f32 v%d, 1.0, v%d" % (vt, self.vG2))
        W.append("v_lshrrev_b32 v%d, 2, v%d" % (self.vOg, self.vL16))
        W.append("v_cvt_pk_bf16_f32 v%d, 0, v%d" % (vt, vt))
        W += self.ogbase
        W.append("v_add_u32 v%d, s%d, v%d" % (self.vOg, self.t0, self.vOg))
        W.append(lambda: self.mfma(acc, v(self.xdf + 4, 4), v(dg + 4, 4)))
        W.append(lambda: self.vm.wait("c1"))
        W.append("s_barrier")
        W.append("ds_write_b32 v%d, v%d" % (self.vOg, vt))
        W.append("v_and_b32 v%d, 0xffffff00, v%d" % (self.vOg, self.vOg))
        W.append("v_bfe_u32 v%d, v0, 5, 1" % vt)
        W.append("v_lshl_add_u32 v%d, v%d, 4, v%d" % (self.vOg, vt, self.vOg))
        W.append("s_waitcnt lgkmcnt(0)")
        for q in range(4): W.append("ds_read_b128 %s, v%d offset:%d" % (v(og + 4 * q, 4), self.vOg, 32 * q))
        W.append("s_waitcnt lgkmcnt(0)")
        self.emit(weave(W[:48], self.lateE) if self.lateE else W[:48])
        self.emit(W[48:n1])
        def hpoll():
            self.fpoll(self.vJunk, self.vf, self.sFH); self.vm.issue("hp")
        if hp: hpoll()
        self.vm.wait("ast")
        A("buffer_store_dword v%d, v%d, %s, 0 offen %s" % (self.vTag, self.vFlag, self.WS, self.o["fa"])); self.vm.issue("flag")
        self.stamp(11)
        self.emit(W[n1:])
        self.lg.zero(False)
        self.emit(weave(["v_pk_mul_f32 %s, %s, %s" % (v(acc + 2 * q, 2), v(acc + 2 * q, 2), v(og + 2 * q, 2)) for q in range(8)], self.lateF))
        if not hp:
            if self.o["hpw"] == 1: self.vm.wait("flag")
            if self.o["hpw"] == 2: self.vm.zero()
            hpoll()
        self.vm.wait("hp")
        V.rel(vt)

    def p2(self):
        A, V, S = self.A, self.V, self.S
        vt = V(); vu = V()
        acc, ac, vf, sH, sO = self.acc, self.ac, self.vf, self.sH, self.sO
        cb = [V(8, 4) for _ in range(3)]
        def crd(f):
            for lt in range(2):
                A("ds_read_b128 %s, v%d offset:%d" % (v(cb[f % 3] + 4 * lt, 4), ac[lt][f & 3], ((f >> 2) & 3) * 8192)); self.lg.issue("c%d" % f)
        crd(0); crd(1)
        self.stamp(12)
        A("s_branch L_hchk")
        A.label("L_hpoll")
        self.fpoll(self.vJunk, vf, self.sFH)
        A("s_waitcnt vmcnt(0)")
        A.label("L_hchk")
        A("v_cmp_ne_u32 vcc, s%d, v%d" % (self.sTag, self.vJunk))
        self.poll_tail("L_hpoll")
        self.vm.zero(False)
        self.stamp(13)
        of = V(64, 4)
        def hld(f):
            if f & 3 == 0: A("s_xor_b32 s%d, s%d, %d" % (self.t0, sH, ((f >> 2) ^ 4) * 4096))
            A("buffer_load_dwordx4 %s, v%d, %s, s%d offen%s %s" % (a(128 + 4 * f, 4), self.vFr, self.WS, self.t0, " offset:%d" % (1024 * (f & 3)) if f & 3 else "", self.o["la"])); self.vm.issue("h%d" % f)
        def old(n):
            if n & 3 == 0: A("s_xor_b32 s%d, s%d, %d" % (self.t1, sO, 1024 * n))
            A("buffer_load_dwordx4 %s, v%d, %s, s%d offen%s %s" % (v(of + 4 * n, 4), self.vFr, self.WS, self.t1, " offset:%d" % (1024 * (n & 3)) if n & 3 else "", self.o["la"])); self.vm.issue("o%d" % n)
        def opoll():
            self.fpoll(vt, vf, self.sFO); self.vm.issue("op")
        def cstep(f, ld):
            n1 = self.vm.need("h%d" % f); n2 = self.lg.need("c%d" % f)
            w = " ".join(x for x in ("" if n1 is None else "vmcnt(%d)" % n1, "" if n2 is None else "lgkmcnt(%d)" % n2) if x)
            if w: A("s_waitcnt " + w)
            self.mfma(acc[0], a(128 + 4 * f, 4), v(cb[f % 3], 4))
            if ld: ld()
            self.mfma(acc[1], a(128 + 4 * f, 4), v(cb[f % 3] + 4, 4), "0" if f == 0 else None)
            if f == 14: A("s_barrier")
            if 10 <= f < 14:
                pass
            if f + 2 < 32:
                if 16 <= f + 2 < 20:
                    for lt in range(2): A("v_xor_b32 v%d, 0x10000, v%d" % (ac[lt][(f + 2) & 3], ac[lt][(f + 2) & 3]))
                crd(f + 2)
            if f >= 16:
                for t in wb[2 * (f - 16):2 * (f - 16) + 2]: A(t); self.lg.issue("wb")
        wb = self.wo_reads(1)
        LA = self.o["LA"]
        for f in range(LA): hld(f)
        f0 = 32 - LA
        for f in range(f0):
            cstep(f, (lambda f=f: hld(f + LA)))
            if f + LA == f0 - 1 + 0: opoll()
        self.vm.wait("op")
        A("v_cmp_ne_u32 vcc, s%d, v%d" % (self.sTag, vt))
        A("s_cmp_lg_u64 vcc, 0")
        A("s_cbranch_scc1 L_slow")
        qv, ql = list(self.vm.q), list(self.lg.q)
        for f in range(f0, 32): cstep(f, (lambda f=f: old(f - f0)))
        self.stamp(14); self.stamp(15)
        A.label("L_join")
        q2 = list(self.vm.q)
        for n in range(16):
            if n == 8: self.lg.zero()
            self.vm.wait("o%d" % n)
            self.mfma(acc[1], v(of + 4 * n, 4), a(8 * n + 4, 4))
            if n + LA < 16: old(n + LA)
            self.mfma(acc[0], v(of + 4 * n, 4), a(8 * n, 4))
        self.stamp(16)
        vr = self.vr; og = of
        for q in range(4): A("ds_write_b128 v%d, %s offset:%d" % (vr, v(acc[1] + 4 * q, 4), 1024 * q))
        A("v_xor_b32 v%d, 8192, v%d" % (vr, vr))
        A("s_waitcnt lgkmcnt(0)")
        A("s_barrier")
        for q in range(4): A("ds_read_b128 %s, v%d offset:%d" % (v(og + 4 * q, 4), vr, 1024 * q))
        for q in range(4):
            A("s_waitcnt lgkmcnt(%d)" % (3 - q))
            for k in range(2): A("v_pk_add_f32 %s, %s, %s" % (v(acc[0] + 4 * q + 2 * k, 2), v(acc[0] + 4 * q + 2 * k, 2), v(og + 4 * q + 2 * k, 2)))
            for i in range(4 * q, 4 * q + 4):
                k = (i & 1) + 2 * (i >> 2); b = (i >> 1) & 1
                A("buffer_store_dword v%d, v%d, %s, %s offen%s%s" % (acc[0] + i, self.vOut, self.OUT, "0" if k == 0 else "s%d" % self.so[k - 1], " offset:2048" if b else "", self.o.get("outaux", "")))
        A("s_cmp_eq_u32 s2, 255")
        A("s_cbranch_scc0 L_fin")
        A("v_mov_b32 v%d, s%d" % (vt, self.sE))
        A("v_mov_b32 v%d, 0" % vu)
        A("buffer_store_dword v%d, v%d, %s, 0 offen" % (vt, vu, self.WS))
        A.label("L_fin")
        if self.o["stamps"]:
            if self.o["stamps"] != 2: A("s_waitcnt vmcnt(0)")
            self.stamp(17)
            A("v_lshlrev_b32 v%d, 2, v0" % vu)
            A("s_lshl_b32 s%d, s2, 10" % self.t0); A("s_add_u32 s%d, s%d, %d" % (self.t0, self.t0, WS_STAMP))
            A("buffer_store_dword v%d, v%d, %s, s%d offen" % (self.vStamp, vu, self.WS, self.t0))
        A("s_endpgm")
        A.label("L_slow")
        self.vm.q, self.lg.q = qv, ql
        for f in range(f0, 32): cstep(f, None)
        self.stamp(14)
        A.label("L_opoll")
        opoll()
        A("s_waitcnt vmcnt(0)")
        A("v_cmp_ne_u32 vcc, s%d, v%d" % (self.sTag, vt))
        self.poll_tail("L_opoll")
        self.vm.zero(False)
        self.stamp(15)
        for n in range(LA): old(n)
        assert self.vm.q == q2, (self.vm.q, q2)
        A("s_branch L_join")

    def gen(self):
        A = self.A
        kernel_head(A, NAME)
        self.prologue()
        V0, S0, q0 = self.V.clone(), self.S.clone(), list(self.vm.q)
        self.ssm(); self.publish(L_R1, False, self.o["ssm_n"])
        A("s_branch L_p2")
        A.label("L_att")
        self.V, self.S, self.vm.q, self.lg.q = V0.clone(), S0.clone(), list(q0), []
        self.att(); self.publish(L_R0, self.o["att_hp"], self.o["att_n"])
        A.label("L_p2")
        self.V, self.S, self.lg.q = V0.clone(), S0.clone(), []
        self.vm.q = []
        self.p2()
        A.label("L_end")
        A("s_endpgm")
        body, n = hazard.fix(A.l)
        head = open("cdna_kernels/%s.s.ref" % NAME[:-7]).read().split("; Override launch")[0] if self.o.get("head", True) else ""
        out = head + "; @launch grid=(256,1,1) block=(256,1,1) lds=163840\n"
        out += '.amdgcn_target "amdgcn-amd-amdhsa--gfx950"\n.text\n' + "\n".join(body) + "\n"
        out += '.section .rodata,"a"\n.p2align 6\n' + kernel_desc(NAME, 512, 256)
        return out

if __name__ == "__main__":
    if len(sys.argv) > 1:
        for arg in sys.argv[1:]:
            nm, _, kv = arg.partition(":")
            o = eval("dict(%s)" % kv)
            open(nm, "w").write(K(stamps=(1 if "_st" in nm else 2 if "_lt" in nm else 0), head=False, **o).gen())
    else:
        open("k.s", "w").write(K().gen())
        open("k_st.s", "w").write(K(stamps=True).gen())
```

```python
import sys, gen
from asmlib import *
def mk(fn, opts, idx, stat, base=0, mult=20, stamps=1):
    s = gen.K(stamps=stamps, head=False, **opts).gen()
    s = s.replace("; @launch grid=(256,1,1) block=(256,1,1) lds=163840", "; @launch kernel=%s grid=(256,1,1) block=(256,1,1) lds=163840\n; @launch kernel=amp_kernel grid=(1,1,1) block=(64,1,1) lds=0" % gen.NAME)
    A = Asm()
    kernel_head(A, "amp_kernel")
    A("s_cmp_ge_u32 s2, 1\ns_cbranch_scc1 Lamp_end")
    A("s_load_dwordx2 s[8:9], s[0:1], 120\ns_mov_b32 s10, 0x10000000\ns_mov_b32 s11, 0x20000\ns_waitcnt lgkmcnt(0)")
    A("v_lshlrev_b32 v1, 10, v0")
    for i in range(4):
        A("s_mov_b32 s3, %d" % (gen.WS_STAMP + i * 65536))
        A("buffer_load_dword v%d, v1, s[8:11], s3 offen offset:%d" % (8 + i, 4 * idx))
        A("buffer_load_dword v%d, v1, s[8:11], s3 offen offset:%d" % (12 + i, 4 * base))
        A("buffer_load_dword v%d, v1, s[8:11], s3 offen" % (16 + i))
    A("s_waitcnt vmcnt(0)")
    A("v_min_u32 v3, v16, v17\nv_min3_u32 v3, v3, v18, v19")
    if stat == "max":
        A("v_max_u32 v2, v8, v9\nv_max3_u32 v2, v2, v10, v11")
    else:
        for i in range(4): A("v_sub_u32 v%d, v%d, v%d" % (8 + i, 8 + i, 12 + i))
        A("v_add_u32 v2, v8, v9\nv_add3_u32 v2, v2, v10, v11")
    A("s_nop 1\ns_mov_b32 s20, 0\ns_mov_b32 s21, -1")
    for l in range(64):
        A("v_readlane_b32 s23, v2, %d\nv_readlane_b32 s24, v3, %d" % (l, l))
        A("s_%s s20, s20, s23\ns_min_u32 s21, s21, s24" % ("max_u32" if stat == "max" else "add_u32"))
    if stat == "max": A("s_sub_u32 s20, s20, s21")
    else: A("s_lshr_b32 s20, s20, 8")
    A("s_mul_i32 s23, s20, %d\ns_min_u32 s23, s23, 200000\ns_add_u32 s23, s23, 5000" % mult)
    A.label("Lamp_spin")
    A("s_memrealtime s[32:33]\ns_waitcnt lgkmcnt(0)\ns_sub_u32 s34, s32, s21\ns_cmp_lt_u32 s34, s23\ns_cbranch_scc1 Lamp_spin")
    A.label("Lamp_end")
    A("s_endpgm")
    i = s.index('.section .rodata')
    s = s[:i] + A.text() + s[i:] + ".p2align 6\n" + kernel_desc("amp_kernel", 32, 32)
    open(fn, "w").write(s)
if __name__ == "__main__":
    o = eval("dict(%s)" % (sys.argv[1] if len(sys.argv) > 1 else ""))
    mk("m_a.s", o, 1, "max"); mk("m_b.s", o, 6, "max"); mk("m_c.s", o, 10, "max"); mk("m_d.s", o, 13, "max"); mk("m_e.s", o, 17, "max")
    mk("m_f.s", o, 32 + 17, "avg", base=32, mult=1)
```

```python
import sys
from asmlib import Asm, v, a, s, kernel_head, kernel_desc
import hazard

NAME = "gated_mix__linear_attn_block__ssm_conv_s5__prompt_kernel"
WS_EPOCH, WS_G, WS_FH, WS_FO, WS_E, WS_KV, WS_A = 0, 0x1000, 0x10000, 0x20000, 0x30000, 0x40000, 0x100000
WS_STAMP = 0x1000000
SPILL = 0x800000
RT_STRIDE = 98304
HUGE = 0x20000000
L_R0, L_R1, L_SP = 0, 65536, 131072
LOG2E = "0x3fb8aa3b"
P_X, P_WQKV, P_WO, P_LRE, P_LIM, P_BRE, P_BIM = 4, 6, 8, 12, 14, 16, 18
P_CRE, P_CIM, P_LDT, P_DSK, P_GW, P_OUT, P_WS = 20, 22, 24, 26, 28, 30, 34

class Alloc:
    def __init__(self, regs):
        self.free = set(regs)
    def __call__(self, n=1, al=1):
        if n > 1 and al == 1: al = 2
        for b in sorted(self.free, reverse=(n <= 2)):
            if b % al == 0 and all(b + i in self.free for i in range(n)):
                for i in range(n): self.free.discard(b + i)
                return b
        raise RuntimeError("out of registers")
    def rel(self, b, n=1):
        for i in range(n):
            assert b + i not in self.free
            self.free.add(b + i)
    def clone(self):
        return Alloc(self.free)

class Cnt:
    def __init__(self, A, name, mx):
        self.A = A; self.name = name; self.mx = mx; self.q = []
    def issue(self, tag): self.q.append(tag)
    def need(self, tag):
        idx = [i for i, t in enumerate(self.q) if t == tag]
        if not idx: return None
        n = len(self.q) - 1 - idx[-1]
        self.q = self.q[idx[-1] + 1:]
        return min(n, self.mx)
    def wait(self, tag):
        n = self.need(tag)
        if n is not None: self.A("s_waitcnt %s(%d)" % (self.name, n))
    def zero(self, emit=True):
        if emit: self.A("s_waitcnt %s(0)" % self.name)
        self.q = []

def weave(main, *side):
    out = [[x] for x in main]
    for sd in side:
        n = len(sd)
        for k, x in enumerate(sd):
            out[min(len(main) - 1, (k * len(main)) // n)].append(x)
    return [y for x in out for y in x]

class K:
    def __init__(self, **opt):
        self.o = dict(stamps=False, rot=(0, 0, 0), pollcap=400000, map=2, order='gpq8', second='', third='4w4', pf=(0, 0, 0, 0, 0, 0, 0, 0, 0), fline=1, selft=0, espec=0, att_c2=6, att_e=2, att_f=10, ssm_f=8, early=None, ssm_a=8, nf=(0, 2, 2, 4), f0=1, hop=0, pad=13, plan=0, att_a=8, pfw=0, tlb=0, wt=0, xrot=6, pf0=1, late7=0, la='sc1', ha='sc1', fa='sc1', skip3=1, glate=0, warm=1, pa='sc1', pe='sc1', hpw=1, j3=1, att_hp=1, wsoff=0, ssm_c=0, ssm_d=0, ssm_e=8, ssm_n=48, att_n=48, att_b=8, att_g=33, att_c1=8, outaux=' sc1 nt', LA=10, olook=14)
        self.o.update(opt)
        self.A = Asm()
        self.vm = Cnt(self.A, "vmcnt", 63)
        self.lg = Cnt(self.A, "lgkmcnt", 15)
        self.V = Alloc(range(1, 256))
        self.S = Alloc([3] + list(range(72, 102)))
        self.fill = []
        self.nstub = 0
        self.pre_done = set()
        self.keep = []

    def stamp(self, idx):
        if not self.o["stamps"]: return
        if self.o["stamps"] == 2 and idx != 17: return
        A = self.A
        A("s_memrealtime s[%d:%d]" % (self.sT, self.sT + 1))
        A("s_memtime s[%d:%d]" % (self.sT2, self.sT2 + 1))
        A("s_waitcnt lgkmcnt(0)")
        self.lg.zero(False)
        A("v_writelane_b32 v%d, s%d, %d" % (self.vStamp, self.sT, idx))
        A("v_writelane_b32 v%d, s%d, %d" % (self.vStamp, self.sT2, 32 + idx))
    def dma(self, vo, srd, so, imm, tag):
        self.A("buffer_load_dwordx4 v%d, %s, %s offen%s lds" % (vo, srd, so, " offset:%d" % imm if imm else ""))
        self.vm.issue(tag)
    def pop(self, n):
        while n > 0 and self.fill:
            f = self.fill.pop(0)
            if callable(f): f()
            else: self.A(f)
            n -= 1
    def mfma(self, d, x, y, c=None):
        self.A("v_mfma_f32_32x32x16_bf16 %s, %s, %s, %s" % (v(d, 16), x, y, v(d, 16) if c is None else c))
    def cmul(self, out, dr, di, ar, ai, br, bi, cr=None, ci=None):
        if cr is None:
            out.append("v_mul_f32 v%d, v%d, v%d" % (dr, ar, br))
            out.append("v_mul_f32 v%d, v%d, v%d" % (di, ar, bi))
        else:
            out.append("v_fma_f32 v%d, v%d, v%d, v%d" % (dr, ar, br, cr))
            out.append("v_fma_f32 v%d, v%d, v%d, v%d" % (di, ar, bi, ci))
        out.append("v_fma_f32 v%d, -v%d, v%d, v%d" % (dr, ai, bi, dr))
        out.append("v_fmac_f32 v%d, v%d, v%d" % (di, ai, br))
    def emit(self, lst):
        for x in lst:
            if isinstance(x, tuple):
                self.emit(x[0]); x[1]()
            elif callable(x): x()
            else: self.A(x)
    def stub(self):
        if not self.o["hop"]: return
        self.nstub += 1
        self.A.label("L_stub%d" % self.nstub)
        self.A("s_branch @STUB%d@" % self.nstub)
    def cap(self):
        A = self.A
        A("s_sub_u32 s%d, s%d, 1" % (self.sCap, self.sCap))
        A("s_cselect_b64 vcc, 0, vcc")
        A("s_cselect_b32 s%d, 0, s%d" % (self.sCap, self.sCap))
        A("s_cmp_lg_u64 vcc, 0")
    def poll_tail(self, lab):
        self.cap()
        self.A("s_cbranch_scc1 %s" % lab)
    def bits(self, out, d, tmp, spec, src="v0"):
        for n, (bit, w, sh) in enumerate(spec):
            if n == 0:
                if bit == sh: out.append("v_and_b32 v%d, 0x%x, %s" % (d, ((1 << w) - 1) << bit, src))
                else:
                    out.append("v_bfe_u32 v%d, %s, %d, %d" % (d, src, bit, w))
                    if sh: out.append("v_lshlrev_b32 v%d, %d, v%d" % (d, sh, d))
            else:
                out.append("v_bfe_u32 v%d, %s, %d, %d" % (tmp, src, bit, w))
                out.append("v_lshl_or_b32 v%d, v%d, %d, v%d" % (d, tmp, sh, d))

    def chunk_dmas(self, c):
        slot = (c % 3) * 32768
        tag = "ch%d" % c
        L = []
        nx0 = ["s_mul_i32 s%d, s%d, s%d" % (self.sO2, self.sCh, self.sWst)]
        nx1 = ["s_lshl_b32 s%d, s%d, 7" % (self.sO1, self.sCh), "s_add_u32 s%d, s%d, 1" % (self.sCh, self.sCh), "s_and_b32 s%d, s%d, 7" % (self.sCh, self.sCh)]
        for n in range(4):
            pre = [] if n & 1 else ["s_add_u32 m0, s%d, %d" % (self.sM, slot + 16384 + (n >> 1) * 4096)] + (nx1 if n else nx0)
            L.append((pre, (lambda n=n: self.dma(self.vw[n], (self.WA, self.WB)[n >> 1], "s%d" % self.sO2, 2048 * (n & 1), tag))))
        for n in range(4):
            pre = [] if n & 1 else ["s_add_u32 m0, s%d, %d" % (self.sM, slot + (n >> 1) * 4096)]
            L.append((pre, (lambda n=n: self.dma(self.vx[n], self.X, "s%d" % self.sO1, 2048 * (n & 1), tag))))
        return L
    def wo_dmas(self, half):
        L = []
        for n in range(8):
            aa, b = n >> 2, n & 3
            pre = [] if b else ["s_add_u32 m0, s%d, %d" % (self.sMW, L_SP + aa * 4096), "s_xor_b32 s%d, s%d, %d" % (self.sO1, self.sP17, (half * 128 + aa * 32) * 1024)]
            L.append((pre, (lambda b=b: self.dma(self.vo[b], self.WO, "s%d" % self.sO1, 1024 * b, "wo%d" % half))))
        return L
    def wo_stag(self):
        L = []
        t0 = self.t0
        for n in range(8):
            pre = ["s_add_u32 s%d, s2, %d" % (t0, n), "s_and_b32 s%d, s%d, 7" % (t0, t0), "s_lshl_b32 s%d, s%d, 10" % (t0, t0),
                   "s_add_u32 m0, s%d, s%d" % (t0, self.sMW2), "s_lshl3_add_u32 s%d, s%d, s%d" % (t0, t0, self.sP17)]
            L.append((pre, (lambda: self.dma(self.vo[0], self.WO, "s%d" % t0, 0, "wo0"))))
        return L
    def c_dmas(self, comp, region):
        L = []
        for idx in range(8):
            for i in range(2):
                pre = [] if i else ["s_xor_b32 m0, s%d, %d" % (self.sMC, region + idx * 8192), "s_xor_b32 s%d, s%d, %d" % (self.sO1, self.sP9, idx * 128)]
                L.append((pre, (lambda i=i: self.dma(self.vc[i], (self.CRE, self.CIM)[comp], "s%d" % self.sO1, 2048 * i, "c%d" % comp))))
        return L

    def prologue(self):
        A, V, S = self.A, self.V, self.S
        self.X, self.WA, self.WB, self.WS = "s[36:39]", "s[40:43]", "s[44:47]", "s[48:51]"
        self.CRE, self.CIM, self.WO, self.OUT, self.ER = "s[52:55]", "s[56:59]", "s[60:63]", "s[64:67]", "s[68:71]"
        self.sT = S(2, 2); self.sT2 = S(2, 2); self.sMk = S(2, 2)
        self.sR, self.sJ, self.sRole, self.sW, self.sPar = [S() for _ in range(5)]
        self.sCT, self.sRH = S(), S()
        self.sM, self.sCh, self.sO1, self.sO2, self.sTag, self.sE, self.sWst, self.sN2 = [S() for _ in range(8)]
        self.t0, self.t1, self.t2, self.t3 = [S() for _ in range(4)]
        t0, t1, t2, t3 = self.t0, self.t1, self.t2, self.t3
        sR, sJ, sW, sCT, sRH, sRole = self.sR, self.sJ, self.sW, self.sCT, self.sRH, self.sRole
        vt = V(); vu = V()
        self.vJunk = V(); self.vL16 = V()
        vp = V(); vd = V(); vg = V(); vq = V()
        A("s_cmp_ge_u32 s2, 256")
        A("s_cbranch_scc1 L_end")
        A("s_load_dwordx16 s[4:19], s[0:1], 0")
        A("s_load_dwordx16 s[20:35], s[0:1], 64")
        if self.o["stamps"]:
            self.vStamp = V()
            A("s_memrealtime s[%d:%d]" % (self.sT, self.sT + 1))
            A("s_memtime s[%d:%d]" % (self.sT2, self.sT2 + 1))
        A("s_getpc_b64 s[%d:%d]" % (self.sMk, self.sMk + 1))
        A.label("L_pc")
        A("s_and_b32 s%d, s2, 0xf8" % t0)
        A("v_lshrrev_b32 v%d, 5, v0" % vt)
        A("v_add_lshl_u32 v%d, s%d, v%d, 7" % (vt, t0, vt))
        A("v_min_u32 v%d, L_end-L_pc, v%d" % (vt, vt))
        A("v_lshrrev_b32 v%d, 6, v0" % vu)
        A("global_load_dword v%d, v%d, s[%d:%d]" % (self.vJunk, vt, self.sMk, self.sMk + 1)); self.vm.issue("junk")
        A("v_readfirstlane_b32 s%d, v%d" % (sW, vu))
        A("s_and_b32 s%d, s2, 1" % sRH)
        A("s_bfe_u32 s%d, s2, 0x20001" % t0)
        A("s_lshr_b32 s%d, s2, 6" % t1)
        A("s_lshl2_add_u32 s%d, s%d, s%d" % (sR, t0, t1))
        A("s_bfe_u32 s%d, s2, 0x20003" % t0)
        A("s_lshl2_add_u32 s%d, s%d, s%d" % (sJ, sRH, t0))
        A("s_bfe_u32 s%d, s2, 0x10005" % sRole)
        A("s_lshl3_add_u32 s%d, s%d, s%d" % (t0, sRole, sJ))
        A("s_lshl2_add_u32 s%d, s%d, s%d" % (self.sN2, t0, sW))
        A("s_cmp_eq_u32 s%d, %d" % (t0, 11 if self.o["j3"] else 99))
        A("s_cselect_b32 s%d, s%d, 0" % (t1, t1))
        A("s_lshl1_add_u32 s%d, s%d, s2" % (self.sCh, t1))
        A("s_and_b32 s%d, s%d, %d" % (self.sCh, self.sCh, self.o["xrot"]))
        A("v_and_b32 v%d, 63, v0" % self.vL16)
        A("v_lshlrev_b32 v%d, 4, v%d" % (self.vL16, self.vL16))
        A("s_and_b32 s%d, s%d, 0x38" % (t0, self.sN2))
        A("s_add_u32 s%d, s%d, s%d" % (t0, t0, self.sN2))
        A("s_lshl_b32 s%d, s%d, 7" % (t1, sR))
        A("s_add_u32 s%d, s%d, s%d" % (t0, t0, t1))
        A("v_lshl_add_u32 v%d, s%d, 10, v%d" % (vg, t0, self.vL16))
        A("v_add_u32 v%d, 8192, v%d" % (vq, vg))
        A("s_mul_i32 s42, s%d, 0x100000" % sRole); A("s_add_u32 s42, s42, 0x80000"); A("s_mov_b32 s46, s42")
        A("s_mul_i32 s%d, s%d, %d" % (self.sWst, sRole, 64 * 3072 - 128)); A("s_add_u32 s%d, s%d, 128" % (self.sWst, self.sWst))
        A("s_mul_i32 s%d, s%d, %d" % (t2, sRole, 32 * 3072))
        A("s_mul_i32 s%d, s%d, %d" % (t3, sRole, 16 * 3072 - 16384)); A("s_add_u32 s%d, s%d, %d" % (t3, t3, 16384 - 2048))
        A("s_mov_b32 s38, 0x200000")
        for b in (36, 40, 44): A("s_mov_b32 s%d, 0x20000" % (b + 3))
        A("s_mul_i32 s%d, s%d, 0x1400" % (self.sM, sW))
        A("s_and_b32 s%d, s%d, 0x2400" % (self.sM, self.sM))
        vUA = V(); vUT = V()
        self.vx = [V() for _ in range(4)]; self.vw = [V() for _ in range(4)]
        o = []
        o.append("v_lshrrev_b32 v%d, 4, v0" % vt)
        o.append("v_xor_b32 v%d, v0, v%d" % (vt, vt))
        self.bits(o, vUA, vu, ((0, 3, 4),), "v%d" % vt)
        o.append("v_lshrrev_b32 v%d, 2, v0" % vt)
        o.append("v_and_b32 v%d, 4, v%d" % (vt, vt))
        o.append("v_xor_b32 v%d, v0, v%d" % (vt, vt))
        self.bits(o, vUT, vu, ((0, 3, 4),), "v%d" % vt)
        w0 = self.vw[0]
        self.bits(o, vt, vu, ((3, 2, 0), (6, 1, 2), (5, 1, 3), (7, 1, 5)))
        o.append("v_lshl_add_u32 v%d, s%d, 6, v%d" % (vt, sJ, vt))
        o.append("v_lshl_add_u32 v%d, v%d, 10, v%d" % (w0, vt, vUA))
        o.append("v_bfe_u32 v%d, v0, 3, 4" % vt)
        o.append("v_mul_u32_u24 v%d, 3072, v%d" % (vt, vt))
        o.append("v_lshrrev_b32 v%d, 7, v0" % vu)
        o.append("v_lshl_add_u32 v%d, v%d, 10, v%d" % (vt, vu, vt))
        o.append("s_lshl_b32 s%d, s%d, 7" % (t0, sJ))
        o.append("s_add_u32 s%d, s%d, 1024" % (t0, t0))
        o.append("s_cmp_eq_u32 s%d, 0" % sRole)
        o.append("s_cselect_b64 vcc, -1, 0")
        o.append("v_add3_u32 v%d, v%d, s%d, v%d" % (vt, vt, t0, vUT))
        o.append("v_cndmask_b32 v%d, v%d, v%d, vcc" % (w0, vt, w0))
        o.append("v_add_u32 v%d, s%d, v%d" % (self.vw[1], t3, w0))
        o.append("v_add_u32 v%d, s%d, v%d" % (self.vw[2], t2, w0))
        o.append("v_add_u32 v%d, s%d, v%d" % (self.vw[3], t2, self.vw[1]))
        x0 = self.vx[0]
        self.bits(o, x0, vu, ((5, 1, 5), (4, 1, 0), (3, 1, 4), (6, 1, 1), (7, 1, 6)))
        o.append("v_lshl_add_u32 v%d, s%d, 7, v%d" % (x0, sR, x0))
        o.append("v_lshl_add_u32 v%d, v%d, 10, v%d" % (x0, x0, vUA))
        for i, d in ((1, 2048), (2, 8192), (3, 10240)): o.append("v_add_u32 v%d, %d, v%d" % (self.vx[i], d, x0))
        self.emit(o)
        self.ppar = [V(), V(), V()]; self.vDs = V(); self.gx = self.vXD = V(16, 4)
        self.sCX = S()
        A("s_mov_b32 s%d, s%d" % (self.sCX, self.sCh))
        A("s_waitcnt lgkmcnt(0)")
        A("s_cselect_b64 s[40:41], s[%d:%d], s[%d:%d]" % (P_BRE, P_BRE + 1, P_WQKV, P_WQKV + 1))
        A("s_cselect_b64 s[44:45], s[%d:%d], s[%d:%d]" % (P_BIM, P_BIM + 1, P_WQKV, P_WQKV + 1))
        A("s_mov_b64 s[36:37], s[%d:%d]" % (P_X, P_X + 1))
        if self.o["stamps"]: A("v_writelane_b32 v%d, s%d, 0\nv_writelane_b32 v%d, s%d, 32" % (self.vStamp, self.sT, self.vStamp, self.sT2))
        self.stamp(18)
        self.early = self.chunk_dmas(0) + self.chunk_dmas(1)
        def grp(tok):
            if tok == "g":
                A("global_load_dwordx4 %s, v%d, s[%d:%d]" % (v(self.gx, 4), vg, P_X, P_X + 1)); self.vm.issue("par")
                A("global_load_dwordx4 %s, v%d, s[%d:%d]" % (v(self.gx + 4, 4), vq, P_X, P_X + 1)); self.vm.issue("par")
            elif tok == "p":
                A("s_bfe_u32 s%d, s2, 0x30003" % sCT)
                A("s_bfe_u32 s%d, s2, 0x10006" % t0)
                A("s_lshl_b32 s%d, s%d, 2" % (t0, t0))
                A("s_xor_b32 s%d, s%d, s%d" % (sCT, sCT, t0))
                o = []
                self.bits(o, vp, vu, ((0, 2, 1), (2, 1, 4), (3, 1, 3), (4, 1, 5), (6, 1, 6)))
                o.append("v_lshl_add_u32 v%d, s%d, 7, v%d" % (vp, sJ, vp))
                self.bits(o, vd, vu, ((0, 5, 1), (7, 1, 6)))
                o.append("v_lshl_add_u32 v%d, s%d, 7, v%d" % (vd, sCT, vd))
                self.emit(o)
            elif tok == "q":
                A("global_load_dwordx4 %s, v%d, s[%d:%d]" % (v(self.gx + 8, 4), self.vL16, P_GW, P_GW + 1)); self.vm.issue("par")
                for q, p in zip(self.ppar, (P_LRE, P_LIM, P_LDT)):
                    A("global_load_ushort v%d, v%d, s[%d:%d]" % (q, vp, p, p + 1)); self.vm.issue("par")
                A("global_load_ushort v%d, v%d, s[%d:%d]" % (self.vDs, vd, P_DSK, P_DSK + 1)); self.vm.issue("par")
            else:
                n = int(tok)
                self.emit(self.early[:n]); self.early = self.early[n:]
        for tok in self.o["order"]: grp(tok)
        self.stamp(19)
        A("s_load_dword s%d, s[%d:%d], 0" % (self.sE, P_WS, P_WS + 1))
        o = []
        o.append("s_lshr_b32 s%d, s2, 7" % self.sPar)
        o.append("s_sub_u32 s%d, s%d, s%d" % (self.sCX, sCT, self.sCX))
        o.append("s_and_b32 s%d, s%d, 7" % (self.sCX, self.sCX))
        for b, p, n in ((48, P_WS, 0x10000000), (52, P_CRE, 0x80000), (56, P_CIM, 0x80000), (60, P_WO, 0x80000), (64, P_OUT, 0x400000)):
            o.append("s_mov_b64 s[%d:%d], s[%d:%d]" % (b, b + 1, p, p + 1))
            o.append("s_mov_b32 s%d, 0x%x" % (b + 2, n))
        o.append("s_mov_b32 s70, 4096")
        for b in range(48, 72, 4): o.append("s_mov_b32 s%d, 0x20000" % (b + 3))
        self.emit(o)
        held = [4, 5, 12, 13, 14, 15, 24, 25, 26, 27, 28, 29, P_WS, P_WS + 1]
        for q in range(4, 36): S.rel(q) if q not in held else None
        self.vTag, self.vBase0, self.vFlag, self.vG1a, self.vG2a, self.vf, self.vr, self.vOut, self.vOg, self.vHm, self.vPf, self.vFr = [V() for _ in range(12)]
        self.vo = [V() for _ in range(4)]; self.vc = [V() for _ in range(2)]
        self.aw = [V(), V()]; self.ac = [[V() for _ in range(4)] for _ in range(2)]
        self.axd = [[V(), V()], [V(), V()]]
        self.vG2 = V(2); self.xdf = V(8, 4); self.acc = [V(16, 4), V(16, 4)]
        self.sPf = S(2, 2)
        self.sMW, self.sMC, self.sRT, self.sRW, self.sCap, self.sP9, self.sP17 = [S() for _ in range(7)]
        self.sH, self.sO, self.sFH, self.sFO = 27, 28, 29, 4
        self.so = [12, 13, 14, 15, 24, 25, 26]
        o = []
        o.append("s_mov_b32 s%d, %d" % (self.sCap, self.o["pollcap"]))
        o.append("s_lshr_b32 s%d, s%d, 1" % (t3, sW))
        o.append("s_and_b32 s%d, s%d, 1" % (t2, sW))
        o.append("v_bfe_u32 v%d, v0, 1, 3" % vt)
        o.append("v_bfe_u32 v%d, v0, 5, 1" % vu)
        o.append("v_xor_b32 v%d, v%d, v%d" % (vt, vt, vu))
        self.bits(o, vu, None, ((0, 5, 7),))
        o.append("v_lshl_add_u32 v%d, v%d, 4, v%d" % (self.vBase0, vt, vu))
        o.append("s_cmp_eq_u32 s%d, 0" % sW)
        o.append("s_cselect_b64 s[%d:%d], s[60:61], s[52:53]" % (self.sPf, self.sPf + 1))
        o.append("s_cmp_eq_u32 s%d, 2" % sW)
        o.append("s_cselect_b64 s[%d:%d], s[56:57], s[%d:%d]" % (self.sPf, self.sPf + 1, self.sPf, self.sPf + 1))
        o.append("s_cmp_eq_u32 s%d, 3" % sW)
        o.append("s_cselect_b32 s%d, 0, %d" % (t0, 15 if self.o["pfw"] else 0))
        o.append("v_and_b32 v%d, s%d, v0" % (self.vPf, t0))
        o.append("s_and_b32 s%d, s2, 7" % t0)
        o.append("s_lshl_b32 s%d, s%d, 8" % (t0, t0))
        o.append("s_and_b32 s%d, s2, 0xf8" % t1)
        o.append("s_add_u32 s%d, s%d, s%d" % (t0, t0, t1))
        o.append("v_lshl_add_u32 v%d, s%d, 1, v%d" % (self.vPf, t0, self.vPf))
        o.append("v_lshlrev_b32 v%d, 7, v%d" % (self.vPf, self.vPf))
        o.append("s_lshl1_add_u32 s%d, s%d, s%d" % (self.sRW, sR, t3))
        o.append("s_lshl1_add_u32 s%d, s%d, s%d" % (t1, sR, sRH))
        o.append("s_lshl1_add_u32 s%d, s%d, s%d" % (self.sRT, t1, t2))
        o.append("s_and_b32 s%d, s%d, 3" % (t0, self.sRT))
        o.append("s_lshl_b32 s%d, s%d, 6" % (t0, t0))
        o.append("s_add_u32 s%d, s%d, s%d" % (t0, t0, t3))
        o.append("s_lshl_b32 s%d, s%d, 6" % (t0, t0))
        o.append("v_xor_b32 v%d, s%d, v%d" % (self.axd[0][0], t0, self.vBase0))
        o.append("v_xor_b32 v%d, 32, v%d" % (self.axd[0][1], self.axd[0][0]))
        for e in range(2): o.append("v_add_u32 v%d, 0x10000, v%d" % (self.axd[1][e], self.axd[0][e]))
        self.vTr = V()
        self.bits(o, self.vTr, vu, ((2, 2, 7), (0, 2, 3), (4, 1, 5), (3, 1, 6)))
        o.append("v_bfe_u32 v%d, v0, 5, 1" % vu)
        o.append("v_lshl_or_b32 v%d, v%d, 9, v%d" % (vt, vu, self.vTr))
        o.append("s_mul_i32 s%d, s%d, %d" % (t0, t3, 16384 + 64))
        o.append("s_add_u32 s%d, s%d, %d" % (t0, t0, L_SP))
        o.append("v_xor_b32 v%d, s%d, v%d" % (self.aw[0], t0, vt))
        o.append("v_xor_b32 v%d, 64, v%d" % (self.aw[1], self.aw[0]))
        o.append("v_lshl_or_b32 v%d, v%d, 10, v%d" % (self.vTr, vu, self.vTr))
        o.append("s_lshl_b32 s%d, s%d, 13" % (self.sMW, sW))
        o.append("s_andn2_b32 s%d, s%d, s%d" % (self.sP9, self.sPar, sRole))
        o.append("s_lshl_b32 s%d, s%d, 9" % (self.sP9, self.sP9))
        o.append("s_lshl_b32 s%d, s%d, 8" % (self.sP17, self.sP9))
        self.bits(o, vu, vt, ((3, 3, 0), (6, 1, 6), (7, 1, 8)))
        o.append("v_lshl_add_u32 v%d, v%d, 10, v%d" % (vu, vu, vUT))
        o.append("v_lshl_add_u32 v%d, s%d, 7, v%d" % (self.vo[0], sCT, vu))
        for b in range(1, 4): o.append("v_add_u32 v%d, %d, v%d" % (self.vo[b], 7168 * b, self.vo[0]))
        o.append("s_lshl2_add_u32 s%d, s%d, s%d" % (self.sMC, t3, t2))
        o.append("s_lshl_b32 s%d, s%d, 10" % (self.sMC, self.sMC))
        o.append("s_lshl_b32 s%d, s%d, 6" % (t0, self.sP9))
        o.append("s_add_u32 s%d, s%d, s%d" % (self.sMC, self.sMC, t0))
        self.bits(o, vt, vu, ((3, 4, 0), (7, 1, 5)))
        o.append("v_lshl_add_u32 v%d, s%d, 6, v%d" % (vt, sCT, vt))
        o.append("v_lshl_add_u32 v%d, v%d, 10, v%d" % (self.vc[0], vt, vUA))
        o.append("v_add_u32 v%d, %d, v%d" % (self.vc[1], 16384 - 2048, self.vc[0]))
        self.bits(o, vu, None, ((0, 5, 4),))
        o.append("v_add_u32 v%d, %d, v%d" % (vu, WS_G, vu))
        o.append("v_lshl_add_u32 v%d, s%d, 9, v%d" % (self.vG1a, self.sRW, vu))
        o.append("v_lshl_add_u32 v%d, s%d, 9, v%d" % (self.vG2a, t1, vu))
        o.append("v_lshl_add_u32 v%d, s%d, 3, v%d" % (self.vG2a, t2, self.vG2a))
        if self.o["skip3"]:
            o.append("v_and_b32 v%d, 56, v0" % vt)
            o.append("v_cmp_eq_u32 vcc, 24, v%d" % vt)
            o.append("v_add_u32 v%d, %d, v%d" % (vt, SPILL - 384, self.vL16))
            o.append("s_nop 0")
            o.append("v_cndmask_b32 v%d, v%d, v%d, vcc" % (self.vFr, self.vL16, vt))
        else:
            o.append("v_mov_b32 v%d, v%d" % (self.vFr, self.vL16))
        o.append("v_bfe_i32 v%d, v0, 0, 1" % self.vHm)
        o.append("v_xor_b32 v%d, 0xffff, v%d" % (self.vHm, self.vHm))
        self.emit(o)
        for tok in self.o["second"]: grp(tok)
        self.grp = grp
        if self.o["hop"]:
            for w in range(4):
                A("s_cmp_eq_u32 s%d, %d" % (sW, w))
                A("s_cbranch_scc1 @CHAIN%d@" % w)
            A.label("L_back")
        self.vUT = vUT; self.vd = vd
        for q in (vt, vu, vUA): V.rel(q)
        self.heldv = [vp, vg, vq]
        A("s_cmp_eq_u32 s%d, 0" % sRole)
        A("s_cbranch_scc0 L_att")

    def warm(self, F, vt, vu, rec):
        if not self.o["warm"]: return
        t0, t1 = self.t0, self.t1
        F.append("s_lshl4_add_u32 s%d, s%d, s%d" % (t0, self.sR, self.sJ))
        F.append("s_lshl_b32 s%d, s%d, 8" % (t0, t0))
        F.append("s_add_u32 s%d, s%d, %d" % (t0, t0, rec))
        tmp = self.V()
        self.bits(F, vu, tmp, ((0, 1, 7), (1, 1, 11)))
        self.V.rel(tmp)
        F.append("v_add_u32 v%d, s%d, v%d" % (vu, t0, vu))
        F.append("v_cmp_le_u32 vcc, 0xe0, v0")
        F.append("s_cmp_eq_u32 s%d, 3" % self.sW)
        F.append("s_cselect_b64 s[%d:%d], s[48:49], s[%d:%d]" % (self.sPf, self.sPf + 1, self.sPf, self.sPf + 1))
        F.append("v_cndmask_b32 v%d, v%d, v%d, vcc" % (vt, vt, vu))
        F.append("v_cmp_le_u32 vcc, 0xc0, v0")
        F.append("s_nop 1")
        F.append("v_cndmask_b32 v%d, v%d, v%d, vcc" % (self.vPf, self.vPf, vt))

    def fpoll(self, d, va, so):
        A = self.A
        if self.o["pa"] == "atomic":
            A("v_mov_b32 v%d, s%d" % (d, self.sTag))
            A("s_mov_b64 exec, 0xff")
            A("v_mov_b32 v%d, 0" % d)
            A("buffer_atomic_or v%d, v%d, %s, s%d offen sc0 sc1" % (d, va, self.WS, so))
            A("s_mov_b64 exec, -1")
        else:
            A("buffer_load_dword v%d, v%d, %s, s%d offen %s" % (d, va, self.WS, so, self.o["pa"]))

    def pf(self):
        self.A("global_load_dword v%d, v%d, s[%d:%d]" % (self.vJunk, self.vPf, self.sPf, self.sPf + 1)); self.vm.issue("junk")
        self.A("v_add_u32 v%d, 0x10000, v%d" % (self.vPf, self.vPf))
        self.A("v_and_b32 v%d, 0x7ffff, v%d" % (self.vPf, self.vPf))

    def p2_setup(self, dg, first, vt, vu):
        V = self.V
        t0, t1, t2, t3 = self.t0, self.t1, self.t2, self.t3
        o = []
        o.append("s_lshr_b32 s%d, s%d, 1" % (t3, self.sW))
        o.append("s_and_b32 s%d, s%d, 1" % (t2, self.sW))
        o.append("s_lshr_b32 s%d, s%d, 1" % (t1, self.sRT))
        self.bits(o, vt, vu, ((1, 2, 0), (4, 1, 2)))
        o.append("v_lshrrev_b32 v%d, 2, v0" % vu)
        o.append("v_xor_b32 v%d, v0, v%d" % (vu, vu))
        o.append("v_and_or_b32 v%d, v%d, 8, v%d" % (vt, vu, vt))
        o.append("v_lshl_or_b32 v%d, v%d, 16, v%d" % (self.vDs, self.vDs, self.vDs))
        o.append("v_and_b32 v%d, v%d, v%d" % (self.vDs, self.vDs, self.vHm))
        sd = ["s_mov_b32 s%d, %d" % (self.so[k - 1], (k & 1) * 32768 + (k >> 1) * 4096) for k in range(1, 8)] + ["s_nop 0"]
        for k in range(0, 8, 2):
            o.append("v_cmp_eq_u32 vcc, %d, v%d" % (k, vt))
            o.append("v_cmp_eq_u32 s[%d:%d], %d, v%d" % (self.sMk, self.sMk + 1, k + 1, vt))
            o += sd[k:k + 2]
            o.append("v_cndmask_b32 v%d, 0, v%d, vcc" % (dg + k, self.vDs))
            o.append("v_cndmask_b32 v%d, 0, v%d, s[%d:%d]" % (dg + k + 1, self.vDs, self.sMk, self.sMk + 1))
        n1 = len(o)
        o.append("s_lshl3_add_u32 s%d, s%d, s%d" % (t0, self.sRW, self.sJ))
        o.append("s_lshl1_add_u32 s%d, s%d, s%d" % (t0, t0, t2))
        o.append("s_lshl_b32 s%d, s%d, 7" % (t0, t0))
        o.append("s_add_u32 s%d, s%d, %d" % (t0, t0, WS_FH))
        self.bits(o, self.vFlag, None, ((0, 5 if self.o["fline"] else 0, 2),))
        o.append("v_add_u32 v%d, s%d, v%d" % (self.vFlag, t0, self.vFlag))
        o.append("v_lshl_add_u32 v%d, s%d, 16, v%d" % (self.vFlag, self.sRole, self.vFlag))
        o.append("s_lshl1_add_u32 s%d, s%d, s%d" % (t0, t1, t3))
        self.bits(o, self.vf, None, ((0, 3, 7),))
        o.append("v_lshl_add_u32 v%d, s%d, 10, v%d" % (self.vf, t0, self.vf))
        o.append("s_mov_b32 s%d, %d" % (self.sFO, WS_FO)); o.append("s_mov_b32 s%d, %d" % (self.sFH, WS_FH))
        o.append("s_mul_i32 s%d, s%d, %d" % (t0, self.sRT, RT_STRIDE))
        o.append("s_lshl_b32 s%d, s%d, 14" % (self.sO, t3))
        o.append("s_lshl1_add_u32 s%d, s%d, s%d" % (self.sH, self.sO, t0))
        o.append("s_add_u32 s%d, s%d, %d" % (self.sH, self.sH, WS_A))
        o.append("s_add_u32 s%d, s%d, s%d" % (self.sO, self.sO, t0))
        o.append("s_add_u32 s%d, s%d, %d" % (self.sO, self.sO, WS_A + 65536))
        o.append("s_lshl4_add_u32 s%d, s%d, s%d" % (self.sO, self.sP9, self.sO))
        o.append("s_mul_i32 s%d, s%d, %d" % (t0, t3, 32768 + 4096))
        if first: o.append("s_add_u32 s%d, s%d, %d" % (t0, t0, first))
        o.append("v_add_u32 v%d, s%d, v%d" % (self.ac[0][0], t0, self.vBase0))
        for sx in range(1, 4): o.append("v_xor_b32 v%d, %d, v%d" % (self.ac[0][sx], 32 * sx, self.ac[0][0]))
        for sx in range(4): o.append("v_xor_b32 v%d, 4096, v%d" % (self.ac[1][sx], self.ac[0][sx]))
        o.append("v_lshl_add_u32 v%d, s%d, 12, v%d" % (self.vr, self.sW, self.vL16))
        if first: o.append("v_add_u32 v%d, %d, v%d" % (self.vr, first, self.vr))
        self.bits(o, vt, vu, ((5, 1, 5), (6, 1, 3)))
        o.append("v_lshl_add_u32 v%d, s%d, 6, v%d" % (vt, t1, vt))
        o.append("v_lshl_add_u32 v%d, v%d, 10, v%d" % (vt, vt, self.vd))
        o.append("v_lshlrev_b32 v%d, 1, v%d" % (self.vOut, vt))
        return o[3:n1], o[:3] + o[n1:]

    def gate_fill(self):
        V = self.V
        F = []
        t0, t1 = self.S(), self.t3
        gx = self.gx; g = gx + 12; vt = V()
        F.append("s_add_u32 s%d, s%d, 1" % (self.sE, self.sE))
        F.append("s_mul_i32 s%d, s%d, 0x9e3779b1" % (self.sTag, self.sE))
        F.append("v_mov_b32 v%d, s%d" % (self.vTag, self.sTag))
        F.append("v_mov_b32 v%d, 0" % g); F.append("v_mov_b32 v%d, 0" % (g + 2))
        for i in range(4):
            F.append("v_dot2c_f32_bf16 v%d, v%d, v%d" % (g, gx + i, gx + 8 + i))
            F.append("v_dot2c_f32_bf16 v%d, v%d, v%d" % (g + 2, gx + 4 + i, gx + 8 + i))
        side = ["v_mov_b32 v%d, v%d" % (g + 1, self.vTag), "v_mov_b32 v%d, v%d" % (g + 3, self.vTag), "v_cmp_eq_u32 vcc, 0x3f0, v%d" % self.vL16,
                "v_mov_b32 v%d, 0x%x" % (vt, HUGE)]
        side.append("s_and_b32 s%d, s%d, 32" % (t0, self.sN2))
        for bit, w_, sh in ((1, 2, 3), (4, 1, 2), (0, 1, 1), (3, 1, 0)):
            side.append("s_bfe_u32 s%d, s%d, 0x%x" % (t1, self.sN2, (w_ << 16) | bit))
            side.append(("s_lshl%d_add_u32" % sh if sh else "s_add_u32") + " s%d, s%d, s%d" % (t0, t1, t0))
        side.append("v_cndmask_b32 v%d, v%d, 0, vcc" % (vt, vt))
        side.append("s_lshl_b32 s%d, s%d, 10" % (t1, self.sR))
        side.append("s_lshl4_add_u32 s%d, s%d, s%d" % (t0, t0, t1))
        side.append("s_add_u32 s%d, s%d, %d" % (t0, t0, WS_G))
        F += side[:3]; side = side[3:]
        for md in ("row_shr:1 row_mask:0xf", "row_shr:2 row_mask:0xf", "row_shr:4 row_mask:0xf", "row_shr:8 row_mask:0xf", "row_bcast:15 row_mask:0xa", "row_bcast:31 row_mask:0xc"):
            for q in (g, g + 2): F.append("v_add_f32_dpp v%d, v%d, v%d %s bank_mask:0xf" % (q, q, q, md))
            F += side[:2]; side = side[2:]
        for q in (g, g + 2): F.append("v_mul_f32 v%d, 0xbfb8aa3b, v%d" % (q, q))
        for q in (g, g + 2): F.append("v_exp_f32 v%d, v%d" % (q, q))
        for q in (g, g + 2): F.append("v_add_f32 v%d, 1.0, v%d" % (q, q))
        for q in (g, g + 2): F.append("v_rcp_f32 v%d, v%d" % (q, q))
        F += side
        for q in (g, g + 2): F.append("v_cvt_pk_bf16_f32 v%d, 0, v%d" % (q, q))
        def st():
            self.A("buffer_store_dwordx4 %s, v%d, %s, s%d offen sc1" % (v(g, 4), vt, self.WS, t0)); self.vm.issue("gst")
        if self.o["glate"]: self.gst = st
        else: F.append(st)
        def rel():
            V.rel(vt)
        self._rel_fill = rel
        return F

    def g_loads(self):
        n = self.nG1
        self.A("buffer_load_dwordx%d %s, v%d, %s, 0 offen sc1" % (n, v(self.vG1, n), self.vG1a, self.WS)); self.vm.issue("g")
        self.A("buffer_load_dwordx2 %s, v%d, %s, 0 offen sc1" % (v(self.vG2, 2), self.vG2a, self.WS)); self.vm.issue("g")

    def g_check(self, name):
        A, V = self.A, self.V
        vt = V()
        self.vm.wait("g")
        A.label("L_gchk_" + name)
        A("v_xor_b32 v%d, v%d, v%d" % (vt, self.vG1 + 1, self.vTag))
        if self.nG1 == 4: A("v_bitop3_b32 v%d, v%d, v%d, v%d bitop3:0xf6" % (vt, vt, self.vG1 + 3, self.vTag))
        A("v_bitop3_b32 v%d, v%d, v%d, v%d bitop3:0xf6" % (vt, vt, self.vG2 + 1, self.vTag))
        A("v_cmp_ne_u32 vcc, 0, v%d" % vt)
        self.cap()
        A("s_cbranch_scc0 L_gok_" + name)
        q = list(self.vm.q)
        self.g_loads(); A("s_waitcnt vmcnt(0)")
        self.vm.q = q
        A("s_branch L_gchk_" + name)
        self.stub()
        A.label("L_gok_" + name)
        V.rel(vt)

    def step(self, ms, rd, dm, nf, wait=True, extra=None):
        A = self.A
        rd = list(rd); dm = list(dm)
        def issue(x):
            if isinstance(x, tuple):
                if id(x) not in self.pre_done: self.emit(x[0])
                x[1]()
            else: x()
        if wait: self.lg.zero()
        for k, (f, tags) in enumerate(ms):
            f()
            n = nf[k]
            if k < 2:
                for t, tg in rd[4 * k:4 * k + 4]: A(t); self.lg.issue(tg)
            if k in (1, 2) and dm:
                issue(dm.pop(0))
                if k == 2:
                    while len(dm) > 1: issue(dm.pop(0))
            if k == 3:
                for x in dm: issue(x)
                if extra: extra()
            self.pop(n)
            if k == 3 and self.o.get("thin"):
                for q in range(0, self.o["thin"], 16): A("s_nop %d" % (min(16, self.o["thin"] - q) - 1))

    def p1_loop(self, name, reads, mfmas, tail, fill, extra=()):
        A = self.A
        self.stamp(20)
        early = list(self.early)
        for tok in self.o["third"]:
            if tok == "w": self.pf()
            else: self.grp(tok)
        assert not self.early
        self.early = early
        for q in self.heldv: self.V.rel(q)
        npf = self.o["pf"]
        for _ in range(npf[0]): self.pf()
        self.stamp(21)
        fl = self.gate_fill() + fill
        for c in range(8):
            dm = self.chunk_dmas(c + 2) if c + 2 < 8 else tail[c - 6]
            dm = dm + [self.pf] * npf[c + 1]
            self.keep.append(dm)
            if c == 5 and self.o["glate"]: dm = dm + [self.gst]
            n1 = self.vm.need("ch%d" % c)
            A("s_waitcnt vmcnt(%d) lgkmcnt(0)" % n1); self.lg.zero(False)
            if fl and "par" not in self.vm.q: self.fill = fl; fl = None
            self.stamp({0: 1, 1: 2, 2: 3, 3: 27, 4: 4, 5: 28, 6: 29, 7: 5}[c])
            A("s_barrier")
            def xd(c=c):
                A("s_cmp_eq_u32 s%d, %d" % (self.sCX, c))
                A("s_cbranch_scc0 L_nx_%s%d" % (name, c))
                hi, lo = self.lds_off((c % 3) * 32768)
                for e in range(2): A("ds_read_b128 %s, v%d offset:%d" % (v(self.xdf + 4 * e, 4), self.axd[hi][e], lo))
                A.label("L_nx_%s%d" % (name, c))
            q = [dm[(len(dm) * i) // 4:(len(dm) * (i + 1)) // 4] for i in range(4)]
            ne = self.o["early"][c] if extra else 0
            for i in range(ne):
                q[{1: (2,), 2: (0, 2), 3: (0, 1, 2), 4: (0, 1, 2, 3)}[ne][i]].append(extra[0]); dm = dm + [extra[0]]; extra = extra[1:]
            last = []
            if c == 7 and self.o["late7"]:
                q = [[], [], [], dm[:4]]; last = dm[4:]
            def pre(lst):
                if lst and isinstance(lst[0], tuple):
                    self.emit(lst[0][0]); self.pre_done.add(id(lst[0]))
            nf = self.o["nf"]
            if c == 0:
                for t, tg in reads(0, 0, 0): A(t); self.lg.issue(tg)
                xd()
                n0 = -(-len(self.fill) // 13) if self.o["f0"] else 0
                self.pop(n0)
                if not n0: self.emit(q[0])
                for sx in range(3):
                    self.step(mfmas(0, sx, sx & 1), reads(0, sx + 1, (sx + 1) & 1), [] if n0 else q[sx + 1], [n0] * 4 if n0 else nf)
                if n0: self.emit(dm)
            else:
                self.step(mfmas(c - 1, 3, 1), reads(c, 0, 0), q[0], nf, False, lambda: pre(q[1]))
                self.step(mfmas(c, 0, 0), reads(c, 1, 1), q[1], nf[:3] + (0,), True, lambda: (pre(q[2]), xd()))
                self.step(mfmas(c, 1, 1), reads(c, 2, 0), q[2], nf, True, lambda: pre(q[3]))
                self.step(mfmas(c, 2, 0), reads(c, 3, 1), q[3], nf[:3] + (0,), True)
        self.step(mfmas(7, 3, 1), [], last, (0, 0, 0, 0))
        assert not self.fill and not extra
        self._rel_fill()
        self.stamp(6)

    def lds_off(self, total):
        return (total >> 16, total & 0xffff)

    def wo_reads(self, half):
        L = []
        for n in range(8):
            for lt in range(2):
                for h in range(2):
                    L.append("ds_read_b64_tr_b16 %s, v%d offset:%d" % (a(64 * half + 8 * n + 4 * lt + 2 * h, 2), self.aw[lt], n * 2048 + h * 1024))
        return L

    def ssm(self):
        A, V, S = self.A, self.V, self.S
        t0, t1, t2, t3 = self.t0, self.t1, self.t2, self.t3
        vt = V(); vu = V()
        for q in (self.vUT, self.vTr): V.rel(q)
        self.nG1 = 4; self.vG1 = V(4, 4)
        ax = [[V() for _ in range(4)] for _ in range(2)]; ab = [[V() for _ in range(4)] for _ in range(2)]
        F = []
        for fam, sel in ((ax, t3), (ab, t2)):
            F.append("v_lshl_add_u32 v%d, s%d, 13, v%d" % (fam[0][0], sel, self.vBase0))
            for sx in range(1, 4): F.append("v_xor_b32 v%d, %d, v%d" % (fam[0][sx], 32 * sx, fam[0][0]))
            for sx in range(4): F.append("v_add_u32 v%d, 0x10000, v%d" % (fam[1][sx], fam[0][sx]))
        pre, pim, pdt = self.ppar
        lam = V(2); cf = V(2); mu = V(2); l32 = V(2); l64 = V(2); L1 = V(2); L2 = V(4, 2); ta = V(2); tb = V(2)
        F1 = F; F = []
        for q in (pre, pim, pdt): F.append("v_lshlrev_b32 v%d, 16, v%d" % (q, q))
        F.append("v_mul_f32 v%d, %s, v%d" % (pdt, LOG2E, pdt))
        F.append("v_exp_f32 v%d, v%d" % (pdt, pdt))
        F.append("v_mul_f32 v%d, v%d, v%d" % (tb, pre, pre))
        F.append("v_cvt_pk_bf16_f32 v%d, 0, v%d" % (pdt, pdt))
        F.append("v_fmac_f32 v%d, v%d, v%d" % (tb, pim, pim))
        F.append("v_mul_f32 v%d, v%d, v%d" % (ta, pdt, pre))
        F.append("v_mul_f32 v%d, v%d, v%d" % (ta + 1, pdt, pim))
        F.append("v_mul_f32 v%d, %s, v%d" % (ta, LOG2E, ta))
        F.append("v_mul_f32 v%d, 0.15915494, v%d" % (ta + 1, ta + 1))
        F.append("v_exp_f32 v%d, v%d" % (ta, ta))
        F.append("v_rndne_f32 v%d, v%d" % (tb + 1, ta + 1))
        F.append("v_sub_f32 v%d, v%d, v%d" % (ta + 1, ta + 1, tb + 1))
        F.append("v_rcp_f32 v%d, v%d" % (tb, tb))
        F.append("v_cos_f32 v%d, v%d" % (lam, ta + 1))
        F.append("v_sin_f32 v%d, v%d" % (lam + 1, ta + 1))
        F.append("v_add_f32 v%d, v%d, v%d" % (tb, tb, tb))
        F.append("v_mul_f32 v%d, v%d, v%d" % (lam, lam, ta))
        F.append("v_mul_f32 v%d, v%d, v%d" % (lam + 1, lam + 1, ta))
        F.append("v_add_f32 v%d, -1.0, v%d" % (ta, lam))
        F.append("v_mul_f32 v%d, v%d, v%d" % (cf, ta, pre))
        F.append("v_mul_f32 v%d, v%d, v%d" % (cf + 1, lam + 1, pre))
        F.append("v_fmac_f32 v%d, v%d, v%d" % (cf, lam + 1, pim))
        F.append("v_fma_f32 v%d, -v%d, v%d, v%d" % (cf + 1, ta, pim, cf + 1))
        F.append("v_mul_f32 v%d, v%d, v%d" % (cf, cf, tb))
        F.append("v_mul_f32 v%d, v%d, v%d" % (cf + 1, cf + 1, tb))
        chain = [lam, ta, tb, ta, mu, l32, l64, L1, L2]
        for x_, y_ in zip(chain, chain[1:]):
            F.append("v_mul_f32 v%d, v%d, v%d" % (y_, x_, x_))
            F.append("v_mul_f32 v%d, v%d, v%d" % (y_ + 1, x_, x_ + 1))
            F.append("v_fma_f32 v%d, -v%d, v%d, v%d" % (y_, x_ + 1, x_ + 1, y_))
            F.append("v_add_f32 v%d, v%d, v%d" % (y_ + 1, y_ + 1, y_ + 1))
        F.append("v_sub_f32 v%d, 0, v%d" % (L2 + 2, L2 + 1)); F.append("v_mov_b32 v%d, v%d" % (L2 + 3, L2 + 1))
        al = V(4, 2); x1 = V(2); hm = S(2, 2); wm = S(2, 2)
        for (d, src, mk) in ((x1, l32, hm), (ta, l64, wm), (L1, L1, hm)):
            F.append("v_cndmask_b32 v%d, 1.0, v%d, s[%d:%d]" % (d, src, mk, mk + 1))
            F.append("v_cndmask_b32 v%d, 0, v%d, s[%d:%d]" % (d + 1, src + 1, mk, mk + 1))
        self.cmul(F, tb, tb + 1, x1, x1 + 1, ta, ta + 1)
        self.cmul(F, al, al + 2, cf, cf + 1, tb, tb + 1)
        self.cmul(F, al + 1, al + 3, mu, mu + 1, al, al + 2)
        ea = [V() for _ in range(8)]; et = [V() for _ in range(8)]; ea0 = ea[0]
        F.append("v_and_b32 v%d, 0xff, v%d" % (ta, self.vTag))
        for k in range(8): F.append("v_bfi_b32 v%d, v%d, 0, v%d" % (et[k], et[k], ta))
        F2 = F; F = F1
        F.append("s_mov_b32 s%d, 0" % hm); F.append("s_mov_b32 s%d, -1" % (hm + 1))
        F.append("s_sub_u32 s%d, 0, s%d" % (wm, t3)); F.append("s_mov_b32 s%d, s%d" % (wm + 1, wm))
        Sk = V(8, 4)
        self.bits(F, vu, vt, ((1, 1, 0), (3, 2, 1)))
        F.append("v_lshlrev_b32 v%d, 3, v0" % vt)
        F.append("v_xor_b32 v%d, v0, v%d" % (vt, vt))
        F.append("v_and_or_b32 v%d, v%d, 32, v%d" % (vu, vt, vu))
        for k in range(0, 8, 2):
            F.append("v_cmp_eq_u32 vcc, %d, v%d" % (k, vu))
            F.append("v_cmp_eq_u32 s[%d:%d], %d, v%d" % (self.sMk, self.sMk + 1, k + 1, vu))
            F.append("v_cndmask_b32 v%d, 0, v%d, vcc" % (Sk + k, self.vHm))
            F.append("v_cndmask_b32 v%d, 0, v%d, s[%d:%d]" % (Sk + k + 1, self.vHm, self.sMk, self.sMk + 1))
        vEs = V(); vXa = V()
        F.append("s_lshl1_add_u32 s%d, s%d, s%d" % (t0, self.sJ, t2))
        F.append("s_lshl_b32 s%d, s%d, 12" % (t0, t0))
        F.append("s_add_u32 s%d, s%d, %d" % (t0, t0, WS_E))
        F.append("s_add_u32 s68, s48, s%d" % t0); F.append("s_addc_u32 s69, s49, 0")
        self.bits(F, vt, None, ((0, 5, 3),))
        F.append("v_lshl_add_u32 v%d, s%d, 8, v%d" % (vEs, self.sR, vt))
        F.append("v_lshl_add_u32 v%d, s%d, 8, v%d" % (vXa, self.sW, vt))
        F.append("v_lshl_add_u32 v%d, s%d, 6, v%d" % (vXa, self.sP9, vXa))
        F.append("v_xor_b32 v%d, %d, v%d" % (vXa, L_R1 + 32768, vXa))
        self.bits(F, ea0, None, ((5, 1, 8),))
        F.append("v_sub_u32 v%d, v%d, v%d" % (ea0, vEs, ea0))
        F.append("v_subrev_u32 v%d, 256, v%d" % (ea0, ea0))
        F.append("v_and_b32 v%d, 0xa0, v0" % vt)
        F.append("v_cmp_eq_u32 vcc, 0x80, v%d" % vt)
        F.append("v_mov_b32 v%d, 0x%x" % (vt, HUGE))
        for k in range(1, 8): F.append("v_subrev_u32 v%d, %d, v%d" % (ea[k], 512 * k, ea0))
        for k in range(8): F.append("v_ashrrev_i32 v%d, 31, v%d" % (et[k], ea[k]))
        F.append("v_cndmask_b32 v%d, v%d, v%d, vcc" % (vEs, vt, vEs))
        self.bits(F, vt, vu, ((0, 1, 7), (1, 1, 12)))
        F.append("v_lshl_add_u32 v%d, s%d, 13, v%d" % (vt, self.sJ, vt))
        F.append("v_lshl_add_u32 v%d, s%d, 8, v%d" % (vt, self.sR, vt))
        F.append("v_add_u32 v%d, %d, v%d" % (vt, WS_E, vt))
        self.warm(F, vt, vu, WS_FH)
        sH = [S() for _ in range(4)]
        F.append("s_mul_i32 s%d, s%d, %d" % (t0, self.sRW, 2 * RT_STRIDE))
        F.append("s_and_b32 s%d, s%d, 4" % (t1, self.sJ)); F.append("s_add_u32 s%d, s%d, s%d" % (t1, t1, self.sJ))
        F.append("s_lshl1_add_u32 s%d, s%d, s%d" % (t1, t1, t2)); F.append("s_lshl_b32 s%d, s%d, 11" % (t1, t1))
        F.append("s_add_u32 s%d, s%d, s%d" % (t0, t0, t1))
        for tau in range(2):
            for comp in range(2):
                F.append("s_add_u32 s%d, s%d, %d" % (sH[2 * tau + comp], t0, WS_A + tau * RT_STRIDE + comp * 16384))
        self.emit(F)
        U = [[V(16, 4), V(16, 4)], [V(16, 4), V(16, 4)]]
        fr = self.acc
        def reads(c, sx, buf):
            slot = (c % 3) * 32768
            out = []
            for k, (fam, off) in enumerate(((ax, 0), (ab, 16384), (ab, 16384 + 4096), (ax, 4096))):
                hi, lo = self.lds_off(slot + off)
                out.append(("ds_read_b128 %s, v%d offset:%d" % (v(fr[buf] + 4 * k, 4), fam[hi][sx], lo), "f%d_%d" % (buf, k)))
            return out
        def mfmas(c, sx, buf):
            out = []
            z = "0" if (c == 0 and sx == 0) else None
            for (tau, comp) in ((0, 0), (0, 1), (1, 0), (1, 1)):
                ka = 0 if tau == 0 else 3; kb = 1 + comp
                out.append(((lambda tau=tau, comp=comp, ka=ka, kb=kb: self.mfma(U[comp][tau], v(fr[buf] + 4 * ka, 4), v(fr[buf] + 4 * kb, 4), z)),
                            ["f%d_%d" % (buf, max(ka, kb))]))
            return out
        c1 = self.c_dmas(1, L_R1)
        plan = self.o["plan"]; w0 = self.wo_dmas(0); c0 = self.c_dmas(0, L_R0)
        gl_ = [] if self.o["glate"] else [self.g_loads]
        tail = {0: [w0, c1[:8] + gl_], 1: [gl_ + c1[:8], []], 2: [gl_, c1[:8]], 3: [gl_ + c1[:4], c1[4:8]]}[plan]
        ex = []
        if self.o["early"]:
            self.sMW2 = S()
            A("s_add_u32 s%d, s%d, %d" % (self.sMW2, self.sMW, L_SP))
            na = self.o["ssm_a"]
            ex = self.wo_stag(); tail = [gl_ + c1[:na], c1[na:8]]
        self.p1_loop("s", reads, mfmas, tail, F2, ex)
        for q in self.ppar: V.rel(q)
        for q in (ta, tb): V.rel(q, 2)
        for fam in (ax, ab):
            for row in fam:
                for q in row: V.rel(q)
        for q in self.vw + self.vx: V.rel(q)
        pr = lambda comp, m: v(U[comp][m >> 3] + 2 * (m & 7), 2)
        E = [V(4, 2), V(4, 2)]
        SR = " op_sel_hi:[0,1,1]"; SI = " op_sel:[1,0,0]"; NG = " neg_lo:[1,0,0] neg_hi:[1,0,0]"
        L = v(lam, 2)
        cur = (pr(0, 0), pr(1, 0))
        for m in range(1, 16):
            d = E[m & 1]; dr, di = v(d, 2), v(d + 2, 2)
            A("v_pk_fma_f32 %s, %s, %s, %s%s" % (dr, L, cur[0], pr(0, m), SR))
            A("v_pk_fma_f32 %s, %s, %s, %s%s" % (di, L, cur[1], pr(1, m), SR))
            A("v_pk_fma_f32 %s, %s, %s, %s%s%s" % (dr, L, cur[1], dr, SI, NG))
            A("v_pk_fma_f32 %s, %s, %s, %s%s" % (di, L, cur[0], di, SI))
            cur = (dr, di)
        Ev = E[1]
        F0 = V(2); F1 = V(2); G = V(2); G0 = V(2); e = V(2)
        o = []
        self.cmul(o, F0, F0 + 1, mu, mu + 1, Ev, Ev + 2, Ev + 1, Ev + 3)
        o.append("v_mov_b32 v%d, v%d" % (F1, F0)); o.append("v_mov_b32 v%d, v%d" % (F1 + 1, F0 + 1))
        o.append("s_movk_i32 s%d, 0xff" % t0)
        o.append("v_permlane32_swap_b32 v%d, v%d" % (F0, F1)); o.append("v_permlane32_swap_b32 v%d, v%d" % (F0 + 1, F1 + 1))
        self.cmul(o, G, G + 1, l32, l32 + 1, F0, F0 + 1, F1, F1 + 1)
        self.emit(o)
        A("ds_write_b64 v%d, %s" % (vXa, v(G, 2)))
        A("v_and_b32 v%d, 0xfffffdff, v%d" % (vXa, vXa))
        if plan == 0: self.vm.wait("wo0")
        A("s_waitcnt lgkmcnt(0)")
        A("s_barrier")
        A("ds_read_b64 %s, v%d" % (v(G0, 2), vXa))
        A("s_waitcnt lgkmcnt(0)"); self.lg.zero(False)
        o = []
        self.cmul(o, e, e + 1, l64, l64 + 1, G0, G0 + 1, G, G + 1)
        self.emit(o)
        er = self.acc[1]
        def eloads():
            for i in range(8):
                A("buffer_load_dwordx2 %s, v%d, %s, 0 offen %s" % (v(er + 2 * i, 2), ea[i], self.ER, self.o["pe"])); self.vm.issue("er")
        A("v_bfi_b32 v%d, s%d, v%d, v%d" % (e, t0, self.vTag, e))
        A("v_bfi_b32 v%d, s%d, v%d, v%d" % (e + 1, t0, self.vTag, e + 1))
        if self.o["espec"] == 1: eloads()
        A("buffer_store_dwordx2 %s, v%d, %s, 0 offen sc1" % (v(e, 2), vEs, self.ER)); self.vm.issue("est")
        if self.o["espec"] == 2: eloads()
        if self.o["glate"]: self.g_loads()
        self.stamp(7)
        W = []
        be = V(4, 2); x2 = V(2); x3 = V(2)
        for (d, mk) in ((F0, hm), (G0, wm)):
            for h in range(2): W.append("v_cndmask_b32 v%d, 0, v%d, s[%d:%d]" % (d + h, d + h, mk, mk + 1))
        self.cmul(W, x3, x3 + 1, x1, x1 + 1, G0, G0 + 1, F0, F0 + 1)
        self.cmul(W, be, be + 2, cf, cf + 1, x3, x3 + 1)
        self.cmul(W, x2, x2 + 1, mu, mu + 1, x3, x3 + 1, Ev, Ev + 2)
        self.cmul(W, be + 1, be + 3, cf, cf + 1, x2, x2 + 1)
        C = v(cf, 2); T = v(x1, 2)
        for m in range(16):
            W.append("v_pk_mul_f32 %s, %s, %s op_sel:[1,0]" % (T, C, pr(0, m)))
            W.append("v_pk_mul_f32 %s, %s, %s op_sel_hi:[0,1]" % (pr(0, m), C, pr(0, m)))
            W.append("v_pk_fma_f32 %s, %s, %s, %s%s%s" % (pr(0, m), C, pr(1, m), pr(0, m), SI, NG))
            W.append("v_pk_fma_f32 %s, %s, %s, %s%s" % (pr(1, m), C, pr(1, m), T, SR))
        for q in (F1, G, G0, e, l32, l64): V.rel(q, 2)
        V.rel(E[0], 4)
        self.emit(weave(W, c0[:8], self.wo_reads(0)) if plan == 0 else weave(W, w0))
        self.stamp(22)
        self.g_check("ssm")
        Sm = [self.vXD, Sk]; og = V(2)
        for tau in range(2): A("v_sub_f32 v%d, 1.0, v%d" % (og + tau, self.vG1 + 2 * tau))
        for tau in range(2): A("v_cvt_pk_bf16_f32 v%d, v%d, v%d" % (og + tau, og + tau, og + tau))
        for tau in range(2):
            for k in range(8): A("v_and_b32 v%d, v%d, v%d" % (Sm[tau] + k, Sk + k, og + tau))
        A("s_waitcnt lgkmcnt(0)")
        A("s_barrier")
        ld = c1[8:] + self.wo_dmas(1) + c0[8:] if plan == 0 else c1[8:] + c0; n = self.o["ssm_c"]
        self.emit(ld[:n]); ld = ld[n:]
        self.stamp(8); self.stamp(24)
        if self.o["espec"]:
            self.vm.wait("er")
            A("s_branch L_echk")
        q = list(self.vm.q)
        A.label("L_epoll")
        eloads()
        A("s_waitcnt vmcnt(0)")
        self.vm.q = q if self.o["espec"] else []
        A.label("L_echk")
        for i in range(8):
            for h in range(2): A("v_xor_b32 v%d, v%d, v%d" % (er + 2 * i + h, er + 2 * i + h, et[i]))
            if i == 0: A("v_or_b32 v%d, v%d, v%d" % (vt, er, er + 1))
            else: A("v_or3_b32 v%d, v%d, v%d, v%d" % (vt, vt, er + 2 * i, er + 2 * i + 1))
        A("v_and_b32 v%d, 0xff, v%d" % (vt, vt))
        A("v_cmp_ne_u32 vcc, 0, v%d" % vt)
        self.poll_tail("L_epoll")
        self.stamp(9)
        n = self.o["ssm_d"]
        self.emit(ld[:n]); ld = ld[n:]
        for i in range(6, -1, -1):
            d = v(er + 2 * i, 2); p_ = v(er + 2 * i + 2, 2)
            A("v_pk_fma_f32 %s, %s, %s, %s op_sel_hi:[0,1,1]" % (d, v(L2, 2), p_, d))
            A("v_pk_fma_f32 %s, %s, %s, %s op_sel:[0,1,0] op_sel_hi:[1,0,1]" % (d, v(L2 + 2, 2), p_, d))
        o = []
        self.cmul(o, x1, x1 + 1, L1, L1 + 1, er, er + 1)
        o.append("v_mov_b32 v%d, v%d" % (x2, x1)); o.append("v_mov_b32 v%d, v%d" % (x2 + 1, x1 + 1))
        o.append("v_permlane32_swap_b32 v%d, v%d" % (x1, x2)); o.append("v_permlane32_swap_b32 v%d, v%d" % (x1 + 1, x2 + 1))
        o.append("v_pk_add_f32 %s, %s, %s" % (v(x1, 2), v(x1, 2), v(x2, 2)))
        c_ = v(x1, 2); br, bi, ar_, ai_ = v(be, 2), v(be + 2, 2), v(al, 2), v(al + 2, 2)
        o.append("v_pk_fma_f32 %s, %s, %s, %s%s" % (br, c_, ar_, br, SR))
        o.append("v_pk_fma_f32 %s, %s, %s, %s%s" % (bi, c_, ai_, bi, SR))
        o.append("v_pk_fma_f32 %s, %s, %s, %s%s%s" % (br, c_, ai_, br, SI, NG))
        o.append("v_pk_fma_f32 %s, %s, %s, %s%s" % (bi, c_, ar_, bi, SI))
        self.emit(o)
        for q in ea + et + [vEs, vXa]: V.rel(q)
        for q in (F0, mu, L1, cf, x1, x2, x3, og): V.rel(q, 2)
        for q in (E[1], L2, al): V.rel(q, 4)
        D = self.acc
        P = [[[V(4, 4), V(4, 4)] for _ in range(2)], [[self.vXD + 8, self.vXD + 12], [V(4, 4), V(4, 4)]]]
        cur = (br, bi)
        def finish(tau, dsts):
            out = []
            for comp in range(2):
                for k in range(8):
                    q = P[comp][tau][k >> 2]
                    out.append("v_cvt_pk_bf16_f32 v%d, v%d, v%d" % (q + (k & 3), dsts[comp] + 2 * k, dsts[comp] + 2 * k + 1))
                    if k & 3 == 3:
                        def st(q=q, k=k, comp=comp):
                            A("buffer_store_dwordx4 %s, v%d, %s, s%d offen%s %s" % (v(q, 4), self.vFr, self.WS, sH[2 * tau + comp], " offset:1024" if k == 7 else "", self.o["ha"]))
                            self.vm.issue("ast")
                        out.append(st)
            return out
        pend = []
        fin0 = finish(0, D)
        for m in range(16):
            tau, k = m >> 3, m & 7
            dr, di = pr(0, m), pr(1, m)
            A("v_pk_fma_f32 %s, %s, %s, %s%s" % (dr, L, cur[0], dr, SR))
            A("v_pk_fma_f32 %s, %s, %s, %s%s" % (di, L, cur[1], di, SR))
            if pend: pend.pop(0)()
            A("v_pk_fma_f32 %s, %s, %s, %s%s%s" % (dr, L, cur[1], dr, SI, NG))
            A("v_pk_fma_f32 %s, %s, %s, %s%s" % (di, L, cur[0], di, SI))
            cur = (dr, di)
            b0 = U[0][tau] + 2 * k; b1 = U[1][tau] + 2 * k
            A("v_cvt_pk_bf16_f32 v%d, v%d, v%d" % (P[0][tau][k >> 2] + (k & 3), b0, b0 + 1))
            A("v_cvt_pk_bf16_f32 v%d, -v%d, -v%d" % (P[1][tau][k >> 2] + (k & 3), b1, b1 + 1))
            if k & 3 == 3:
                kk = k >> 2
                dst = D if tau == 0 else [U[0][0], U[1][0]]
                for comp in range(2):
                    pend.append(lambda comp=comp, dst=dst, tau=tau, kk=kk: self.mfma(dst[comp], v(P[comp][tau][kk], 4), v(Sm[tau] + 4 * kk, 4), "0" if kk == 0 else None))
            if m >= 11: self.emit(fin0[:4]); fin0 = fin0[4:]
        for f in pend: f()
        self.emit(fin0)
        self.emit(finish(1, [U[0][0], U[1][0]]))
        self.stamp(10)
        n = self.o["ssm_e"]
        lateE, lateF = ld[:n], ld[n:]
        diag, addr = self.p2_setup(self.of + 16, L_R1, self.p_vt, self.p_vu)
        W, M, Z = self.skip_term("s_xor_b32 s%d, s%d, %d" % (t1, self.sMC, L_R0 + 7 * 8192), diag)
        self.emit(W + M[:8])
        self.lg.wait("ogr")
        self.emit(weave(M[8:] + addr + Z, lateE))
        self.flag()
        self.vm.wait("c1")
        A("s_barrier")
        n = self.o["ssm_f"]
        self.emit(lateF[:n]); lateF = lateF[n:]
        self.crd(0); self.crd(1)
        if self.o["hpw"] == 1: self.vm.wait("flag")
        self.hpoll()
        self.h_wait("s")
        for f in range(self.o["LA"]): self.hld(f)
        return self.p2_first(self.o["LA"], lateF)

    def att(self):
        A, V, S = self.A, self.V, self.S
        t0, t1, t2, t3 = self.t0, self.t1, self.t2, self.t3
        vt = V(); vu = V()
        self.nG1 = 2; self.vG1 = V(2)
        ax = [[[V() for _ in range(4)] for _ in range(2)] for _ in range(2)]
        akv = [V(), V()]; aq = [V(), V()]; vq = [V(), V()]
        sM2 = S(); sKV = [S() for _ in range(4)]; sOo = S(); sEps = S()
        vKs = V(); vKp = V(); xw = V(); xr = V(); xz = V(); c10 = V(); c01 = V(); ones = V(4, 4); cl = V(2)
        kw = V(); zw = V(); r0 = V(); r1 = V()
        F = []
        F.append("v_lshl_add_u32 v%d, s%d, 3, v%d" % (self.vG1a, t2, self.vG1a))
        F.append("v_lshl_add_u32 v%d, s%d, 12, v%d" % (ax[0][0][0], self.sW, self.vBase0))
        for sx in range(1, 4): F.append("v_xor_b32 v%d, %d, v%d" % (ax[0][0][sx], 32 * sx, ax[0][0][0]))
        for sx in range(4): F.append("v_xor_b32 v%d, 4096, v%d" % (ax[1][0][sx], ax[0][0][sx]))
        for lt in range(2):
            for sx in range(4): F.append("v_add_u32 v%d, 0x10000, v%d" % (ax[lt][1][sx], ax[lt][0][sx]))
        F.append("v_and_b32 v%d, 64, v0" % vt)
        F.append("v_xor_b32 v%d, v%d, v%d" % (akv[0], vt, self.vTr))
        F.append("v_add_u32 v%d, 0x10000, v%d" % (akv[1], akv[0]))
        F.append("v_add_u32 v%d, %d, v%d" % (aq[0], L_R1, self.vTr))
        F.append("v_xor_b32 v%d, 64, v%d" % (aq[1], aq[0]))
        self.bits(F, vt, vu, ((3, 3, 0), (6, 2, 4)))
        F.append("v_mul_u32_u24 v%d, 3072, v%d" % (vt, vt))
        F.append("v_lshl_add_u32 v%d, s%d, 7, v%d" % (vt, self.sJ, vt))
        F.append("v_add_u32 v%d, v%d, v%d" % (vq[0], vt, self.vUT))
        F.append("v_add_u32 v%d, %d, v%d" % (vq[1], 8 * 3072 - 1024, vq[0]))
        F.append("s_lshl_b32 s%d, s%d, 11" % (sM2, self.sW))
        F.append("s_add_u32 s%d, s%d, %d" % (sM2, sM2, L_R1))
        sPq = S()
        sC0 = S()
        F.append("s_lshl_b32 s%d, s%d, 2" % (sPq, self.sPar) if not self.o["early"] else "s_mov_b32 s%d, 0" % sPq)
        F.append("s_sub_u32 s%d, s%d, s%d" % (sC0, self.sCT, self.sCX))
        F.append("s_lshl_b32 s%d, s%d, 13" % (t0, sPq)); F.append("s_add_u32 s%d, s%d, s%d" % (sM2, sM2, t0))
        F.append("s_lshl2_add_u32 s%d, s%d, s%d" % (t0, self.sJ, self.sW))
        F.append("s_lshl_b32 s%d, s%d, 14" % (t0, t0))
        for i in range(4): F.append("s_add_u32 s%d, s%d, %d" % (sKV[i], t0, WS_KV + 4096 * i))
        F.append("v_lshl_add_u32 v%d, s%d, 10, v%d" % (vKs, self.sR, self.vFr))
        self.bits(F, vKp, None, ((0, 4, 10),))
        F.append("v_lshl_add_u32 v%d, s%d, 11, v%d" % (xw, self.sW, self.vL16))
        F.append("v_add_u32 v%d, %d, v%d" % (xw, L_SP, xw))
        F.append("v_lshl_add_u32 v%d, s%d, 10, v%d" % (xr, t3, xw))
        F.append("v_and_b32 v%d, 0xffffefff, v%d" % (xr, xr))
        F.append("v_lshlrev_b32 v%d, 2, v0" % xz)
        F.append("v_add_u32 v%d, %d, v%d" % (xz, L_SP + 8192, xz))
        F.append("v_mov_b32 v%d, 0x3f80" % c10); F.append("v_mov_b32 v%d, 0x3f800000" % c01)
        for i in range(4): F.append("v_mov_b32 v%d, 0x3f803f80" % (ones + i))
        F.append("v_mov_b32 v%d, %s" % (cl, LOG2E))
        F.append("s_mov_b32 s%d, 0x358637bd" % sEps)
        KB = L_R1 + 7 * 8192; ZB = KB + 2048
        F.append("v_and_b32 v%d, 16, v0" % vt)
        F.append("v_cmp_ne_u32 s[%d:%d], 0, v%d" % (self.sMk, self.sMk + 1, vt))
        F.append("v_add_u32 v%d, %d, v%d" % (r0, KB, self.vL16))
        F.append("v_lshl_add_u32 v%d, s%d, 10, v%d" % (kw, t2, r0))
        F.append("v_lshl_add_u32 v%d, s%d, 3, v%d" % (kw, t3, kw))
        self.bits(F, zw, vt, ((0, 2, 1), (4, 1, 5), (2, 1, 4), (3, 1, 3), (6, 1, 10)))
        F.append("v_add_u32 v%d, %d, v%d" % (zw, ZB, zw))
        self.bits(F, vu, None, ((5, 1, 4),))
        F.append("v_add_u32 v%d, %d, v%d" % (vu, ZB, vu))
        F.append("v_add_u32 v%d, 32, v%d" % (vt, vu))
        F.append("v_cndmask_b32 v%d, v%d, v%d, s[%d:%d]" % (r1, vt, r0, self.sMk, self.sMk + 1))
        F.append("v_cndmask_b32 v%d, v%d, v%d, s[%d:%d]" % (r0, r0, vu, self.sMk, self.sMk + 1))
        self.bits(F, vt, vu, ((0, 3, 7), (3, 2, 14)) if self.o["warm"] == 2 else ((0, 0, 7), (3, 0, 14)))
        F.append("v_lshl_add_u32 v%d, s%d, 16, v%d" % (vt, self.sJ, vt))
        F.append("v_lshl_add_u32 v%d, s%d, 10, v%d" % (vt, self.sR, vt))
        F.append("v_add_u32 v%d, %d, v%d" % (vt, WS_KV, vt))
        self.warm(F, vt, vu, WS_FO)
        F.append("s_lshl1_add_u32 s%d, s%d, s%d" % (t0, self.sRW, t2))
        F.append("s_mul_i32 s%d, s%d, %d" % (t0, t0, RT_STRIDE))
        F.append("s_lshl_b32 s%d, s%d, 12" % (t1, self.sJ)); F.append("s_add_u32 s%d, s%d, s%d" % (t0, t0, t1))
        F.append("s_add_u32 s%d, s%d, %d" % (sOo, t0, WS_A + 65536))
        self.emit(F)
        for q in (self.vUT, self.vTr): V.rel(q)
        Kt = [V(16, 4), V(16, 4)]; Vt = [V(16, 4), V(16, 4)]
        fr = self.acc
        xk = lambda c, sx: a(128 + 16 * c + 4 * sx, 4)
        def reads(c, sx, buf):
            slot = (c % 3) * 32768
            out = []
            hi, lo = self.lds_off(slot)
            def rw(m):
                for h in range(2):
                    h2, l2 = self.lds_off(slot + 16384 + m * 8192 + sx * 2048 + h * 512)
                    out.append(("ds_read_b64_tr_b16 %s, v%d offset:%d" % (v(fr[buf] + 4 + 4 * m + 2 * h, 2), akv[h2], l2), "w%d_%d" % (buf, m)))
            out.append(("ds_read_b128 %s, v%d offset:%d" % (xk(c, sx), ax[0][hi][sx], lo), "x%d_0" % buf))
            rw(0)
            out.append(("ds_read_b128 %s, v%d offset:%d" % (v(fr[buf], 4), ax[1][hi][sx], lo), "x%d_1" % buf))
            rw(1)
            return out
        def mfmas(c, sx, buf):
            out = []
            z = "0" if (c == 0 and sx == 0) else None
            for (m, lt) in ((0, 0), (0, 1), (1, 0), (1, 1)):
                xf = xk(c, sx) if lt == 0 else v(fr[buf], 4); wf = v(fr[buf] + 4 + 4 * m, 4)
                out.append(((lambda m=m, lt=lt, xf=xf, wf=wf: self.mfma((Kt, Vt)[m][lt], xf, wf, z)), ["w%d_%d" % (buf, m), "x%d_%d" % (buf, lt)]))
            return out
        wq = []
        for c in range(8):
            for i in range(2):
                pre = ["s_xor_b32 m0, s%d, %d" % (sM2, c * 8192), "s_xor_b32 s%d, s%d, %d" % (t0, sPq, c), "s_add_u32 s%d, s%d, s%d" % (t0, t0, sC0),
                       "s_and_b32 s%d, s%d, 7" % (t0, t0), "s_mul_i32 s%d, s%d, %d" % (t0, t0, 64 * 3072)]
                if i: pre = pre[:1] if (self.o["early"] and c >= 4) else []
                wq.append((pre, (lambda i=i: self.dma(vq[i], self.WA, "s%d" % t0, 1024 * i, "wq"))))
        gl_ = [] if self.o["glate"] else [self.g_loads]
        if self.o["early"]:
            self.p1_loop("a", reads, mfmas, [gl_ + wq[:8], []], self.p2_setup(0, L_R0, vt, vu)[1], wq[8:]); wq = wq[:8]
        else: self.p1_loop("a", reads, mfmas, [gl_ + wq[:8], wq[8:8 + self.o["att_a"]]], self.p2_setup(0, L_R0, vt, vu)[1])
        for lt in range(2):
            for row in ax[lt]:
                for q in row: V.rel(q)
        for q in akv + self.vx + self.vw + self.ppar: V.rel(q)
        tmp = V(8, 4)
        def phi(src, dst):
            out = []
            for k0 in range(0, 8, 4):
                for k in range(k0, k0 + 4):
                    out.append("v_pk_mul_f32 %s, %s, %s op_sel_hi:[0,1]" % (v(tmp + 2 * (k & 3), 2), v(cl, 2), v(src + 2 * k, 2)))
                for k in range(k0, k0 + 4):
                    for h in range(2):
                        out.append("v_exp_f32 v%d, v%d clamp" % (tmp + 2 * (k & 3) + h, tmp + 2 * (k & 3) + h))
                        out.append("v_max_f32 v%d, s%d, v%d" % (src + 2 * k + h, sEps, src + 2 * k + h))
                for k in range(k0, k0 + 4):
                    out.append("v_pk_add_f32 %s, %s, %s" % (v(src + 2 * k, 2), v(src + 2 * k, 2), v(tmp + 2 * (k & 3), 2)))
                for k in range(k0, k0 + 4):
                    out.append("v_cvt_pk_bf16_f32 v%d, v%d, v%d" % (dst + k, src + 2 * k, src + 2 * k + 1))
            return out
        pk = [V(8, 4), V(8, 4)]; pv = [V(8, 4), V(8, 4)]; Tk, Tz = self.acc
        W = []
        for lt in range(2):
            ph = phi(Kt[lt], pk[lt])
            for kk in range(2):
                W += ph[28 * kk:28 * kk + 28]
                for k in range(4 * kk, 4 * kk + 4): W.append("v_cvt_pk_bf16_f32 v%d, v%d, v%d" % (pv[lt] + k, Vt[lt] + 2 * k, Vt[lt] + 2 * k + 1))
                z = "0" if (lt == 0 and kk == 0) else None
                W.append(lambda lt=lt, kk=kk, z=z: self.mfma(Tz, v(ones, 4), v(pk[lt] + 4 * kk, 4), z))
                W.append(lambda lt=lt, kk=kk, z=z: self.mfma(Tk, v(pk[lt] + 4 * kk, 4), v(pv[lt] + 4 * kk, 4), z))
        cf_ = self.c_dmas(1, L_R0); n = self.o["att_b"]
        bl = wq[8 + self.o["att_a"]:] + cf_[:n]
        self.emit(weave(W[:100], bl) + W[100:] if bl else W); cf_ = cf_[n:]
        Uu = Kt[0]
        A("ds_write_b32 v%d, v%d" % (xz, Tz))
        for i in range(8):
            A("v_cndmask_b32 v%d, v%d, v%d, s[%d:%d]" % (Uu + i, Tk + i, Tk + 8 + i, self.sMk, self.sMk + 1))
            if i & 3 == 3: A("ds_write_b128 v%d, %s offset:%d" % (xw, v(Uu + i - 3, 4), 256 * (i - 3)))
        A("v_xor_b32 v%d, 512, v%d" % (xz, xz))
        A("s_waitcnt lgkmcnt(0)")
        A("s_barrier")
        A("ds_read_b128 %s, v%d" % (v(Uu, 4), xr))
        A("ds_read_b128 %s, v%d offset:4096" % (v(Uu + 4, 4), xr))
        A("ds_read_b32 v%d, v%d" % (Uu + 14, xz))
        A("v_mov_b32 v%d, v%d" % (Uu + 11, self.vTag))
        A("s_waitcnt lgkmcnt(0)"); self.lg.zero(False)
        A("v_pk_add_f32 %s, %s, %s" % (v(Uu, 2), v(Uu, 2), v(Uu + 4, 2)))
        A("v_pk_add_f32 %s, %s, %s" % (v(Uu + 2, 2), v(Uu + 2, 2), v(Uu + 6, 2)))
        A("v_add_f32 v%d, v%d, v%d" % (Uu + 10, Uu + 14, Tz))
        A("v_cvt_pk_bf16_f32 v%d, v%d, v%d" % (Uu + 8, Uu, Uu + 1))
        A("v_cvt_pk_bf16_f32 v%d, v%d, v%d" % (Uu + 9, Uu + 2, Uu + 3))
        A("buffer_store_dwordx4 %s, v%d, %s, s%d offen sc1" % (v(Uu + 8, 4), vKs, self.WS, sKV[0])); self.vm.issue("kst")
        self.stamp(7)
        if self.o["glate"]:
            self.g_loads()
        else: self.g_check("att")
        self.vm.wait("wq")
        A("s_barrier")
        Qt = self.acc
        qf = [pv[0], pv[0] + 4, pv[1], pv[1] + 4, pk[1], pk[1] + 4]
        rec = [Kt[0], Kt[1], Vt[0], Vt[1]]
        acc = V(6, 2)
        def qreads(n):
            gm, k = n >> 5, n & 31
            return [("ds_read_b64_tr_b16 %s, v%d offset:%d" % (v(qf[n % 6] + 2 * h, 2), aq[gm], k * 2048 + h * 512), "q%d" % n) for h in range(2)]
        def gl(n):
            A("buffer_load_dwordx4 %s, v%d, %s, s%d offen%s sc1" % (v(rec[n >> 2] + 4 * (n & 3), 4), self.vFr, self.WS, sKV[n >> 2], " offset:%d" % (1024 * (n & 3)) if n & 3 else ""))
            self.vm.issue("r%d" % n)
        def gsum():
            for i in range(6): A("v_mov_b32 v%d, 0" % (acc + i))
            for n in range(16):
                q = rec[n >> 2] + 4 * (n & 3)
                self.vm.wait("r%d" % n)
                A("v_dot2c_f32_bf16 v%d, v%d, v%d" % (acc, q, c10))
                A("v_dot2c_f32_bf16 v%d, v%d, v%d" % (acc + 1, q, c01))
                A("v_dot2c_f32_bf16 v%d, v%d, v%d" % (acc + 2, q + 1, c10))
                A("v_dot2c_f32_bf16 v%d, v%d, v%d" % (acc + 3, q + 1, c01))
                A("v_add_f32 v%d, v%d, v%d" % (acc + 4, acc + 4, q + 2))
                A("v_bitop3_b32 v%d, v%d, v%d, v%d bitop3:0xf6" % (acc + 5, acc + 5, q + 3, self.vTag))
        ld = cf_ + self.wo_dmas(0)
        gls = [([], (lambda n=n: gl(n))) for n in range(16)]
        g0 = self.o["att_g"]
        ph0 = phi(Qt[0], pk[0])
        for n in range(4):
            for t, tg in qreads(n): A(t); self.lg.issue(tg)
        for n in range(64):
            if n == 32: self.stamp(22)
            cur = None
            if n & 1 and ld: cur = ld.pop(0)
            elif n & 1 and n >= g0 and gls: cur = gls.pop(0)
            if cur: self.emit(cur[0])
            if n & 1 == 0: self.lg.wait("q%d" % (n + 1))
            self.mfma(Qt[n >> 5], v(qf[n % 6], 4), a(128 + 4 * (n & 31), 4), "0" if n & 31 == 0 else None)
            if n + 4 < 64:
                for t, tg in qreads(n + 4): A(t); self.lg.issue(tg)
            if cur: cur[1]()
            if n >= 35: self.emit(ph0[:2]); ph0 = ph0[2:]
        assert not ld and not ph0
        A("s_barrier")
        self.stamp(8)
        if self.o["glate"]: self.g_check("att")
        late = self.c_dmas(0, L_R1); nc = self.o["att_c1"]
        self.emit(weave(phi(Qt[1], pk[1]), gls + late[:nc])); late = late[nc:]
        self.stamp(24)
        A.label("L_ksum")
        gsum()
        A("v_cmp_ne_u32 vcc, 0, v%d" % (acc + 5))
        self.cap()
        A("s_cbranch_scc0 L_kok")
        q = list(self.vm.q)
        A.label("L_kpoll")
        A("buffer_load_dword v%d, v%d, %s, s%d offen offset:1020 sc1" % (vt, vKp, self.WS, sKV[0]))
        A("s_waitcnt vmcnt(0)")
        A("v_cmp_ne_u32 vcc, s%d, v%d" % (self.sTag, vt))
        self.poll_tail("L_kpoll")
        for n in range(16): gl(n)
        A("s_waitcnt vmcnt(0)")
        self.vm.q = q
        A("s_branch L_ksum")
        self.stub()
        A.label("L_kok")
        self.stamp(9)
        A("v_cvt_pk_bf16_f32 v%d, v%d, v%d" % (acc, acc, acc + 1))
        A("v_cvt_pk_bf16_f32 v%d, v%d, v%d" % (acc + 1, acc + 2, acc + 3))
        A("v_cvt_pk_bf16_f32 v%d, v%d, v%d" % (acc + 4, acc + 4, acc + 4))
        A("ds_write_b64 v%d, %s" % (kw, v(acc, 2)))
        A("ds_write_b16 v%d, v%d" % (zw, acc + 4))
        n2 = self.o["att_c2"]
        self.emit(late[:n2]); late = late[n2:]
        assert len(late) >= 2
        A("s_waitcnt lgkmcnt(0)")
        A("s_barrier")
        Ah = [pv[0], pv[0] + 4, pv[1], pv[1] + 4]
        for h in range(4): A("ds_read_b128 %s, v%d offset:%d" % (v(Ah[h], 4), (r0, r1)[h & 1], 1024 * (h >> 1)))
        for h in range(4):
            A("s_waitcnt lgkmcnt(%d)" % (3 - h))
            self.mfma(rec[h], v(Ah[h], 4), v(pk[h >> 1] + 4 * (h & 1), 4), "0")
        self.lg.zero(False)
        for h in range(4):
            d = rec[h]; num = d + 8 * (h & 1); den = d + 8 * (1 - (h & 1))
            A("v_add_f32 v%d, s%d, v%d" % (den, sEps, den))
            A("v_rcp_f32 v%d, v%d" % (den, den))
            A("v_mul_f32 v%d, v%d, v%d" % (den, den, self.vG1))
            for k in range(4): A("v_pk_mul_f32 %s, %s, %s op_sel_hi:[0,1]" % (v(num + 2 * k, 2), v(den, 2), v(num + 2 * k, 2)))
            for k in range(4): A("v_cvt_pk_bf16_f32 v%d, v%d, v%d" % (den + 4 + k, num + 2 * k, num + 2 * k + 1))
            A("buffer_store_dwordx4 %s, v%d, %s, s%d offen%s %s" % (v(den + 4, 4), self.vFr, self.WS, sOo, " offset:%d" % (1024 * h) if h else "", self.o["ha"])); self.vm.issue("ast")
        self.stamp(10)
        diag, _ = self.p2_setup(self.of + 16, L_R0, self.p_vt, self.p_vu)
        W, M, Z = self.skip_term("s_add_u32 s%d, s%d, %d" % (t1, self.sMW, L_SP), diag)
        self.emit(weave(M, self.wo_reads(0), late[:-2]) if late[:-2] else weave(M, self.wo_reads(0)))
        A("s_waitcnt lgkmcnt(0)")
        A("s_barrier")
        self.emit(W)
        late = late[-2:] + self.wo_dmas(1); n = self.o["att_e"]; n2 = self.o["att_f"]
        self.emit(late[:2])
        self.lg.wait("ogr")
        self.crd(0); self.crd(1)
        self.emit(weave(Z, late[2:n]) if late[2:n] else Z)
        if self.o["att_hp"]: self.hpoll()
        self.flag()
        self.emit(late[n:n2])
        if not self.o["att_hp"]: self.hpoll()
        self.h_wait("a")
        for f in range(self.o["LA"]): self.hld(f)
        return self.p2_first(self.o["LA"], late[n2:])

    def skip_term(self, ogbase, diag):
        A = self.A
        vt = self.p_vt; xd = self.vXD; og = self.of; dg = self.of + 16
        def ds(text, tag):
            return lambda: (A(text), self.lg.issue(tag))
        W = []
        W.append("v_sub_f32 v%d, 1.0, v%d" % (vt, self.vG2))
        W.append("v_lshrrev_b32 v%d, 2, v%d" % (self.vOg, self.vL16))
        W.append("v_cvt_pk_bf16_f32 v%d, 0, v%d" % (vt, vt))
        W.append(ogbase)
        W.append("v_add_u32 v%d, s%d, v%d" % (self.vOg, self.t1, self.vOg))
        W.append(ds("ds_write_b32 v%d, v%d" % (self.vOg, vt), "ogw"))
        W.append("v_and_b32 v%d, 0xffffff00, v%d" % (self.vOg, self.vOg))
        W.append("v_bfe_u32 v%d, v0, 5, 1" % vt)
        W.append("v_lshl_add_u32 v%d, v%d, 4, v%d" % (self.vOg, vt, self.vOg))
        for q in range(4): W.append(ds("ds_read_b128 %s, v%d offset:%d" % (v(og + 4 * q, 4), self.vOg, 32 * q), "ogr"))
        M = list(diag)
        M.append(lambda: self.mfma(xd, v(self.xdf, 4), v(dg, 4), "0"))
        M.append(lambda: self.mfma(xd, v(self.xdf + 4, 4), v(dg + 4, 4)))
        Z = ["v_pk_mul_f32 %s, %s, %s" % (v(xd + 2 * q, 2), v(xd + 2 * q, 2), v(og + 2 * q, 2)) for q in range(8)]
        return W, M, Z

    def hpoll(self):
        self.fpoll(self.vJunk, self.vf, self.sFH); self.vm.issue("hp")

    def flag(self):
        self.vm.wait("ast")
        self.A("buffer_store_dword v%d, v%d, %s, 0 offen %s" % (self.vTag, self.vFlag, self.WS, self.o["fa"])); self.vm.issue("flag")
        self.stamp(11)

    def p2_regs(self, V):
        self.p_vt = V(); self.p_vu = V()
        self.cb = [V(8, 4) for _ in range(3)]
        self.of = V(64, 4)
    def crd(self, f):
        for lt in range(2):
            self.A("ds_read_b128 %s, v%d offset:%d" % (v(self.cb[f % 3] + 4 * lt, 4), self.ac[lt][f & 3], ((f >> 2) & 3) * 8192)); self.lg.issue("c%d" % f)
    def hld(self, f):
        A = self.A
        if f & 3 == 0: A("s_xor_b32 s%d, s%d, %d" % (self.t0, self.sH, ((f >> 2) ^ 4) * 4096))
        A("buffer_load_dwordx4 %s, v%d, %s, s%d offen%s %s" % (a(128 + 4 * f, 4), self.vFr, self.WS, self.t0, " offset:%d" % (1024 * (f & 3)) if f & 3 else "", self.o["la"])); self.vm.issue("h%d" % f)
    def cstep(self, f, ld):
        A = self.A; acc, ac, cb = self.acc, self.ac, self.cb
        assert "h%d" % f in self.vm.q or f >= 22
        n1 = self.vm.need("h%d" % f); n2 = self.lg.need("c%d" % f)
        w = " ".join(x for x in ("" if n1 is None else "vmcnt(%d)" % n1, "" if n2 is None else "lgkmcnt(%d)" % n2) if x)
        if w: A("s_waitcnt " + w)
        self.mfma(acc[0], a(128 + 4 * f, 4), v(cb[f % 3], 4), v(self.vXD, 16) if f == 0 else None)
        if ld: ld()
        self.mfma(acc[1], a(128 + 4 * f, 4), v(cb[f % 3] + 4, 4), "0" if f == 0 else None)
        if f == 14: A("s_barrier")
        if f + 2 < 32:
            if 16 <= f + 2 < 20:
                for lt in range(2): A("v_xor_b32 v%d, 0x10000, v%d" % (ac[lt][(f + 2) & 3], ac[lt][(f + 2) & 3]))
            self.crd(f + 2)
        if f >= 16:
            for t in self.wo_reads(1)[2 * (f - 16):2 * (f - 16) + 2]: A(t); self.lg.issue("wb")
    def h_wait(self, name, inloop=None):
        A = self.A
        self.vm.wait("hp")
        self.stamp(12)
        A("s_branch L_hchk" + name)
        A.label("L_hpoll" + name)
        if inloop: inloop()
        self.fpoll(self.vJunk, self.vf, self.sFH)
        A("s_waitcnt vmcnt(0)")
        A.label("L_hchk" + name)
        A("v_cmp_ne_u32 vcc, s%d, v%d" % (self.sTag, self.vJunk))
        self.poll_tail("L_hpoll" + name)
        self.stamp(13)
    def p2_first(self, nh, extra):
        LA = self.o["LA"]
        q = list(extra) + [(lambda f=f: self.hld(f)) for f in range(nh, 2 * LA + 1)]
        n = len(q); done = 0
        for f in range(LA + 1):
            to = -(-n * (f + 1) // (LA + 1))
            self.cstep(f, (lambda lo=done, to=to: self.emit(q[lo:to]))); done = to
        return list(self.vm.q), list(self.lg.q)

    def p2(self):
        A, S = self.A, self.S
        vt, vu, of = self.p_vt, self.p_vu, self.of
        acc, vf, sO = self.acc, self.vf, self.sO
        cstep, hld = self.cstep, self.hld
        def old(n):
            if n & 3 == 0: A("s_xor_b32 s%d, s%d, %d" % (self.t1, sO, 1024 * n))
            A("buffer_load_dwordx4 %s, v%d, %s, s%d offen%s %s" % (v(of + 4 * n, 4), self.vFr, self.WS, self.t1, " offset:%d" % (1024 * (n & 3)) if n & 3 else "", self.o["la"])); self.vm.issue("o%d" % n)
        def opoll():
            self.fpoll(vt, vf, self.sFO); self.vm.issue("op")
        LA = self.o["LA"]
        f0 = 32 - LA
        assert f0 - 1 - LA > LA
        for f in range(LA + 1, f0):
            cstep(f, (lambda f=f: hld(f + LA)))
            if f + LA == f0 - 1 + 0: opoll()
        self.vm.wait("op")
        A("v_cmp_ne_u32 vcc, s%d, v%d" % (self.sTag, vt))
        A("s_cmp_lg_u64 vcc, 0")
        A("s_cbranch_scc1 L_slow")
        qv, ql = list(self.vm.q), list(self.lg.q)
        for f in range(f0, 32): cstep(f, (lambda f=f: old(f - f0)))
        self.stamp(14); self.stamp(15)
        A.label("L_join")
        q2 = list(self.vm.q)
        for n in range(16):
            if n == 8: self.lg.zero()
            self.vm.wait("o%d" % n)
            self.mfma(acc[1], v(of + 4 * n, 4), a(8 * n + 4, 4))
            if n + LA < 16: old(n + LA)
            self.mfma(acc[0], v(of + 4 * n, 4), a(8 * n, 4))
        self.stamp(16)
        vr = self.vr; og = of
        for q in range(4): A("ds_write_b128 v%d, %s offset:%d" % (vr, v(acc[1] + 4 * q, 4), 1024 * q))
        A("v_xor_b32 v%d, 8192, v%d" % (vr, vr))
        A("s_waitcnt lgkmcnt(0)")
        A("s_barrier")
        for q in range(4): A("ds_read_b128 %s, v%d offset:%d" % (v(og + 4 * q, 4), vr, 1024 * q))
        for q in range(4):
            A("s_waitcnt lgkmcnt(%d)" % (3 - q))
            for k in range(2): A("v_pk_add_f32 %s, %s, %s" % (v(acc[0] + 4 * q + 2 * k, 2), v(acc[0] + 4 * q + 2 * k, 2), v(og + 4 * q + 2 * k, 2)))
            for i in range(4 * q, 4 * q + 4):
                k = (i & 1) + 2 * (i >> 2); b = (i >> 1) & 1
                A("buffer_store_dword v%d, v%d, %s, %s offen%s%s" % (acc[0] + i, self.vOut, self.OUT, "0" if k == 0 else "s%d" % self.so[k - 1], " offset:2048" if b else "", self.o.get("outaux", "")))
        A("s_cmp_eq_u32 s2, 255")
        A("s_cbranch_scc0 L_fin")
        A("v_mov_b32 v%d, s%d" % (vt, self.sE))
        A("v_mov_b32 v%d, 0" % vu)
        A("buffer_store_dword v%d, v%d, %s, 0 offen" % (vt, vu, self.WS))
        A.label("L_fin")
        if self.o["stamps"]:
            if self.o["stamps"] != 2: A("s_waitcnt vmcnt(0)")
            self.stamp(17)
            A("v_lshlrev_b32 v%d, 2, v0" % vu)
            A("s_lshl_b32 s%d, s2, 10" % self.t0); A("s_add_u32 s%d, s%d, %d" % (self.t0, self.t0, WS_STAMP))
            A("buffer_store_dword v%d, v%d, %s, s%d offen" % (self.vStamp, vu, self.WS, self.t0))
        A("s_endpgm")
        self.stub()
        A.label("L_slow")
        self.vm.q, self.lg.q = qv, ql
        for f in range(f0, 32): cstep(f, None)
        self.stamp(14)
        A.label("L_opoll")
        opoll()
        A("s_waitcnt vmcnt(0)")
        A("v_cmp_ne_u32 vcc, s%d, v%d" % (self.sTag, vt))
        self.poll_tail("L_opoll")
        self.vm.zero(False)
        self.stamp(15)
        for n in range(LA): old(n)
        assert self.vm.q == q2, (self.vm.q, q2)
        A("s_branch L_join")

    def gen(self):
        A = self.A
        kernel_head(A, NAME)
        self.prologue()
        V0, S0, q0 = self.V.clone(), self.S.clone(), list(self.vm.q)
        self.p2_regs(V0.clone())
        st1 = self.ssm()
        A("s_branch L_p2")
        A.label("L_att")
        self.V, self.S, self.vm.q, self.lg.q = V0.clone(), S0.clone(), list(q0), []
        st2 = self.att()
        assert st1 == st2, (st1, st2)
        A.label("L_p2")
        self.p2()
        A.label("L_end")
        A("s_endpgm")
        body, n = hazard.fix(A.l)
        head = open("cdna_kernels/%s.s.ref" % NAME[:-7]).read().split("; Override launch")[0] if self.o.get("head", True) else ""
        out = head + "; @launch grid=(256,1,1) block=(256,1,1) lds=163840\n"
        out += '.amdgcn_target "amdgcn-amd-amdhsa--gfx950"\n.text\n'
        if self.o["pad"] >= 0:
            out += "; start the kernel at the top of a 4 KB page (instruction fetch stalls at page crossings)\n.p2align 12\n.fill %d, 4, 0xbf800000\n" % (64 * self.o["pad"])
        out += "\n".join(body) + "\n"
        out += '.section .rodata,"a"\n.p2align 6\n' + kernel_desc(NAME, 512, 256)
        if self.o["hop"]: out = self.link_stubs(out)
        return out

    def link_stubs(self, out):
        import re, subprocess, tempfile, os
        tmp = re.sub(r"@(STUB|CHAIN)\d+@", "L_back", out)
        d = tempfile.mkdtemp()
        open(d + "/a.s", "w").write(tmp)
        subprocess.run(["clang", "-x", "assembler", "-target", "amdgcn-amd-amdhsa", "-mcpu=gfx950", "-c", d + "/a.s", "-o", d + "/a.o"], check=True)
        sym = subprocess.run(["llvm-objdump", "-t", d + "/a.o"], capture_output=True, text=True).stdout
        ad = {l.split()[-1]: int(l.split()[0], 16) for l in sym.splitlines() if re.match(r"^[0-9a-f]{16} ", l)}
        base = ad[NAME]
        page = {}
        for k in range(1, self.nstub + 1):
            page.setdefault((ad["L_stub%d" % k] - base) >> 12, k)
        page.pop(0, None)
        pages = sorted(page)
        self.pages = (pages, (ad["L_end"] - base) >> 12)
        nxt = {}
        for w in range(4):
            ch = [page[p] for p in pages[w::4]]
            out = out.replace("@CHAIN%d@" % w, "L_stub%d" % ch[0] if ch else "L_back")
            for x, y in zip(ch, ch[1:]): nxt[x] = "L_stub%d" % y
        for k in range(1, self.nstub + 1): out = out.replace("@STUB%d@" % k, nxt.get(k, "L_back"))
        return out

if __name__ == "__main__":
    if len(sys.argv) > 1:
        for arg in sys.argv[1:]:
            nm, _, kv = arg.partition(":")
            o = eval("dict(%s)" % kv)
            open(nm, "w").write(K(stamps=(1 if "_st" in nm else 2 if "_lt" in nm else 0), head=False, **o).gen())
    else:
        open("k.s", "w").write(K().gen())
        open("k_st.s", "w").write(K(stamps=True).gen())
```

```python
import sys, amp
for nm, sp in zip("abcdef", sys.argv[1:]):
    if sp == "fixed": amp.mk("m_%s.s" % nm, {}, 17, "max", mult=0, stamps=2)
    else: amp.mk("m_%s.s" % nm, eval("dict(%s)" % sp), 17, "max", mult=20, stamps=2)
```

```python
import sys
from asmlib import Asm, v, a, s, kernel_head, kernel_desc
import hazard

NAME = "gated_mix__linear_attn_block__ssm_conv_s5__prompt_kernel"
WS_EPOCH, WS_G, WS_FH, WS_FO, WS_E, WS_KV, WS_A = 0, 0x1000, 0x10000, 0x20000, 0x30000, 0x40000, 0x100000
WS_STAMP = 0x1000000
SPILL = 0x800000
RT_STRIDE = 98304
HUGE = 0x20000000
L_R0, L_R1, L_SP = 0, 65536, 131072
LOG2E = "0x3fb8aa3b"
P_X, P_WQKV, P_WO, P_LRE, P_LIM, P_BRE, P_BIM = 4, 6, 8, 12, 14, 16, 18
P_CRE, P_CIM, P_LDT, P_DSK, P_GW, P_OUT, P_WS = 20, 22, 24, 26, 28, 30, 34

class Alloc:
    def __init__(self, regs):
        self.free = set(regs)
    def __call__(self, n=1, al=1):
        if n > 1 and al == 1: al = 2
        for b in sorted(self.free, reverse=(n <= 2)):
            if b % al == 0 and all(b + i in self.free for i in range(n)):
                for i in range(n): self.free.discard(b + i)
                return b
        raise RuntimeError("out of registers")
    def rel(self, b, n=1):
        for i in range(n):
            assert b + i not in self.free
            self.free.add(b + i)
    def clone(self):
        return Alloc(self.free)

class Cnt:
    def __init__(self, A, name, mx):
        self.A = A; self.name = name; self.mx = mx; self.q = []
    def issue(self, tag): self.q.append(tag)
    def need(self, tag):
        idx = [i for i, t in enumerate(self.q) if t == tag]
        if not idx: return None
        n = len(self.q) - 1 - idx[-1]
        self.q = self.q[idx[-1] + 1:]
        return min(n, self.mx)
    def wait(self, tag):
        n = self.need(tag)
        if n is not None: self.A("s_waitcnt %s(%d)" % (self.name, n))
    def zero(self, emit=True):
        if emit: self.A("s_waitcnt %s(0)" % self.name)
        self.q = []

def weave(main, *side):
    out = [[x] for x in main]
    for sd in side:
        n = len(sd)
        for k, x in enumerate(sd):
            out[min(len(main) - 1, (k * len(main)) // n)].append(x)
    return [y for x in out for y in x]

class K:
    def __init__(self, **opt):
        self.o = dict(stamps=0, pollcap=400000, order='gpq8', third='w4h4', d0=4, hop=1, pad=13, xrot=6, j3=1, qpf=1,
                      ssm=(8, 8, 0, 0, 8, 8), late7=1, att_b=8, att_g=16, att_c1=8, att_c2=6, att_e=2, att_f=10,
                      hpw=1, xdo=1, olead=4, owait=3, dpos=((-6, -2, 2, 6, 10, 14, 18, 22), (-6, -2, 2, 6, 10, 14, 18, 22)), outaux=' sc1 nt', LA=10, dbg='')
        self.o.update(opt)
        self.A = Asm()
        self.vm = Cnt(self.A, "vmcnt", 63)
        self.lg = Cnt(self.A, "lgkmcnt", 15)
        self.V = Alloc(range(1, 256))
        self.S = Alloc([3] + list(range(72, 102)))

    def stamp(self, idx):
        if not self.o["stamps"]: return
        if self.o["stamps"] == 2 and idx != 17: return
        A = self.A
        A("s_memrealtime s[%d:%d]" % (self.sT, self.sT + 1))
        A("s_memtime s[%d:%d]" % (self.sT2, self.sT2 + 1))
        A("s_waitcnt lgkmcnt(0)")
        self.lg.zero(False)
        A("v_writelane_b32 v%d, s%d, %d" % (self.vStamp, self.sT, idx))
        A("v_writelane_b32 v%d, s%d, %d" % (self.vStamp, self.sT2, 32 + idx))
    def dma(self, vo, srd, so, imm, tag):
        self.A("buffer_load_dwordx4 v%d, %s, %s offen%s lds" % (vo, srd, so, " offset:%d" % imm if imm else ""))
        self.vm.issue(tag)
    def ds(self, text, tag):
        return lambda: (self.A(text), self.lg.issue(tag))
    def mf(self, d, x, y, c=None, k=32):
        self.A("v_mfma_f32_16x16x%d_bf16 %s, %s, %s, %s" % (k, v(d, 4), x, y, v(d, 4) if c is None else c))
    def cmul(self, out, dr, di, ar, ai, br, bi, cr=None, ci=None):
        if cr is None:
            out.append("v_mul_f32 v%d, v%d, v%d" % (dr, ar, br))
            out.append("v_mul_f32 v%d, v%d, v%d" % (di, ar, bi))
        else:
            out.append("v_fma_f32 v%d, v%d, v%d, v%d" % (dr, ar, br, cr))
            out.append("v_fma_f32 v%d, v%d, v%d, v%d" % (di, ar, bi, ci))
        out.append("v_fma_f32 v%d, -v%d, v%d, v%d" % (dr, ai, bi, dr))
        out.append("v_fmac_f32 v%d, v%d, v%d" % (di, ai, br))
    def pmul(self, out, d, x, y, c=None, sel=None):
        q = lambda z: (z, z + 2) if isinstance(z, int) else z
        d, x, y = q(d), q(x), q(y)
        m3 = "" if sel is None else (" op_sel:[1,0,0]" if sel else " op_sel_hi:[0,1,1]")
        m2 = "" if sel is None else (" op_sel:[1,0]" if sel else " op_sel_hi:[0,1]")
        for k in range(2):
            if c is None: out.append("v_pk_mul_f32 %s, %s, %s%s" % (v(d[k], 2), v(x[0], 2), v(y[k], 2), m2))
            else: out.append("v_pk_fma_f32 %s, %s, %s, %s%s" % (v(d[k], 2), v(x[0], 2), v(y[k], 2), v(q(c)[k], 2), m3))
        out.append("v_pk_fma_f32 %s, %s, %s, %s%s neg_lo:[1,0,0] neg_hi:[1,0,0]" % (v(d[0], 2), v(x[1], 2), v(y[1], 2), v(d[0], 2), m3))
        out.append("v_pk_fma_f32 %s, %s, %s, %s%s" % (v(d[1], 2), v(x[1], 2), v(y[0], 2), v(d[1], 2), m3))
    def emit(self, lst):
        for x in lst:
            if isinstance(x, tuple):
                self.emit(x[0]); x[1]()
            elif callable(x): x()
            else: self.A(x)
    def cap(self):
        A = self.A
        A("s_sub_u32 s%d, s%d, 1" % (self.sCap, self.sCap))
        A("s_cselect_b64 vcc, 0, vcc")
        A("s_cselect_b32 s%d, 0, s%d" % (self.sCap, self.sCap))
        A("s_cmp_lg_u64 vcc, 0")
    def poll_tail(self, lab):
        self.cap()
        self.A("s_cbranch_scc1 %s" % lab)
    def bits(self, out, d, tmp, spec, src="v0"):
        for n, (bit, w, sh) in enumerate(spec):
            if n == 0:
                if bit == sh: out.append("v_and_b32 v%d, 0x%x, %s" % (d, ((1 << w) - 1) << bit, src))
                else:
                    out.append("v_bfe_u32 v%d, %s, %d, %d" % (d, src, bit, w))
                    if sh: out.append("v_lshlrev_b32 v%d, %d, v%d" % (d, sh, d))
            else:
                out.append("v_bfe_u32 v%d, %s, %d, %d" % (tmp, src, bit, w))
                out.append("v_lshl_or_b32 v%d, v%d, %d, v%d" % (d, tmp, sh, d))
    def wait2(self, vtag, ltag):
        n1 = self.vm.need(vtag) if vtag else None
        n2 = self.lg.need(ltag) if ltag else None
        w = " ".join(x for x in ("" if n1 is None else "vmcnt(%d)" % n1, "" if n2 is None else "lgkmcnt(%d)" % n2) if x)
        if w: self.A("s_waitcnt " + w)

    def slot(self, c):
        return ((c + 2) % 4) * 32768
    def chunk_dmas(self, c):
        slot = self.slot(c); tag = "ch%d" % c
        L = []
        nx0 = ["s_mul_i32 s%d, s%d, s%d" % (self.sO2, self.sCh, self.sWst)]
        nx1 = ["s_lshl_b32 s%d, s%d, 7" % (self.sO1, self.sCh)]
        nx2 = ["s_add_u32 s%d, s%d, 1" % (self.sCh, self.sCh)]; nx3 = ["s_and_b32 s%d, s%d, 7" % (self.sCh, self.sCh)]
        for n in range(4):
            pre = [] if n & 1 else ["s_add_u32 m0, s%d, %d" % (self.sM, slot + 16384 + (n >> 1) * 4096)] + (nx1 if n else nx0)
            L.append((pre, (lambda n=n: self.dma(self.vw[n], (self.WA, self.WB)[n >> 1], "s%d" % self.sO2, 2048 * (n & 1), tag))))
        for n in range(4):
            pre = [] if n & 1 else ["s_add_u32 m0, s%d, %d" % (self.sM, slot + (n >> 1) * 4096)] + (nx3 if n else nx2)
            L.append((pre, (lambda n=n: self.dma(self.vx[n >> 1], self.X, "s%d" % self.sO1, 2048 * (n & 1), tag))))
        return L
    def wo_dmas(self, half):
        L = []
        for n in range(8):
            aa, b = n >> 2, n & 3
            pre = [] if b else ["s_add_u32 m0, s%d, %d" % (self.sMW, L_SP + aa * 4096), "s_xor_b32 s%d, s%d, %d" % (self.sO1, self.sP17, (half * 128 + aa * 32) * 1024)]
            L.append((pre, (lambda b=b: self.dma(self.vo[b], self.WO, "s%d" % self.sO1, 1024 * b, "wo%d" % half))))
        return L
    def c_dmas(self, comp, region):
        L = []
        for idx in range(8):
            for i in range(2):
                pre = [] if i else ["s_xor_b32 m0, s%d, %d" % (self.sMC, region + idx * 8192), "s_xor_b32 s%d, s%d, %d" % (self.sO1, self.sP9, idx * 128)]
                L.append((pre, (lambda i=i: self.dma(self.vc[i], (self.CRE, self.CIM)[comp], "s%d" % self.sO1, 2048 * i, "c%d" % comp))))
        return L
    def wo_reads(self, half):
        L = []
        for n in range(4):
            for t in range(4):
                for h in range(2):
                    L.append("ds_read_b64_tr_b16 %s, v%d offset:%d" % (a(64 * half + 16 * n + 4 * t + 2 * h, 2), self.aw[t], n * 4096 + h * 2048))
        return L

    def prologue(self):
        A, V, S = self.A, self.V, self.S
        self.X, self.WA, self.WB, self.WS = "s[36:39]", "s[40:43]", "s[44:47]", "s[48:51]"
        self.CRE, self.CIM, self.WO, self.OUT, self.ER = "s[52:55]", "s[56:59]", "s[60:63]", "s[64:67]", "s[68:71]"
        self.sT = S(2, 2); self.sT2 = S(2, 2); self.sMk = S(2, 2)
        self.sR, self.sJ, self.sRole, self.sW, self.sCT, self.sRH = [S() for _ in range(6)]
        self.sM, self.sCh, self.sO1, self.sO2, self.sTag, self.sE, self.sWst, self.sN2, self.sCX = [S() for _ in range(9)]
        self.t0, self.t1, self.t2, self.t3 = [S() for _ in range(4)]
        t0, t1, t2, t3 = self.t0, self.t1, self.t2, self.t3
        sR, sJ, sW, sCT, sRH, sRole = self.sR, self.sJ, self.sW, self.sCT, self.sRH, self.sRole
        vt = V(); vu = V()
        self.vJunk = V(); self.vL16 = V()
        vp = V(); vd = V(); vg = V()
        A("s_cmp_ge_u32 s2, 256")
        A("s_cbranch_scc1 L_end")
        A("s_load_dwordx16 s[4:19], s[0:1], 0")
        A("s_load_dwordx16 s[20:35], s[0:1], 64")
        if self.o["stamps"]:
            self.vStamp = V()
            A("s_memrealtime s[%d:%d]" % (self.sT, self.sT + 1))
            A("s_memtime s[%d:%d]" % (self.sT2, self.sT2 + 1))
        A("s_getpc_b64 s[%d:%d]" % (self.sMk, self.sMk + 1))
        A.label("L_pc")
        A("s_and_b32 s%d, s2, 0xf8" % t0)
        A("v_lshrrev_b32 v%d, 5, v0" % vt)
        A("v_add_lshl_u32 v%d, s%d, v%d, 7" % (vt, t0, vt))
        A("v_min_u32 v%d, L_end-L_pc, v%d" % (vt, vt))
        A("v_lshrrev_b32 v%d, 6, v0" % vu)
        A("global_load_dword v%d, v%d, s[%d:%d]" % (self.vJunk, vt, self.sMk, self.sMk + 1)); self.vm.issue("junk")
        A("v_readfirstlane_b32 s%d, v%d" % (sW, vu))
        A("s_and_b32 s%d, s2, 1" % sRH)
        A("s_bfe_u32 s%d, s2, 0x20001" % t0)
        A("s_lshr_b32 s%d, s2, 6" % t1)
        A("s_lshl2_add_u32 s%d, s%d, s%d" % (sR, t0, t1))
        A("s_bfe_u32 s%d, s2, 0x20003" % t0)
        A("s_lshl2_add_u32 s%d, s%d, s%d" % (sJ, sRH, t0))
        A("s_bfe_u32 s%d, s2, 0x10005" % sRole)
        A("s_lshl3_add_u32 s%d, s%d, s%d" % (t0, sRole, sJ))
        A("s_lshl2_add_u32 s%d, s%d, s%d" % (self.sN2, t0, sW))
        A("s_cmp_eq_u32 s%d, %d" % (t0, 11 if self.o["j3"] else 99))
        A("s_cselect_b32 s%d, s%d, 0" % (t1, t1))
        A("s_lshl1_add_u32 s%d, s%d, s2" % (self.sCh, t1))
        A("s_and_b32 s%d, s%d, %d" % (self.sCh, self.sCh, self.o["xrot"]))
        A("v_and_b32 v%d, 63, v0" % self.vL16)
        A("v_lshlrev_b32 v%d, 4, v%d" % (self.vL16, self.vL16))
        A("s_and_b32 s%d, s%d, 0x3e" % (t0, self.sN2))
        A("s_add_u32 s%d, s%d, s%d" % (t0, t0, self.sN2))
        A("s_lshl_b32 s%d, s%d, 7" % (t1, sR))
        A("s_add_u32 s%d, s%d, s%d" % (t0, t0, t1))
        A("v_lshl_add_u32 v%d, s%d, 10, v%d" % (vg, t0, self.vL16))
        A("s_mul_i32 s42, s%d, 0x100000" % sRole); A("s_add_u32 s42, s42, 0x80000"); A("s_mov_b32 s46, s42")
        A("s_mul_i32 s%d, s%d, %d" % (self.sWst, sRole, 64 * 3072 - 128)); A("s_add_u32 s%d, s%d, 128" % (self.sWst, self.sWst))
        A("s_mul_i32 s%d, s%d, %d" % (t2, sRole, 32 * 3072))
        A("s_lshl_b32 s%d, s%d, 13" % (t3, sRole)); A("s_add_u32 s%d, s%d, 2048" % (t3, t3))
        A("s_mov_b32 s38, 0x200000")
        for b in (36, 40, 44): A("s_mov_b32 s%d, 0x20000" % (b + 3))
        A("s_mul_i32 s%d, s%d, 0x1400" % (self.sM, sW))
        A("s_and_b32 s%d, s%d, 0x2400" % (self.sM, self.sM))
        vUA = V(); vUT = V()
        self.vx = [V() for _ in range(2)]; self.vw = [V() for _ in range(4)]
        o = []
        o.append("v_lshrrev_b32 v%d, 4, v0" % vt)
        o.append("v_xor_b32 v%d, v0, v%d" % (vt, vt))
        self.bits(o, vUA, vu, ((0, 3, 4),), "v%d" % vt)
        o.append("v_lshrrev_b32 v%d, 3, v0" % vt)
        o.append("v_and_b32 v%d, 6, v%d" % (vt, vt))
        o.append("v_xor_b32 v%d, v0, v%d" % (vt, vt))
        self.bits(o, vUT, vu, ((0, 3, 4),), "v%d" % vt)
        w0 = self.vw[0]; w1 = self.vw[1]
        self.bits(o, vt, vu, ((3, 2, 0), (5, 2, 3)))
        o.append("v_lshrrev_b32 v%d, 7, v0" % vu)
        o.append("v_lshl_or_b32 v%d, v%d, 5, v%d" % (w0, vu, vt))
        o.append("v_lshl_add_u32 v%d, s%d, 6, v%d" % (w0, sJ, w0))
        o.append("v_lshl_add_u32 v%d, v%d, 10, v%d" % (w0, w0, vUA))
        o.append("v_mul_u32_u24 v%d, 3072, v%d" % (vt, vt))
        o.append("v_lshl_add_u32 v%d, v%d, 10, v%d" % (vt, vu, vt))
        o.append("s_lshl_b32 s%d, s%d, 7" % (t0, sJ))
        o.append("s_add_u32 s%d, s%d, 1024" % (t0, t0))
        o.append("s_cmp_eq_u32 s%d, 0" % sRole)
        o.append("s_cselect_b64 vcc, -1, 0")
        o.append("v_add3_u32 v%d, v%d, s%d, v%d" % (vt, vt, t0, vUT))
        o.append("v_cndmask_b32 v%d, v%d, v%d, vcc" % (w0, vt, w0))
        o.append("v_add_u32 v%d, s%d, v%d" % (w1, t3, w0))
        o.append("v_add_u32 v%d, s%d, v%d" % (self.vw[2], t2, w0))
        o.append("v_add_u32 v%d, s%d, v%d" % (self.vw[3], t2, w1))
        x0 = self.vx[0]
        self.bits(o, x0, vu, ((3, 1, 3), (4, 1, 0), (5, 3, 4)))
        o.append("v_lshl_add_u32 v%d, s%d, 7, v%d" % (x0, sR, x0))
        o.append("v_lshl_add_u32 v%d, v%d, 10, v%d" % (x0, x0, vUA))
        o.append("v_add_u32 v%d, 4096, v%d" % (self.vx[1], x0))
        self.emit(o)
        self.ppar = [V(2), V(2), V(2)]; self.vDs = V(4, 2); self.gx = self.vXD = V(16, 4)
        A("s_mov_b32 s%d, s%d" % (self.sCX, self.sCh))
        A("s_waitcnt lgkmcnt(0)")
        A("s_cselect_b64 s[40:41], s[%d:%d], s[%d:%d]" % (P_BRE, P_BRE + 1, P_WQKV, P_WQKV + 1))
        A("s_cselect_b64 s[44:45], s[%d:%d], s[%d:%d]" % (P_BIM, P_BIM + 1, P_WQKV, P_WQKV + 1))
        A("s_mov_b64 s[36:37], s[%d:%d]" % (P_X, P_X + 1))
        if self.o["stamps"]: A("v_writelane_b32 v%d, s%d, 0\nv_writelane_b32 v%d, s%d, 32" % (self.vStamp, self.sT, self.vStamp, self.sT2))
        self.stamp(18)
        self.early = self.chunk_dmas(0) + self.chunk_dmas(1)
        for tok in self.o["order"]:
            if tok == "g":
                A("global_load_dwordx4 %s, v%d, s[%d:%d]" % (v(self.gx, 4), vg, P_X, P_X + 1)); self.vm.issue("par")
                A("global_load_dwordx4 %s, v%d, s[%d:%d] offset:2048" % (v(self.gx + 4, 4), vg, P_X, P_X + 1)); self.vm.issue("par")
            elif tok == "p":
                A("s_bfe_u32 s%d, s2, 0x30003" % sCT)
                A("s_bfe_u32 s%d, s2, 0x10006" % t0)
                A("s_lshl_b32 s%d, s%d, 2" % (t0, t0))
                A("s_xor_b32 s%d, s%d, s%d" % (sCT, sCT, t0))
                o = []
                self.bits(o, vp, vu, ((6, 1, 6), (0, 2, 1), (2, 2, 4)))
                o.append("v_lshl_add_u32 v%d, s%d, 7, v%d" % (vp, sJ, vp))
                self.bits(o, vd, vu, ((4, 2, 3), (7, 1, 6)))
                o.append("v_lshl_add_u32 v%d, s%d, 7, v%d" % (vd, sCT, vd))
                self.emit(o)
            elif tok == "q":
                A("global_load_dwordx4 %s, v%d, s[%d:%d]" % (v(self.gx + 8, 4), self.vL16, P_GW, P_GW + 1)); self.vm.issue("par")
                for b in range(2):
                    A("global_load_dwordx2 %s, v%d, s[%d:%d] offset:%d" % (v(self.vDs + 2 * b, 2), vd, P_DSK, P_DSK + 1, 32 * b)); self.vm.issue("par")
                A("s_cmp_eq_u32 s%d, 0" % sRole)
                A("s_cbranch_scc0 L_nopar")
                for q, p in zip(self.ppar, (P_LRE, P_LIM, P_LDT)):
                    for b in range(2): A("global_load_ushort v%d, v%d, s[%d:%d] offset:%d" % (q + b, vp, p, p + 1, 8 * b))
                A.label("L_nopar")
                assert len(self.early) == 16
            else:
                n = int(tok)
                self.emit(self.early[:n]); self.early = self.early[n:]
        self.stamp(19)
        A("s_load_dword s%d, s[%d:%d], 0" % (self.sE, P_WS, P_WS + 1))
        o = []
        o.append("s_sub_u32 s%d, s%d, s%d" % (self.sCX, sCT, self.sCX))
        o.append("s_and_b32 s%d, s%d, 7" % (self.sCX, self.sCX))
        for b, p, n in ((48, P_WS, 0x10000000), (52, P_CRE, 0x80000), (56, P_CIM, 0x80000), (60, P_WO, 0x80000), (64, P_OUT, 0x400000)):
            o.append("s_mov_b64 s[%d:%d], s[%d:%d]" % (b, b + 1, p, p + 1))
            o.append("s_mov_b32 s%d, 0x%x" % (b + 2, n))
        o.append("s_mov_b32 s70, 4096")
        for b in range(48, 72, 4): o.append("s_mov_b32 s%d, 0x20000" % (b + 3))
        self.emit(o)
        for q in range(4, 34): S.rel(q)
        self.vTag, self.vBase, self.vFlag, self.vG1a, self.vG2a, self.vf, self.vr, self.vOut, self.vPf, self.vFr, self.vTr = [V() for _ in range(11)]
        self.vo = [V() for _ in range(4)]; self.vc = [V() for _ in range(2)]
        self.aw = [V() for _ in range(4)]; self.ac = [[V(), V()], [V(), V()]]; self.axd = [[V(), V()], [V(), V()]]
        self.vG2 = V(4, 4); self.xdf = V(8, 4); self.acc = [V(16, 4), V(16, 4)]
        self.sPf = S(2, 2)
        self.sMW, self.sMC, self.sRT, self.sRW, self.sCap, self.sP9, self.sP17, self.sH, self.sO, self.sFH, self.sFO = [S() for _ in range(11)]
        o = []
        o.append("s_mov_b32 s%d, %d" % (self.sCap, self.o["pollcap"]))
        o.append("s_lshr_b32 s%d, s%d, 1" % (t3, sW))
        o.append("s_and_b32 s%d, s%d, 1" % (t2, sW))
        o.append("s_lshl1_add_u32 s%d, s%d, s%d" % (self.sRW, sR, t3))
        o.append("s_lshl1_add_u32 s%d, s%d, s%d" % (t1, sR, sRH))
        o.append("s_lshl1_add_u32 s%d, s%d, s%d" % (self.sRT, t1, t2))
        xd0 = self.axd[0][0]
        o.append("v_bfe_u32 v%d, v0, 1, 3" % vt)
        o.append("v_bfe_u32 v%d, v0, 4, 2" % vu)
        o.append("v_xor_b32 v%d, v%d, v%d" % (self.vBase, vt, vu))
        o.append("v_bfe_u32 v%d, v0, 5, 1" % vu)
        o.append("v_xor_b32 v%d, v%d, v%d" % (xd0, vt, vu))
        self.bits(o, vu, None, ((0, 4, 7),))
        o.append("v_lshl_add_u32 v%d, v%d, 4, v%d" % (self.vBase, self.vBase, vu))
        o.append("v_lshl_add_u32 v%d, v%d, 4, v%d" % (xd0, xd0, vu))
        o.append("v_bfe_u32 v%d, v0, 4, 1" % vu)
        o.append("v_lshl_or_b32 v%d, v%d, 3, v%d" % (xd0, vu, xd0))
        o.append("s_and_b32 s%d, s%d, 3" % (t0, self.sRT))
        o.append("s_lshl_b32 s%d, s%d, 6" % (t0, t0))
        o.append("s_add_u32 s%d, s%d, s%d" % (t0, t0, t3))
        o.append("s_lshl_b32 s%d, s%d, 6" % (t0, t0))
        o.append("v_xor_b32 v%d, s%d, v%d" % (xd0, t0, xd0))
        o.append("v_xor_b32 v%d, 32, v%d" % (self.axd[0][1], xd0))
        for e in range(2): o.append("v_add_u32 v%d, 0x10000, v%d" % (self.axd[1][e], self.axd[0][e]))
        self.bits(o, self.vTr, vu, ((2, 4, 7), (0, 2, 3), (3, 2, 5)))
        o.append("s_mul_i32 s%d, s%d, %d" % (t0, t3, 16384 + 64))
        o.append("s_add_u32 s%d, s%d, %d" % (t0, t0, L_SP))
        o.append("v_xor_b32 v%d, s%d, v%d" % (self.aw[0], t0, self.vTr))
        for t in range(1, 4): o.append("v_xor_b32 v%d, %d, v%d" % (self.aw[t], 32 * t, self.aw[0]))
        o.append("s_lshl_b32 s%d, s%d, 13" % (self.sMW, sW))
        o.append("s_lshr_b32 s%d, s2, 7" % t0)
        o.append("s_andn2_b32 s%d, s%d, s%d" % (self.sP9, t0, sRole))
        o.append("s_lshl_b32 s%d, s%d, 9" % (self.sP9, self.sP9))
        o.append("s_lshl_b32 s%d, s%d, 8" % (self.sP17, self.sP9))
        self.bits(o, vu, vt, ((3, 3, 0), (6, 1, 6), (7, 1, 8)))
        o.append("v_lshl_add_u32 v%d, v%d, 10, v%d" % (vu, vu, vUT))
        o.append("v_lshl_add_u32 v%d, s%d, 7, v%d" % (self.vo[0], sCT, vu))
        for b in range(1, 4): o.append("v_add_u32 v%d, %d, v%d" % (self.vo[b], 7168 * b, self.vo[0]))
        o.append("s_lshl2_add_u32 s%d, s%d, s%d" % (self.sMC, t3, t2))
        o.append("s_lshl_b32 s%d, s%d, 10" % (self.sMC, self.sMC))
        o.append("s_lshl_b32 s%d, s%d, 6" % (t0, self.sP9))
        o.append("s_add_u32 s%d, s%d, s%d" % (self.sMC, self.sMC, t0))
        self.bits(o, vt, vu, ((3, 4, 0), (7, 1, 5)))
        o.append("v_lshl_add_u32 v%d, s%d, 6, v%d" % (vt, sCT, vt))
        o.append("v_lshl_add_u32 v%d, v%d, 10, v%d" % (self.vc[0], vt, vUA))
        o.append("v_add_u32 v%d, %d, v%d" % (self.vc[1], 16384 - 2048, self.vc[0]))
        self.bits(o, vu, None, ((0, 4, 4),))
        o.append("v_add_u32 v%d, %d, v%d" % (vu, WS_G, vu))
        o.append("v_lshl_add_u32 v%d, s%d, 9, v%d" % (self.vG1a, self.sRW, vu))
        o.append("v_lshl_add_u32 v%d, s%d, 8, v%d" % (self.vG2a, self.sRT, vu))
        o.append("v_and_b32 v%d, 56, v0" % vt)
        o.append("v_cmp_eq_u32 vcc, 24, v%d" % vt)
        o.append("v_add_u32 v%d, %d, v%d" % (vt, SPILL - 384, self.vL16))
        o.append("s_mov_b64 s[%d:%d], s[48:49]" % (self.sPf, self.sPf + 1))
        o.append("v_cndmask_b32 v%d, v%d, v%d, vcc" % (self.vFr, self.vL16, vt))
        o.append("s_lshl4_add_u32 s%d, s%d, s%d" % (t0, sR, sJ))
        o.append("s_lshl_b32 s%d, s%d, 8" % (t0, t0))
        o.append("s_add_u32 s%d, s%d, %d" % (t0, t0, WS_FH))
        self.bits(o, self.vPf, vu, ((6, 1, 7), (7, 1, 11)))
        o.append("v_add_u32 v%d, s%d, v%d" % (self.vPf, t0, self.vPf))
        o.append("v_lshl_add_u32 v%d, s%d, 16, v%d" % (self.vPf, sRole, self.vPf))
        self.bits(o, self.vFlag, None, ((0, 5, 2),))
        o.append("v_add_u32 v%d, v%d, v%d" % (self.vFlag, self.vFlag, self.vPf))
        self.emit(o)
        self.vUT = vUT
        for q in (vt, vu, vUA, vp, vg, vd): V.rel(q)
        A("s_cmp_eq_u32 s%d, 0" % sRole)
        A("s_cbranch_scc0 L_att")

    def p2_addr(self, first, vt, vu):
        t0, t1, t3 = self.t0, self.t1, self.t3
        o = []
        o.append("s_lshr_b32 s%d, s%d, 1" % (t3, self.sW))
        o.append("s_lshr_b32 s%d, s%d, 1" % (t1, self.sRT))
        o.append("s_lshl1_add_u32 s%d, s%d, s%d" % (t0, t1, t3))
        self.bits(o, self.vf, None, ((0, 3, 7),))
        o.append("v_lshl_add_u32 v%d, s%d, 10, v%d" % (self.vf, t0, self.vf))
        o.append("s_mov_b32 s%d, %d" % (self.sFO, WS_FO)); o.append("s_mov_b32 s%d, %d" % (self.sFH, WS_FH))
        o.append("s_mul_i32 s%d, s%d, %d" % (t0, self.sRT, RT_STRIDE))
        o.append("s_lshl_b32 s%d, s%d, 14" % (self.sO, t3))
        o.append("s_lshl1_add_u32 s%d, s%d, s%d" % (self.sH, self.sO, t0))
        o.append("s_add_u32 s%d, s%d, %d" % (self.sH, self.sH, WS_A))
        o.append("s_add_u32 s%d, s%d, s%d" % (self.sO, self.sO, t0))
        o.append("s_add_u32 s%d, s%d, %d" % (self.sO, self.sO, WS_A + 65536))
        o.append("s_lshl4_add_u32 s%d, s%d, s%d" % (self.sO, self.sP9, self.sO))
        o.append("s_mul_i32 s%d, s%d, %d" % (t0, t3, 32768 + 4096))
        if first: o.append("s_add_u32 s%d, s%d, %d" % (t0, t0, first))
        o.append("v_add_u32 v%d, s%d, v%d" % (self.ac[0][0], t0, self.vBase))
        o.append("v_xor_b32 v%d, 64, v%d" % (self.ac[0][1], self.ac[0][0]))
        for sx in range(2): o.append("v_xor_b32 v%d, 4096, v%d" % (self.ac[1][sx], self.ac[0][sx]))
        self.bits(o, vt, None, ((4, 2, 5),))
        o.append("v_xor_b32 v%d, v%d, v%d" % (vt, vt, self.vL16))
        o.append("v_lshl_add_u32 v%d, s%d, 12, v%d" % (self.vr, self.sW, vt))
        if first: o.append("v_add_u32 v%d, %d, v%d" % (self.vr, first, self.vr))
        self.bits(o, vt, vu, ((3, 1, 3), (4, 1, 0), (5, 1, 4), (6, 1, 2)))
        o.append("v_lshl_add_u32 v%d, s%d, 6, v%d" % (vt, t1, vt))
        self.bits(o, vu, None, ((0, 3, 4),))
        o.append("v_lshl_add_u32 v%d, v%d, 11, v%d" % (vt, vt, vu))
        o.append("s_lshl1_add_u32 s%d, s%d, s%d" % (t0, self.sCT, t3))
        o.append("v_lshl_add_u32 v%d, s%d, 7, v%d" % (self.vOut, t0, vt))
        return o

    def skip_term(self):
        xd = self.vXD; dm = self.of; og = self.of + 8
        W = []
        for a1 in range(2): W.append("v_sub_f32 v%d, 1.0, v%d" % (og + a1, self.vG2 + 2 * a1))
        for k in range(4):
            W.append("v_and_b32 v%d, 0xffff, v%d" % (dm + 2 * k, self.vDs + k))
            W.append("v_and_b32 v%d, 0xffff0000, v%d" % (dm + 2 * k + 1, self.vDs + k))
        for a1 in range(2): W.append("v_cvt_pk_bf16_f32 v%d, 0, v%d" % (og + a1, og + a1))
        for n in range(16): W.append("v_dot2_f32_bf16 v%d, v%d, v%d, 0" % (xd + n, self.xdf + (n >> 1), dm + (n & 7)))
        for q in range(8): W.append("v_pk_mul_f32 %s, %s, %s %s" % (v(xd + 2 * q, 2), v(og, 2), v(xd + 2 * q, 2), "op_sel:[1,0]" if q >> 2 else "op_sel_hi:[0,1]"))
        return W

    def gate_fill(self):
        V = self.V
        F = []
        t0, t1 = self.t2, self.t3
        gx = self.gx; g = gx + 12; vt = self.vr
        F.append("s_add_u32 s%d, s%d, 1" % (self.sE, self.sE))
        F.append("s_mul_i32 s%d, s%d, 0x9e3779b1" % (self.sTag, self.sE))
        F.append("v_mov_b32 v%d, s%d" % (self.vTag, self.sTag))
        F.append("v_mov_b32 v%d, 0" % g); F.append("v_mov_b32 v%d, 0" % (g + 2))
        for i in range(4):
            F.append("v_dot2c_f32_bf16 v%d, v%d, v%d" % (g, gx + i, gx + 8 + i))
            F.append("v_dot2c_f32_bf16 v%d, v%d, v%d" % (g + 2, gx + 4 + i, gx + 8 + i))
        side = ["v_mov_b32 v%d, v%d" % (g + 1, self.vTag), "v_mov_b32 v%d, v%d" % (g + 3, self.vTag), "v_cmp_eq_u32 vcc, 0x3f0, v%d" % self.vL16,
                "v_mov_b32 v%d, 0x%x" % (vt, HUGE)]
        side.append("s_and_b32 s%d, s%d, 32" % (t0, self.sN2))
        for bit, w_, sh in ((1, 1, 4), (3, 2, 2), (0, 1, 1), (2, 1, 0)):
            side.append("s_bfe_u32 s%d, s%d, 0x%x" % (t1, self.sN2, (w_ << 16) | bit))
            side.append(("s_lshl%d_add_u32" % sh if sh else "s_add_u32") + " s%d, s%d, s%d" % (t0, t1, t0))
        side.append("v_cndmask_b32 v%d, v%d, 0, vcc" % (vt, vt))
        side.append("s_lshl_b32 s%d, s%d, 10" % (t1, self.sR))
        side.append("s_lshl4_add_u32 s%d, s%d, s%d" % (t0, t0, t1))
        side.append("s_add_u32 s%d, s%d, %d" % (t0, t0, WS_G))
        F += side[:3]; side = side[3:]
        for md in ("row_shr:1 row_mask:0xf", "row_shr:2 row_mask:0xf", "row_shr:4 row_mask:0xf", "row_shr:8 row_mask:0xf", "row_bcast:15 row_mask:0xa", "row_bcast:31 row_mask:0xc"):
            for q in (g, g + 2): F.append("v_add_f32_dpp v%d, v%d, v%d %s bank_mask:0xf" % (q, q, q, md))
            F += side[:2]; side = side[2:]
        for q in (g, g + 2): F.append("v_mul_f32 v%d, 0xbfb8aa3b, v%d" % (q, q))
        for q in (g, g + 2): F.append("v_exp_f32 v%d, v%d" % (q, q))
        for q in (g, g + 2): F.append("v_add_f32 v%d, 1.0, v%d" % (q, q))
        for q in (g, g + 2): F.append("v_rcp_f32 v%d, v%d" % (q, q))
        F += side
        for q in (g, g + 2): F.append("v_cvt_pk_bf16_f32 v%d, 0, v%d" % (q, q))
        def st():
            self.A("buffer_store_dwordx4 %s, v%d, %s, s%d offen sc1" % (v(g, 4), vt, self.WS, t0)); self.vm.issue("gst")
        F.append(st)
        return F

    def g_loads(self):
        for k in range(self.nG1):
            self.A("buffer_load_dwordx4 %s, v%d, %s, 0 offen%s sc1" % (v(self.vG1 + 4 * k, 4), self.vG1a, self.WS, " offset:256" if k else "")); self.vm.issue("g")
        self.A("buffer_load_dwordx4 %s, v%d, %s, 0 offen sc1" % (v(self.vG2, 4), self.vG2a, self.WS)); self.vm.issue("g")

    def g_check(self, name, vt):
        A = self.A
        self.vm.wait("g")
        A.label("L_gchk_" + name)
        A("v_xor_b32 v%d, v%d, v%d" % (vt, self.vG2 + 1, self.vTag))
        for q in [self.vG2 + 3] + [self.vG1 + 1 + 2 * k for k in range(2 * self.nG1)]:
            A("v_bitop3_b32 v%d, v%d, v%d, v%d bitop3:0xf6" % (vt, vt, q, self.vTag))
        A("v_cmp_ne_u32 vcc, 0, v%d" % vt)
        self.cap()
        A("s_cbranch_scc0 L_gok_" + name)
        q = list(self.vm.q)
        self.g_loads(); A("s_waitcnt vmcnt(0)")
        self.vm.q = q
        A("s_branch L_gchk_" + name)
        A.label("L_gok_" + name)

    def hop(self, name):
        if not self.o["hop"]: return
        A = self.A
        A("s_mov_b64 exec, 0")
        for w in range(3):
            A("s_cmp_eq_u32 s%d, %d" % (self.sW, w))
            A("s_cbranch_scc1 @CHAIN%s%d@" % (name, w))
        A("s_branch @CHAIN%s3@" % name)
        if name == "s":
            A.label("L_backx")
            A("s_cmp_eq_u32 s%d, 0" % self.sRole)
            A("s_cbranch_scc0 L_backa")
        A.label("L_back" + name)
        A("s_mov_b64 exec, -1")

    def p1_loop(self, name, xread, wread, mfma, tail, fill, warm):
        A = self.A
        self.stamp(20)
        early = list(self.early)
        for tok in self.o["third"]:
            if tok == "w": warm()
            elif tok == "h": self.hop(name)
            else: self.emit(early[:int(tok)]); early = early[int(tok):]
        assert not early
        self.stamp(21)
        if self.o["xdo"]:
            A("s_branch L_loop" + name)
            for c in range(8):
                A.label("L_xd_%s%d" % (name, c))
                hi, lo = self.slot(c) >> 16, self.slot(c) & 0xffff
                for n in range(4): A("ds_read_b64 %s, v%d offset:%d" % (v(self.xdf + 2 * n, 2), self.axd[hi][n & 1], lo + 2048 * (n >> 1)))
                A("s_branch L_nx_%s%d" % (name, c))
            A.label("L_loop" + name)
        gap = {}
        def at(n, x): gap.setdefault(n, []).append(x)
        nw = len(wread(0, 0))
        wpos = {1: ((-8,), (-3,), (0,), (4,)), 2: ((-8, -7), (-2, -1), (1, 2), (5, 6))}[nw]
        dpos = {1: (-2, 2, 6, -1 + 8 + 3), 2: (0, 3, 4, 7)}[nw]
        xpos = [-8 + nw + i for i in range(4)]
        last = []
        for c in range(8):
            base = 32 * c
            def sync(c=c):
                n1 = self.vm.need("ch%d" % c)
                if c in (0, 6, 7):
                    A("s_waitcnt vmcnt(%d) lgkmcnt(0)" % n1); self.lg.zero(False)
                else: A("s_waitcnt vmcnt(%d)" % n1)
                self.stamp({0: 1, 1: 2, 2: 3, 3: 27, 4: 4, 5: 28, 6: 29, 7: 5}[c])
                A("s_barrier")
            at(base - 9, sync)
            for sx in range(2):
                st = 2 * c + sx
                for t in range(4):
                    for p, x in zip(wpos[t], wread(st, t)): at(16 * st + p, self.ds(x, "w%d_%d" % (st, t)))
                    at(16 * st + xpos[t], self.ds(xread(st, t), "x%d_%d" % (st, t)))
            def xd(c=c):
                A("s_cmp_eq_u32 s%d, %d" % (self.sCX, c))
                if self.o["xdo"]: A("s_cbranch_scc1 L_xd_%s%d" % (name, c))
                else:
                    A("s_cbranch_scc0 L_nx_%s%d" % (name, c))
                    hi, lo = self.slot(c) >> 16, self.slot(c) & 0xffff
                    for n in range(4): A("ds_read_b64 %s, v%d offset:%d" % (v(self.xdf + 2 * n, 2), self.axd[hi][n & 1], lo + 2048 * (n >> 1)))
                A.label("L_nx_%s%d" % (name, c))
            at(base + (3 if nw == 1 else 4), xd)
            dm = self.chunk_dmas(c + 2) if c + 2 < 8 else tail[c - 6]
            if c == 7 and name == "s" and self.o["late7"]: last = dm; dm = []
            pos = list(self.o["dpos"][nw - 1])
            if c == 0:
                k = self.o["d0"]; pos = [22 - 2 * (k - i) for i in range(k)] + [22] * (8 - k)
            pos = [max(-8, pos[0] - 3)] * max(0, len(dm) - 8) + pos
            prev = -8
            for i, x in enumerate(dm):
                p = pos[i]
                if isinstance(x, tuple):
                    for k, y in enumerate(x[0]): at(base + max(prev, p - len(x[0]) + k), y)
                    at(base + p, x[1])
                else: at(base + p, x)
                prev = p
        fl = self.gate_fill() + fill
        for n in range(-9, 256):
            if n >= 0:
                st, k = n >> 4, n & 15
                if k == 0: self.lg.wait("x%d_1" % st)
                elif k == 2: self.lg.wait("x%d_3" % st)
                elif k & 3 == 0: self.lg.wait("w%d_%d" % (st, k >> 2))
                mfma(st, k >> 2, k & 3)
            g_ = gap.pop(n, [])
            if -1 <= n < 22:
                k = -(-len(fl) // (22 - n))
                assert "par" not in self.vm.q
                g_ = g_ + fl[:k]; fl = fl[k:]
            self.emit(g_)
        assert not fl and not gap, gap
        self.emit(last)
        self.stamp(6)

    def ssm(self):
        A, V, S = self.A, self.V, self.S
        t0, t1, t2, t3 = self.t0, self.t1, self.t2, self.t3
        vt = V(); vu = V()
        for q in (self.vUT, self.vTr): V.rel(q)
        self.nG1 = 2; self.vG1 = V(8, 4)
        ax = [[V(), V()], [V(), V()]]; ab = [[V(), V()], [V(), V()]]
        Q = lambda: V(4, 2)
        F = []
        for fam, sel in ((ax, t3), (ab, t2)):
            F.append("v_lshl_add_u32 v%d, s%d, 13, v%d" % (fam[0][0], sel, self.vBase))
            F.append("v_xor_b32 v%d, 64, v%d" % (fam[0][1], fam[0][0]))
            for sx in range(2): F.append("v_add_u32 v%d, 0x10000, v%d" % (fam[1][sx], fam[0][sx]))
        m0_, m1_, mw = S(2, 2), S(2, 2), S(2, 2)
        F.append("s_mov_b32 s%d, 0xffff0000" % m0_); F.append("s_mov_b32 s%d, 0xffff0000" % (m0_ + 1))
        F.append("s_mov_b32 s%d, 0" % m1_); F.append("s_mov_b32 s%d, -1" % (m1_ + 1))
        F.append("s_sub_u32 s%d, 0, s%d" % (mw, t3)); F.append("s_mov_b32 s%d, s%d" % (mw + 1, mw))
        Sk = V(2)
        F.append("v_lshrrev_b32 v%d, 2, v0" % vt)
        F.append("v_xor_b32 v%d, v0, v%d" % (vt, vt))
        F.append("v_and_b32 v%d, 12, v%d" % (vt, vt))
        F.append("v_and_or_b32 v%d, v0, 2, v%d" % (vt, vt))
        F.append("v_cmp_eq_u32 vcc, 0, v%d" % vt)
        F.append("v_cmp_eq_u32 s[%d:%d], 2, v%d" % (self.sMk, self.sMk + 1, vt))
        F.append("v_bfe_i32 v%d, v0, 0, 1" % vu)
        F.append("v_xor_b32 v%d, 0xffff, v%d" % (vu, vu))
        F.append("v_cndmask_b32 v%d, 0, v%d, vcc" % (Sk, vu))
        F.append("v_cndmask_b32 v%d, 0, v%d, s[%d:%d]" % (Sk + 1, vu, self.sMk, self.sMk + 1))
        vEs = V(); vXa = V(); ea = [V() for _ in range(4)]; et = [V() for _ in range(4)]
        F.append("s_lshl1_add_u32 s%d, s%d, s%d" % (t0, self.sJ, t2))
        F.append("s_lshl_b32 s%d, s%d, 12" % (t0, t0))
        F.append("s_add_u32 s%d, s%d, %d" % (t0, t0, WS_E))
        F.append("s_add_u32 s68, s48, s%d" % t0); F.append("s_addc_u32 s69, s49, 0")
        self.bits(F, vt, None, ((0, 4, 4),))
        F.append("v_lshl_add_u32 v%d, s%d, 8, v%d" % (vEs, self.sR, vt))
        F.append("v_lshl_add_u32 v%d, s%d, 8, v%d" % (vXa, self.sW, vt))
        F.append("v_lshl_add_u32 v%d, s%d, 6, v%d" % (vXa, self.sP9, vXa))
        F.append("v_xor_b32 v%d, %d, v%d" % (vXa, L_R1 + 32768, vXa))
        self.bits(F, ea[0], None, ((4, 2, 8),))
        F.append("v_sub_u32 v%d, v%d, v%d" % (ea[0], vEs, ea[0]))
        F.append("v_subrev_u32 v%d, 256, v%d" % (ea[0], ea[0]))
        F.append("v_and_b32 v%d, 0xb0, v0" % vt)
        F.append("v_cmp_eq_u32 vcc, 0x80, v%d" % vt)
        F.append("v_add_u32 v%d, s%d, v%d" % (vu, t0, vEs))
        F.append("v_mov_b32 v%d, 0x%x" % (vt, HUGE))
        for k in range(1, 4): F.append("v_subrev_u32 v%d, %d, v%d" % (ea[k], 1024 * k, ea[0]))
        for k in range(4): F.append("v_ashrrev_i32 v%d, 31, v%d" % (et[k], ea[k]))
        F.append("v_cndmask_b32 v%d, v%d, v%d, vcc" % (vEs, vt, vEs))
        F.append("v_cndmask_b32 v%d, v%d, v%d, vcc" % (self.vPf, self.vPf, vu))
        sH = [S() for _ in range(4)]
        F.append("s_mul_i32 s%d, s%d, %d" % (t0, self.sRW, 2 * RT_STRIDE))
        F.append("s_and_b32 s%d, s%d, 4" % (t1, self.sJ)); F.append("s_add_u32 s%d, s%d, s%d" % (t1, t1, self.sJ))
        F.append("s_lshl1_add_u32 s%d, s%d, s%d" % (t1, t1, t2)); F.append("s_lshl_b32 s%d, s%d, 11" % (t1, t1))
        F.append("s_add_u32 s%d, s%d, s%d" % (t0, t0, t1))
        for tau in range(2):
            for comp in range(2):
                F.append("s_add_u32 s%d, s%d, %d" % (sH[2 * tau + comp], t0, WS_A + tau * RT_STRIDE + comp * 16384))
        self.emit(F)
        F = []
        pre, pim, pdt = self.ppar
        lam, cf, mu, l16, l32, l64, L4, Lg, x16, x32 = [Q() for _ in range(10)]
        al = [Q(), Q()]
        ta, tb, tc = self.acc[0], self.acc[0] + 4, self.acc[0] + 8
        P2 = lambda r: v(r, 2)
        for q in (pre, pim, pdt):
            for b in range(2): F.append("v_lshlrev_b32 v%d, 16, v%d" % (q + b, q + b))
        for b in range(2): F.append("v_mul_f32 v%d, %s, v%d" % (pdt + b, LOG2E, pdt + b))
        for b in range(2): F.append("v_exp_f32 v%d, v%d" % (pdt + b, pdt + b))
        F.append("v_pk_mul_f32 %s, %s, %s" % (P2(tb), P2(pre), P2(pre)))
        for b in range(2): F.append("v_cvt_pk_bf16_f32 v%d, 0, v%d" % (pdt + b, pdt + b))
        F.append("v_pk_fma_f32 %s, %s, %s, %s" % (P2(tb), P2(pim), P2(pim), P2(tb)))
        F.append("v_pk_mul_f32 %s, %s, %s" % (P2(ta), P2(pdt), P2(pre)))
        F.append("v_pk_mul_f32 %s, %s, %s" % (P2(ta + 2), P2(pdt), P2(pim)))
        for b in range(2): F.append("v_mul_f32 v%d, %s, v%d" % (ta + b, LOG2E, ta + b))
        for b in range(2): F.append("v_mul_f32 v%d, 0.15915494, v%d" % (ta + 2 + b, ta + 2 + b))
        for b in range(2): F.append("v_exp_f32 v%d, v%d" % (ta + b, ta + b))
        for b in range(2): F.append("v_rndne_f32 v%d, v%d" % (tb + 2 + b, ta + 2 + b))
        for b in range(2): F.append("v_sub_f32 v%d, v%d, v%d" % (ta + 2 + b, ta + 2 + b, tb + 2 + b))
        for b in range(2): F.append("v_rcp_f32 v%d, v%d" % (tb + b, tb + b))
        for b in range(2): F.append("v_cos_f32 v%d, v%d" % (lam + b, ta + 2 + b))
        for b in range(2): F.append("v_sin_f32 v%d, v%d" % (lam + 2 + b, ta + 2 + b))
        F.append("v_pk_add_f32 %s, %s, %s" % (P2(tb), P2(tb), P2(tb)))
        for k in (0, 2): F.append("v_pk_mul_f32 %s, %s, %s" % (P2(lam + k), P2(lam + k), P2(ta)))
        for b in range(2): F.append("v_add_f32 v%d, -1.0, v%d" % (ta + b, lam + b))
        F.append("v_pk_mul_f32 %s, %s, %s" % (P2(cf), P2(ta), P2(pre)))
        F.append("v_pk_mul_f32 %s, %s, %s" % (P2(cf + 2), P2(lam + 2), P2(pre)))
        F.append("v_pk_fma_f32 %s, %s, %s, %s" % (P2(cf), P2(lam + 2), P2(pim), P2(cf)))
        F.append("v_pk_fma_f32 %s, %s, %s, %s neg_lo:[1,0,0] neg_hi:[1,0,0]" % (P2(cf + 2), P2(ta), P2(pim), P2(cf + 2)))
        for k in (0, 2): F.append("v_pk_mul_f32 %s, %s, %s" % (P2(cf + k), P2(cf + k), P2(tb)))
        chain = [lam, ta, tb, mu, l16, l32, l64, ta, tb, L4]
        for x_, y_ in zip(chain, chain[1:]):
            F.append("v_pk_mul_f32 %s, %s, %s" % (P2(y_), P2(x_), P2(x_)))
            F.append("v_pk_mul_f32 %s, %s, %s" % (P2(y_ + 2), P2(x_), P2(x_ + 2)))
            F.append("v_pk_fma_f32 %s, %s, %s, %s neg_lo:[1,0,0] neg_hi:[1,0,0]" % (P2(y_), P2(x_ + 2), P2(x_ + 2), P2(y_)))
            F.append("v_pk_add_f32 %s, %s, %s" % (P2(y_ + 2), P2(y_ + 2), P2(y_ + 2)))
        def sel(out, d, src, mk, one):
            for k in range(4): out.append("v_cndmask_b32 v%d, %s, v%d, s[%d:%d]" % (d + k, "1.0" if (one and k < 2) else "0", src + k, mk, mk + 1))
        sel(F, ta, ta, m0_, 1); sel(F, tb, tb, m1_, 1)
        self.pmul(F, Lg, ta, tb)
        sel(F, x16, l16, m0_, 1); sel(F, x32, l32, m1_, 1); sel(F, ta, l64, mw, 1)
        self.pmul(F, tb, x16, x32); self.pmul(F, tc, tb, ta)
        for b in range(2):
            self.cmul(F, al[b], al[b] + 2, cf + b, cf + 2 + b, tc + b, tc + 2 + b)
            self.cmul(F, al[b] + 1, al[b] + 3, mu + b, mu + 2 + b, al[b], al[b] + 2)
        F.append("v_and_b32 v%d, 0xff, v%d" % (vu, self.vTag))
        for k in range(4): F.append("v_bfi_b32 v%d, v%d, 0, v%d" % (et[k], et[k], vu))
        U = [[V(16, 4), V(16, 4)], [V(16, 4), V(16, 4)]]
        def lds(fam, st, off):
            tot = self.slot(st >> 1) + off
            return fam[tot >> 16][st & 1], tot & 0xffff
        xread = lambda st, t: "ds_read_b128 %s, v%d offset:%d" % ((a(32 * (st & 1) + 4 * t, 4),) + lds(ax, st, 2048 * t))
        wread = lambda st, t: ["ds_read_b128 %s, v%d offset:%d" % ((a(32 * (st & 1) + 16 + 4 * t, 4),) + lds(ab, st, 16384 + 4096 * (t & 1) + 2048 * (t >> 1)))]
        def mfma(st, t, x):
            self.mf(U[t & 1][t >> 1] + 4 * x, a(32 * (st & 1) + 4 * x, 4), a(32 * (st & 1) + 16 + 4 * t, 4), "0" if st == 0 else None)
        c1 = self.c_dmas(1, L_R1); c0 = self.c_dmas(0, L_R0)
        ld = c1[:8] + c0[:8] + c1[8:] + self.wo_dmas(1) + c0[8:]
        sl = self.o["ssm"]
        assert sl[0] <= 8 and sl[0] + sl[1] <= 16 and sum(sl[:5]) >= 24
        def take(n):
            out = ld[:n]; del ld[:n]
            return out
        def warm():
            A("global_load_dword v%d, v%d, s[%d:%d]" % (self.vJunk, self.vPf, self.sPf, self.sPf + 1)); self.vm.issue("junk")
        self.p1_loop("s", xread, wread, mfma, [[self.g_loads] + self.wo_dmas(0), take(sl[0])], F, warm)
        for q in self.ppar: V.rel(q, 2)
        for fam in (ax, ab):
            for row in fam:
                for q in row: V.rel(q)
        for q in self.vw + self.vx: V.rel(q)
        pr = lambda b, m: (U[0][b] + 2 * m, U[1][b] + 2 * m)
        T = self.acc[0]; T2 = self.acc[1]
        E = [[T, T + 4], [T + 8, T + 12]]
        o = []
        for b in range(2):
            cur = pr(b, 0)
            for m in range(1, 8):
                self.pmul(o, E[b][m & 1], lam, cur, pr(b, m), b); cur = E[b][m & 1]
        Ev = [E[0][1], E[1][1]]
        Fe, Fo, Ge, Go = T, T + 8, T2, T2 + 4
        Wv, W0, e = T2 + 8, T2 + 12, Q()
        for b in range(2): self.cmul(o, Fe + b, Fe + 2 + b, mu + b, mu + 2 + b, Ev[b], Ev[b] + 2, Ev[b] + 1, Ev[b] + 3)
        def split(out, x, y, w):
            for k in (0, 2): out.append("v_pk_mov_b32 %s, %s, %s op_sel:[0,1]" % (P2(y + k), P2(x + k), P2(x + k)))
            for k in range(4): out.append("v_permlane%d_swap_b32 v%d, v%d" % (w, x + k, y + k))
        split(o, Fe, Fo, 16)
        self.pmul(o, Ge, l16, Fe, Fo)
        split(o, Ge, Go, 32)
        self.pmul(o, Wv, l32, Ge, Go)
        self.emit(o)
        A("ds_write_b128 v%d, %s" % (vXa, v(Wv, 4)))
        A("v_and_b32 v%d, 0xfffffdff, v%d" % (vXa, vXa))
        A("s_movk_i32 s%d, 0xff" % t0)
        self.vm.wait("wo0")
        A("s_waitcnt lgkmcnt(0)")
        A("s_barrier")
        A("ds_read_b128 %s, v%d" % (v(W0, 4), vXa))
        A("s_waitcnt lgkmcnt(0)"); self.lg.zero(False)
        o = []
        self.pmul(o, e, l64, W0, Wv)
        for k in range(4): o.append("v_bfi_b32 v%d, s%d, v%d, v%d" % (e + k, t0, self.vTag, e + k))
        self.emit(o)
        A("buffer_store_dwordx4 %s, v%d, %s, 0 offen sc1" % (v(e, 4), vEs, self.ER)); self.vm.issue("est")
        self.stamp(7)
        W = []
        be = [l16, l32]
        sel(W, W0, W0, mw, 0); sel(W, Ge, Ge, m1_, 0); sel(W, Fe, Fe, m0_, 0)
        self.pmul(W, Go, x32, W0, Ge)
        self.pmul(W, Fo, x16, Go, Fe)
        for b in range(2):
            self.cmul(W, be[b], be[b] + 2, cf + b, cf + 2 + b, Fo + b, Fo + 2 + b)
            self.cmul(W, Wv, Wv + 1, mu + b, mu + 2 + b, Fo + b, Fo + 2 + b, Ev[b], Ev[b] + 2)
            self.cmul(W, be[b] + 1, be[b] + 3, cf + b, cf + 2 + b, Wv, Wv + 1)
        for b in range(2):
            s2 = " op_sel:[1,0]" if b else " op_sel_hi:[0,1]"; s3 = " op_sel:[1,0,0]" if b else " op_sel_hi:[0,1,1]"
            for m in range(8):
                ur, ui = pr(b, m)
                W.append("v_pk_mul_f32 %s, %s, %s%s" % (P2(W0), P2(cf + 2), P2(ur), s2))
                W.append("v_pk_mul_f32 %s, %s, %s%s" % (P2(ur), P2(cf), P2(ur), s2))
                W.append("v_pk_fma_f32 %s, %s, %s, %s%s neg_lo:[1,0,0] neg_hi:[1,0,0]" % (P2(ur), P2(cf + 2), P2(ui), P2(ur), s3))
                W.append("v_pk_fma_f32 %s, %s, %s, %s%s" % (P2(ui), P2(cf), P2(ui), P2(W0), s3))
        self.emit(weave(W, take(sl[1]), self.wo_reads(0)))
        self.stamp(22)
        self.g_check("ssm", vt)
        Sm = self.vG1
        for x in range(4): A("v_sub_f32 v%d, 1.0, v%d" % (Sm + 2 * x, Sm + 2 * x))
        for x in range(4): A("v_cvt_pk_bf16_f32 v%d, v%d, v%d" % (Sm + 2 * x, Sm + 2 * x, Sm + 2 * x))
        for x in range(4):
            A("v_and_b32 v%d, v%d, v%d" % (Sm + 2 * x + 1, Sk + 1, Sm + 2 * x))
            A("v_and_b32 v%d, v%d, v%d" % (Sm + 2 * x, Sk, Sm + 2 * x))
        A("s_waitcnt lgkmcnt(0)")
        A("s_barrier")
        self.emit(take(sl[2]))
        self.stamp(8); self.stamp(24)
        er = T2
        A.label("L_epoll")
        for i in range(4): A("buffer_load_dwordx4 %s, v%d, %s, 0 offen sc1" % (v(er + 4 * i, 4), ea[i], self.ER))
        for i in range(4):
            A("s_waitcnt vmcnt(%d)" % (3 - i))
            for k in range(4): A("v_xor_b32 v%d, v%d, v%d" % (er + 4 * i + k, er + 4 * i + k, et[i]))
            if i == 0: A("v_or_b32 v%d, v%d, v%d" % (vt, er, er + 1))
            else: A("v_or3_b32 v%d, v%d, v%d, v%d" % (vt, vt, er + 4 * i, er + 4 * i + 1))
            A("v_or3_b32 v%d, v%d, v%d, v%d" % (vt, vt, er + 4 * i + 2, er + 4 * i + 3))
        self.vm.zero(False)
        A("v_and_b32 v%d, 0xff, v%d" % (vt, vt))
        A("v_cmp_ne_u32 vcc, 0, v%d" % vt)
        self.poll_tail("L_epoll")
        self.stamp(9)
        self.emit(take(sl[3]))
        o = []
        for i in range(2, -1, -1): self.pmul(o, er + 4 * i, L4, er + 4 * i + 4, er + 4 * i)
        cs = T; c2 = T + 4
        self.pmul(o, cs, Lg, er)
        for w_ in (16, 32):
            split(o, cs, c2, w_)
            for k in (0, 2): o.append("v_pk_add_f32 %s, %s, %s" % (P2(cs + k), P2(cs + k), P2(c2 + k)))
        for b in range(2): self.pmul(o, be[b], cs, al[b], be[b], b)
        self.emit(o)
        P1 = [mu, l64]; P1b = [x16, x32]; Pq = [self.vXD, self.vXD + 8]
        cur = [be[0], be[1]]
        def finish(x):
            out = []
            D = self.acc[x & 1]
            for comp in (1, 0):
                q = Pq[x & 1] + 4 * comp
                for k in range(4): out.append("v_cvt_pk_bf16_f32 v%d, v%d, v%d" % (q + k, D + 8 * comp + 2 * k, D + 8 * comp + 2 * k + 1))
                def st(q=q, comp=comp):
                    A("buffer_store_dwordx4 %s, v%d, %s, s%d offen%s sc1" % (v(q, 4), self.vFr, self.WS, sH[2 * (x >> 1) + comp], " offset:1024" if x & 1 else ""))
                    self.vm.issue("ast")
                out.append(st)
            return out
        pend = []
        for x in range(4):
            pk_ = (P1, P1b)[x & 1]
            for b in range(2):
                o = []
                for m in (2 * x, 2 * x + 1):
                    self.pmul(o, pr(b, m), lam, cur[b], pr(b, m), b); cur[b] = pr(b, m)
                for comp in (1, 0):
                    ng = "-" if comp else ""
                    for h in range(2):
                        r_ = U[comp][b] + 4 * x + 2 * h
                        o.append("v_cvt_pk_bf16_f32 v%d, %sv%d, %sv%d" % (pk_[b] + 2 * comp + h, ng, r_, ng, r_ + 1))
                self.emit(o[:2] + pend[:1] + o[2:5] + pend[1:] + o[5:])
                pend = [(lambda comp=comp, b=b, x=x, pk_=pk_: self.mf(self.acc[x & 1] + 8 * comp + 4 * b, v(pk_[b] + 2 * comp, 2), v(Sm + 2 * x, 2), "0", 16)) for comp in (1, 0)]
            if x == 3: self.emit(pend)
            if x: self.emit(finish(x - 1))
        self.emit(finish(3))
        self.stamp(10)
        self.emit(weave(self.p2_addr(L_R1, self.p_vt, self.p_vu) + self.skip_term(), take(sl[4])))
        self.flag()
        self.vm.wait("c1")
        A("s_barrier")
        self.emit(take(sl[5]))
        for n in range(4): self.crd(n)
        if self.o["hpw"]: self.vm.wait("flag")
        self.hpoll()
        self.h_wait("s")
        return self.p2_first(ld)

    def att(self):
        A, V, S = self.A, self.V, self.S
        t0, t1, t2, t3 = self.t0, self.t1, self.t2, self.t3
        vt = V(); vu = V()
        for q in self.ppar: V.rel(q, 2)
        self.nG1 = 1; self.vG1 = V(4, 4)
        ax = [[[V(), V()], [V(), V()]] for _ in range(2)]
        akv = [[V(), V()], [V(), V()]]; aq = [V() for _ in range(4)]; vq = [V(), V()]; vWq = V()
        sM2 = S(); sKV = [S() for _ in range(4)]; sOo = S(); sEps = S(); sC0 = S()
        vKs = V(); vKp = V(); xw = V(); xr = V(); zx = V(); zr = V(); c10 = V(); c01 = V(); ones = V(4, 4); cl = V(2)
        kw = V(); zw = V(); rk = V(); rz = V()
        F = []
        F.append("v_lshl_add_u32 v%d, s%d, 12, v%d" % (ax[0][0][0], self.sW, self.vBase))
        F.append("v_xor_b32 v%d, 64, v%d" % (ax[0][0][1], ax[0][0][0]))
        for sx in range(2): F.append("v_xor_b32 v%d, 4096, v%d" % (ax[1][0][sx], ax[0][0][sx]))
        for lt in range(2):
            for sx in range(2): F.append("v_add_u32 v%d, 0x10000, v%d" % (ax[lt][1][sx], ax[lt][0][sx]))
        F.append("v_and_b32 v%d, 64, v0" % vt)
        F.append("v_xor_b32 v%d, v%d, v%d" % (akv[0][0], vt, self.vTr))
        F.append("v_xor_b32 v%d, 32, v%d" % (akv[0][1], akv[0][0]))
        for b in range(2): F.append("v_add_u32 v%d, 0x10000, v%d" % (akv[1][b], akv[0][b]))
        F.append("s_and_b32 s%d, s%d, 3" % (t0, self.sR))
        self.bits(F, vWq, vu, ((0, 5, 0), (6, 2, 5)))
        F.append("v_lshl_add_u32 v%d, s%d, 7, v%d" % (vWq, t0, vWq))
        F.append("v_mul_u32_u24 v%d, 3072, v%d" % (vWq, vWq))
        F.append("v_lshl_add_u32 v%d, s%d, 7, v%d" % (vWq, self.sJ, vWq))
        self.emit(F)
        F = []
        F.append("s_lshr_b32 s%d, s%d, 1" % (t3, self.sW)); F.append("s_and_b32 s%d, s%d, 1" % (t2, self.sW))
        F.append("v_lshl_add_u32 v%d, s%d, 8, v%d" % (self.vG1a, t2, self.vG1a))
        F.append("v_add_u32 v%d, %d, v%d" % (aq[0], L_R1, self.vTr))
        for t in range(1, 4): F.append("v_xor_b32 v%d, %d, v%d" % (aq[t], 32 * t, aq[0]))
        self.bits(F, vt, vu, ((3, 2, 0), (6, 1, 2), (5, 1, 3), (7, 1, 5)))
        F.append("v_mul_u32_u24 v%d, 3072, v%d" % (vt, vt))
        F.append("v_lshl_add_u32 v%d, s%d, 7, v%d" % (vt, self.sJ, vt))
        F.append("v_add_u32 v%d, v%d, v%d" % (vq[0], vt, self.vUT))
        F.append("v_add_u32 v%d, %d, v%d" % (vq[1], 16 * 3072 - 1024, vq[0]))
        F.append("s_lshl_b32 s%d, s%d, 11" % (sM2, self.sW))
        F.append("s_sub_u32 s%d, s%d, s%d" % (sC0, self.sCT, self.sCX))
        F.append("s_lshl2_add_u32 s%d, s%d, s%d" % (t0, self.sJ, self.sW))
        F.append("s_lshl_b32 s%d, s%d, 14" % (t0, t0))
        for i in range(4): F.append("s_add_u32 s%d, s%d, %d" % (sKV[i], t0, WS_KV + 4096 * i))
        F.append("v_lshl_add_u32 v%d, s%d, 10, v%d" % (vKs, self.sR, self.vFr))
        self.bits(F, vKp, None, ((0, 4, 10),))
        F.append("v_lshl_add_u32 v%d, s%d, 11, v%d" % (xw, self.sW, self.vL16))
        F.append("v_add_u32 v%d, %d, v%d" % (xw, L_SP, xw))
        F.append("v_lshl_add_u32 v%d, s%d, 10, v%d" % (xr, t3, xw))
        F.append("v_and_b32 v%d, 0xffffefff, v%d" % (xr, xr))
        F.append("v_lshrrev_b32 v%d, 2, v%d" % (zx, xw)); F.append("v_add_u32 v%d, %d, v%d" % (zx, L_SP + 8192 - L_SP // 4, zx))
        F.append("v_lshrrev_b32 v%d, 2, v%d" % (zr, xr)); F.append("v_add_u32 v%d, %d, v%d" % (zr, L_SP + 8192 - L_SP // 4, zr))
        F.append("v_mov_b32 v%d, 0x3f80" % c10); F.append("v_mov_b32 v%d, 0x3f800000" % c01)
        for i in range(4): F.append("v_mov_b32 v%d, 0x3f803f80" % (ones + i))
        F.append("v_mov_b32 v%d, %s" % (cl, LOG2E))
        F.append("s_mov_b32 s%d, 0x358637bd" % sEps)
        KB = L_R1 + 7 * 8192; ZB = KB + 2048
        F.append("s_lshl1_add_u32 s%d, s%d, s%d" % (t0, t2, t3))
        F.append("v_lshrrev_b32 v%d, 1, v%d" % (rk, self.vL16)); F.append("v_add_u32 v%d, %d, v%d" % (rk, KB, rk))
        F.append("v_lshl_add_u32 v%d, s%d, 9, v%d" % (kw, t0, rk))
        self.bits(F, zw, None, ((0, 4, 1),)); F.append("v_add_u32 v%d, %d, v%d" % (zw, ZB, zw))
        F.append("v_lshl_add_u32 v%d, s%d, 9, v%d" % (zw, t0, zw))
        self.bits(F, rz, None, ((4, 2, 3),)); F.append("v_add_u32 v%d, %d, v%d" % (rz, ZB, rz))
        F.append("s_lshl1_add_u32 s%d, s%d, s%d" % (t0, self.sRW, t2))
        F.append("s_mul_i32 s%d, s%d, %d" % (t0, t0, RT_STRIDE))
        F.append("s_lshl_b32 s%d, s%d, 12" % (t1, self.sJ)); F.append("s_add_u32 s%d, s%d, s%d" % (t0, t0, t1))
        F.append("s_add_u32 s%d, s%d, %d" % (sOo, t0, WS_A + 65536))
        F += self.p2_addr(L_R0, vt, vu)
        KV = [V(16, 4) for _ in range(4)]
        def xf(st, x): return a(128 + 8 * st + 4 * x, 4) if x < 2 else a(32 * (st & 1) + 4 * x, 4)
        def xread(st, x):
            tot = self.slot(st >> 1) + 2048 * (x & 1)
            return "ds_read_b128 %s, v%d offset:%d" % (xf(st, x), ax[x >> 1][tot >> 16][st & 1], tot & 0xffff)
        def wread(st, t):
            out = []
            for h in range(2):
                tot = self.slot(st >> 1) + 16384 + 8192 * (t >> 1) + 4096 * (st & 1) + 2048 * h
                out.append("ds_read_b64_tr_b16 %s, v%d offset:%d" % (a(32 * (st & 1) + 16 + 4 * t + 2 * h, 2), akv[tot >> 16][t & 1], tot & 0xffff))
            return out
        def mfma(st, t, x):
            self.mf(KV[t] + 4 * x, xf(st, x), a(32 * (st & 1) + 16 + 4 * t, 4), "0" if st == 0 else None)
        wq = []
        for c in range(8):
            for i in range(2):
                pre = [] if i else ["s_add_u32 m0, s%d, %d" % (sM2, L_R1 + c * 8192), "s_add_u32 s%d, s%d, %d" % (t0, sC0, c),
                                    "s_and_b32 s%d, s%d, 7" % (t0, t0), "s_mul_i32 s%d, s%d, %d" % (t0, t0, 64 * 3072)]
                wq.append((pre, (lambda i=i: self.dma(vq[i], self.WA, "s%d" % t0, 1024 * i, "wq"))))
        def warm():
            A("global_load_dword v%d, v%d, s[%d:%d]" % (self.vJunk, self.vPf, self.sPf, self.sPf + 1)); self.vm.issue("junk")
            if self.o["qpf"]:
                A("buffer_load_dword v%d, v%d, %s, 0 offen" % (self.vJunk, vWq, self.WA)); self.vm.issue("junk")
        self.p1_loop("a", xread, wread, mfma, [[self.g_loads] + wq[:8], wq[8:]], F, warm)
        for lt in range(2):
            for row in ax[lt]:
                for q in row: V.rel(q)
        for q in akv[0] + akv[1] + vq + self.vx + self.vw + [vWq, self.vUT, self.vTr]: V.rel(q)
        tmp = V(8, 4)
        def phi(src, dst):
            out = []
            for k0 in range(0, 8, 4):
                for k in range(k0, k0 + 4):
                    out.append("v_pk_mul_f32 %s, %s, %s op_sel_hi:[0,1]" % (v(tmp + 2 * (k & 3), 2), v(cl, 2), v(src + 2 * k, 2)))
                for k in range(k0, k0 + 4):
                    for h in range(2):
                        out.append("v_exp_f32 v%d, v%d clamp" % (tmp + 2 * (k & 3) + h, tmp + 2 * (k & 3) + h))
                        out.append("v_max_f32 v%d, s%d, v%d" % (src + 2 * k + h, sEps, src + 2 * k + h))
                for k in range(k0, k0 + 4):
                    out.append("v_pk_add_f32 %s, %s, %s" % (v(src + 2 * k, 2), v(src + 2 * k, 2), v(tmp + 2 * (k & 3), 2)))
                for k in range(k0, k0 + 4):
                    out.append("v_cvt_pk_bf16_f32 v%d, v%d, v%d" % (dst + k, src + 2 * k, src + 2 * k + 1))
            return out
        pk = [V(8, 4), V(8, 4)]; pv = [V(8, 4), V(8, 4)]; Tk = self.acc[0]; Tz = self.acc[0] + 8
        W = []
        for b in range(2):
            ph = phi(KV[b], pk[b])
            for kk in range(2):
                W += ph[28 * kk:28 * kk + 28]
                for k in range(4 * kk, 4 * kk + 4): W.append("v_cvt_pk_bf16_f32 v%d, v%d, v%d" % (pv[b] + k, KV[2 + b] + 2 * k, KV[2 + b] + 2 * k + 1))
                z = None if kk else "0"
                W.append(lambda b=b, kk=kk, z=z: self.mf(Tz + 4 * b, v(ones, 4), v(pk[b] + 4 * kk, 4), z))
                W.append(lambda b=b, kk=kk, z=z: self.mf(Tk + 4 * b, v(pk[b] + 4 * kk, 4), v(pv[b] + 4 * kk, 4), z))
        W.insert(80, "ds_write_b128 v%d, %s" % (xw, v(Tk, 4)))
        cf_ = self.c_dmas(1, L_R0); n = self.o["att_b"]
        self.emit(weave(W[:100], cf_[:n]) + W[100:]); cf_ = cf_[n:]
        Uu = self.acc[1]
        A("v_mov_b32 v%d, v%d" % (Uu + 15, self.vTag))
        A("ds_write2st64_b32 v%d, v%d, v%d offset0:0 offset1:1" % (zx, Tz, Tz + 4))
        A("ds_write_b128 v%d, %s offset:1024" % (xw, v(Tk + 4, 4)))
        A("s_waitcnt lgkmcnt(0)")
        A("s_barrier")
        A("ds_read_b128 %s, v%d" % (v(Uu, 4), xr))
        A("ds_read_b128 %s, v%d offset:4096" % (v(Uu + 4, 4), xr))
        A("ds_read2st64_b32 %s, v%d offset0:0 offset1:4" % (v(Uu + 8, 2), zr))
        A("s_waitcnt lgkmcnt(1)")
        A("v_pk_add_f32 %s, %s, %s" % (v(Uu, 2), v(Uu, 2), v(Uu + 4, 2)))
        A("v_pk_add_f32 %s, %s, %s" % (v(Uu + 2, 2), v(Uu + 2, 2), v(Uu + 6, 2)))
        A("v_cvt_pk_bf16_f32 v%d, v%d, v%d" % (Uu + 12, Uu, Uu + 1))
        A("v_cvt_pk_bf16_f32 v%d, v%d, v%d" % (Uu + 13, Uu + 2, Uu + 3))
        A("s_waitcnt lgkmcnt(0)"); self.lg.zero(False)
        A("v_add_f32 v%d, v%d, v%d" % (Uu + 14, Uu + 8, Uu + 9))
        A("buffer_store_dwordx4 %s, v%d, %s, s%d offen sc1" % (v(Uu + 12, 4), vKs, self.WS, sKV[0])); self.vm.issue("kst")
        self.stamp(7)
        self.g_check("att", vt)
        self.vm.wait("wq")
        A("s_barrier")
        Qt = self.acc
        rec = KV
        acc = V(6, 2)
        def qread(n, h):
            return self.ds("ds_read_b64_tr_b16 %s, v%d offset:%d" % (a(4 * (n % 8) + 2 * h, 2), aq[2 * (n >> 5) + (n & 1)], ((n >> 1) & 15) * 4096 + h * 2048), "q%d" % n)
        def gl(n):
            A("buffer_load_dwordx4 %s, v%d, %s, s%d offen%s sc1" % (v(rec[n >> 2] + 4 * (n & 3), 4), self.vFr, self.WS, sKV[n >> 2], " offset:%d" % (1024 * (n & 3)) if n & 3 else ""))
            self.vm.issue("r%d" % n)
        def gsum():
            for i in range(6): A("v_mov_b32 v%d, 0" % (acc + i))
            for n in range(16):
                q = rec[n >> 2] + 4 * (n & 3)
                if n & 1 == 0: self.vm.wait("r%d" % (n + 1))
                A("v_dot2c_f32_bf16 v%d, v%d, v%d" % (acc, q, c10))
                A("v_dot2c_f32_bf16 v%d, v%d, v%d" % (acc + 1, q, c01))
                A("v_dot2c_f32_bf16 v%d, v%d, v%d" % (acc + 2, q + 1, c10))
                A("v_dot2c_f32_bf16 v%d, v%d, v%d" % (acc + 3, q + 1, c01))
                A("v_add_f32 v%d, v%d, v%d" % (acc + 4, acc + 4, q + 2))
                A("v_bitop3_b32 v%d, v%d, v%d, v%d bitop3:0xf6" % (acc + 5, acc + 5, q + 3, self.vTag))
        ld = cf_ + self.wo_dmas(0)
        gls = [([], (lambda n=n: gl(n))) for n in range(16)]
        ph0 = phi(Qt[0], pk[0])
        for n in range(4):
            for h in range(2): qread(n, h)()
        for st in range(32):
            cur = ld.pop(0) if ld else (gls.pop(0) if (st >= self.o["att_g"] and gls) else None)
            self.lg.wait("q%d" % (2 * st + 1))
            for k in range(4):
                n = 2 * st + (k >> 1)
                self.mf(Qt[st >> 4] + 4 * k, a(4 * (n % 8), 4), a(128 + 8 * (st & 15) + 4 * (k & 1), 4), "0" if st & 15 == 0 else None)
                if n + 4 < 64: qread(n + 4, k & 1)()
                if cur and k < 2: self.emit(cur[0][k:k + 1])
                if cur and k == 2: cur[1]()
                if st >= 18: self.emit(ph0[:1]); ph0 = ph0[1:]
            if st == 15: self.stamp(22)
        assert not ld and not ph0
        A("s_barrier")
        self.stamp(8)
        late = self.c_dmas(0, L_R1); nc = self.o["att_c1"]
        self.emit(weave(phi(Qt[1], pk[1]), gls + late[:nc])); late = late[nc:]
        self.stamp(24)
        A.label("L_ksum")
        gsum()
        A("v_cmp_ne_u32 vcc, 0, v%d" % (acc + 5))
        self.cap()
        A("s_cbranch_scc0 L_kok")
        q = list(self.vm.q)
        A.label("L_kpoll")
        A("buffer_load_dword v%d, v%d, %s, s%d offen offset:1020 sc1" % (vt, vKp, self.WS, sKV[0]))
        A("s_waitcnt vmcnt(0)")
        A("v_cmp_ne_u32 vcc, s%d, v%d" % (self.sTag, vt))
        self.poll_tail("L_kpoll")
        for n in range(16): gl(n)
        A("s_waitcnt vmcnt(0)")
        self.vm.q = q
        A("s_branch L_ksum")
        A.label("L_kok")
        self.stamp(9)
        A("v_cvt_pk_bf16_f32 v%d, v%d, v%d" % (acc, acc, acc + 1))
        A("v_cvt_pk_bf16_f32 v%d, v%d, v%d" % (acc + 1, acc + 2, acc + 3))
        A("v_cvt_pk_bf16_f32 v%d, v%d, v%d" % (acc + 4, acc + 4, acc + 4))
        A("ds_write_b64 v%d, %s" % (kw, v(acc, 2)))
        A("ds_write_b16 v%d, v%d" % (zw, acc + 4))
        n2 = self.o["att_c2"]
        self.emit(late[:n2]); late = late[n2:]
        assert len(late) >= 2
        A("s_waitcnt lgkmcnt(0)")
        A("s_barrier")
        for h in range(4):
            A("ds_read_b64 %s, v%d offset:%d" % (v(pv[1] + 2 * h, 2), rz, 512 * h))
            A("ds_read_b64 %s, v%d offset:%d" % (v(pv[0] + 2 * h, 2), rk, 512 * h))
        def omf(f):
            hp, a1 = f >> 1, f & 1
            out = []
            for part in (1, 0):
                for h in range(2):
                    out.append(lambda part=part, h=h: self.mf(rec[f] + 8 * (1 - part) + 4 * h, v(pv[part] + 4 * hp + 2 * h, 2), v(pk[hp] + 4 * h + 2 * a1, 2), "0", 16))
            return out
        def ofin(f):
            d = rec[f]; out = []
            for h in range(2): out.append("v_add_f32 v%d, s%d, v%d" % (d + 4 * h, sEps, d + 4 * h))
            for h in range(2): out.append("v_rcp_f32 v%d, v%d" % (d + 4 * h, d + 4 * h))
            for h in range(2): out.append("v_mul_f32 v%d, v%d, v%d" % (d + 4 * h, d + 4 * h, self.vG1 + 2 * (f & 1)))
            for k in range(4): out.append("v_pk_mul_f32 %s, %s, %s op_sel_hi:[0,1]" % (v(d + 8 + 2 * k, 2), v(d + 4 * (k >> 1), 2), v(d + 8 + 2 * k, 2)))
            for k in range(4): out.append("v_cvt_pk_bf16_f32 v%d, v%d, v%d" % (d + k, d + 8 + 2 * k, d + 9 + 2 * k))
            def st():
                A("buffer_store_dwordx4 %s, v%d, %s, s%d offen%s sc1" % (v(d, 4), self.vFr, self.WS, sOo, " offset:%d" % (1024 * f) if f else "")); self.vm.issue("ast")
            out.append(st)
            return out
        A("s_waitcnt lgkmcnt(4)")
        self.emit(omf(0) + omf(1))
        A("s_waitcnt lgkmcnt(0)"); self.lg.zero(False)
        self.emit(weave(ofin(0), omf(2)) + weave(ofin(1), omf(3)) + ofin(2) + ofin(3))
        self.stamp(10)
        self.emit(weave(self.skip_term(), self.wo_reads(0), late[:-2]))
        A("s_waitcnt lgkmcnt(0)")
        A("s_barrier")
        late = late[-2:] + self.wo_dmas(1); n = self.o["att_e"]; n2 = self.o["att_f"]
        self.emit(late[:n])
        for k in range(4): self.crd(k)
        self.hpoll()
        self.flag()
        self.emit(late[n:n2])
        self.h_wait("a")
        return self.p2_first(late[n2:])

    def hpoll(self):
        self.A("buffer_load_dword v%d, v%d, %s, s%d offen sc1" % (self.vJunk, self.vf, self.WS, self.sFH)); self.vm.issue("hp")

    def flag(self):
        self.vm.wait("ast")
        self.A("buffer_store_dword v%d, v%d, %s, 0 offen sc1" % (self.vTag, self.vFlag, self.WS)); self.vm.issue("flag")
        self.stamp(11)

    def p2_regs(self, V):
        self.p_vt = V(); self.p_vu = V()
        self.cb = V(24, 4)
        self.of = V(64, 4)
    def crd(self, n):
        st, t = n >> 2, n & 3
        r_ = self.ac[t >> 1][st & 1]
        if st in (8, 9) and t & 1 == 0: self.A("v_xor_b32 v%d, 0x10000, v%d" % (r_, r_))
        self.A("ds_read_b128 %s, v%d offset:%d" % (v(self.cb + 4 * (n % 6), 4), r_, ((st >> 1) & 3) * 8192 + (t & 1) * 2048)); self.lg.issue("c%d" % n)
    def hld(self, f):
        A = self.A
        if f & 3 == 0: A("s_xor_b32 s%d, s%d, %d" % (self.t0, self.sH, ((f >> 2) ^ 4) * 4096))
        A("buffer_load_dwordx4 %s, v%d, %s, s%d offen%s sc1" % (a(128 + 4 * f, 4), self.vFr, self.WS, self.t0, " offset:%d" % (1024 * (f & 3)) if f & 3 else "")); self.vm.issue("h%d" % f)
    def cstep(self, st, ld):
        A = self.A
        wb = self.wo_reads(1)[4 * (st - 8):4 * (st - 8) + 4] if st >= 8 else []
        ld = list(ld); many = len(ld) > 2
        if st == 7: A("s_barrier")
        for k in range(8):
            t, a1 = k >> 1, k & 1
            if k == 0: self.wait2("h%d" % (2 * st + 1), "c%d" % (4 * st + 1))
            if k == 4: self.wait2(None, "c%d" % (4 * st + 3))
            off = 8 * a1 + 4 * (t & 1)
            c = None if st else (v(self.vXD + off, 4) if t < 2 else "0")
            self.mf(self.acc[t >> 1] + off, v(self.cb + 4 * ((4 * st + t) % 6), 4), a(128 + 8 * st + 4 * a1, 4), c)
            if a1:
                if st < 15: self.crd(4 * st + 4 + t)
            else:
                n = -(-len(ld) // (4 - t)) if (many or t & 1 == 0) else 0
                self.emit(ld[:n]); ld = ld[n:]
                if t & 1:
                    for x in wb[t - 1:t + 1]: A(x); self.lg.issue("wb")
        assert not ld
    def h_wait(self, name):
        A = self.A
        self.vm.wait("hp")
        self.stamp(12)
        A("s_branch L_hchk" + name)
        A.label("L_hpoll" + name)
        A("buffer_load_dword v%d, v%d, %s, s%d offen sc1" % (self.vJunk, self.vf, self.WS, self.sFH))
        A("s_waitcnt vmcnt(0)")
        A.label("L_hchk" + name)
        A("v_cmp_ne_u32 vcc, s%d, v%d" % (self.sTag, self.vJunk))
        self.poll_tail("L_hpoll" + name)
        self.stamp(13)
    def p2_first(self, extra):
        LA = self.o["LA"]; ns = LA // 2 + 1
        for f in range(LA): self.hld(f)
        q = list(extra) + [(lambda f=f: self.hld(f)) for f in range(LA, LA + 2 * ns)]
        n = len(q); done = 0
        for st in range(ns):
            to = -(-n * (st + 1) // ns)
            self.cstep(st, q[done:to]); done = to
        return list(self.vm.q), list(self.lg.q)

    def p2(self):
        A = self.A
        vt, vu, of = self.p_vt, self.p_vu, self.of
        acc, sO = self.acc, self.sO
        def old(n):
            if n & 3 == 0: A("s_xor_b32 s%d, s%d, %d" % (self.t1, sO, 1024 * n))
            A("buffer_load_dwordx4 %s, v%d, %s, s%d offen%s sc1" % (v(of + 4 * n, 4), self.vFr, self.WS, self.t1, " offset:%d" % (1024 * (n & 3)) if n & 3 else "")); self.vm.issue("o%d" % n)
        def opoll():
            A("buffer_load_dword v%d, v%d, %s, s%d offen sc1" % (vt, self.vf, self.WS, self.sFO)); self.vm.issue("op")
        LA = self.o["LA"]; s1 = LA // 2 + 1; s0 = 16 - LA // 2
        opoll()
        for st in range(s1, s0): self.cstep(st, [(lambda f=f: self.hld(f)) for f in (2 * st + LA, 2 * st + LA + 1)])
        self.vm.wait("op")
        A("v_cmp_ne_u32 vcc, s%d, v%d" % (self.sTag, vt))
        A("s_cmp_lg_u64 vcc, 0")
        A("s_cbranch_scc1 L_slow")
        qv, ql = list(self.vm.q), list(self.lg.q)
        for st in range(s0, 16): self.cstep(st, [(lambda n=n: old(n)) for n in (2 * (st - s0), 2 * (st - s0) + 1)])
        self.stamp(14); self.stamp(15)
        A.label("L_join")
        q2 = list(self.vm.q)
        vr = self.vr; vr1, ra, rb, rc, rd = [self.cb + k for k in range(5)]
        side = ["s_movk_i32 s%d, 4096" % self.t2, "s_mov_b32 s%d, 0x10000" % self.t3, "s_mov_b32 s%d, 0x11000" % self.t0, "v_xor_b32 v%d, 128, v%d" % (vr1, vr)]
        self.bits(side, ra, rb, ((0, 3, 5), (0, 2, 8), (2, 1, 10)))
        self.bits(side, rb, None, ((3, 3, 4),))
        side += ["v_xor_b32 v%d, v%d, v%d" % (ra, ra, rb), "v_and_b32 v%d, 0xfffff000, v%d" % (rb, vr), "v_add_u32 v%d, v%d, v%d" % (rc, ra, rb),
                 "v_xor_b32 v%d, 128, v%d" % (rd, rc), "v_xor_b32 v%d, 8192, v%d" % (ra, rc), "v_xor_b32 v%d, 8192, v%d" % (rb, rd)]
        seq = [(st, (k >> 1) ^ 2, k & 1) for st in range(8) for k in range(8)]
        nl = self.o["olead"]
        seq = seq[:64 - 8 * nl] + [x for x in seq[64 - 8 * nl:] if x[1] >= 2] + [x for x in seq[64 - 8 * nl:] if x[1] < 2]
        seq = seq[:60] + sorted(seq[60:], key=lambda x: x[2])
        wr = ["ds_write_b128 v%d, %s offset:%d" % ((vr, vr1)[q & 1], v(acc[1] + 4 * q, 4), 1024 * q) for q in (0, 2, 1, 3)]
        wr += [None] * self.o["owait"] + ["s_waitcnt lgkmcnt(0)\ns_barrier"]
        wr += ["ds_read_b128 %s, v%d offset:%d" % (v(of + 4 * q, 4), (ra, rb)[q & 1], 2048 * (q >> 1)) for q in range(4)]
        for n, (st, t, a1) in enumerate(seq):
            if n == 32 - 4 * max(0, nl - 4): self.lg.zero()
            self.vm.wait("o%d" % (2 * st + 1))
            self.mf(acc[t >> 1] + 8 * a1 + 4 * (t & 1), a(16 * st + 4 * t, 4), v(of + 8 * st + 4 * a1, 4))
            if n & 3 == 0 and LA + (n >> 2) < 16: old(LA + (n >> 2))
            if n & 1 and side: A(side.pop(0))
            if n >= 64 - 4 * nl + 4 and wr:
                x = wr.pop(0)
                if x: A(x)
        self.emit([x for x in wr if x])
        self.stamp(16)
        assert not side
        for a1 in range(2):
            for q in (2 * a1, 2 * a1 + 1): A("ds_write_b128 v%d, %s offset:%d" % ((vr, vr1)[q & 1], v(acc[0] + 4 * q, 4), 32768 + 1024 * q))
            for q in (2 * a1, 2 * a1 + 1): A("ds_read_b128 %s, v%d offset:%d" % (v(acc[1] + 4 * q, 4), (rc, rd)[q & 1], 32768 + 2048 * a1))
        for q in range(4):
            own = acc[1] + 4 * q
            A("s_waitcnt lgkmcnt(%d)" % (5, 4, 1, 0)[q])
            for k in (0, 2): A("v_pk_add_f32 %s, %s, %s" % (v(own + k, 2), v(own + k, 2), v(of + 4 * q + k, 2)))
            A("buffer_store_dwordx4 %s, v%d, %s, %s offen%s" % (v(own, 4), self.vOut, self.OUT, ("0", "s%d" % self.t3, "s%d" % self.t2, "s%d" % self.t0)[q], self.o["outaux"]))
        A("s_cmp_eq_u32 s2, 255")
        A("s_cbranch_scc0 L_fin")
        A("v_mov_b32 v%d, s%d" % (vt, self.sE))
        A("v_mov_b32 v%d, 0" % vu)
        A("buffer_store_dword v%d, v%d, %s, 0 offen" % (vt, vu, self.WS))
        A.label("L_fin")
        if self.o["stamps"]:
            if self.o["stamps"] != 2: A("s_waitcnt vmcnt(0)")
            self.stamp(17)
            A("v_lshlrev_b32 v%d, 2, v0" % vu)
            A("s_lshl_b32 s%d, s2, 10" % self.t0); A("s_add_u32 s%d, s%d, %d" % (self.t0, self.t0, WS_STAMP))
            A("buffer_store_dword v%d, v%d, %s, s%d offen" % (self.vStamp, vu, self.WS, self.t0))
        A("s_endpgm")
        A.label("L_slow")
        self.vm.q, self.lg.q = qv, ql
        for st in range(s0, 16): self.cstep(st, [])
        self.stamp(14)
        A.label("L_opoll")
        opoll()
        A("s_waitcnt vmcnt(0)")
        A("v_cmp_ne_u32 vcc, s%d, v%d" % (self.sTag, vt))
        self.poll_tail("L_opoll")
        self.vm.zero(False)
        self.stamp(15)
        for n in range(LA): old(n)
        assert self.vm.q == q2, (self.vm.q, q2)
        A("s_branch L_join")

    def gen(self):
        A = self.A
        kernel_head(A, NAME)
        self.prologue()
        V0, S0, q0 = self.V.clone(), self.S.clone(), list(self.vm.q)
        self.p2_regs(V0.clone())
        st1 = self.ssm()
        A("s_branch L_p2")
        A.label("L_att")
        self.V, self.S, self.vm.q, self.lg.q = V0.clone(), S0.clone(), list(q0), []
        st2 = self.att()
        assert st1 == st2, (st1, st2)
        A.label("L_p2")
        self.p2()
        A.label("L_end")
        A("s_endpgm")
        body, n = hazard.fix(A.l)
        head = open("cdna_kernels/%s.s.ref" % NAME[:-7]).read().split("; Override launch")[0] if self.o.get("head", True) else ""
        out = head + "; @launch grid=(256,1,1) block=(256,1,1) lds=163840\n"
        out += '.amdgcn_target "amdgcn-amd-amdhsa--gfx950"\n.text\n'
        if self.o["pad"] >= 0:
            out += "; start the kernel at the top of a 4 KB page (instruction fetch stalls at page crossings)\n.p2align 12\n.fill %d, 4, 0xbf800000\n" % (64 * self.o["pad"])
        out += "\n".join(body) + "\n"
        out += '.section .rodata,"a"\n.p2align 6\n' + kernel_desc(NAME, 512, 256)
        if self.o["hop"]: out = self.link_stubs(out)
        return out

    def link_stubs(self, out):
        import re, subprocess, tempfile
        d = tempfile.mkdtemp()
        open(d + "/a.s", "w").write(re.sub(r"@CHAIN(\w)\d+@", r"L_back\1", out))
        subprocess.run(["clang", "-x", "assembler", "-target", "amdgcn-amd-amdhsa", "-mcpu=gfx950", "-c", d + "/a.s", "-o", d + "/a.o"], check=True)
        dis = subprocess.run(["llvm-objdump", "-d", "--mcpu=gfx950", d + "/a.o"], capture_output=True, text=True).stdout
        dis = dis[dis.index("<%s>:" % NAME):]
        sizes = [4 * len(m.group(1).split()) for m in re.finditer(r"// [0-9A-F]{12}: ((?:[0-9A-F]{8} ?)+)", dis)]
        lines = out.split("\n"); res = []; k = 0; pc = 0; on = False; sec = None; tg = {"s": [], "a": []}; page = 0
        def put(roles):
            nm = "L_pg%d" % len(res)
            res.append(nm + ":"); res.append("    s_cbranch_execz L_back" + ("x" if len(roles) > 1 else roles))
            for r in roles: tg[r].append(nm)
        for l in lines:
            t = l.strip()
            if t == NAME + ":": on = True
            if t.startswith(".section"): on = False
            ins = on and t and not t.startswith((";", ".")) and not t.endswith(":")
            if ins and (pc >> 12) > page:
                page = pc >> 12
                if sec: put(sec); pc += 4
            res.append(l)
            if t in ("L_backs:", "L_backa:"): sec = t[-2]
            if t in ("L_att:", "L_slow:"): sec = None
            if t == "L_p2:":
                sec = "sa"; put("s"); pc += 4
            if ins: pc += sizes[k]; k += 1
        assert k == len(sizes), (k, len(sizes))
        out = "\n".join(res)
        for r in "sa":
            t = list(tg[r])
            while len(t) > 4:
                x = t.pop(); y = t[len(t) - 4]
                assert y not in tg["a" if r == "s" else "s"]
                out = out.replace(y + ":\n    s_cbranch_execz L_back" + r, y + ":\n    s_cbranch_execz " + x)
            for w in range(4): out = out.replace("@CHAIN%s%d@" % (r, w), t[w] if w < len(t) else "L_back" + r)
        return out

if __name__ == "__main__":
    if len(sys.argv) > 1:
        for arg in sys.argv[1:]:
            nm, _, kv = arg.partition(":")
            o = eval("dict(%s)" % kv)
            open(nm, "w").write(K(stamps=(1 if "_st" in nm else 2 if "_lt" in nm else 0), head=False, **o).gen())
    else:
        open("k.s", "w").write(K().gen())
        open("k_st.s", "w").write(K(stamps=True).gen())
```

```python
import sys
from asmlib import Asm, v, a, s, kernel_head, kernel_desc
import hazard

NAME = "gated_mix__linear_attn_block__ssm_conv_s5__prompt_kernel"
WS_EPOCH, WS_G, WS_FH, WS_FO, WS_E, WS_KV, WS_A = 0, 0x1000, 0x10000, 0x20000, 0x30000, 0x40000, 0x100000
WS_LF = 0xc0000
WS_STAMP = 0x1000000
SPILL = 0x800000
RT_STRIDE = 98304
HUGE = 0x20000000
L_R0, L_R1, L_SP = 0, 65536, 131072
LOG2E = "0x3fb8aa3b"
P_X, P_WQKV, P_WO, P_LRE, P_LIM, P_BRE, P_BIM = 4, 6, 8, 12, 14, 16, 18
P_CRE, P_CIM, P_LDT, P_DSK, P_GW, P_OUT, P_WS = 20, 22, 24, 26, 28, 30, 34

class Alloc:
    def __init__(self, regs):
        self.free = set(regs)
    def __call__(self, n=1, al=1):
        if n > 1 and al == 1: al = 2
        for b in sorted(self.free, reverse=(n <= 2)):
            if b % al == 0 and all(b + i in self.free for i in range(n)):
                for i in range(n): self.free.discard(b + i)
                return b
        raise RuntimeError("out of registers")
    def rel(self, b, n=1):
        for i in range(n):
            assert b + i not in self.free
            self.free.add(b + i)
    def clone(self):
        return Alloc(self.free)

class Cnt:
    def __init__(self, A, name, mx):
        self.A = A; self.name = name; self.mx = mx; self.q = []
    def issue(self, tag): self.q.append(tag)
    def need(self, tag):
        idx = [i for i, t in enumerate(self.q) if t == tag]
        if not idx: return None
        n = len(self.q) - 1 - idx[-1]
        self.q = self.q[idx[-1] + 1:]
        return min(n, self.mx)
    def wait(self, tag):
        n = self.need(tag)
        if n is not None: self.A("s_waitcnt %s(%d)" % (self.name, n))
    def zero(self, emit=True):
        if emit: self.A("s_waitcnt %s(0)" % self.name)
        self.q = []

def weave(main, *side):
    out = [[x] for x in main]
    for sd in side:
        n = len(sd)
        for k, x in enumerate(sd):
            out[min(len(main) - 1, (k * len(main)) // n)].append(x)
    return [y for x in out for y in x]

class K:
    def __init__(self, **opt):
        self.o = dict(stamps=0, pollcap=400000, order='gpq8', third=('w4h4', 'w4h4'), nf=(80, 60), d0=8, hop=1, pad=13, xrot=6, j3=1, qpf=1,
                      ssm=(8, 8, 0, 0, 8, 8), late7=1, att_b=8, att_g=16, att_c1=8, att_c2=6, att_e=2, att_f=10,
                      hpw=1, smid=999, wat=0, wn=3, wl2=0, qmode=0, ph1=(28, 40), efirst=1, clead=6, glate=None, xmul=6, qat=88, wfirst=0, mid=(100, 104, 200), wopar=1, gmid=0, pause=(0,) * 8, psplit=1, dfirst=0, lflag=0, l7at=0, early=(None, None), xdo=1, olead=4, owait=3, dpos=((-6, -2, 2, 6, 10, 14, 18, 22), (-6, -2, 2, 6, 10, 14, 18, 22)), outaux=' sc1 nt', LA=10, dbg='')
        self.o.update(opt)
        self.A = Asm()
        self.vm = Cnt(self.A, "vmcnt", 62)
        self.lg = Cnt(self.A, "lgkmcnt", 14)
        self.V = Alloc(range(1, 256))
        self.S = Alloc([3] + list(range(72, 102)))

    def stamp(self, idx):
        if not self.o["stamps"]: return
        if self.o["stamps"] == 2 and idx != 17: return
        A = self.A
        A("s_memrealtime s[%d:%d]" % (self.sT, self.sT + 1))
        A("s_memtime s[%d:%d]" % (self.sT2, self.sT2 + 1))
        A("s_waitcnt lgkmcnt(0)")
        self.lg.zero(False)
        A("v_writelane_b32 v%d, s%d, %d" % (self.vStamp, self.sT, idx))
        A("v_writelane_b32 v%d, s%d, %d" % (self.vStamp, self.sT2, 32 + idx))
    def dma(self, vo, srd, so, imm, tag):
        self.A("buffer_load_dwordx4 v%d, %s, %s offen%s lds" % (vo, srd, so, " offset:%d" % imm if imm else ""))
        self.vm.issue(tag)
    def ds(self, text, tag):
        return lambda: (self.A(text), self.lg.issue(tag))
    def mf(self, d, x, y, c=None, k=32):
        self.A("v_mfma_f32_16x16x%d_bf16 %s, %s, %s, %s" % (k, v(d, 4), x, y, v(d, 4) if c is None else c))
    def cmul(self, out, dr, di, ar, ai, br, bi, cr=None, ci=None):
        if cr is None:
            out.append("v_mul_f32 v%d, v%d, v%d" % (dr, ar, br))
            out.append("v_mul_f32 v%d, v%d, v%d" % (di, ar, bi))
        else:
            out.append("v_fma_f32 v%d, v%d, v%d, v%d" % (dr, ar, br, cr))
            out.append("v_fma_f32 v%d, v%d, v%d, v%d" % (di, ar, bi, ci))
        out.append("v_fma_f32 v%d, -v%d, v%d, v%d" % (dr, ai, bi, dr))
        out.append("v_fmac_f32 v%d, v%d, v%d" % (di, ai, br))
    def pmul(self, out, d, x, y, c=None, sel=None):
        q = lambda z: (z, z + 2) if isinstance(z, int) else z
        d, x, y = q(d), q(x), q(y)
        m3 = "" if sel is None else (" op_sel:[1,0,0]" if sel else " op_sel_hi:[0,1,1]")
        m2 = "" if sel is None else (" op_sel:[1,0]" if sel else " op_sel_hi:[0,1]")
        for k in range(2):
            if c is None: out.append("v_pk_mul_f32 %s, %s, %s%s" % (v(d[k], 2), v(x[0], 2), v(y[k], 2), m2))
            else: out.append("v_pk_fma_f32 %s, %s, %s, %s%s" % (v(d[k], 2), v(x[0], 2), v(y[k], 2), v(q(c)[k], 2), m3))
        out.append("v_pk_fma_f32 %s, %s, %s, %s%s neg_lo:[1,0,0] neg_hi:[1,0,0]" % (v(d[0], 2), v(x[1], 2), v(y[1], 2), v(d[0], 2), m3))
        out.append("v_pk_fma_f32 %s, %s, %s, %s%s" % (v(d[1], 2), v(x[1], 2), v(y[0], 2), v(d[1], 2), m3))
    def emit(self, lst):
        for x in lst:
            if isinstance(x, tuple):
                self.emit(x[0]); x[1]()
            elif callable(x): x()
            else: self.A(x)
    def cap(self):
        A = self.A
        A("s_sub_u32 s%d, s%d, 1" % (self.sCap, self.sCap))
        A("s_cselect_b64 vcc, 0, vcc")
        A("s_cselect_b32 s%d, 0, s%d" % (self.sCap, self.sCap))
        A("s_cmp_lg_u64 vcc, 0")
    def poll_tail(self, lab):
        self.cap()
        self.A("s_cbranch_scc1 %s" % lab)
    def bits(self, out, d, tmp, spec, src="v0"):
        for n, (bit, w, sh) in enumerate(spec):
            if n == 0:
                if bit == sh: out.append("v_and_b32 v%d, 0x%x, %s" % (d, ((1 << w) - 1) << bit, src))
                else:
                    out.append("v_bfe_u32 v%d, %s, %d, %d" % (d, src, bit, w))
                    if sh: out.append("v_lshlrev_b32 v%d, %d, v%d" % (d, sh, d))
            else:
                out.append("v_bfe_u32 v%d, %s, %d, %d" % (tmp, src, bit, w))
                out.append("v_lshl_or_b32 v%d, v%d, %d, v%d" % (d, tmp, sh, d))
    def wait2(self, vtag, ltag):
        n1 = self.vm.need(vtag) if vtag else None
        n2 = self.lg.need(ltag) if ltag else None
        w = " ".join(x for x in ("" if n1 is None else "vmcnt(%d)" % n1, "" if n2 is None else "lgkmcnt(%d)" % n2) if x)
        if w: self.A("s_waitcnt " + w)

    def slot(self, c):
        return ((c + 2) % 4) * 32768
    def chunk_dmas(self, c):
        slot = self.slot(c); tag = "ch%d" % c
        L = []
        nx0 = ["s_mul_i32 s%d, s%d, s%d" % (self.sO2, self.sCh, self.sWst)]
        nx1 = ["s_lshl_b32 s%d, s%d, 7" % (self.sO1, self.sCh)]
        nx2 = ["s_add_u32 s%d, s%d, 1" % (self.sCh, self.sCh)]; nx3 = ["s_and_b32 s%d, s%d, 7" % (self.sCh, self.sCh)]
        for n in range(4):
            pre = [] if n & 1 else ["s_add_u32 m0, s%d, %d" % (self.sM, slot + 16384 + (n >> 1) * 4096)] + (nx1 if n else nx0)
            L.append((pre, (lambda n=n: self.dma(self.vw[n], (self.WA, self.WB)[n >> 1], "s%d" % self.sO2, 2048 * (n & 1), tag))))
        for n in range(4):
            pre = [] if n & 1 else ["s_add_u32 m0, s%d, %d" % (self.sM, slot + (n >> 1) * 4096)] + (nx3 if n else nx2)
            L.append((pre, (lambda n=n: self.dma(self.vx[n >> 1], self.X, "s%d" % self.sO1, 2048 * (n & 1), tag))))
        return L
    def wo_dmas(self, half):
        L = []
        for n in range(8):
            aa, b = n >> 2, n & 3
            pre = [] if b else ["s_add_u32 m0, s%d, %d" % (self.sMW, L_SP + aa * 4096), "s_xor_b32 s%d, s%d, %d" % (self.sO1, self.sP17, (half * 128 + aa * 32) * 1024)]
            L.append((pre, (lambda b=b: self.dma(self.vo[b], self.WO, "s%d" % self.sO1, 1024 * b, "wo%d" % half))))
        return L
    def wo_stag(self):
        L = []
        t0 = self.sLX
        for n in range(8):
            pre = ["s_add_u32 s%d, s%d, 1024" % (self.sSt, self.sSt), "s_and_b32 s%d, s%d, 0x1c00" % (self.sSt, self.sSt),
                   "s_add_u32 m0, s%d, s%d" % (self.sSt, self.sMW2), "s_lshl3_add_u32 s%d, s%d, s%d" % (t0, self.sSt, self.sP17)]
            L.append((pre, (lambda: self.dma(self.vo[0], self.WO, "s%d" % t0, 0, "wo0"))))
        return L
    def c_dmas(self, comp, region):
        L = []
        for idx in range(8):
            for i in range(2):
                pre = [] if i else ["s_xor_b32 m0, s%d, %d" % (self.sMC, region + idx * 8192), "s_xor_b32 s%d, s%d, %d" % (self.sO1, self.sP9, idx * 128)]
                L.append((pre, (lambda i=i: self.dma(self.vc[i], (self.CRE, self.CIM)[comp], "s%d" % self.sO1, 2048 * i, "c%d" % comp))))
        return L
    def wo_reads(self, half):
        L = []
        for n in range(4):
            for t in range(4):
                for h in range(2):
                    L.append("ds_read_b64_tr_b16 %s, v%d offset:%d" % (a(64 * half + 16 * n + 4 * t + 2 * h, 2), self.aw[t], n * 4096 + h * 2048))
        return L

    def prologue(self):
        A, V, S = self.A, self.V, self.S
        self.X, self.WA, self.WB, self.WS = "s[36:39]", "s[40:43]", "s[44:47]", "s[48:51]"
        self.CRE, self.CIM, self.WO, self.OUT, self.ER = "s[52:55]", "s[56:59]", "s[60:63]", "s[64:67]", "s[68:71]"
        self.sT = S(2, 2); self.sT2 = S(2, 2); self.sMk = S(2, 2)
        self.sR, self.sJ, self.sRole, self.sW, self.sCT, self.sRH = [S() for _ in range(6)]
        self.sM, self.sCh, self.sO1, self.sO2, self.sTag, self.sE, self.sWst, self.sN2, self.sCX = [S() for _ in range(9)]
        self.t0, self.t1, self.t2, self.t3 = [S() for _ in range(4)]
        t0, t1, t2, t3 = self.t0, self.t1, self.t2, self.t3
        sR, sJ, sW, sCT, sRH, sRole = self.sR, self.sJ, self.sW, self.sCT, self.sRH, self.sRole
        vt = V(); vu = V()
        self.vJunk = V(); self.vL16 = V()
        vp = V(); vd = V(); vg = V()
        A("s_cmp_ge_u32 s2, 256")
        A("s_cbranch_scc1 L_end")
        A("s_load_dwordx16 s[4:19], s[0:1], 0")
        A("s_load_dwordx16 s[20:35], s[0:1], 64")
        if self.o["stamps"]:
            self.vStamp = V()
            A("s_memrealtime s[%d:%d]" % (self.sT, self.sT + 1))
            A("s_memtime s[%d:%d]" % (self.sT2, self.sT2 + 1))
        A("s_getpc_b64 s[%d:%d]" % (self.sMk, self.sMk + 1))
        A.label("L_pc")
        A("s_and_b32 s%d, s2, 0xf8" % t0)
        A("v_lshrrev_b32 v%d, 5, v0" % vt)
        A("v_add_lshl_u32 v%d, s%d, v%d, 7" % (vt, t0, vt))
        A("v_min_u32 v%d, L_end-L_pc, v%d" % (vt, vt))
        A("v_lshrrev_b32 v%d, 6, v0" % vu)
        A("global_load_dword v%d, v%d, s[%d:%d]" % (self.vJunk, vt, self.sMk, self.sMk + 1)); self.vm.issue("junk")
        A("v_readfirstlane_b32 s%d, v%d" % (sW, vu))
        A("s_and_b32 s%d, s2, 1" % sRH)
        A("s_bfe_u32 s%d, s2, 0x20001" % t0)
        A("s_lshr_b32 s%d, s2, 6" % t1)
        A("s_lshl2_add_u32 s%d, s%d, s%d" % (sR, t0, t1))
        A("s_bfe_u32 s%d, s2, 0x20003" % t0)
        A("s_lshl2_add_u32 s%d, s%d, s%d" % (sJ, sRH, t0))
        A("s_bfe_u32 s%d, s2, 0x10005" % sRole)
        A("s_lshl3_add_u32 s%d, s%d, s%d" % (t0, sRole, sJ))
        A("s_lshl2_add_u32 s%d, s%d, s%d" % (self.sN2, t0, sW))
        A("s_cmp_eq_u32 s%d, %d" % (t0, 11 if self.o["j3"] else 99))
        A("s_cselect_b32 s%d, s%d, 0" % (t1, t1))
        if self.o["glate"]:
            A("s_mul_i32 s%d, s2, %d" % (t0, self.o["xmul"]))
            A("s_and_b32 s%d, s%d, %d" % (t0, t0, self.o["xrot"]))
            A("s_lshl1_add_u32 s%d, s%d, s%d" % (self.sCh, t1, t0))
            A("s_and_b32 s%d, s%d, 7" % (self.sCh, self.sCh))
        else:
            A("s_lshl1_add_u32 s%d, s%d, s2" % (self.sCh, t1))
            A("s_and_b32 s%d, s%d, %d" % (self.sCh, self.sCh, self.o["xrot"]))
        A("v_and_b32 v%d, 63, v0" % self.vL16)
        A("v_lshlrev_b32 v%d, 4, v%d" % (self.vL16, self.vL16))
        A("s_and_b32 s%d, s%d, 0x3e" % (t0, self.sN2))
        A("s_add_u32 s%d, s%d, s%d" % (t0, t0, self.sN2))
        A("s_lshl_b32 s%d, s%d, 7" % (t1, sR))
        A("s_add_u32 s%d, s%d, s%d" % (t0, t0, t1))
        A("v_lshl_add_u32 v%d, s%d, 10, v%d" % (vg, t0, self.vL16))
        A("s_mul_i32 s42, s%d, 0x100000" % sRole); A("s_add_u32 s42, s42, 0x80000"); A("s_mov_b32 s46, s42")
        A("s_mul_i32 s%d, s%d, %d" % (self.sWst, sRole, 64 * 3072 - 128)); A("s_add_u32 s%d, s%d, 128" % (self.sWst, self.sWst))
        A("s_mul_i32 s%d, s%d, %d" % (t2, sRole, 32 * 3072))
        A("s_lshl_b32 s%d, s%d, 13" % (t3, sRole)); A("s_add_u32 s%d, s%d, 2048" % (t3, t3))
        A("s_mov_b32 s38, 0x200000")
        for b in (36, 40, 44): A("s_mov_b32 s%d, 0x20000" % (b + 3))
        A("s_mul_i32 s%d, s%d, 0x1400" % (self.sM, sW))
        A("s_and_b32 s%d, s%d, 0x2400" % (self.sM, self.sM))
        vUA = V(); vUT = V()
        self.vx = [V() for _ in range(2)]; self.vw = [V() for _ in range(4)]
        o = []
        o.append("v_lshrrev_b32 v%d, 4, v0" % vt)
        o.append("v_xor_b32 v%d, v0, v%d" % (vt, vt))
        self.bits(o, vUA, vu, ((0, 3, 4),), "v%d" % vt)
        o.append("v_lshrrev_b32 v%d, 3, v0" % vt)
        o.append("v_and_b32 v%d, 6, v%d" % (vt, vt))
        o.append("v_xor_b32 v%d, v0, v%d" % (vt, vt))
        self.bits(o, vUT, vu, ((0, 3, 4),), "v%d" % vt)
        w0 = self.vw[0]; w1 = self.vw[1]
        self.bits(o, vt, vu, ((3, 2, 0), (5, 2, 3)))
        o.append("v_lshrrev_b32 v%d, 7, v0" % vu)
        o.append("v_lshl_or_b32 v%d, v%d, 5, v%d" % (w0, vu, vt))
        o.append("v_lshl_add_u32 v%d, s%d, 6, v%d" % (w0, sJ, w0))
        o.append("v_lshl_add_u32 v%d, v%d, 10, v%d" % (w0, w0, vUA))
        o.append("v_mul_u32_u24 v%d, 3072, v%d" % (vt, vt))
        o.append("v_lshl_add_u32 v%d, v%d, 10, v%d" % (vt, vu, vt))
        o.append("s_lshl_b32 s%d, s%d, 7" % (t0, sJ))
        o.append("s_add_u32 s%d, s%d, 1024" % (t0, t0))
        o.append("s_cmp_eq_u32 s%d, 0" % sRole)
        o.append("s_cselect_b64 vcc, -1, 0")
        o.append("v_add3_u32 v%d, v%d, s%d, v%d" % (vt, vt, t0, vUT))
        o.append("v_cndmask_b32 v%d, v%d, v%d, vcc" % (w0, vt, w0))
        o.append("v_add_u32 v%d, s%d, v%d" % (w1, t3, w0))
        o.append("v_add_u32 v%d, s%d, v%d" % (self.vw[2], t2, w0))
        o.append("v_add_u32 v%d, s%d, v%d" % (self.vw[3], t2, w1))
        x0 = self.vx[0]
        self.bits(o, x0, vu, ((3, 1, 3), (4, 1, 0), (5, 3, 4)))
        o.append("v_lshl_add_u32 v%d, s%d, 7, v%d" % (x0, sR, x0))
        o.append("v_lshl_add_u32 v%d, v%d, 10, v%d" % (x0, x0, vUA))
        o.append("v_add_u32 v%d, 4096, v%d" % (self.vx[1], x0))
        self.emit(o)
        self.ppar = [V(2), V(2), V(2)]; self.vDs = V(4, 2); self.gx = self.vXD = V(16, 4)
        A("s_mov_b32 s%d, s%d" % (self.sCX, self.sCh))
        A("s_waitcnt lgkmcnt(0)")
        A("s_cselect_b64 s[40:41], s[%d:%d], s[%d:%d]" % (P_BRE, P_BRE + 1, P_WQKV, P_WQKV + 1))
        A("s_cselect_b64 s[44:45], s[%d:%d], s[%d:%d]" % (P_BIM, P_BIM + 1, P_WQKV, P_WQKV + 1))
        A("s_mov_b64 s[36:37], s[%d:%d]" % (P_X, P_X + 1))
        if self.o["stamps"]: A("v_writelane_b32 v%d, s%d, 0\nv_writelane_b32 v%d, s%d, 32" % (self.vStamp, self.sT, self.vStamp, self.sT2))
        self.stamp(18)
        e0, e1 = self.chunk_dmas(0), self.chunk_dmas(1)
        self.early = e0 + e1
        if self.o["wfirst"]:
            inc = [e0[4][0][1], e0[6][0][1]]; shl = e0[2][0][1]
            e1[0] = (inc + e1[0][0], e1[0][1]); e1[2] = (e1[2][0][:1], e1[2][1])
            e0[4] = (e0[4][0][:1], e0[4][1]); e0[6] = (e0[6][0][:1], e0[6][1])
            e1[4] = ([shl] + e1[4][0], e1[4][1])
            self.early = e0[:4] + e1[:4] + e0[4:] + e1[4:]
        for tok in self.o["order"]:
            if tok == "g":
                A("global_load_dwordx4 %s, v%d, s[%d:%d]" % (v(self.gx, 4), vg, P_X, P_X + 1)); self.vm.issue("par")
                A("global_load_dwordx4 %s, v%d, s[%d:%d] offset:2048" % (v(self.gx + 4, 4), vg, P_X, P_X + 1)); self.vm.issue("par")
            elif tok == "p":
                A("s_bfe_u32 s%d, s2, 0x30003" % sCT)
                A("s_bfe_u32 s%d, s2, 0x10006" % t0)
                A("s_lshl_b32 s%d, s%d, 2" % (t0, t0))
                A("s_xor_b32 s%d, s%d, s%d" % (sCT, sCT, t0))
                o = []
                self.bits(o, vp, vu, ((6, 1, 6), (0, 2, 1), (2, 2, 4)))
                o.append("v_lshl_add_u32 v%d, s%d, 7, v%d" % (vp, sJ, vp))
                self.bits(o, vd, vu, ((4, 2, 3), (7, 1, 6)))
                o.append("v_lshl_add_u32 v%d, s%d, 7, v%d" % (vd, sCT, vd))
                self.emit(o)
            elif tok == "q":
                A("global_load_dwordx4 %s, v%d, s[%d:%d]" % (v(self.gx + 8, 4), self.vL16, P_GW, P_GW + 1)); self.vm.issue("par")
                for b in range(2):
                    A("global_load_dwordx2 %s, v%d, s[%d:%d] offset:%d" % (v(self.vDs + 2 * b, 2), vd, P_DSK, P_DSK + 1, 32 * b)); self.vm.issue("par")
                A("s_cmp_eq_u32 s%d, 0" % sRole)
                A("s_cbranch_scc0 L_nopar")
                for q, p in zip(self.ppar, (P_LRE, P_LIM, P_LDT)):
                    for b in range(2): A("global_load_ushort v%d, v%d, s[%d:%d] offset:%d" % (q + b, vp, p, p + 1, 8 * b))
                A.label("L_nopar")
                assert len(self.early) == 16
            else:
                n = int(tok)
                self.emit(self.early[:n]); self.early = self.early[n:]
        self.stamp(19)
        A("s_load_dword s%d, s[%d:%d], 0" % (self.sE, P_WS, P_WS + 1))
        o = []
        o.append("s_sub_u32 s%d, s%d, s%d" % (self.sCX, sCT, self.sCX))
        o.append("s_and_b32 s%d, s%d, 7" % (self.sCX, self.sCX))
        for b, p, n in ((48, P_WS, 0x10000000), (52, P_CRE, 0x80000), (56, P_CIM, 0x80000), (60, P_WO, 0x80000), (64, P_OUT, 0x400000)):
            o.append("s_mov_b64 s[%d:%d], s[%d:%d]" % (b, b + 1, p, p + 1))
            o.append("s_mov_b32 s%d, 0x%x" % (b + 2, n))
        o.append("s_mov_b32 s70, 4096")
        for b in range(48, 72, 4): o.append("s_mov_b32 s%d, 0x20000" % (b + 3))
        self.emit(o)
        for q in range(4, 34): S.rel(q) if q not in (P_WQKV, P_WQKV + 1) else None
        self.vTag, self.vBase, self.vFlag, self.vG1a, self.vG2a, self.vf, self.vr, self.vOut, self.vPf, self.vFr, self.vTr = [V() for _ in range(11)]
        self.vo = [V() for _ in range(4)]; self.vc = [V() for _ in range(2)]
        self.aw = [V() for _ in range(4)]; self.ac = [[V(), V()], [V(), V()]]; self.axd = [[V(), V()], [V(), V()]]
        self.vG2 = V(4, 4); self.xdf = V(8, 4); self.acc = [V(16, 4), V(16, 4)]
        self.sMW, self.sMC, self.sRT, self.sRW, self.sCap, self.sP9, self.sP17, self.sH, self.sO, self.sFH, self.sFO = [S() for _ in range(11)]
        o = []
        o.append("s_mov_b32 s%d, %d" % (self.sCap, self.o["pollcap"]))
        o.append("s_lshr_b32 s%d, s%d, 1" % (t3, sW))
        o.append("s_and_b32 s%d, s%d, 1" % (t2, sW))
        o.append("s_lshl1_add_u32 s%d, s%d, s%d" % (self.sRW, sR, t3))
        o.append("s_lshl1_add_u32 s%d, s%d, s%d" % (t1, sR, sRH))
        o.append("s_lshl1_add_u32 s%d, s%d, s%d" % (self.sRT, t1, t2))
        xd0 = self.axd[0][0]
        o.append("v_bfe_u32 v%d, v0, 1, 3" % vt)
        o.append("v_bfe_u32 v%d, v0, 4, 2" % vu)
        o.append("v_xor_b32 v%d, v%d, v%d" % (self.vBase, vt, vu))
        o.append("v_bfe_u32 v%d, v0, 5, 1" % vu)
        o.append("v_xor_b32 v%d, v%d, v%d" % (xd0, vt, vu))
        self.bits(o, vu, None, ((0, 4, 7),))
        o.append("v_lshl_add_u32 v%d, v%d, 4, v%d" % (self.vBase, self.vBase, vu))
        o.append("v_lshl_add_u32 v%d, v%d, 4, v%d" % (xd0, xd0, vu))
        o.append("v_bfe_u32 v%d, v0, 4, 1" % vu)
        o.append("v_lshl_or_b32 v%d, v%d, 3, v%d" % (xd0, vu, xd0))
        o.append("s_and_b32 s%d, s%d, 3" % (t0, self.sRT))
        o.append("s_lshl_b32 s%d, s%d, 6" % (t0, t0))
        o.append("s_add_u32 s%d, s%d, s%d" % (t0, t0, t3))
        o.append("s_lshl_b32 s%d, s%d, 6" % (t0, t0))
        o.append("v_xor_b32 v%d, s%d, v%d" % (xd0, t0, xd0))
        o.append("v_xor_b32 v%d, 32, v%d" % (self.axd[0][1], xd0))
        for e in range(2): o.append("v_add_u32 v%d, 0x10000, v%d" % (self.axd[1][e], self.axd[0][e]))
        self.bits(o, self.vTr, vu, ((2, 4, 7), (0, 2, 3), (3, 2, 5)))
        o.append("s_mul_i32 s%d, s%d, %d" % (t0, t3, 16384 + 64))
        o.append("s_add_u32 s%d, s%d, %d" % (t0, t0, L_SP))
        o.append("v_xor_b32 v%d, s%d, v%d" % (self.aw[0], t0, self.vTr))
        for t in range(1, 4): o.append("v_xor_b32 v%d, %d, v%d" % (self.aw[t], 32 * t, self.aw[0]))
        o.append("s_lshl_b32 s%d, s%d, 13" % (self.sMW, sW))
        self.sSt, self.sMW2, self.sLF, self.sLX = S(), S(), S(), S()
        o.append("s_lshl_b32 s%d, s2, 10" % self.sSt)
        o.append("s_add_u32 s%d, s%d, %d" % (self.sMW2, self.sMW, L_SP))
        o.append("s_lshr_b32 s%d, s2, 7" % t0)
        o.append("s_andn2_b32 s%d, s%d, s%d" % (self.sP9, t0, sRole))
        o.append("s_lshl_b32 s%d, s%d, 9" % (self.sP9, self.sP9))
        o.append("s_lshl_b32 s%d, s%d, 8" % (self.sP17, self.sP9) if self.o["wopar"] else "s_mov_b32 s%d, 0" % self.sP17)
        self.bits(o, vu, vt, ((3, 3, 0), (6, 1, 6), (7, 1, 8)))
        o.append("v_lshl_add_u32 v%d, v%d, 10, v%d" % (vu, vu, vUT))
        o.append("v_lshl_add_u32 v%d, s%d, 7, v%d" % (self.vo[0], sCT, vu))
        for b in range(1, 4): o.append("v_add_u32 v%d, %d, v%d" % (self.vo[b], 7168 * b, self.vo[0]))
        o.append("s_lshl2_add_u32 s%d, s%d, s%d" % (self.sMC, t3, t2))
        o.append("s_lshl_b32 s%d, s%d, 10" % (self.sMC, self.sMC))
        o.append("s_lshl_b32 s%d, s%d, 6" % (t0, self.sP9))
        o.append("s_add_u32 s%d, s%d, s%d" % (self.sMC, self.sMC, t0))
        self.bits(o, vt, vu, ((3, 4, 0), (7, 1, 5)))
        o.append("v_lshl_add_u32 v%d, s%d, 6, v%d" % (vt, sCT, vt))
        o.append("v_lshl_add_u32 v%d, v%d, 10, v%d" % (self.vc[0], vt, vUA))
        o.append("v_add_u32 v%d, %d, v%d" % (self.vc[1], 16384 - 2048, self.vc[0]))
        self.bits(o, vu, None, ((0, 4, 4),))
        o.append("v_add_u32 v%d, %d, v%d" % (vu, WS_G, vu))
        o.append("v_lshl_add_u32 v%d, s%d, 9, v%d" % (self.vG1a, self.sRW, vu))
        o.append("v_lshl_add_u32 v%d, s%d, 8, v%d" % (self.vG2a, self.sRT, vu))
        o.append("v_and_b32 v%d, 56, v0" % vt)
        o.append("v_cmp_eq_u32 vcc, 24, v%d" % vt)
        o.append("v_add_u32 v%d, %d, v%d" % (vt, SPILL - 384, self.vL16))
        o.append("s_nop 0")
        o.append("v_cndmask_b32 v%d, v%d, v%d, vcc" % (self.vFr, self.vL16, vt))
        vWq = self.vWq = V()
        if self.o["qmode"] == 2:
            o.append("s_lshr_b32 s%d, s2, 3" % t0)
            self.bits(o, vWq, vu, ((2, 2, 0), (6, 2, 2)))
            o.append("v_lshl_add_u32 v%d, s%d, 4, v%d" % (vWq, t0, vWq))
        else:
            o.append("s_lshr_b32 s%d, s2, 6" % t0); o.append("s_and_b32 s%d, s%d, 3" % (t1, sJ)); o.append("s_lshl2_add_u32 s%d, s%d, s%d" % (t0, t0, t1))
            self.bits(o, vWq, vu, ((2, 3, 0), (6, 2, 3)))
            o.append("v_lshl_add_u32 v%d, s%d, 5, v%d" % (vWq, t0, vWq))
        o.append("v_mul_u32_u24 v%d, 24, v%d" % (vWq, vWq))
        o.append("v_and_or_b32 v%d, v0, 3, v%d" % (vWq, vWq))
        o.append("v_lshl_add_u32 v%d, s%d, 2, v%d" % (vWq, sRH, vWq))
        o.append("v_lshlrev_b32 v%d, 7, v%d" % (vWq, vWq))
        o.append("s_lshl4_add_u32 s%d, s%d, s%d" % (t0, sR, sJ))
        o.append("s_lshl_b32 s%d, s%d, 8" % (t0, t0))
        o.append("s_add_u32 s%d, s%d, %d" % (t0, t0, WS_FH))
        self.bits(o, self.vPf, vu, ((6, 1, 7), (7, 1, 11)))
        o.append("v_add_u32 v%d, s%d, v%d" % (self.vPf, t0, self.vPf))
        o.append("v_lshl_add_u32 v%d, s%d, 16, v%d" % (self.vPf, sRole, self.vPf))
        self.bits(o, self.vFlag, None, ((0, 5, 2),))
        o.append("v_add_u32 v%d, v%d, v%d" % (self.vFlag, self.vFlag, self.vPf))
        if self.o["lflag"]:
            o.append("v_bfe_u32 v%d, v0, 5, 1" % vu)
            o.append("v_mul_u32_u24 v%d, 0x%x, v%d" % (vu, WS_LF, vu))
            o.append("v_add_u32 v%d, v%d, v%d" % (self.vPf, vu, self.vPf))
        self.emit(o)
        self.vUT = vUT
        for q in (vt, vu, vUA, vp, vd): V.rel(q)
        self.vg = vg
        A("s_cmp_eq_u32 s%d, 0" % sRole)
        A("s_cbranch_scc0 L_att")

    def p2_addr(self, first, vt, vu):
        t0, t1, t3 = self.t0, self.t1, self.t3
        o = []
        o.append("s_lshr_b32 s%d, s%d, 1" % (t3, self.sW))
        o.append("s_lshr_b32 s%d, s%d, 1" % (t1, self.sRT))
        o.append("s_lshl1_add_u32 s%d, s%d, s%d" % (t0, t1, t3))
        self.bits(o, self.vf, None, ((0, 3, 7),))
        o.append("v_lshl_add_u32 v%d, s%d, 10, v%d" % (self.vf, t0, self.vf))
        o.append("s_mov_b32 s%d, %d" % (self.sFO, WS_FO)); o.append("s_mov_b32 s%d, %d" % (self.sFH, WS_FH))
        if self.o["lflag"]:
            o.append("s_mov_b32 s%d, %d" % (self.sLF, WS_LF))
            o.append(lambda: (self.A("s_cmp_eq_u32 s%d, s%d" % (t3, self.sRH)), self.A("s_cselect_b32 s%d, s%d, 0" % (self.sLX, self.sLF))))
            o.append("s_add_u32 s%d, s%d, s%d" % (self.sFH, self.sFH, self.sLX))
            o.append("s_add_u32 s%d, s%d, s%d" % (self.sFO, self.sFO, self.sLX))
        o.append("s_mul_i32 s%d, s%d, %d" % (t0, self.sRT, RT_STRIDE))
        o.append("s_lshl_b32 s%d, s%d, 14" % (self.sO, t3))
        o.append("s_lshl1_add_u32 s%d, s%d, s%d" % (self.sH, self.sO, t0))
        o.append("s_add_u32 s%d, s%d, %d" % (self.sH, self.sH, WS_A))
        o.append("s_add_u32 s%d, s%d, s%d" % (self.sO, self.sO, t0))
        o.append("s_add_u32 s%d, s%d, %d" % (self.sO, self.sO, WS_A + 65536))
        if self.o["wopar"]: o.append("s_lshl4_add_u32 s%d, s%d, s%d" % (self.sO, self.sP9, self.sO))
        o.append("s_mul_i32 s%d, s%d, %d" % (t0, t3, 32768 + 4096))
        if first: o.append("s_add_u32 s%d, s%d, %d" % (t0, t0, first))
        o.append("v_add_u32 v%d, s%d, v%d" % (self.ac[0][0], t0, self.vBase))
        o.append("v_xor_b32 v%d, 64, v%d" % (self.ac[0][1], self.ac[0][0]))
        for sx in range(2): o.append("v_xor_b32 v%d, 4096, v%d" % (self.ac[1][sx], self.ac[0][sx]))
        self.bits(o, vt, None, ((4, 2, 5),))
        o.append("v_xor_b32 v%d, v%d, v%d" % (vt, vt, self.vL16))
        o.append("v_lshl_add_u32 v%d, s%d, 12, v%d" % (self.vr, self.sW, vt))
        if first: o.append("v_add_u32 v%d, %d, v%d" % (self.vr, first, self.vr))
        self.bits(o, vt, vu, ((3, 1, 3), (4, 1, 0), (5, 1, 4), (6, 1, 2)))
        o.append("v_lshl_add_u32 v%d, s%d, 6, v%d" % (vt, t1, vt))
        self.bits(o, vu, None, ((0, 3, 4),))
        o.append("v_lshl_add_u32 v%d, v%d, 11, v%d" % (vt, vt, vu))
        o.append("s_lshl1_add_u32 s%d, s%d, s%d" % (t0, self.sCT, t3))
        o.append("v_lshl_add_u32 v%d, s%d, 7, v%d" % (self.vOut, t0, vt))
        return o

    def skip_term(self):
        xd = self.vXD; dm = self.of; og = self.of + 8
        W = []
        for a1 in range(2): W.append("v_sub_f32 v%d, 1.0, v%d" % (og + a1, self.vG2 + 2 * a1))
        for k in range(4):
            W.append("v_and_b32 v%d, 0xffff, v%d" % (dm + 2 * k, self.vDs + k))
            W.append("v_and_b32 v%d, 0xffff0000, v%d" % (dm + 2 * k + 1, self.vDs + k))
        for a1 in range(2): W.append("v_cvt_pk_bf16_f32 v%d, 0, v%d" % (og + a1, og + a1))
        for n in range(16): W.append("v_dot2_f32_bf16 v%d, v%d, v%d, 0" % (xd + n, self.xdf + (n >> 1), dm + (n & 7)))
        for q in range(8): W.append("v_pk_mul_f32 %s, %s, %s %s" % (v(xd + 2 * q, 2), v(og, 2), v(xd + 2 * q, 2), "op_sel:[1,0]" if q >> 2 else "op_sel_hi:[0,1]"))
        return W

    def gate_fill(self):
        V = self.V
        F = []
        t0, t1 = self.S(), self.S()
        gx = self.gx; g = gx + 12; vt = self.V()
        F.append("s_add_u32 s%d, s%d, 1" % (self.sE, self.sE))
        F.append("s_mul_i32 s%d, s%d, 0x9e3779b1" % (self.sTag, self.sE))
        F.append("v_mov_b32 v%d, s%d" % (self.vTag, self.sTag))
        F.append("v_mov_b32 v%d, 0" % g); F.append("v_mov_b32 v%d, 0" % (g + 2))
        for i in range(4):
            F.append("v_dot2c_f32_bf16 v%d, v%d, v%d" % (g, gx + i, gx + 8 + i))
            F.append("v_dot2c_f32_bf16 v%d, v%d, v%d" % (g + 2, gx + 4 + i, gx + 8 + i))
        side = ["v_mov_b32 v%d, v%d" % (g + 1, self.vTag), "v_mov_b32 v%d, v%d" % (g + 3, self.vTag), "v_cmp_eq_u32 vcc, 0x3f0, v%d" % self.vL16,
                "v_mov_b32 v%d, 0x%x" % (vt, HUGE)]
        side.append("s_and_b32 s%d, s%d, 32" % (t0, self.sN2))
        for bit, w_, sh in ((1, 1, 4), (3, 2, 2), (0, 1, 1), (2, 1, 0)):
            side.append("s_bfe_u32 s%d, s%d, 0x%x" % (t1, self.sN2, (w_ << 16) | bit))
            side.append(("s_lshl%d_add_u32" % sh if sh else "s_add_u32") + " s%d, s%d, s%d" % (t0, t1, t0))
        side.append("v_cndmask_b32 v%d, v%d, 0, vcc" % (vt, vt))
        side.append("s_lshl_b32 s%d, s%d, 10" % (t1, self.sR))
        side.append("s_lshl4_add_u32 s%d, s%d, s%d" % (t0, t0, t1))
        side.append("s_add_u32 s%d, s%d, %d" % (t0, t0, WS_G))
        F += side[:3]; side = side[3:]
        for md in ("row_shr:1 row_mask:0xf", "row_shr:2 row_mask:0xf", "row_shr:4 row_mask:0xf", "row_shr:8 row_mask:0xf", "row_bcast:15 row_mask:0xa", "row_bcast:31 row_mask:0xc"):
            for q in (g, g + 2): F.append("v_add_f32_dpp v%d, v%d, v%d %s bank_mask:0xf" % (q, q, q, md))
            F += side[:2]; side = side[2:]
        for q in (g, g + 2): F.append("v_mul_f32 v%d, 0xbfb8aa3b, v%d" % (q, q))
        for q in (g, g + 2): F.append("v_exp_f32 v%d, v%d" % (q, q))
        for q in (g, g + 2): F.append("v_add_f32 v%d, 1.0, v%d" % (q, q))
        for q in (g, g + 2): F.append("v_rcp_f32 v%d, v%d" % (q, q))
        F += side
        for q in (g, g + 2): F.append("v_cvt_pk_bf16_f32 v%d, 0, v%d" % (q, q))
        def st():
            self.A("buffer_store_dwordx4 %s, v%d, %s, s%d offen sc1" % (v(g, 4), vt, self.WS, t0)); self.vm.issue("gst")
        F.append(st)
        return F

    def g_loads(self):
        for k in range(self.nG1):
            self.A("buffer_load_dwordx4 %s, v%d, %s, 0 offen%s sc1" % (v(self.vG1 + 4 * k, 4), self.vG1a, self.WS, " offset:256" if k else "")); self.vm.issue("g")
        self.A("buffer_load_dwordx4 %s, v%d, %s, 0 offen sc1" % (v(self.vG2, 4), self.vG2a, self.WS)); self.vm.issue("g")

    def g_check(self, name, vt):
        A = self.A
        self.vm.wait("g")
        A.label("L_gchk_" + name)
        A("v_xor_b32 v%d, v%d, v%d" % (vt, self.vG2 + 1, self.vTag))
        for q in [self.vG2 + 3] + [self.vG1 + 1 + 2 * k for k in range(2 * self.nG1)]:
            A("v_bitop3_b32 v%d, v%d, v%d, v%d bitop3:0xf6" % (vt, vt, q, self.vTag))
        A("v_cmp_ne_u32 vcc, 0, v%d" % vt)
        self.cap()
        A("s_cbranch_scc0 L_gok_" + name)
        q = list(self.vm.q)
        self.g_loads(); A("s_waitcnt vmcnt(0)")
        self.vm.q = q
        A("s_branch L_gchk_" + name)
        A.label("L_gok_" + name)

    def hop(self, name):
        if not self.o["hop"]: return
        A = self.A
        A("s_mov_b64 exec, 0")
        for w in range(3):
            A("s_cmp_eq_u32 s%d, %d" % (self.sW, w))
            A("s_cbranch_scc1 @CHAIN%s%d@" % (name, w))
        A("s_branch @CHAIN%s3@" % name)
        if name == "s":
            A.label("L_backx")
            A("s_cmp_eq_u32 s%d, 0" % self.sRole)
            A("s_cbranch_scc0 L_backa")
        A.label("L_back" + name)
        A("s_mov_b64 exec, -1")

    def p1_loop(self, name, xread, wread, mfma, tail, fill):
        A = self.A
        def warm(tok):
            if tok == "w": A("global_load_dword v%d, v%d, s[48:49]" % (self.vJunk, self.vPf))
            else: A("global_load_dword v%d, v%d, s[%d:%d]" % (self.vJunk, self.vWq, P_WQKV, P_WQKV + 1))
            self.vm.issue("junk")
        self.stamp(20)
        early = list(self.early)
        gf = self.gate_fill()
        for tok in self.o["third"][name == "a"]:
            if tok in "wq": warm(tok)
            elif tok == "G":
                A("s_waitcnt vmcnt(%d) lgkmcnt(0)" % (len(self.vm.q) - self.vm.q.index("ch0")))
                self.emit(gf); gf = []
            elif tok == "f":
                if name == "s": A("s_waitcnt vmcnt(%d)" % (len(self.vm.q) - self.vm.q.index("ch0")))
                k = min(self.o["nf"][name == "a"], len(fill))
                self.emit(fill[:k]); fill = fill[k:]
            elif tok == "h": self.hop(name)
            else: self.emit(early[:int(tok)]); early = early[int(tok):]
        assert not early
        self.stamp(21)
        if self.o["xdo"]:
            A("s_branch L_loop" + name)
            for c in range(8):
                A.label("L_xd_%s%d" % (name, c))
                hi, lo = self.slot(c) >> 16, self.slot(c) & 0xffff
                for n in range(4): A("ds_read_b64 %s, v%d offset:%d" % (v(self.xdf + 2 * n, 2), self.axd[hi][n & 1], lo + 2048 * (n >> 1)))
                A("s_branch L_nx_%s%d" % (name, c))
            A.label("L_loop" + name)
        gap = {}
        def at(n, x): gap.setdefault(n, []).append(x)
        nw = len(wread(0, 0))
        wpos = {1: ((-8,), (-3,), (0,), (4,)), 2: ((-8, -7), (-2, -1), (1, 2), (5, 6))}[nw]
        dpos = {1: (-2, 2, 6, -1 + 8 + 3), 2: (0, 3, 4, 7)}[nw]
        xpos = [-8 + nw + i for i in range(4)]
        last = []
        early_n = self.o["early"][name == "a"]; ex = self.wo_stag()
        for c in range(8):
            base = 32 * c
            def sync(c=c):
                n1 = self.vm.need("ch%d" % c)
                if c == 6 and "wo0" in self.vm.q: n1 = self.vm.need("wo0")
                if c in (0, 6, 7):
                    A("s_waitcnt vmcnt(%d) lgkmcnt(0)" % n1); self.lg.zero(False)
                else: A("s_waitcnt vmcnt(%d)" % n1)
                self.stamp({0: 1, 1: 2, 2: 3, 3: 27, 4: 4, 5: 28, 6: 29, 7: 5}[c])
                A("s_barrier")
            at(base - 9, sync)
            for k in range(self.o["pause"][c]): at(base + 7 + 8 * (k & 1) * self.o["psplit"], "s_nop 15")
            for sx in range(2):
                st = 2 * c + sx
                for t in range(4):
                    for p, x in zip(wpos[t], wread(st, t)): at(16 * st + p, self.ds(x, "w%d_%d" % (st, t)))
                    at(16 * st + xpos[t], self.ds(xread(st, t), "x%d_%d" % (st, t)))
            def xd(c=c):
                A("s_cmp_eq_u32 s%d, %d" % (self.sCX, c))
                if self.o["xdo"]: A("s_cbranch_scc1 L_xd_%s%d" % (name, c))
                else:
                    A("s_cbranch_scc0 L_nx_%s%d" % (name, c))
                    hi, lo = self.slot(c) >> 16, self.slot(c) & 0xffff
                    for n in range(4): A("ds_read_b64 %s, v%d offset:%d" % (v(self.xdf + 2 * n, 2), self.axd[hi][n & 1], lo + 2048 * (n >> 1)))
                A.label("L_nx_%s%d" % (name, c))
            at(base + (3 if nw == 1 else 4), xd)
            dm = self.chunk_dmas(c + 2) if c + 2 < 8 else tail[c - 6]
            if c == 7 and name == "s" and self.o["late7"]: last = dm; dm = []
            pos = list(self.o["dpos"][nw - 1])
            ne = early_n[c] if early_n else 0
            if ne:
                for i in range(ne): dm.insert({1: (4,), 2: (2, 7), 3: (2, 5, 8), 4: (2, 5, 8, 11)}[ne][i], ex.pop(0))
                pos = [-7 + (30 * i) // len(dm) for i in range(len(dm))]
            if c == 6 and early_n:
                assert not ex
                for i, x in enumerate(self.wo_reads(0)): at(base - 8 + (28 * i) // 32, self.ds(x, "wor"))
            if c == 0:
                k = self.o["d0"]; pos = [22 - 2 * (k - i) for i in range(k)] + [22] * (len(dm) - k)
            pos = [max(-8, pos[0] - 3)] * max(0, len(dm) - len(pos)) + pos
            prev = -8
            for i, x in enumerate(dm):
                p = pos[i]
                if isinstance(x, tuple):
                    for k, y in enumerate(x[0]): at(base + max(prev, p - len(x[0]) + k), y)
                    at(base + p, x[1])
                else: at(base + p, x)
                prev = p
        m0_, m1_, nm = self.o["mid"]
        if name == "s": nm = min(nm, self.o["smid"])
        if self.o["gmid"]: fill = gf + fill; gf = []
        if self.o["glate"]:
            gc, g0, g1 = self.o["glate"]
            def rows():
                for k in range(2):
                    A("buffer_load_dwordx4 %s, v%d, %s, 0 offen%s" % (v(self.gx + 4 * k, 4), self.vg, self.X, " offset:2048" if k else "")); self.vm.issue("grow")
            at(gc, rows)
            at(g0, lambda: self.vm.wait("grow"))
            for i, x in enumerate(gf[3:]): at(g0 + ((g1 - g0) * i) // len(gf), x)
            gf = gf[:3]
        if self.o["qat"] and (name == "a" or self.o["qmode"] == 2): at(self.o["qat"], lambda: warm("q"))
        if name == "s" and self.o["wat"]:
            def w2():
                for srd in (self.WO, self.CIM, self.CRE)[:self.o["wn"]]:
                    A("buffer_load_dword v%d, v%d, %s, 0 offen" % (self.vJunk, self.vW2, srd)); self.vm.issue("junk")
            at(self.o["wat"], w2)
        nm = min(nm, len(fill)); midl = fill[len(fill) - nm:]; fill = fill[:len(fill) - nm]
        for i, x in enumerate(midl): at(m0_ + ((m1_ - m0_) * i) // nm, x)
        fl = gf + fill
        for n in range(-9, 256):
            if n >= 0:
                st, k = n >> 4, n & 15
                if k == 0: self.lg.wait("x%d_1" % st)
                elif k == 2: self.lg.wait("x%d_3" % st)
                elif k & 3 == 0: self.lg.wait("w%d_%d" % (st, k >> 2))
                mfma(st, k >> 2, k & 3)
            g_ = gap.pop(n, [])
            if -1 <= n < 22:
                k = -(-len(fl) // (22 - n))
                assert "par" not in self.vm.q
                g_ = g_ + fl[:k]; fl = fl[k:]
            self.emit(g_)
        assert not fl and not gap, gap
        self.last = last
        if self.o["late7"] == 1: self.emit(last); self.last = []
        self.stamp(6)

    def ssm(self):
        A, V, S = self.A, self.V, self.S
        t0, t1, t2, t3 = self.t0, self.t1, self.t2, self.t3
        vt = V(); vu = V()
        for q in (self.vUT, self.vTr): V.rel(q)
        self.nG1 = 2; self.vG1 = V(8, 4)
        ax = [[V(), V()], [V(), V()]]; ab = [[V(), V()], [V(), V()]]
        Q = lambda: V(4, 2)
        F = []
        for fam, sel in ((ax, t3), (ab, t2)):
            F.append("v_lshl_add_u32 v%d, s%d, 13, v%d" % (fam[0][0], sel, self.vBase))
            F.append("v_xor_b32 v%d, 64, v%d" % (fam[0][1], fam[0][0]))
            for sx in range(2): F.append("v_add_u32 v%d, 0x10000, v%d" % (fam[1][sx], fam[0][sx]))
        m0_, m1_, mw = S(2, 2), S(2, 2), S(2, 2)
        F.append("s_mov_b32 s%d, 0xffff0000" % m0_); F.append("s_mov_b32 s%d, 0xffff0000" % (m0_ + 1))
        F.append("s_mov_b32 s%d, 0" % m1_); F.append("s_mov_b32 s%d, -1" % (m1_ + 1))
        F.append("s_sub_u32 s%d, 0, s%d" % (mw, t3)); F.append("s_mov_b32 s%d, s%d" % (mw + 1, mw))
        Sk = V(2)
        F.append("v_lshrrev_b32 v%d, 2, v0" % vt)
        F.append("v_xor_b32 v%d, v0, v%d" % (vt, vt))
        F.append("v_and_b32 v%d, 12, v%d" % (vt, vt))
        F.append("v_and_or_b32 v%d, v0, 2, v%d" % (vt, vt))
        F.append("v_cmp_eq_u32 vcc, 0, v%d" % vt)
        F.append("v_cmp_eq_u32 s[%d:%d], 2, v%d" % (self.sMk, self.sMk + 1, vt))
        F.append("v_bfe_i32 v%d, v0, 0, 1" % vu)
        F.append("v_xor_b32 v%d, 0xffff, v%d" % (vu, vu))
        F.append("v_cndmask_b32 v%d, 0, v%d, vcc" % (Sk, vu))
        F.append("v_cndmask_b32 v%d, 0, v%d, s[%d:%d]" % (Sk + 1, vu, self.sMk, self.sMk + 1))
        vEs = V(); vXa = V(); ea = [V() for _ in range(4)]; et = [V() for _ in range(4)]
        F.append("s_lshl1_add_u32 s%d, s%d, s%d" % (t0, self.sJ, t2))
        F.append("s_lshl_b32 s%d, s%d, 12" % (t0, t0))
        F.append("s_add_u32 s%d, s%d, %d" % (t0, t0, WS_E))
        F.append("s_add_u32 s68, s48, s%d" % t0); F.append("s_addc_u32 s69, s49, 0")
        self.bits(F, vt, None, ((0, 4, 4),))
        F.append("v_lshl_add_u32 v%d, s%d, 8, v%d" % (vEs, self.sR, vt))
        F.append("v_lshl_add_u32 v%d, s%d, 8, v%d" % (vXa, self.sW, vt))
        F.append("v_lshl_add_u32 v%d, s%d, 6, v%d" % (vXa, self.sP9, vXa))
        F.append("v_xor_b32 v%d, %d, v%d" % (vXa, L_R1 + 32768, vXa))
        self.bits(F, ea[0], None, ((4, 2, 8),))
        F.append("v_sub_u32 v%d, v%d, v%d" % (ea[0], vEs, ea[0]))
        F.append("v_subrev_u32 v%d, 256, v%d" % (ea[0], ea[0]))
        F.append("v_and_b32 v%d, 0xb0, v0" % vt)
        F.append("v_cmp_eq_u32 vcc, 0x80, v%d" % vt)
        F.append("v_add_u32 v%d, s%d, v%d" % (vu, t0, vEs))
        F.append("v_mov_b32 v%d, 0x%x" % (vt, HUGE))
        for k in range(1, 4): F.append("v_subrev_u32 v%d, %d, v%d" % (ea[k], 1024 * k, ea[0]))
        for k in range(4): F.append("v_ashrrev_i32 v%d, 31, v%d" % (et[k], ea[k]))
        F.append("v_cndmask_b32 v%d, v%d, v%d, vcc" % (vEs, vt, vEs))
        F.append("v_cndmask_b32 v%d, v%d, v%d, vcc" % (self.vPf, self.vPf, vu))
        if self.o["wat"]:
            self.vW2 = V()
            if self.o["wl2"]:
                F.append("s_lshr_b32 s%d, s2, 6" % t0); F.append("s_and_b32 s%d, s%d, 3" % (t1, self.sJ)); F.append("s_lshl2_add_u32 s%d, s%d, s%d" % (t0, t0, t1))
                F.append("v_lshl_add_u32 v%d, s%d, 8, v0" % (self.vW2, t0))
            else:
                F.append("s_lshl3_add_u32 s%d, s%d, s%d" % (t0, self.sR, self.sJ))
                F.append("v_lshrrev_b32 v%d, 3, v0" % self.vW2)
                F.append("v_lshl_add_u32 v%d, s%d, 5, v%d" % (self.vW2, t0, self.vW2))
            F.append("v_lshlrev_b32 v%d, 7, v%d" % (self.vW2, self.vW2))
        sH = [S() for _ in range(4)]
        F.append("s_mul_i32 s%d, s%d, %d" % (t0, self.sRW, 2 * RT_STRIDE))
        F.append("s_and_b32 s%d, s%d, 4" % (t1, self.sJ)); F.append("s_add_u32 s%d, s%d, s%d" % (t1, t1, self.sJ))
        F.append("s_lshl1_add_u32 s%d, s%d, s%d" % (t1, t1, t2)); F.append("s_lshl_b32 s%d, s%d, 11" % (t1, t1))
        F.append("s_add_u32 s%d, s%d, s%d" % (t0, t0, t1))
        for tau in range(2):
            for comp in range(2):
                F.append("s_add_u32 s%d, s%d, %d" % (sH[2 * tau + comp], t0, WS_A + tau * RT_STRIDE + comp * 16384))
        self.emit(F)
        F = []
        pre, pim, pdt = self.ppar
        lam, cf, mu, l16, l32, l64, L4, Lg, x16, x32 = [Q() for _ in range(10)]
        al = [Q(), Q()]
        ta, tb, tc = self.acc[0], self.acc[0] + 4, self.acc[0] + 8
        P2 = lambda r: v(r, 2)
        for q in (pre, pim, pdt):
            for b in range(2): F.append("v_lshlrev_b32 v%d, 16, v%d" % (q + b, q + b))
        for b in range(2): F.append("v_mul_f32 v%d, %s, v%d" % (pdt + b, LOG2E, pdt + b))
        for b in range(2): F.append("v_exp_f32 v%d, v%d" % (pdt + b, pdt + b))
        F.append("v_pk_mul_f32 %s, %s, %s" % (P2(tb), P2(pre), P2(pre)))
        for b in range(2): F.append("v_cvt_pk_bf16_f32 v%d, 0, v%d" % (pdt + b, pdt + b))
        F.append("v_pk_fma_f32 %s, %s, %s, %s" % (P2(tb), P2(pim), P2(pim), P2(tb)))
        F.append("v_pk_mul_f32 %s, %s, %s" % (P2(ta), P2(pdt), P2(pre)))
        F.append("v_pk_mul_f32 %s, %s, %s" % (P2(ta + 2), P2(pdt), P2(pim)))
        for b in range(2): F.append("v_mul_f32 v%d, %s, v%d" % (ta + b, LOG2E, ta + b))
        for b in range(2): F.append("v_mul_f32 v%d, 0.15915494, v%d" % (ta + 2 + b, ta + 2 + b))
        for b in range(2): F.append("v_exp_f32 v%d, v%d" % (ta + b, ta + b))
        for b in range(2): F.append("v_rndne_f32 v%d, v%d" % (tb + 2 + b, ta + 2 + b))
        for b in range(2): F.append("v_sub_f32 v%d, v%d, v%d" % (ta + 2 + b, ta + 2 + b, tb + 2 + b))
        for b in range(2): F.append("v_rcp_f32 v%d, v%d" % (tb + b, tb + b))
        for b in range(2): F.append("v_cos_f32 v%d, v%d" % (lam + b, ta + 2 + b))
        for b in range(2): F.append("v_sin_f32 v%d, v%d" % (lam + 2 + b, ta + 2 + b))
        F.append("v_pk_add_f32 %s, %s, %s" % (P2(tb), P2(tb), P2(tb)))
        for k in (0, 2): F.append("v_pk_mul_f32 %s, %s, %s" % (P2(lam + k), P2(lam + k), P2(ta)))
        for b in range(2): F.append("v_add_f32 v%d, -1.0, v%d" % (ta + b, lam + b))
        F.append("v_pk_mul_f32 %s, %s, %s" % (P2(cf), P2(ta), P2(pre)))
        F.append("v_pk_mul_f32 %s, %s, %s" % (P2(cf + 2), P2(lam + 2), P2(pre)))
        F.append("v_pk_fma_f32 %s, %s, %s, %s" % (P2(cf), P2(lam + 2), P2(pim), P2(cf)))
        F.append("v_pk_fma_f32 %s, %s, %s, %s neg_lo:[1,0,0] neg_hi:[1,0,0]" % (P2(cf + 2), P2(ta), P2(pim), P2(cf + 2)))
        for k in (0, 2): F.append("v_pk_mul_f32 %s, %s, %s" % (P2(cf + k), P2(cf + k), P2(tb)))
        chain = [lam, ta, tb, mu, l16, l32, l64, ta, tb, L4]
        for x_, y_ in zip(chain, chain[1:]):
            F.append("v_pk_mul_f32 %s, %s, %s" % (P2(y_), P2(x_), P2(x_)))
            F.append("v_pk_mul_f32 %s, %s, %s" % (P2(y_ + 2), P2(x_), P2(x_ + 2)))
            F.append("v_pk_fma_f32 %s, %s, %s, %s neg_lo:[1,0,0] neg_hi:[1,0,0]" % (P2(y_), P2(x_ + 2), P2(x_ + 2), P2(y_)))
            F.append("v_pk_add_f32 %s, %s, %s" % (P2(y_ + 2), P2(y_ + 2), P2(y_ + 2)))
        def sel(out, d, src, mk, one):
            for k in range(4): out.append("v_cndmask_b32 v%d, %s, v%d, s[%d:%d]" % (d + k, "1.0" if (one and k < 2) else "0", src + k, mk, mk + 1))
        sel(F, ta, ta, m0_, 1); sel(F, tb, tb, m1_, 1)
        self.pmul(F, Lg, ta, tb)
        sel(F, x16, l16, m0_, 1); sel(F, x32, l32, m1_, 1); sel(F, ta, l64, mw, 1)
        self.pmul(F, tb, x16, x32); self.pmul(F, tc, tb, ta)
        for b in range(2):
            self.cmul(F, al[b], al[b] + 2, cf + b, cf + 2 + b, tc + b, tc + 2 + b)
            self.cmul(F, al[b] + 1, al[b] + 3, mu + b, mu + 2 + b, al[b], al[b] + 2)
        U = [[V(16, 4), V(16, 4)], [V(16, 4), V(16, 4)]]
        def lds(fam, st, off):
            tot = self.slot(st >> 1) + off
            return fam[tot >> 16][st & 1], tot & 0xffff
        xread = lambda st, t: "ds_read_b128 %s, v%d offset:%d" % ((a(64 + 32 * (st & 1) + 4 * t, 4),) + lds(ax, st, 2048 * t))
        wread = lambda st, t: ["ds_read_b128 %s, v%d offset:%d" % ((a(64 + 32 * (st & 1) + 16 + 4 * t, 4),) + lds(ab, st, 16384 + 4096 * (t & 1) + 2048 * (t >> 1)))]
        def mfma(st, t, x):
            self.mf(U[t & 1][t >> 1] + 4 * x, a(64 + 32 * (st & 1) + 4 * x, 4), a(64 + 32 * (st & 1) + 16 + 4 * t, 4), "0" if st == 0 else None)
        c1 = self.c_dmas(1, L_R1); c0 = self.c_dmas(0, L_R0)
        early = self.o["early"][0]
        sl = self.o["ssm"]
        if early:
            a1 = c1[:8]; ld = self.wo_dmas(1) + c0[:8] + c1[8:] + c0[8:]
        else:
            a1 = self.wo_dmas(0); ld = c1[:8] + c0[:8] + c1[8:] + self.wo_dmas(1) + c0[8:]
        assert sl[0] <= 8 and sl[0] + sl[1] <= 16 and sum(sl[:5]) >= 24
        def take(n):
            out = ld[:n]; del ld[:n]
            return out
        self.p1_loop("s", xread, wread, mfma, [([] if self.o["glate"] else [self.g_loads]) + a1, take(sl[0])], F)
        for q in self.ppar: V.rel(q, 2)
        for fam in (ax, ab):
            for row in fam:
                for q in row: V.rel(q)
        for q in self.vw + self.vx: V.rel(q)
        pr = lambda b, m: (U[0][b] + 2 * m, U[1][b] + 2 * m)
        T = self.acc[0]; T2 = self.acc[1]
        E = [[T, T + 4], [T + 8, T + 12]]
        o = []
        for b in range(2):
            cur = pr(b, 0)
            for m in range(1, 8):
                self.pmul(o, E[b][m & 1], lam, cur, pr(b, m), b); cur = E[b][m & 1]
        Ev = [E[0][1], E[1][1]]
        Fe, Fo, Ge, Go = T, T + 8, T2, T2 + 4
        Wv, W0, e = T2 + 8, T2 + 12, Q()
        for b in range(2): self.cmul(o, Fe + b, Fe + 2 + b, mu + b, mu + 2 + b, Ev[b], Ev[b] + 2, Ev[b] + 1, Ev[b] + 3)
        def split(out, x, y, w):
            for k in (0, 2): out.append("v_pk_mov_b32 %s, %s, %s op_sel:[0,1]" % (P2(y + k), P2(x + k), P2(x + k)))
            for k in range(4): out.append("v_permlane%d_swap_b32 v%d, v%d" % (w, x + k, y + k))
        split(o, Fe, Fo, 16)
        self.pmul(o, Ge, l16, Fe, Fo)
        split(o, Ge, Go, 32)
        self.pmul(o, Wv, l32, Ge, Go)
        k = self.o["l7at"]
        self.emit(o[:k] + weave(o[k:64], self.last) + o[64:])
        A("ds_write_b128 v%d, %s" % (vXa, v(Wv, 4)))
        A("v_and_b32 v%d, 0xfffffdff, v%d" % (vXa, vXa))
        tt = (t0, t1, t2, t3)
        for k in range(4): A("s_mov_b32 s%d, 0x%x" % (tt[k], 0x07060500 + k))
        self.vm.wait("wo0")
        A("s_waitcnt lgkmcnt(0)")
        A("s_barrier")
        A("ds_read_b128 %s, v%d" % (v(W0, 4), vXa))
        A("s_waitcnt lgkmcnt(0)"); self.lg.zero(False)
        o = []
        self.pmul(o, e, l64, W0, Wv)
        for k in range(4): o.append("v_perm_b32 v%d, v%d, v%d, s%d" % (e + k, e + k, self.vTag, tt[k]))
        self.emit(o)
        A("buffer_store_dwordx4 %s, v%d, %s, 0 offen sc1" % (v(e, 4), vEs, self.ER)); self.vm.issue("est")
        if self.o["glate"]: self.g_loads()
        self.stamp(7)
        W = ["s_bfe_u32 s%d, s%d, 0x%x" % (tt[k], self.sTag, 0x80000 + 8 * k) for k in range(4)]
        be = [l16, l32]
        sel(W, W0, W0, mw, 0); sel(W, Ge, Ge, m1_, 0); sel(W, Fe, Fe, m0_, 0)
        self.pmul(W, Go, x32, W0, Ge)
        self.pmul(W, Fo, x16, Go, Fe)
        for b in range(2):
            self.cmul(W, be[b], be[b] + 2, cf + b, cf + 2 + b, Fo + b, Fo + 2 + b)
            self.cmul(W, Wv, Wv + 1, mu + b, mu + 2 + b, Fo + b, Fo + 2 + b, Ev[b], Ev[b] + 2)
            self.cmul(W, be[b] + 1, be[b] + 3, cf + b, cf + 2 + b, Wv, Wv + 1)
        for b in range(2):
            s2 = " op_sel:[1,0]" if b else " op_sel_hi:[0,1]"; s3 = " op_sel:[1,0,0]" if b else " op_sel_hi:[0,1,1]"
            for m in range(8):
                ur, ui = pr(b, m)
                W.append("v_pk_mul_f32 %s, %s, %s%s" % (P2(W0), P2(cf + 2), P2(ur), s2))
                W.append("v_pk_mul_f32 %s, %s, %s%s" % (P2(ur), P2(cf), P2(ur), s2))
                W.append("v_pk_fma_f32 %s, %s, %s, %s%s neg_lo:[1,0,0] neg_hi:[1,0,0]" % (P2(ur), P2(cf + 2), P2(ui), P2(ur), s3))
                W.append("v_pk_fma_f32 %s, %s, %s, %s%s" % (P2(ui), P2(cf), P2(ui), P2(W0), s3))
        self.emit(weave(W, take(sl[1]), [] if early else self.wo_reads(0)))
        self.stamp(22)
        er = T2
        def eloads():
            for i in range(4): A("buffer_load_dwordx4 %s, v%d, %s, 0 offen sc1" % (v(er + 4 * i, 4), ea[i], self.ER)); self.vm.issue("er")
        if self.o["efirst"]: eloads()
        self.g_check("ssm", vt)
        Sm = self.vG1
        for x in range(4): A("v_sub_f32 v%d, 1.0, v%d" % (Sm + 2 * x, Sm + 2 * x))
        for x in range(4): A("v_cvt_pk_bf16_f32 v%d, v%d, v%d" % (Sm + 2 * x, Sm + 2 * x, Sm + 2 * x))
        for x in range(4):
            A("v_and_b32 v%d, v%d, v%d" % (Sm + 2 * x + 1, Sk + 1, Sm + 2 * x))
            A("v_and_b32 v%d, v%d, v%d" % (Sm + 2 * x, Sk, Sm + 2 * x))
        bar_late = early and sum(sl[:4]) <= 16
        if not bar_late:
            A("s_waitcnt lgkmcnt(0)")
            A("s_barrier")
        self.emit(take(sl[2]))
        self.stamp(8); self.stamp(24)
        df = self.o["efirst"]
        if df:
            self.vm.wait("er")
            A("s_branch L_echk")
        q = list(self.vm.q)
        A.label("L_epoll")
        eloads()
        if df:
            A("s_waitcnt vmcnt(0)"); A.label("L_echk")
        for i in range(4):
            if not df: A("s_waitcnt vmcnt(%d)" % (3 - i))
            for k in range(4): A("v_bitop3_b32 v%d, v%d, v%d, s%d bitop3:0xd2" % (er + 4 * i + k, er + 4 * i + k, et[i], tt[k]))
            if i == 0: A("v_or_b32 v%d, v%d, v%d" % (vt, er, er + 1))
            else: A("v_or3_b32 v%d, v%d, v%d, v%d" % (vt, vt, er + 4 * i, er + 4 * i + 1))
            A("v_or3_b32 v%d, v%d, v%d, v%d" % (vt, vt, er + 4 * i + 2, er + 4 * i + 3))
        self.vm.q = q if df else []
        A("v_and_b32 v%d, 0xff, v%d" % (vt, vt))
        A("v_cmp_ne_u32 vcc, 0, v%d" % vt)
        self.poll_tail("L_epoll")
        self.stamp(9)
        dD = take(sl[3])
        o = []
        for i in range(2, -1, -1): self.pmul(o, er + 4 * i, L4, er + 4 * i + 4, er + 4 * i)
        cs = T; c2 = T + 4
        self.pmul(o, cs, Lg, er)
        for w_ in (16, 32):
            split(o, cs, c2, w_)
            for k in (0, 2): o.append("v_pk_add_f32 %s, %s, %s" % (P2(cs + k), P2(cs + k), P2(c2 + k)))
        for b in range(2): self.pmul(o, be[b], cs, al[b], be[b], b)
        self.emit(o)
        P1 = [mu, l64]; P1b = [x16, x32]; Pq = [self.vXD, self.vXD + 8]
        cur = [be[0], be[1]]
        def finish(x):
            out = []
            D = self.acc[x & 1]
            for comp in (1, 0):
                q = Pq[x & 1] + 4 * comp
                for k in range(4): out.append("v_cvt_pk_bf16_f32 v%d, v%d, v%d" % (q + k, D + 8 * comp + 2 * k, D + 8 * comp + 2 * k + 1))
                def st(q=q, comp=comp):
                    A("buffer_store_dwordx4 %s, v%d, %s, s%d offen%s sc1" % (v(q, 4), self.vFr, self.WS, sH[2 * (x >> 1) + comp], " offset:1024" if x & 1 else ""))
                    self.vm.issue("ast")
                out.append(st)
            return out
        pend = []
        for x in range(4):
            pk_ = (P1, P1b)[x & 1]
            for b in range(2):
                o = []
                for m in (2 * x, 2 * x + 1):
                    self.pmul(o, pr(b, m), lam, cur[b], pr(b, m), b); cur[b] = pr(b, m)
                for comp in (1, 0):
                    ng = "-" if comp else ""
                    for h in range(2):
                        r_ = U[comp][b] + 4 * x + 2 * h
                        o.append("v_cvt_pk_bf16_f32 v%d, %sv%d, %sv%d" % (pk_[b] + 2 * comp + h, ng, r_, ng, r_ + 1))
                self.emit(o[:2] + pend[:1] + o[2:5] + pend[1:] + o[5:])
                if x == 0 or (x == 1 and b == 0):
                    k = -(-len(dD) // (3 - 2 * x - b)); self.emit(dD[:k]); dD = dD[k:]
                pend = [(lambda comp=comp, b=b, x=x, pk_=pk_: self.mf(self.acc[x & 1] + 8 * comp + 4 * b, v(pk_[b] + 2 * comp, 2), v(Sm + 2 * x, 2), "0", 16)) for comp in (1, 0)]
            if x == 3: self.emit(pend)
            if x: self.emit(finish(x - 1))
        self.emit(finish(3))
        self.stamp(10)
        if bar_late: A("s_barrier")
        self.emit(weave(self.p2_addr(L_R1, self.p_vt, self.p_vu) + self.skip_term(), take(sl[4])))
        self.flag()
        self.vm.wait("c1")
        A("s_barrier")
        self.emit(take(sl[5]))
        for n in range(self.o["clead"]): self.crd(n)
        if self.o["hpw"] == 1: self.vm.wait("flag")
        self.hpoll()
        self.h_wait("s")
        return self.p2_first(ld)

    def att(self):
        A, V, S = self.A, self.V, self.S
        t0, t1, t2, t3 = self.t0, self.t1, self.t2, self.t3
        vt = V(); vu = V()
        for q in self.ppar: V.rel(q, 2)
        self.nG1 = 1; self.vG1 = V(4, 4)
        ax = [[[V(), V()], [V(), V()]] for _ in range(2)]
        akv = [[V(), V()], [V(), V()]]; aq = [V() for _ in range(4)]; vq = [V(), V()]
        sM2 = S(); sKV = [S() for _ in range(4)]; sOo = S(); sEps = S(); sC0 = S()
        vKs = V(); vKp = V(); xw = V(); xr = V(); zx = V(); zr = V(); c10 = V(); c01 = V(); ones = V(4, 4); cl = V(2)
        kw = V(); zw = V(); rk = V(); rz = V()
        F = []
        F.append("v_lshl_add_u32 v%d, s%d, 12, v%d" % (ax[0][0][0], self.sW, self.vBase))
        F.append("v_xor_b32 v%d, 64, v%d" % (ax[0][0][1], ax[0][0][0]))
        for sx in range(2): F.append("v_xor_b32 v%d, 4096, v%d" % (ax[1][0][sx], ax[0][0][sx]))
        for lt in range(2):
            for sx in range(2): F.append("v_add_u32 v%d, 0x10000, v%d" % (ax[lt][1][sx], ax[lt][0][sx]))
        F.append("v_and_b32 v%d, 64, v0" % vt)
        F.append("v_xor_b32 v%d, v%d, v%d" % (akv[0][0], vt, self.vTr))
        F.append("v_xor_b32 v%d, 32, v%d" % (akv[0][1], akv[0][0]))
        for b in range(2): F.append("v_add_u32 v%d, 0x10000, v%d" % (akv[1][b], akv[0][b]))
        self.emit(F)
        F = []
        F.append("s_lshr_b32 s%d, s%d, 1" % (t3, self.sW)); F.append("s_and_b32 s%d, s%d, 1" % (t2, self.sW))
        F.append("v_lshl_add_u32 v%d, s%d, 8, v%d" % (self.vG1a, t2, self.vG1a))
        F.append("v_add_u32 v%d, %d, v%d" % (aq[0], L_R1, self.vTr))
        for t in range(1, 4): F.append("v_xor_b32 v%d, %d, v%d" % (aq[t], 32 * t, aq[0]))
        self.bits(F, vt, vu, ((3, 2, 0), (6, 1, 2), (5, 1, 3), (7, 1, 5)))
        F.append("v_mul_u32_u24 v%d, 3072, v%d" % (vt, vt))
        F.append("v_lshl_add_u32 v%d, s%d, 7, v%d" % (vt, self.sJ, vt))
        F.append("v_add_u32 v%d, v%d, v%d" % (vq[0], vt, self.vUT))
        F.append("v_add_u32 v%d, %d, v%d" % (vq[1], 16 * 3072 - 1024, vq[0]))
        F.append("s_lshl_b32 s%d, s%d, 11" % (sM2, self.sW))
        F.append("s_sub_u32 s%d, s%d, s%d" % (sC0, self.sCT, self.sCX))
        F.append("s_lshl2_add_u32 s%d, s%d, s%d" % (t0, self.sJ, self.sW))
        F.append("s_lshl_b32 s%d, s%d, 14" % (t0, t0))
        for i in range(4): F.append("s_add_u32 s%d, s%d, %d" % (sKV[i], t0, WS_KV + 4096 * i))
        F.append("v_lshl_add_u32 v%d, s%d, 10, v%d" % (vKs, self.sR, self.vFr))
        self.bits(F, vKp, None, ((0, 4, 10),))
        F.append("v_lshl_add_u32 v%d, s%d, 11, v%d" % (xw, self.sW, self.vL16))
        F.append("v_add_u32 v%d, %d, v%d" % (xw, L_SP, xw))
        F.append("v_lshl_add_u32 v%d, s%d, 10, v%d" % (xr, t3, xw))
        F.append("v_and_b32 v%d, 0xffffefff, v%d" % (xr, xr))
        F.append("v_lshrrev_b32 v%d, 2, v%d" % (zx, xw)); F.append("v_add_u32 v%d, %d, v%d" % (zx, L_SP + 8192 - L_SP // 4, zx))
        F.append("v_lshrrev_b32 v%d, 2, v%d" % (zr, xr)); F.append("v_add_u32 v%d, %d, v%d" % (zr, L_SP + 8192 - L_SP // 4, zr))
        F.append("v_mov_b32 v%d, 0x3f80" % c10); F.append("v_mov_b32 v%d, 0x3f800000" % c01)
        for i in range(4): F.append("v_mov_b32 v%d, 0x3f803f80" % (ones + i))
        F.append("v_mov_b32 v%d, %s" % (cl, LOG2E))
        F.append("s_mov_b32 s%d, 0x358637bd" % sEps)
        KB = L_R1 + 7 * 8192; ZB = KB + 2048
        F.append("s_lshl1_add_u32 s%d, s%d, s%d" % (t0, t2, t3))
        F.append("v_lshrrev_b32 v%d, 1, v%d" % (rk, self.vL16)); F.append("v_add_u32 v%d, %d, v%d" % (rk, KB, rk))
        F.append("v_lshl_add_u32 v%d, s%d, 9, v%d" % (kw, t0, rk))
        self.bits(F, zw, None, ((0, 4, 1),)); F.append("v_add_u32 v%d, %d, v%d" % (zw, ZB, zw))
        F.append("v_lshl_add_u32 v%d, s%d, 9, v%d" % (zw, t0, zw))
        self.bits(F, rz, None, ((4, 2, 3),)); F.append("v_add_u32 v%d, %d, v%d" % (rz, ZB, rz))
        F.append("s_lshl1_add_u32 s%d, s%d, s%d" % (t0, self.sRW, t2))
        F.append("s_mul_i32 s%d, s%d, %d" % (t0, t0, RT_STRIDE))
        F.append("s_lshl_b32 s%d, s%d, 12" % (t1, self.sJ)); F.append("s_add_u32 s%d, s%d, s%d" % (t0, t0, t1))
        F.append("s_add_u32 s%d, s%d, %d" % (sOo, t0, WS_A + 65536))
        F += self.p2_addr(L_R0, vt, vu)
        KV = [V(16, 4) for _ in range(4)]
        def xf(st, x): return a(128 + 8 * st + 4 * x, 4) if x < 2 else a(64 + 32 * (st & 1) + 4 * x, 4)
        def xread(st, x):
            tot = self.slot(st >> 1) + 2048 * (x & 1)
            return "ds_read_b128 %s, v%d offset:%d" % (xf(st, x), ax[x >> 1][tot >> 16][st & 1], tot & 0xffff)
        def wread(st, t):
            out = []
            for h in range(2):
                tot = self.slot(st >> 1) + 16384 + 8192 * (t >> 1) + 4096 * (st & 1) + 2048 * h
                out.append("ds_read_b64_tr_b16 %s, v%d offset:%d" % (a(64 + 32 * (st & 1) + 16 + 4 * t + 2 * h, 2), akv[tot >> 16][t & 1], tot & 0xffff))
            return out
        def mfma(st, t, x):
            self.mf(KV[t] + 4 * x, xf(st, x), a(64 + 32 * (st & 1) + 16 + 4 * t, 4), "0" if st == 0 else None)
        wq = []
        for c in range(8):
            for i in range(2):
                pre = [] if i else ["s_add_u32 m0, s%d, %d" % (sM2, L_R1 + c * 8192), "s_add_u32 s%d, s%d, %d" % (t0, sC0, c),
                                    "s_and_b32 s%d, s%d, 7" % (t0, t0), "s_mul_i32 s%d, s%d, %d" % (t0, t0, 64 * 3072)]
                wq.append((pre, (lambda i=i: self.dma(vq[i], self.WA, "s%d" % t0, 1024 * i, "wq"))))
        self.p1_loop("a", xread, wread, mfma, [([] if self.o["glate"] else [self.g_loads]) + wq[:8], wq[8:]], F)
        for lt in range(2):
            for row in ax[lt]:
                for q in row: V.rel(q)
        for q in akv[0] + akv[1] + vq + self.vx + self.vw + [self.vUT, self.vTr]: V.rel(q)
        tmp = V(8, 4)
        def phi(src, dst):
            out = []
            for k0 in range(0, 8, 4):
                for k in range(k0, k0 + 4):
                    out.append("v_pk_mul_f32 %s, %s, %s op_sel_hi:[0,1]" % (v(tmp + 2 * (k & 3), 2), v(cl, 2), v(src + 2 * k, 2)))
                for k in range(k0, k0 + 4):
                    for h in range(2):
                        out.append("v_exp_f32 v%d, v%d clamp" % (tmp + 2 * (k & 3) + h, tmp + 2 * (k & 3) + h))
                        out.append("v_max_f32 v%d, s%d, v%d" % (src + 2 * k + h, sEps, src + 2 * k + h))
                for k in range(k0, k0 + 4):
                    out.append("v_pk_add_f32 %s, %s, %s" % (v(src + 2 * k, 2), v(src + 2 * k, 2), v(tmp + 2 * (k & 3), 2)))
                for k in range(k0, k0 + 4):
                    out.append("v_cvt_pk_bf16_f32 v%d, v%d, v%d" % (dst + k, src + 2 * k, src + 2 * k + 1))
            return out
        pk = [V(8, 4), V(8, 4)]; pv = [V(8, 4), V(8, 4)]; Tk = self.acc[0]; Tz = self.acc[0] + 8
        W = []
        for b in range(2):
            ph = phi(KV[b], pk[b])
            for kk in range(2):
                W += ph[28 * kk:28 * kk + 28]
                for k in range(4 * kk, 4 * kk + 4): W.append("v_cvt_pk_bf16_f32 v%d, v%d, v%d" % (pv[b] + k, KV[2 + b] + 2 * k, KV[2 + b] + 2 * k + 1))
                z = None if kk else "0"
                W.append(lambda b=b, kk=kk, z=z: self.mf(Tz + 4 * b, v(ones, 4), v(pk[b] + 4 * kk, 4), z))
                W.append(lambda b=b, kk=kk, z=z: self.mf(Tk + 4 * b, v(pk[b] + 4 * kk, 4), v(pv[b] + 4 * kk, 4), z))
        W.insert(80, "ds_write_b128 v%d, %s" % (xw, v(Tk, 4)))
        cf_ = self.c_dmas(1, L_R0); n = self.o["att_b"]
        self.emit(weave(W[:100], cf_[:n]) + W[100:]); cf_ = cf_[n:]
        Uu = self.acc[1]
        def qread(n, h):
            return self.ds("ds_read_b64_tr_b16 %s, v%d offset:%d" % (a(64 + 4 * (n % 8) + 2 * h, 2), aq[2 * (n >> 5) + (n & 1)], ((n >> 1) & 15) * 4096 + h * 2048), "q%d" % n)
        A("v_mov_b32 v%d, v%d" % (Uu + 15, self.vTag))
        A("ds_write2st64_b32 v%d, v%d, v%d offset0:0 offset1:1" % (zx, Tz, Tz + 4))
        A("ds_write_b128 v%d, %s offset:1024" % (xw, v(Tk + 4, 4)))
        A("s_waitcnt vmcnt(%d) lgkmcnt(0)" % self.vm.need("wq")); self.lg.zero(False)
        A("s_barrier")
        self.ds("ds_read_b128 %s, v%d" % (v(Uu, 4), xr), "x0")()
        self.ds("ds_read_b128 %s, v%d offset:4096" % (v(Uu + 4, 4), xr), "x0")()
        self.ds("ds_read2st64_b32 %s, v%d offset0:0 offset1:4" % (v(Uu + 8, 2), zr), "x1")()
        for n in range(4):
            for h in range(2): qread(n, h)()
        self.lg.wait("x0")
        A("v_pk_add_f32 %s, %s, %s" % (v(Uu, 2), v(Uu, 2), v(Uu + 4, 2)))
        A("v_pk_add_f32 %s, %s, %s" % (v(Uu + 2, 2), v(Uu + 2, 2), v(Uu + 6, 2)))
        A("v_cvt_pk_bf16_f32 v%d, v%d, v%d" % (Uu + 12, Uu, Uu + 1))
        A("v_cvt_pk_bf16_f32 v%d, v%d, v%d" % (Uu + 13, Uu + 2, Uu + 3))
        self.lg.wait("x1")
        A("v_add_f32 v%d, v%d, v%d" % (Uu + 14, Uu + 8, Uu + 9))
        A("buffer_store_dwordx4 %s, v%d, %s, s%d offen sc1" % (v(Uu + 12, 4), vKs, self.WS, sKV[0])); self.vm.issue("kst")
        self.stamp(7)
        if self.o["glate"]: self.g_loads()
        Qt = self.acc
        rec = KV
        acc = V(6, 2)
        def gl(n):
            A("buffer_load_dwordx4 %s, v%d, %s, s%d offen%s sc1" % (v(rec[n >> 2] + 4 * (n & 3), 4), self.vFr, self.WS, sKV[n >> 2], " offset:%d" % (1024 * (n & 3)) if n & 3 else ""))
            self.vm.issue("r%d" % n)
        def gsum():
            for i in range(6): A("v_mov_b32 v%d, 0" % (acc + i))
            for n in range(16):
                q = rec[n >> 2] + 4 * (n & 3)
                if n & 1 == 0: self.vm.wait("r%d" % (n + 1))
                A("v_dot2c_f32_bf16 v%d, v%d, v%d" % (acc, q, c10))
                A("v_dot2c_f32_bf16 v%d, v%d, v%d" % (acc + 1, q, c01))
                A("v_dot2c_f32_bf16 v%d, v%d, v%d" % (acc + 2, q + 1, c10))
                A("v_dot2c_f32_bf16 v%d, v%d, v%d" % (acc + 3, q + 1, c01))
                A("v_add_f32 v%d, v%d, v%d" % (acc + 4, acc + 4, q + 2))
                A("v_bitop3_b32 v%d, v%d, v%d, v%d bitop3:0xf6" % (acc + 5, acc + 5, q + 3, self.vTag))
        early = self.o["early"][1]
        ld = cf_ + self.wo_dmas(1 if early else 0)
        gls = [([], (lambda n=n: gl(n))) for n in range(16)]
        ph0 = phi(Qt[0], pk[0])
        for st in range(32):
            if len(ld) == 8: A("s_barrier")
            cur = ld.pop(0) if ld else (gls.pop(0) if (st >= self.o["att_g"] and gls) else None)
            self.lg.wait("q%d" % (2 * st + 1))
            for k in range(4):
                n = 2 * st + (k >> 1)
                self.mf(Qt[st >> 4] + 4 * k, a(64 + 4 * (n % 8), 4), a(128 + 8 * (st & 15) + 4 * (k & 1), 4), "0" if st & 15 == 0 else None)
                if n + 4 < 64: qread(n + 4, k & 1)()
                if cur and k < 2: self.emit(cur[0][k:k + 1])
                if cur and k == 2: cur[1]()
                if st >= 18: self.emit(ph0[:1]); ph0 = ph0[1:]
            if st == 15: self.stamp(22)
        assert not ld and not ph0
        A("s_barrier")
        self.stamp(8)
        self.g_check("att", vt)
        late = self.c_dmas(0, L_R1); nc = self.o["att_c1"]
        ph1 = phi(Qt[1], pk[1]); p1, p2_ = self.o["ph1"]
        self.emit(weave(ph1[:p1], gls + late[:nc])); late = late[nc:]
        self.stamp(24)
        A.label("L_ksum")
        gsum()
        A("v_cmp_ne_u32 vcc, 0, v%d" % (acc + 5))
        self.cap()
        A("s_cbranch_scc0 L_kok")
        q = list(self.vm.q)
        A.label("L_kpoll")
        A("buffer_load_dword v%d, v%d, %s, s%d offen offset:1020 sc1" % (vt, vKp, self.WS, sKV[0]))
        A("s_waitcnt vmcnt(0)")
        A("v_cmp_ne_u32 vcc, s%d, v%d" % (self.sTag, vt))
        self.poll_tail("L_kpoll")
        for n in range(16): gl(n)
        A("s_waitcnt vmcnt(0)")
        self.vm.q = q
        A("s_branch L_ksum")
        A.label("L_kok")
        self.stamp(9)
        A("v_cvt_pk_bf16_f32 v%d, v%d, v%d" % (acc, acc, acc + 1))
        A("v_cvt_pk_bf16_f32 v%d, v%d, v%d" % (acc + 1, acc + 2, acc + 3))
        A("v_cvt_pk_bf16_f32 v%d, v%d, v%d" % (acc + 4, acc + 4, acc + 4))
        A("ds_write_b64 v%d, %s" % (kw, v(acc, 2)))
        A("ds_write_b16 v%d, v%d" % (zw, acc + 4))
        n2 = self.o["att_c2"]
        self.emit(ph1[p1:p2_])
        A("s_waitcnt lgkmcnt(0)")
        A("s_barrier")
        for h in range(4):
            A("ds_read_b64 %s, v%d offset:%d" % (v(pv[1] + 2 * h, 2), rz, 512 * h))
            A("ds_read_b64 %s, v%d offset:%d" % (v(pv[0] + 2 * h, 2), rk, 512 * h))
        def omf(f):
            hp, a1 = f >> 1, f & 1
            out = []
            for part in (1, 0):
                for h in range(2):
                    out.append(lambda part=part, h=h: self.mf(rec[f] + 8 * (1 - part) + 4 * h, v(pv[part] + 4 * hp + 2 * h, 2), v(pk[hp] + 4 * h + 2 * a1, 2), "0", 16))
            return out
        def ofin(f):
            d = rec[f]; out = []
            for h in range(2): out.append("v_add_f32 v%d, s%d, v%d" % (d + 4 * h, sEps, d + 4 * h))
            for h in range(2): out.append("v_rcp_f32 v%d, v%d" % (d + 4 * h, d + 4 * h))
            for h in range(2): out.append("v_mul_f32 v%d, v%d, v%d" % (d + 4 * h, d + 4 * h, self.vG1 + 2 * (f & 1)))
            for k in range(4): out.append("v_pk_mul_f32 %s, %s, %s op_sel_hi:[0,1]" % (v(d + 8 + 2 * k, 2), v(d + 4 * (k >> 1), 2), v(d + 8 + 2 * k, 2)))
            for k in range(4): out.append("v_cvt_pk_bf16_f32 v%d, v%d, v%d" % (d + k, d + 8 + 2 * k, d + 9 + 2 * k))
            def st():
                A("buffer_store_dwordx4 %s, v%d, %s, s%d offen%s sc1" % (v(d, 4), self.vFr, self.WS, sOo, " offset:%d" % (1024 * f) if f else "")); self.vm.issue("ast")
            out.append(st)
            return out
        self.emit(weave(ph1[p2_:], late[:n2]) if ph1[p2_:] else late[:n2]); late = late[n2:]
        assert len(late) >= 2
        A("s_waitcnt lgkmcnt(4)")
        self.emit(omf(0) + omf(1))
        A("s_waitcnt lgkmcnt(0)"); self.lg.zero(False)
        self.emit(weave(ofin(0), omf(2)) + weave(ofin(1), omf(3)) + ofin(2) + ofin(3))
        self.stamp(10)
        self.emit(weave(self.skip_term(), [] if early else self.wo_reads(0), late[:-2]))
        A("s_waitcnt lgkmcnt(0)")
        A("s_barrier")
        late = late[-2:] + ([] if early else self.wo_dmas(1)); n = self.o["att_e"]; n2 = self.o["att_f"]
        self.emit(late[:n])
        for k in range(self.o["clead"]): self.crd(k)
        self.hpoll()
        self.flag()
        self.emit(late[n:n2])
        self.h_wait("a")
        return self.p2_first(late[n2:])

    def retry(self, sreg):
        if not self.o["lflag"]: return
        A = self.A
        A("s_and_b32 s%d, s%d, 3" % (self.t2, self.sCap))
        A("s_cselect_b32 s%d, 0, s%d" % (self.t2, self.sLX))
        A("s_xor_b32 s%d, s%d, s%d" % (sreg, sreg, self.t2))

    def hpoll(self):
        self.A("buffer_load_dword v%d, v%d, %s, s%d offen sc1" % (self.vJunk, self.vf, self.WS, self.sFH)); self.vm.issue("hp")

    def flag(self):
        self.vm.wait("ast")
        if self.o["lflag"]:
            self.A("buffer_store_dword v%d, v%d, %s, s%d offen" % (self.vTag, self.vFlag, self.WS, self.sLF)); self.vm.issue("lflag")
        self.A("buffer_store_dword v%d, v%d, %s, 0 offen sc1" % (self.vTag, self.vFlag, self.WS)); self.vm.issue("flag")
        self.stamp(11)

    def p2_regs(self, V):
        self.p_vt = V(); self.p_vu = V()
        self.cb = V(32, 4)
        self.of = V(64, 4)
    def crd(self, n):
        st, t = n >> 2, n & 3
        r_ = self.ac[t >> 1][st & 1]
        if st in (8, 9) and t & 1 == 0: self.A("v_xor_b32 v%d, 0x10000, v%d" % (r_, r_))
        self.A("ds_read_b128 %s, v%d offset:%d" % (v(self.cb + 4 * (n % 8), 4), r_, ((st >> 1) & 3) * 8192 + (t & 1) * 2048)); self.lg.issue("c%d" % n)
    def hld(self, f):
        A = self.A
        if f & 3 == 0: A("s_xor_b32 s%d, s%d, %d" % (self.t0, self.sH, ((f >> 2) ^ 4) * 4096))
        A("buffer_load_dwordx4 %s, v%d, %s, s%d offen%s sc1" % (a(128 + 4 * f, 4), self.vFr, self.WS, self.t0, " offset:%d" % (1024 * (f & 3)) if f & 3 else "")); self.vm.issue("h%d" % f)
    def cstep(self, st, ld):
        A = self.A
        CL = self.o["clead"]
        ld = list(ld); many = len(ld) > 2
        for k in range(8):
            t, a1 = k >> 1, k & 1
            if k == 0: self.wait2("h%d" % (2 * st + 1), "c%d" % (4 * st + 1))
            if k == 4: self.wait2(None, "c%d" % (4 * st + 3))
            off = 8 * a1 + 4 * (t & 1)
            c = None if st else (v(self.vXD + off, 4) if t < 2 else "0")
            self.mf(self.acc[t >> 1] + off, v(self.cb + 4 * ((4 * st + t) % 8), 4), a(128 + 8 * st + 4 * a1, 4), c)
            if a1:
                if 4 * st + CL + t == 32:
                    assert not [x for x in self.vm.q if x[0] in "cw"]
                    A("s_barrier")
                if 4 * st + CL + t < 64: self.crd(4 * st + CL + t)
            else:
                n = -(-len(ld) // (4 - t)) if (many or t & 1 == 0) else 0
                self.emit(ld[:n]); ld = ld[n:]
        assert not ld
    def h_wait(self, name):
        A = self.A
        self.vm.wait("hp")
        self.stamp(12)
        A("s_branch L_hchk" + name)
        A.label("L_hpoll" + name)
        self.retry(self.sFH)
        A("buffer_load_dword v%d, v%d, %s, s%d offen sc1" % (self.vJunk, self.vf, self.WS, self.sFH))
        A("s_waitcnt vmcnt(0)")
        A.label("L_hchk" + name)
        A("v_cmp_ne_u32 vcc, s%d, v%d" % (self.sTag, self.vJunk))
        self.poll_tail("L_hpoll" + name)
        self.stamp(13)
    def p2_first(self, extra):
        LA = self.o["LA"]; ns = LA // 2 + 1
        for f in range(LA): self.hld(f)
        q = list(extra) + [(lambda f=f: self.hld(f)) for f in range(LA, LA + 2 * ns)]
        n = len(q); done = 0
        for st in range(ns):
            to = -(-n * (st + 1) // ns)
            self.cstep(st, q[done:to]); done = to
        return list(self.vm.q), list(self.lg.q)

    def p2(self):
        A = self.A
        vt, vu, of = self.p_vt, self.p_vu, self.of
        acc, sO = self.acc, self.sO
        def old(n):
            if n & 3 == 0: A("s_xor_b32 s%d, s%d, %d" % (self.t1, sO, 1024 * n))
            A("buffer_load_dwordx4 %s, v%d, %s, s%d offen%s sc1" % (v(of + 4 * n, 4), self.vFr, self.WS, self.t1, " offset:%d" % (1024 * (n & 3)) if n & 3 else "")); self.vm.issue("o%d" % n)
        def opoll():
            A("buffer_load_dword v%d, v%d, %s, s%d offen sc1" % (vt, self.vf, self.WS, self.sFO)); self.vm.issue("op")
        LA = self.o["LA"]; s1 = LA // 2 + 1; s0 = 16 - LA // 2
        opoll()
        for st in range(s1, s0): self.cstep(st, [(lambda f=f: self.hld(f)) for f in (2 * st + LA, 2 * st + LA + 1)])
        self.vm.wait("op")
        A("v_cmp_ne_u32 vcc, s%d, v%d" % (self.sTag, vt))
        A("s_cmp_lg_u64 vcc, 0")
        A("s_cbranch_scc1 L_slow")
        qv, ql = list(self.vm.q), list(self.lg.q)
        for st in range(s0, 16): self.cstep(st, [(lambda n=n: old(n)) for n in (2 * (st - s0), 2 * (st - s0) + 1)])
        self.stamp(14); self.stamp(15)
        A.label("L_join")
        q2 = list(self.vm.q)
        vr = self.vr; vr1, ra, rb, rc, rd = [self.cb + k for k in range(5)]
        side = ["s_movk_i32 s%d, 4096" % self.t2, "s_mov_b32 s%d, 0x10000" % self.t3, "s_mov_b32 s%d, 0x11000" % self.t0, "v_xor_b32 v%d, 128, v%d" % (vr1, vr)]
        self.bits(side, ra, rb, ((0, 3, 5), (0, 2, 8), (2, 1, 10)))
        self.bits(side, rb, None, ((3, 3, 4),))
        side += ["v_xor_b32 v%d, v%d, v%d" % (ra, ra, rb), "v_and_b32 v%d, 0xfffff000, v%d" % (rb, vr), "v_add_u32 v%d, v%d, v%d" % (rc, ra, rb),
                 "v_xor_b32 v%d, 128, v%d" % (rd, rc), "v_xor_b32 v%d, 8192, v%d" % (ra, rc), "v_xor_b32 v%d, 8192, v%d" % (rb, rd)]
        seq = [(st, (k >> 1) ^ 2, k & 1) for st in range(8) for k in range(8)]
        nl = self.o["olead"]
        seq = seq[:64 - 8 * nl] + [x for x in seq[64 - 8 * nl:] if x[1] >= 2] + [x for x in seq[64 - 8 * nl:] if x[1] < 2]
        seq = seq[:60] + sorted(seq[60:], key=lambda x: x[2])
        wr = ["ds_write_b128 v%d, %s offset:%d" % ((vr, vr1)[q & 1], v(acc[1] + 4 * q, 4), 1024 * q) for q in (0, 2, 1, 3)]
        wr += [None] * self.o["owait"] + ["s_waitcnt lgkmcnt(0)\ns_barrier"]
        wr += ["ds_read_b128 %s, v%d offset:%d" % (v(of + 4 * q, 4), (ra, rb)[q & 1], 2048 * (q >> 1)) for q in range(4)]
        w1 = self.wo_reads(1); wb = []
        for (st, t, a1) in seq:
            if st >= 4: wb.append((w1[8 * (st - 4) + 2 * t + a1], "wb%d_%d" % (st, t)))
        wb = wb[:28] + sorted(wb[28:], key=lambda x: x[1])
        self.lg.q = []
        for n, (st, t, a1) in enumerate(seq):
            if n == 64 - 4 * nl + 4 and not wb: self.lg.zero()
            self.wait2("o%d" % (2 * st + 1), "wb%d_%d" % (st, t | 1))
            self.mf(acc[t >> 1] + 8 * a1 + 4 * (t & 1), a(16 * st + 4 * t, 4), v(of + 8 * st + 4 * a1, 4))
            if n & 3 == 0 and LA + (n >> 2) < 16: old(LA + (n >> 2))
            if n & 3 and wb:
                x, tg = wb.pop(0); A(x); self.lg.issue(tg)
            if (n & 3 == 0 and LA + (n >> 2) >= 16 or not wb) and side: self.emit(side[:2]); side = side[2:]
            if n >= 64 - 4 * nl + 4 and wr:
                x = wr.pop(0)
                if x: A(x)
        self.emit([x for x in wr if x])
        self.stamp(16)
        assert not side
        for a1 in range(2):
            for q in (2 * a1, 2 * a1 + 1): A("ds_write_b128 v%d, %s offset:%d" % ((vr, vr1)[q & 1], v(acc[0] + 4 * q, 4), 32768 + 1024 * q))
            for q in (2 * a1, 2 * a1 + 1): A("ds_read_b128 %s, v%d offset:%d" % (v(acc[1] + 4 * q, 4), (rc, rd)[q & 1], 32768 + 2048 * a1))
        for q in range(4):
            own = acc[1] + 4 * q
            A("s_waitcnt lgkmcnt(%d)" % (5, 4, 1, 0)[q])
            for k in (0, 2): A("v_pk_add_f32 %s, %s, %s" % (v(own + k, 2), v(own + k, 2), v(of + 4 * q + k, 2)))
            A("buffer_store_dwordx4 %s, v%d, %s, %s offen%s" % (v(own, 4), self.vOut, self.OUT, ("0", "s%d" % self.t3, "s%d" % self.t2, "s%d" % self.t0)[q], self.o["outaux"]))
        A("s_cmp_eq_u32 s2, 255")
        A("s_cbranch_scc0 L_fin")
        A("v_mov_b32 v%d, s%d" % (vt, self.sE))
        A("v_mov_b32 v%d, 0" % vu)
        A("buffer_store_dword v%d, v%d, %s, 0 offen" % (vt, vu, self.WS))
        A.label("L_fin")
        if self.o["stamps"]:
            if self.o["stamps"] != 2: A("s_waitcnt vmcnt(0)")
            self.stamp(17)
            A("v_lshlrev_b32 v%d, 2, v0" % vu)
            A("s_lshl_b32 s%d, s2, 10" % self.t0); A("s_add_u32 s%d, s%d, %d" % (self.t0, self.t0, WS_STAMP))
            A("buffer_store_dword v%d, v%d, %s, s%d offen" % (self.vStamp, vu, self.WS, self.t0))
        A("s_endpgm")
        A.label("L_slow")
        self.vm.q, self.lg.q = qv, ql
        for st in range(s0, 16): self.cstep(st, [])
        self.stamp(14)
        A.label("L_opoll")
        self.retry(self.sFO)
        opoll()
        A("s_waitcnt vmcnt(0)")
        A("v_cmp_ne_u32 vcc, s%d, v%d" % (self.sTag, vt))
        self.poll_tail("L_opoll")
        self.vm.zero(False)
        self.stamp(15)
        for n in range(LA): old(n)
        assert self.vm.q == q2, (self.vm.q, q2)
        A("s_branch L_join")

    def gen(self):
        A = self.A
        kernel_head(A, NAME)
        self.prologue()
        V0, S0, q0 = self.V.clone(), self.S.clone(), list(self.vm.q)
        self.p2_regs(V0.clone())
        st1 = self.ssm()
        A("s_branch L_p2")
        A.label("L_att")
        self.V, self.S, self.vm.q, self.lg.q = V0.clone(), S0.clone(), list(q0), []
        st2 = self.att()
        assert st1 == st2, (st1, st2)
        A.label("L_p2")
        self.p2()
        A.label("L_end")
        A("s_endpgm")
        body, n = hazard.fix(A.l)
        head = open("cdna_kernels/%s.s.ref" % NAME[:-7]).read().split("; Override launch")[0] if self.o.get("head", True) else ""
        out = head + "; @launch grid=(256,1,1) block=(256,1,1) lds=163840\n"
        out += '.amdgcn_target "amdgcn-amd-amdhsa--gfx950"\n.text\n'
        if self.o["pad"] >= 0:
            out += "; start the kernel at the top of a 4 KB page (instruction fetch stalls at page crossings)\n.p2align 12\n.fill %d, 4, 0xbf800000\n" % (64 * self.o["pad"])
        out += "\n".join(body) + "\n"
        out += '.section .rodata,"a"\n.p2align 6\n' + kernel_desc(NAME, 512, 256)
        if self.o["hop"]: out = self.link_stubs(out)
        return out

    def link_stubs(self, out):
        import re, subprocess, tempfile
        d = tempfile.mkdtemp()
        open(d + "/a.s", "w").write(re.sub(r"@CHAIN(\w)\d+@", r"L_back\1", out))
        subprocess.run(["clang", "-x", "assembler", "-target", "amdgcn-amd-amdhsa", "-mcpu=gfx950", "-c", d + "/a.s", "-o", d + "/a.o"], check=True)
        dis = subprocess.run(["llvm-objdump", "-d", "--mcpu=gfx950", d + "/a.o"], capture_output=True, text=True).stdout
        dis = dis[dis.index("<%s>:" % NAME):]
        sizes = [4 * len(m.group(1).split()) for m in re.finditer(r"// [0-9A-F]{12}: ((?:[0-9A-F]{8} ?)+)", dis)]
        lines = out.split("\n"); res = []; k = 0; pc = 0; on = False; sec = None; tg = {"s": [], "a": []}; page = 0
        def put(roles):
            nm = "L_pg%d" % len(res)
            res.append(nm + ":"); res.append("    s_cbranch_execz L_back" + ("x" if len(roles) > 1 else roles))
            for r in roles: tg[r].append(nm)
        for l in lines:
            t = l.strip()
            if t == NAME + ":": on = True
            if t.startswith(".section"): on = False
            ins = on and t and not t.startswith((";", ".")) and not t.endswith(":")
            if ins and (pc >> 12) > page:
                page = pc >> 12
                if sec: put(sec); pc += 4
            res.append(l)
            if t in ("L_backs:", "L_backa:"): sec = t[-2]
            if t in ("L_att:", "L_slow:"): sec = None
            if t == "L_p2:":
                sec = "sa"; put("s"); pc += 4
            if ins: pc += sizes[k]; k += 1
        assert k == len(sizes), (k, len(sizes))
        out = "\n".join(res)
        for r in "sa":
            t = list(tg[r])
            while len(t) > 4:
                x = t.pop(); y = t[len(t) - 4]
                assert y not in tg["a" if r == "s" else "s"]
                out = out.replace(y + ":\n    s_cbranch_execz L_back" + r, y + ":\n    s_cbranch_execz " + x)
            for w in range(4): out = out.replace("@CHAIN%s%d@" % (r, w), t[w] if w < len(t) else "L_back" + r)
        return out

if __name__ == "__main__":
    if len(sys.argv) > 1:
        for arg in sys.argv[1:]:
            nm, _, kv = arg.partition(":")
            o = eval("dict(%s)" % kv)
            open(nm, "w").write(K(stamps=(1 if "_st" in nm else 2 if "_lt" in nm else 0), head=False, **o).gen())
    else:
        open("k.s", "w").write(K().gen())
        open("k_st.s", "w").write(K(stamps=True).gen())
```

```python
import sys
from asmlib import Asm, v, a, s, kernel_head, kernel_desc
import hazard

NAME = "gated_mix__linear_attn_block__ssm_conv_s5__prompt_kernel"
WS_EPOCH, WS_G, WS_FH, WS_FO, WS_E, WS_KV, WS_A = 0, 0x1000, 0x10000, 0x20000, 0x30000, 0x40000, 0x100000
WS_LF = 0xc0000
WS_STAMP = 0x1000000
SPILL = 0x800000
RT_STRIDE = 98304
HUGE = 0x20000000
L_R0, L_R1, L_SP = 0, 65536, 131072
LOG2E = "0x3fb8aa3b"
P_X, P_WQKV, P_WO, P_LRE, P_LIM, P_BRE, P_BIM = 4, 6, 8, 12, 14, 16, 18
P_CRE, P_CIM, P_LDT, P_DSK, P_GW, P_OUT, P_WS = 20, 22, 24, 26, 28, 30, 34

class Alloc:
    def __init__(self, regs):
        self.free = set(regs)
    def __call__(self, n=1, al=1):
        if n > 1 and al == 1: al = 2
        for b in sorted(self.free, reverse=(n <= 2)):
            if b % al == 0 and all(b + i in self.free for i in range(n)):
                for i in range(n): self.free.discard(b + i)
                return b
        raise RuntimeError("out of registers")
    def rel(self, b, n=1):
        for i in range(n):
            assert b + i not in self.free
            self.free.add(b + i)
    def clone(self):
        return Alloc(self.free)

class Cnt:
    def __init__(self, A, name, mx):
        self.A = A; self.name = name; self.mx = mx; self.q = []
    def issue(self, tag): self.q.append(tag)
    def need(self, tag):
        idx = [i for i, t in enumerate(self.q) if t == tag]
        if not idx: return None
        n = len(self.q) - 1 - idx[-1]
        self.q = self.q[idx[-1] + 1:]
        return min(n, self.mx)
    def wait(self, tag):
        n = self.need(tag)
        if n is not None: self.A("s_waitcnt %s(%d)" % (self.name, n))
    def zero(self, emit=True):
        if emit: self.A("s_waitcnt %s(0)" % self.name)
        self.q = []

def weave(main, *side):
    out = [[x] for x in main]
    for sd in side:
        n = len(sd)
        for k, x in enumerate(sd):
            out[min(len(main) - 1, (k * len(main)) // n)].append(x)
    return [y for x in out for y in x]

class K:
    def __init__(self, **opt):
        self.o = dict(stamps=0, pollcap=400000, order='gpq8', third=('w4h4', 'w4h4'), nf=(80, 60), d0=8, hop=1, pad=13, xrot=6, j3=1, qpf=1,
                      ssm=(8, 8, 0, 0, 8, 8), late7=1, att_b=8, att_g=16, att_c1=8, att_c2=6, att_e=2, att_f=10,
                      hpw=1, rx=0, kall=0, kown=1, kvw=0, smid=999, wat=0, wn=3, wl2=0, qmode=0, ph1=(28, 40), efirst=1, clead=6, glate=None, xmul=6, qat=88, wfirst=0, mid=(100, 104, 200), wopar=1, gmid=0, pause=(0,) * 8, psplit=1, dfirst=0, lflag=0, l7at=0, early=(None, None), xdo=1, olead=4, owait=3, dpos=((-6, -2, 2, 6, 10, 14, 18, 22), (-6, -2, 2, 6, 10, 14, 18, 22)), outaux=' sc1 nt', LA=10, dbg='')
        self.o.update(opt)
        self.A = Asm()
        self.vm = Cnt(self.A, "vmcnt", 62)
        self.lg = Cnt(self.A, "lgkmcnt", 14)
        self.V = Alloc(range(1, 256))
        self.S = Alloc([3] + list(range(72, 102)))

    def stamp(self, idx):
        if not self.o["stamps"]: return
        if self.o["stamps"] == 2 and idx != 17: return
        A = self.A
        A("s_memrealtime s[%d:%d]" % (self.sT, self.sT + 1))
        A("s_memtime s[%d:%d]" % (self.sT2, self.sT2 + 1))
        A("s_waitcnt lgkmcnt(0)")
        self.lg.zero(False)
        A("v_writelane_b32 v%d, s%d, %d" % (self.vStamp, self.sT, idx))
        A("v_writelane_b32 v%d, s%d, %d" % (self.vStamp, self.sT2, 32 + idx))
    def dma(self, vo, srd, so, imm, tag):
        self.A("buffer_load_dwordx4 v%d, %s, %s offen%s lds" % (vo, srd, so, " offset:%d" % imm if imm else ""))
        self.vm.issue(tag)
    def ds(self, text, tag):
        return lambda: (self.A(text), self.lg.issue(tag))
    def mf(self, d, x, y, c=None, k=32):
        self.A("v_mfma_f32_16x16x%d_bf16 %s, %s, %s, %s" % (k, v(d, 4), x, y, v(d, 4) if c is None else c))
    def cmul(self, out, dr, di, ar, ai, br, bi, cr=None, ci=None):
        if cr is None:
            out.append("v_mul_f32 v%d, v%d, v%d" % (dr, ar, br))
            out.append("v_mul_f32 v%d, v%d, v%d" % (di, ar, bi))
        else:
            out.append("v_fma_f32 v%d, v%d, v%d, v%d" % (dr, ar, br, cr))
            out.append("v_fma_f32 v%d, v%d, v%d, v%d" % (di, ar, bi, ci))
        out.append("v_fma_f32 v%d, -v%d, v%d, v%d" % (dr, ai, bi, dr))
        out.append("v_fmac_f32 v%d, v%d, v%d" % (di, ai, br))
    def pmul(self, out, d, x, y, c=None, sel=None):
        q = lambda z: (z, z + 2) if isinstance(z, int) else z
        d, x, y = q(d), q(x), q(y)
        m3 = "" if sel is None else (" op_sel:[1,0,0]" if sel else " op_sel_hi:[0,1,1]")
        m2 = "" if sel is None else (" op_sel:[1,0]" if sel else " op_sel_hi:[0,1]")
        for k in range(2):
            if c is None: out.append("v_pk_mul_f32 %s, %s, %s%s" % (v(d[k], 2), v(x[0], 2), v(y[k], 2), m2))
            else: out.append("v_pk_fma_f32 %s, %s, %s, %s%s" % (v(d[k], 2), v(x[0], 2), v(y[k], 2), v(q(c)[k], 2), m3))
        out.append("v_pk_fma_f32 %s, %s, %s, %s%s neg_lo:[1,0,0] neg_hi:[1,0,0]" % (v(d[0], 2), v(x[1], 2), v(y[1], 2), v(d[0], 2), m3))
        out.append("v_pk_fma_f32 %s, %s, %s, %s%s" % (v(d[1], 2), v(x[1], 2), v(y[0], 2), v(d[1], 2), m3))
    def emit(self, lst):
        for x in lst:
            if isinstance(x, tuple):
                self.emit(x[0]); x[1]()
            elif callable(x): x()
            else: self.A(x)
    def cap(self):
        A = self.A
        A("s_sub_u32 s%d, s%d, 1" % (self.sCap, self.sCap))
        A("s_cselect_b64 vcc, 0, vcc")
        A("s_cselect_b32 s%d, 0, s%d" % (self.sCap, self.sCap))
        A("s_cmp_lg_u64 vcc, 0")
    def poll_tail(self, lab):
        self.cap()
        self.A("s_cbranch_scc1 %s" % lab)
    def bits(self, out, d, tmp, spec, src="v0"):
        for n, (bit, w, sh) in enumerate(spec):
            if n == 0:
                if bit == sh: out.append("v_and_b32 v%d, 0x%x, %s" % (d, ((1 << w) - 1) << bit, src))
                else:
                    out.append("v_bfe_u32 v%d, %s, %d, %d" % (d, src, bit, w))
                    if sh: out.append("v_lshlrev_b32 v%d, %d, v%d" % (d, sh, d))
            else:
                out.append("v_bfe_u32 v%d, %s, %d, %d" % (tmp, src, bit, w))
                out.append("v_lshl_or_b32 v%d, v%d, %d, v%d" % (d, tmp, sh, d))
    def wait2(self, vtag, ltag):
        n1 = self.vm.need(vtag) if vtag else None
        n2 = self.lg.need(ltag) if ltag else None
        w = " ".join(x for x in ("" if n1 is None else "vmcnt(%d)" % n1, "" if n2 is None else "lgkmcnt(%d)" % n2) if x)
        if w: self.A("s_waitcnt " + w)

    def slot(self, c):
        return ((c + 2) % 4) * 32768
    def chunk_dmas(self, c):
        slot = self.slot(c); tag = "ch%d" % c
        L = []
        nx0 = ["s_mul_i32 s%d, s%d, s%d" % (self.sO2, self.sCh, self.sWst)]
        nx1 = ["s_lshl_b32 s%d, s%d, 7" % (self.sO1, self.sCh)]
        nx2 = ["s_add_u32 s%d, s%d, 1" % (self.sCh, self.sCh)]; nx3 = ["s_and_b32 s%d, s%d, 7" % (self.sCh, self.sCh)]
        for n in range(4):
            pre = [] if n & 1 else ["s_add_u32 m0, s%d, %d" % (self.sM, slot + 16384 + (n >> 1) * 4096)] + (nx1 if n else nx0)
            L.append((pre, (lambda n=n: self.dma(self.vw[n], (self.WA, self.WB)[n >> 1], "s%d" % self.sO2, 2048 * (n & 1), tag))))
        for n in range(4):
            pre = [] if n & 1 else ["s_add_u32 m0, s%d, %d" % (self.sM, slot + (n >> 1) * 4096)] + (nx3 if n else nx2)
            L.append((pre, (lambda n=n: self.dma(self.vx[n >> 1], self.X, "s%d" % self.sO1, 2048 * (n & 1), tag))))
        return L
    def wo_dmas(self, half):
        L = []
        for n in range(8):
            aa, b = n >> 2, n & 3
            pre = [] if b else ["s_add_u32 m0, s%d, %d" % (self.sMW, L_SP + aa * 4096), "s_xor_b32 s%d, s%d, %d" % (self.sO1, self.sP17, (half * 128 + aa * 32) * 1024)]
            L.append((pre, (lambda b=b: self.dma(self.vo[b], self.WO, "s%d" % self.sO1, 1024 * b, "wo%d" % half))))
        return L
    def wo_stag(self):
        L = []
        t0 = self.sLX
        for n in range(8):
            pre = ["s_add_u32 s%d, s%d, 1024" % (self.sSt, self.sSt), "s_and_b32 s%d, s%d, 0x1c00" % (self.sSt, self.sSt),
                   "s_add_u32 m0, s%d, s%d" % (self.sSt, self.sMW2), "s_lshl3_add_u32 s%d, s%d, s%d" % (t0, self.sSt, self.sP17)]
            L.append((pre, (lambda: self.dma(self.vo[0], self.WO, "s%d" % t0, 0, "wo0"))))
        return L
    def c_dmas(self, comp, region):
        L = []
        for idx in range(8):
            for i in range(2):
                pre = [] if i else ["s_xor_b32 m0, s%d, %d" % (self.sMC, region + idx * 8192), "s_xor_b32 s%d, s%d, %d" % (self.sO1, self.sP9, idx * 128)]
                L.append((pre, (lambda i=i: self.dma(self.vc[i], (self.CRE, self.CIM)[comp], "s%d" % self.sO1, 2048 * i, "c%d" % comp))))
        return L
    def wo_reads(self, half):
        L = []
        for n in range(4):
            for t in range(4):
                for h in range(2):
                    L.append("ds_read_b64_tr_b16 %s, v%d offset:%d" % (a(64 * half + 16 * n + 4 * t + 2 * h, 2), self.aw[t], n * 4096 + h * 2048))
        return L

    def prologue(self):
        A, V, S = self.A, self.V, self.S
        self.X, self.WA, self.WB, self.WS = "s[36:39]", "s[40:43]", "s[44:47]", "s[48:51]"
        self.CRE, self.CIM, self.WO, self.OUT, self.ER = "s[52:55]", "s[56:59]", "s[60:63]", "s[64:67]", "s[68:71]"
        self.sT = S(2, 2); self.sT2 = S(2, 2); self.sMk = S(2, 2)
        self.sR, self.sJ, self.sRole, self.sW, self.sCT, self.sRH = [S() for _ in range(6)]
        self.sM, self.sCh, self.sO1, self.sO2, self.sTag, self.sE, self.sWst, self.sN2, self.sCX = [S() for _ in range(9)]
        self.t0, self.t1, self.t2, self.t3 = [S() for _ in range(4)]
        t0, t1, t2, t3 = self.t0, self.t1, self.t2, self.t3
        sR, sJ, sW, sCT, sRH, sRole = self.sR, self.sJ, self.sW, self.sCT, self.sRH, self.sRole
        vt = V(); vu = V()
        self.vJunk = V(); self.vL16 = V()
        vp = V(); vd = V(); vg = V()
        A("s_cmp_ge_u32 s2, 256")
        A("s_cbranch_scc1 L_end")
        A("s_load_dwordx16 s[4:19], s[0:1], 0")
        A("s_load_dwordx16 s[20:35], s[0:1], 64")
        if self.o["stamps"]:
            self.vStamp = V()
            A("s_memrealtime s[%d:%d]" % (self.sT, self.sT + 1))
            A("s_memtime s[%d:%d]" % (self.sT2, self.sT2 + 1))
        A("s_getpc_b64 s[%d:%d]" % (self.sMk, self.sMk + 1))
        A.label("L_pc")
        A("s_and_b32 s%d, s2, 0xf8" % t0)
        A("v_lshrrev_b32 v%d, 5, v0" % vt)
        A("v_add_lshl_u32 v%d, s%d, v%d, 7" % (vt, t0, vt))
        A("v_min_u32 v%d, L_end-L_pc, v%d" % (vt, vt))
        A("v_lshrrev_b32 v%d, 6, v0" % vu)
        A("global_load_dword v%d, v%d, s[%d:%d]" % (self.vJunk, vt, self.sMk, self.sMk + 1)); self.vm.issue("junk")
        A("v_readfirstlane_b32 s%d, v%d" % (sW, vu))
        A("s_and_b32 s%d, s2, 1" % sRH)
        A("s_bfe_u32 s%d, s2, 0x20001" % t0)
        if self.o["rx"]: A("s_xor_b32 s%d, s%d, %d" % (t0, t0, self.o["rx"]))
        A("s_lshr_b32 s%d, s2, 6" % t1)
        A("s_lshl2_add_u32 s%d, s%d, s%d" % (sR, t0, t1))
        A("s_bfe_u32 s%d, s2, 0x20003" % t0)
        A("s_lshl2_add_u32 s%d, s%d, s%d" % (sJ, sRH, t0))
        A("s_bfe_u32 s%d, s2, 0x10005" % sRole)
        A("s_lshl3_add_u32 s%d, s%d, s%d" % (t0, sRole, sJ))
        A("s_lshl2_add_u32 s%d, s%d, s%d" % (self.sN2, t0, sW))
        A("s_cmp_eq_u32 s%d, %d" % (t0, 11 if self.o["j3"] else 99))
        A("s_cselect_b32 s%d, s%d, 0" % (t1, t1))
        if self.o["glate"]:
            A("s_mul_i32 s%d, s2, %d" % (t0, self.o["xmul"]))
            A("s_and_b32 s%d, s%d, %d" % (t0, t0, self.o["xrot"]))
            A("s_lshl1_add_u32 s%d, s%d, s%d" % (self.sCh, t1, t0))
            A("s_and_b32 s%d, s%d, 7" % (self.sCh, self.sCh))
        else:
            A("s_lshl1_add_u32 s%d, s%d, s2" % (self.sCh, t1))
            A("s_and_b32 s%d, s%d, %d" % (self.sCh, self.sCh, self.o["xrot"]))
        A("v_and_b32 v%d, 63, v0" % self.vL16)
        A("v_lshlrev_b32 v%d, 4, v%d" % (self.vL16, self.vL16))
        A("s_and_b32 s%d, s%d, 0x3e" % (t0, self.sN2))
        A("s_add_u32 s%d, s%d, s%d" % (t0, t0, self.sN2))
        A("s_lshl_b32 s%d, s%d, 7" % (t1, sR))
        A("s_add_u32 s%d, s%d, s%d" % (t0, t0, t1))
        A("v_lshl_add_u32 v%d, s%d, 10, v%d" % (vg, t0, self.vL16))
        A("s_mul_i32 s42, s%d, 0x100000" % sRole); A("s_add_u32 s42, s42, 0x80000"); A("s_mov_b32 s46, s42")
        A("s_mul_i32 s%d, s%d, %d" % (self.sWst, sRole, 64 * 3072 - 128)); A("s_add_u32 s%d, s%d, 128" % (self.sWst, self.sWst))
        A("s_mul_i32 s%d, s%d, %d" % (t2, sRole, 32 * 3072))
        A("s_lshl_b32 s%d, s%d, 13" % (t3, sRole)); A("s_add_u32 s%d, s%d, 2048" % (t3, t3))
        A("s_mov_b32 s38, 0x200000")
        for b in (36, 40, 44): A("s_mov_b32 s%d, 0x20000" % (b + 3))
        A("s_mul_i32 s%d, s%d, 0x1400" % (self.sM, sW))
        A("s_and_b32 s%d, s%d, 0x2400" % (self.sM, self.sM))
        vUA = V(); vUT = V()
        self.vx = [V() for _ in range(2)]; self.vw = [V() for _ in range(4)]
        o = []
        o.append("v_lshrrev_b32 v%d, 4, v0" % vt)
        o.append("v_xor_b32 v%d, v0, v%d" % (vt, vt))
        self.bits(o, vUA, vu, ((0, 3, 4),), "v%d" % vt)
        o.append("v_lshrrev_b32 v%d, 3, v0" % vt)
        o.append("v_and_b32 v%d, 6, v%d" % (vt, vt))
        o.append("v_xor_b32 v%d, v0, v%d" % (vt, vt))
        self.bits(o, vUT, vu, ((0, 3, 4),), "v%d" % vt)
        w0 = self.vw[0]; w1 = self.vw[1]
        self.bits(o, vt, vu, ((3, 2, 0), (5, 2, 3)))
        o.append("v_lshrrev_b32 v%d, 7, v0" % vu)
        o.append("v_lshl_or_b32 v%d, v%d, 5, v%d" % (w0, vu, vt))
        o.append("v_lshl_add_u32 v%d, s%d, 6, v%d" % (w0, sJ, w0))
        o.append("v_lshl_add_u32 v%d, v%d, 10, v%d" % (w0, w0, vUA))
        o.append("v_mul_u32_u24 v%d, 3072, v%d" % (vt, vt))
        o.append("v_lshl_add_u32 v%d, v%d, 10, v%d" % (vt, vu, vt))
        o.append("s_lshl_b32 s%d, s%d, 7" % (t0, sJ))
        o.append("s_add_u32 s%d, s%d, 1024" % (t0, t0))
        o.append("s_cmp_eq_u32 s%d, 0" % sRole)
        o.append("s_cselect_b64 vcc, -1, 0")
        o.append("v_add3_u32 v%d, v%d, s%d, v%d" % (vt, vt, t0, vUT))
        o.append("v_cndmask_b32 v%d, v%d, v%d, vcc" % (w0, vt, w0))
        o.append("v_add_u32 v%d, s%d, v%d" % (w1, t3, w0))
        o.append("v_add_u32 v%d, s%d, v%d" % (self.vw[2], t2, w0))
        o.append("v_add_u32 v%d, s%d, v%d" % (self.vw[3], t2, w1))
        x0 = self.vx[0]
        self.bits(o, x0, vu, ((3, 1, 3), (4, 1, 0), (5, 3, 4)))
        o.append("v_lshl_add_u32 v%d, s%d, 7, v%d" % (x0, sR, x0))
        o.append("v_lshl_add_u32 v%d, v%d, 10, v%d" % (x0, x0, vUA))
        o.append("v_add_u32 v%d, 4096, v%d" % (self.vx[1], x0))
        self.emit(o)
        self.ppar = [V(2), V(2), V(2)]; self.vDs = V(4, 2); self.gx = self.vXD = V(16, 4)
        A("s_mov_b32 s%d, s%d" % (self.sCX, self.sCh))
        A("s_waitcnt lgkmcnt(0)")
        A("s_cselect_b64 s[40:41], s[%d:%d], s[%d:%d]" % (P_BRE, P_BRE + 1, P_WQKV, P_WQKV + 1))
        A("s_cselect_b64 s[44:45], s[%d:%d], s[%d:%d]" % (P_BIM, P_BIM + 1, P_WQKV, P_WQKV + 1))
        A("s_mov_b64 s[36:37], s[%d:%d]" % (P_X, P_X + 1))
        if self.o["stamps"]: A("v_writelane_b32 v%d, s%d, 0\nv_writelane_b32 v%d, s%d, 32" % (self.vStamp, self.sT, self.vStamp, self.sT2))
        self.stamp(18)
        e0, e1 = self.chunk_dmas(0), self.chunk_dmas(1)
        self.early = e0 + e1
        if self.o["wfirst"]:
            inc = [e0[4][0][1], e0[6][0][1]]; shl = e0[2][0][1]
            e1[0] = (inc + e1[0][0], e1[0][1]); e1[2] = (e1[2][0][:1], e1[2][1])
            e0[4] = (e0[4][0][:1], e0[4][1]); e0[6] = (e0[6][0][:1], e0[6][1])
            e1[4] = ([shl] + e1[4][0], e1[4][1])
            self.early = e0[:4] + e1[:4] + e0[4:] + e1[4:]
        for tok in self.o["order"]:
            if tok == "g":
                A("global_load_dwordx4 %s, v%d, s[%d:%d]" % (v(self.gx, 4), vg, P_X, P_X + 1)); self.vm.issue("par")
                A("global_load_dwordx4 %s, v%d, s[%d:%d] offset:2048" % (v(self.gx + 4, 4), vg, P_X, P_X + 1)); self.vm.issue("par")
            elif tok == "p":
                A("s_bfe_u32 s%d, s2, 0x30003" % sCT)
                A("s_bfe_u32 s%d, s2, 0x10006" % t0)
                A("s_lshl_b32 s%d, s%d, 2" % (t0, t0))
                A("s_xor_b32 s%d, s%d, s%d" % (sCT, sCT, t0))
                o = []
                self.bits(o, vp, vu, ((6, 1, 6), (0, 2, 1), (2, 2, 4)))
                o.append("v_lshl_add_u32 v%d, s%d, 7, v%d" % (vp, sJ, vp))
                self.bits(o, vd, vu, ((4, 2, 3), (7, 1, 6)))
                o.append("v_lshl_add_u32 v%d, s%d, 7, v%d" % (vd, sCT, vd))
                self.emit(o)
            elif tok == "q":
                A("global_load_dwordx4 %s, v%d, s[%d:%d]" % (v(self.gx + 8, 4), self.vL16, P_GW, P_GW + 1)); self.vm.issue("par")
                for b in range(2):
                    A("global_load_dwordx2 %s, v%d, s[%d:%d] offset:%d" % (v(self.vDs + 2 * b, 2), vd, P_DSK, P_DSK + 1, 32 * b)); self.vm.issue("par")
                A("s_cmp_eq_u32 s%d, 0" % sRole)
                A("s_cbranch_scc0 L_nopar")
                for q, p in zip(self.ppar, (P_LRE, P_LIM, P_LDT)):
                    for b in range(2): A("global_load_ushort v%d, v%d, s[%d:%d] offset:%d" % (q + b, vp, p, p + 1, 8 * b))
                A.label("L_nopar")
                assert len(self.early) == 16
            else:
                n = int(tok)
                self.emit(self.early[:n]); self.early = self.early[n:]
        self.stamp(19)
        A("s_load_dword s%d, s[%d:%d], 0" % (self.sE, P_WS, P_WS + 1))
        o = []
        o.append("s_sub_u32 s%d, s%d, s%d" % (self.sCX, sCT, self.sCX))
        o.append("s_and_b32 s%d, s%d, 7" % (self.sCX, self.sCX))
        for b, p, n in ((48, P_WS, 0x10000000), (52, P_CRE, 0x80000), (56, P_CIM, 0x80000), (60, P_WO, 0x80000), (64, P_OUT, 0x400000)):
            o.append("s_mov_b64 s[%d:%d], s[%d:%d]" % (b, b + 1, p, p + 1))
            o.append("s_mov_b32 s%d, 0x%x" % (b + 2, n))
        o.append("s_mov_b32 s70, 4096")
        for b in range(48, 72, 4): o.append("s_mov_b32 s%d, 0x20000" % (b + 3))
        self.emit(o)
        for q in range(4, 34): S.rel(q) if q not in (P_WQKV, P_WQKV + 1) else None
        self.vTag, self.vBase, self.vFlag, self.vG1a, self.vG2a, self.vf, self.vr, self.vOut, self.vPf, self.vFr, self.vTr = [V() for _ in range(11)]
        self.vo = [V() for _ in range(4)]; self.vc = [V() for _ in range(2)]
        self.aw = [V() for _ in range(4)]; self.ac = [[V(), V()], [V(), V()]]; self.axd = [[V(), V()], [V(), V()]]
        self.vG2 = V(4, 4); self.xdf = V(8, 4); self.acc = [V(16, 4), V(16, 4)]
        self.sMW, self.sMC, self.sRT, self.sRW, self.sCap, self.sP9, self.sP17, self.sH, self.sO, self.sFH, self.sFO = [S() for _ in range(11)]
        o = []
        o.append("s_mov_b32 s%d, %d" % (self.sCap, self.o["pollcap"]))
        o.append("s_lshr_b32 s%d, s%d, 1" % (t3, sW))
        o.append("s_and_b32 s%d, s%d, 1" % (t2, sW))
        o.append("s_lshl1_add_u32 s%d, s%d, s%d" % (self.sRW, sR, t3))
        o.append("s_lshl1_add_u32 s%d, s%d, s%d" % (t1, sR, sRH))
        o.append("s_lshl1_add_u32 s%d, s%d, s%d" % (self.sRT, t1, t2))
        xd0 = self.axd[0][0]
        o.append("v_bfe_u32 v%d, v0, 1, 3" % vt)
        o.append("v_bfe_u32 v%d, v0, 4, 2" % vu)
        o.append("v_xor_b32 v%d, v%d, v%d" % (self.vBase, vt, vu))
        o.append("v_bfe_u32 v%d, v0, 5, 1" % vu)
        o.append("v_xor_b32 v%d, v%d, v%d" % (xd0, vt, vu))
        self.bits(o, vu, None, ((0, 4, 7),))
        o.append("v_lshl_add_u32 v%d, v%d, 4, v%d" % (self.vBase, self.vBase, vu))
        o.append("v_lshl_add_u32 v%d, v%d, 4, v%d" % (xd0, xd0, vu))
        o.append("v_bfe_u32 v%d, v0, 4, 1" % vu)
        o.append("v_lshl_or_b32 v%d, v%d, 3, v%d" % (xd0, vu, xd0))
        o.append("s_and_b32 s%d, s%d, 3" % (t0, self.sRT))
        o.append("s_lshl_b32 s%d, s%d, 6" % (t0, t0))
        o.append("s_add_u32 s%d, s%d, s%d" % (t0, t0, t3))
        o.append("s_lshl_b32 s%d, s%d, 6" % (t0, t0))
        o.append("v_xor_b32 v%d, s%d, v%d" % (xd0, t0, xd0))
        o.append("v_xor_b32 v%d, 32, v%d" % (self.axd[0][1], xd0))
        for e in range(2): o.append("v_add_u32 v%d, 0x10000, v%d" % (self.axd[1][e], self.axd[0][e]))
        self.bits(o, self.vTr, vu, ((2, 4, 7), (0, 2, 3), (3, 2, 5)))
        o.append("s_mul_i32 s%d, s%d, %d" % (t0, t3, 16384 + 64))
        o.append("s_add_u32 s%d, s%d, %d" % (t0, t0, L_SP))
        o.append("v_xor_b32 v%d, s%d, v%d" % (self.aw[0], t0, self.vTr))
        for t in range(1, 4): o.append("v_xor_b32 v%d, %d, v%d" % (self.aw[t], 32 * t, self.aw[0]))
        o.append("s_lshl_b32 s%d, s%d, 13" % (self.sMW, sW))
        self.sSt, self.sMW2, self.sLF, self.sLX = S(), S(), S(), S()
        o.append("s_lshl_b32 s%d, s2, 10" % self.sSt)
        o.append("s_add_u32 s%d, s%d, %d" % (self.sMW2, self.sMW, L_SP))
        o.append("s_lshr_b32 s%d, s2, 7" % t0)
        o.append("s_andn2_b32 s%d, s%d, s%d" % (self.sP9, t0, sRole))
        o.append("s_lshl_b32 s%d, s%d, 9" % (self.sP9, self.sP9))
        o.append("s_lshl_b32 s%d, s%d, 8" % (self.sP17, self.sP9) if self.o["wopar"] else "s_mov_b32 s%d, 0" % self.sP17)
        self.bits(o, vu, vt, ((3, 3, 0), (6, 1, 6), (7, 1, 8)))
        o.append("v_lshl_add_u32 v%d, v%d, 10, v%d" % (vu, vu, vUT))
        o.append("v_lshl_add_u32 v%d, s%d, 7, v%d" % (self.vo[0], sCT, vu))
        for b in range(1, 4): o.append("v_add_u32 v%d, %d, v%d" % (self.vo[b], 7168 * b, self.vo[0]))
        o.append("s_lshl2_add_u32 s%d, s%d, s%d" % (self.sMC, t3, t2))
        o.append("s_lshl_b32 s%d, s%d, 10" % (self.sMC, self.sMC))
        o.append("s_lshl_b32 s%d, s%d, 6" % (t0, self.sP9))
        o.append("s_add_u32 s%d, s%d, s%d" % (self.sMC, self.sMC, t0))
        self.bits(o, vt, vu, ((3, 4, 0), (7, 1, 5)))
        o.append("v_lshl_add_u32 v%d, s%d, 6, v%d" % (vt, sCT, vt))
        o.append("v_lshl_add_u32 v%d, v%d, 10, v%d" % (self.vc[0], vt, vUA))
        o.append("v_add_u32 v%d, %d, v%d" % (self.vc[1], 16384 - 2048, self.vc[0]))
        self.bits(o, vu, None, ((0, 4, 4),))
        o.append("v_add_u32 v%d, %d, v%d" % (vu, WS_G, vu))
        o.append("v_lshl_add_u32 v%d, s%d, 9, v%d" % (self.vG1a, self.sRW, vu))
        o.append("v_lshl_add_u32 v%d, s%d, 8, v%d" % (self.vG2a, self.sRT, vu))
        o.append("v_and_b32 v%d, 56, v0" % vt)
        o.append("v_cmp_eq_u32 vcc, 24, v%d" % vt)
        o.append("v_add_u32 v%d, %d, v%d" % (vt, SPILL - 384, self.vL16))
        o.append("s_nop 0")
        o.append("v_cndmask_b32 v%d, v%d, v%d, vcc" % (self.vFr, self.vL16, vt))
        vWq = self.vWq = V()
        if self.o["qmode"] == 2:
            o.append("s_lshr_b32 s%d, s2, 3" % t0)
            self.bits(o, vWq, vu, ((2, 2, 0), (6, 2, 2)))
            o.append("v_lshl_add_u32 v%d, s%d, 4, v%d" % (vWq, t0, vWq))
        else:
            o.append("s_lshr_b32 s%d, s2, 6" % t0); o.append("s_and_b32 s%d, s%d, 3" % (t1, sJ)); o.append("s_lshl2_add_u32 s%d, s%d, s%d" % (t0, t0, t1))
            self.bits(o, vWq, vu, ((2, 3, 0), (6, 2, 3)))
            o.append("v_lshl_add_u32 v%d, s%d, 5, v%d" % (vWq, t0, vWq))
        o.append("v_mul_u32_u24 v%d, 24, v%d" % (vWq, vWq))
        o.append("v_and_or_b32 v%d, v0, 3, v%d" % (vWq, vWq))
        o.append("v_lshl_add_u32 v%d, s%d, 2, v%d" % (vWq, sRH, vWq))
        o.append("v_lshlrev_b32 v%d, 7, v%d" % (vWq, vWq))
        o.append("s_lshl4_add_u32 s%d, s%d, s%d" % (t0, sR, sJ))
        o.append("s_lshl_b32 s%d, s%d, 8" % (t0, t0))
        o.append("s_add_u32 s%d, s%d, %d" % (t0, t0, WS_FH))
        self.bits(o, self.vPf, vu, ((6, 1, 7), (7, 1, 11)))
        o.append("v_add_u32 v%d, s%d, v%d" % (self.vPf, t0, self.vPf))
        o.append("v_lshl_add_u32 v%d, s%d, 16, v%d" % (self.vPf, sRole, self.vPf))
        self.bits(o, self.vFlag, None, ((0, 5, 2),))
        o.append("v_add_u32 v%d, v%d, v%d" % (self.vFlag, self.vFlag, self.vPf))
        if self.o["lflag"]:
            o.append("v_bfe_u32 v%d, v0, 5, 1" % vu)
            o.append("v_mul_u32_u24 v%d, 0x%x, v%d" % (vu, WS_LF, vu))
            o.append("v_add_u32 v%d, v%d, v%d" % (self.vPf, vu, self.vPf))
        self.emit(o)
        self.vUT = vUT
        for q in (vt, vu, vUA, vp, vd): V.rel(q)
        self.vg = vg
        A("s_cmp_eq_u32 s%d, 0" % sRole)
        A("s_cbranch_scc0 L_att")

    def p2_addr(self, first, vt, vu):
        t0, t1, t3 = self.t0, self.t1, self.t3
        o = []
        o.append("s_lshr_b32 s%d, s%d, 1" % (t3, self.sW))
        o.append("s_lshr_b32 s%d, s%d, 1" % (t1, self.sRT))
        o.append("s_lshl1_add_u32 s%d, s%d, s%d" % (t0, t1, t3))
        self.bits(o, self.vf, None, ((0, 3, 7),))
        o.append("v_lshl_add_u32 v%d, s%d, 10, v%d" % (self.vf, t0, self.vf))
        o.append("s_mov_b32 s%d, %d" % (self.sFO, WS_FO)); o.append("s_mov_b32 s%d, %d" % (self.sFH, WS_FH))
        if self.o["lflag"]:
            o.append("s_mov_b32 s%d, %d" % (self.sLF, WS_LF))
            o.append(lambda: (self.A("s_cmp_eq_u32 s%d, s%d" % (t3, self.sRH)), self.A("s_cselect_b32 s%d, s%d, 0" % (self.sLX, self.sLF))))
            o.append("s_add_u32 s%d, s%d, s%d" % (self.sFH, self.sFH, self.sLX))
            o.append("s_add_u32 s%d, s%d, s%d" % (self.sFO, self.sFO, self.sLX))
        o.append("s_mul_i32 s%d, s%d, %d" % (t0, self.sRT, RT_STRIDE))
        o.append("s_lshl_b32 s%d, s%d, 14" % (self.sO, t3))
        o.append("s_lshl1_add_u32 s%d, s%d, s%d" % (self.sH, self.sO, t0))
        o.append("s_add_u32 s%d, s%d, %d" % (self.sH, self.sH, WS_A))
        o.append("s_add_u32 s%d, s%d, s%d" % (self.sO, self.sO, t0))
        o.append("s_add_u32 s%d, s%d, %d" % (self.sO, self.sO, WS_A + 65536))
        if self.o["wopar"]: o.append("s_lshl4_add_u32 s%d, s%d, s%d" % (self.sO, self.sP9, self.sO))
        o.append("s_mul_i32 s%d, s%d, %d" % (t0, t3, 32768 + 4096))
        if first: o.append("s_add_u32 s%d, s%d, %d" % (t0, t0, first))
        o.append("v_add_u32 v%d, s%d, v%d" % (self.ac[0][0], t0, self.vBase))
        o.append("v_xor_b32 v%d, 64, v%d" % (self.ac[0][1], self.ac[0][0]))
        for sx in range(2): o.append("v_xor_b32 v%d, 4096, v%d" % (self.ac[1][sx], self.ac[0][sx]))
        self.bits(o, vt, None, ((4, 2, 5),))
        o.append("v_xor_b32 v%d, v%d, v%d" % (vt, vt, self.vL16))
        o.append("v_lshl_add_u32 v%d, s%d, 12, v%d" % (self.vr, self.sW, vt))
        if first: o.append("v_add_u32 v%d, %d, v%d" % (self.vr, first, self.vr))
        self.bits(o, vt, vu, ((3, 1, 3), (4, 1, 0), (5, 1, 4), (6, 1, 2)))
        o.append("v_lshl_add_u32 v%d, s%d, 6, v%d" % (vt, t1, vt))
        self.bits(o, vu, None, ((0, 3, 4),))
        o.append("v_lshl_add_u32 v%d, v%d, 11, v%d" % (vt, vt, vu))
        o.append("s_lshl1_add_u32 s%d, s%d, s%d" % (t0, self.sCT, t3))
        o.append("v_lshl_add_u32 v%d, s%d, 7, v%d" % (self.vOut, t0, vt))
        return o

    def skip_term(self):
        xd = self.vXD; dm = self.of; og = self.of + 8
        W = []
        for a1 in range(2): W.append("v_sub_f32 v%d, 1.0, v%d" % (og + a1, self.vG2 + 2 * a1))
        for k in range(4):
            W.append("v_and_b32 v%d, 0xffff, v%d" % (dm + 2 * k, self.vDs + k))
            W.append("v_and_b32 v%d, 0xffff0000, v%d" % (dm + 2 * k + 1, self.vDs + k))
        for a1 in range(2): W.append("v_cvt_pk_bf16_f32 v%d, 0, v%d" % (og + a1, og + a1))
        for n in range(16): W.append("v_dot2_f32_bf16 v%d, v%d, v%d, 0" % (xd + n, self.xdf + (n >> 1), dm + (n & 7)))
        for q in range(8): W.append("v_pk_mul_f32 %s, %s, %s %s" % (v(xd + 2 * q, 2), v(og, 2), v(xd + 2 * q, 2), "op_sel:[1,0]" if q >> 2 else "op_sel_hi:[0,1]"))
        return W

    def gate_fill(self):
        V = self.V
        F = []
        t0, t1 = self.S(), self.S()
        gx = self.gx; g = gx + 12; vt = self.V()
        F.append("s_add_u32 s%d, s%d, 1" % (self.sE, self.sE))
        F.append("s_mul_i32 s%d, s%d, 0x9e3779b1" % (self.sTag, self.sE))
        F.append("v_mov_b32 v%d, s%d" % (self.vTag, self.sTag))
        F.append("v_mov_b32 v%d, 0" % g); F.append("v_mov_b32 v%d, 0" % (g + 2))
        for i in range(4):
            F.append("v_dot2c_f32_bf16 v%d, v%d, v%d" % (g, gx + i, gx + 8 + i))
            F.append("v_dot2c_f32_bf16 v%d, v%d, v%d" % (g + 2, gx + 4 + i, gx + 8 + i))
        side = ["v_mov_b32 v%d, v%d" % (g + 1, self.vTag), "v_mov_b32 v%d, v%d" % (g + 3, self.vTag), "v_cmp_eq_u32 vcc, 0x3f0, v%d" % self.vL16,
                "v_mov_b32 v%d, 0x%x" % (vt, HUGE)]
        side.append("s_and_b32 s%d, s%d, 32" % (t0, self.sN2))
        for bit, w_, sh in ((1, 1, 4), (3, 2, 2), (0, 1, 1), (2, 1, 0)):
            side.append("s_bfe_u32 s%d, s%d, 0x%x" % (t1, self.sN2, (w_ << 16) | bit))
            side.append(("s_lshl%d_add_u32" % sh if sh else "s_add_u32") + " s%d, s%d, s%d" % (t0, t1, t0))
        side.append("v_cndmask_b32 v%d, v%d, 0, vcc" % (vt, vt))
        side.append("s_lshl_b32 s%d, s%d, 10" % (t1, self.sR))
        side.append("s_lshl4_add_u32 s%d, s%d, s%d" % (t0, t0, t1))
        side.append("s_add_u32 s%d, s%d, %d" % (t0, t0, WS_G))
        F += side[:3]; side = side[3:]
        for md in ("row_shr:1 row_mask:0xf", "row_shr:2 row_mask:0xf", "row_shr:4 row_mask:0xf", "row_shr:8 row_mask:0xf", "row_bcast:15 row_mask:0xa", "row_bcast:31 row_mask:0xc"):
            for q in (g, g + 2): F.append("v_add_f32_dpp v%d, v%d, v%d %s bank_mask:0xf" % (q, q, q, md))
            F += side[:2]; side = side[2:]
        for q in (g, g + 2): F.append("v_mul_f32 v%d, 0xbfb8aa3b, v%d" % (q, q))
        for q in (g, g + 2): F.append("v_exp_f32 v%d, v%d" % (q, q))
        for q in (g, g + 2): F.append("v_add_f32 v%d, 1.0, v%d" % (q, q))
        for q in (g, g + 2): F.append("v_rcp_f32 v%d, v%d" % (q, q))
        F += side
        for q in (g, g + 2): F.append("v_cvt_pk_bf16_f32 v%d, 0, v%d" % (q, q))
        def st():
            self.A("buffer_store_dwordx4 %s, v%d, %s, s%d offen sc1" % (v(g, 4), vt, self.WS, t0)); self.vm.issue("gst")
        F.append(st)
        return F

    def g_loads(self):
        for k in range(self.nG1):
            self.A("buffer_load_dwordx4 %s, v%d, %s, 0 offen%s sc1" % (v(self.vG1 + 4 * k, 4), self.vG1a, self.WS, " offset:256" if k else "")); self.vm.issue("g")
        self.A("buffer_load_dwordx4 %s, v%d, %s, 0 offen sc1" % (v(self.vG2, 4), self.vG2a, self.WS)); self.vm.issue("g")

    def g_check(self, name, vt):
        A = self.A
        self.vm.wait("g")
        A.label("L_gchk_" + name)
        A("v_xor_b32 v%d, v%d, v%d" % (vt, self.vG2 + 1, self.vTag))
        for q in [self.vG2 + 3] + [self.vG1 + 1 + 2 * k for k in range(2 * self.nG1)]:
            A("v_bitop3_b32 v%d, v%d, v%d, v%d bitop3:0xf6" % (vt, vt, q, self.vTag))
        A("v_cmp_ne_u32 vcc, 0, v%d" % vt)
        self.cap()
        A("s_cbranch_scc0 L_gok_" + name)
        q = list(self.vm.q)
        self.g_loads(); A("s_waitcnt vmcnt(0)")
        self.vm.q = q
        A("s_branch L_gchk_" + name)
        A.label("L_gok_" + name)

    def hop(self, name):
        if not self.o["hop"]: return
        A = self.A
        A("s_mov_b64 exec, 0")
        for w in range(3):
            A("s_cmp_eq_u32 s%d, %d" % (self.sW, w))
            A("s_cbranch_scc1 @CHAIN%s%d@" % (name, w))
        A("s_branch @CHAIN%s3@" % name)
        if name == "s":
            A.label("L_backx")
            A("s_cmp_eq_u32 s%d, 0" % self.sRole)
            A("s_cbranch_scc0 L_backa")
        A.label("L_back" + name)
        A("s_mov_b64 exec, -1")

    def p1_loop(self, name, xread, wread, mfma, tail, fill):
        A = self.A
        def warm(tok):
            if tok == "w": A("global_load_dword v%d, v%d, s[48:49]" % (self.vJunk, self.vPf))
            else: A("global_load_dword v%d, v%d, s[%d:%d]" % (self.vJunk, self.vWq, P_WQKV, P_WQKV + 1))
            self.vm.issue("junk")
        self.stamp(20)
        early = list(self.early)
        gf = self.gate_fill()
        for tok in self.o["third"][name == "a"]:
            if tok in "wq": warm(tok)
            elif tok == "G":
                A("s_waitcnt vmcnt(%d) lgkmcnt(0)" % (len(self.vm.q) - self.vm.q.index("ch0")))
                self.emit(gf); gf = []
            elif tok == "f":
                if name == "s": A("s_waitcnt vmcnt(%d)" % (len(self.vm.q) - self.vm.q.index("ch0")))
                k = min(self.o["nf"][name == "a"], len(fill))
                self.emit(fill[:k]); fill = fill[k:]
            elif tok == "h": self.hop(name)
            else: self.emit(early[:int(tok)]); early = early[int(tok):]
        assert not early
        self.stamp(21)
        if self.o["xdo"]:
            A("s_branch L_loop" + name)
            for c in range(8):
                A.label("L_xd_%s%d" % (name, c))
                hi, lo = self.slot(c) >> 16, self.slot(c) & 0xffff
                for n in range(4): A("ds_read_b64 %s, v%d offset:%d" % (v(self.xdf + 2 * n, 2), self.axd[hi][n & 1], lo + 2048 * (n >> 1)))
                A("s_branch L_nx_%s%d" % (name, c))
            A.label("L_loop" + name)
        gap = {}
        def at(n, x): gap.setdefault(n, []).append(x)
        nw = len(wread(0, 0))
        wpos = {1: ((-8,), (-3,), (0,), (4,)), 2: ((-8, -7), (-2, -1), (1, 2), (5, 6))}[nw]
        dpos = {1: (-2, 2, 6, -1 + 8 + 3), 2: (0, 3, 4, 7)}[nw]
        xpos = [-8 + nw + i for i in range(4)]
        last = []
        early_n = self.o["early"][name == "a"]; ex = self.wo_stag()
        for c in range(8):
            base = 32 * c
            def sync(c=c):
                n1 = self.vm.need("ch%d" % c)
                if c == 6 and "wo0" in self.vm.q: n1 = self.vm.need("wo0")
                if c in (0, 6, 7):
                    A("s_waitcnt vmcnt(%d) lgkmcnt(0)" % n1); self.lg.zero(False)
                else: A("s_waitcnt vmcnt(%d)" % n1)
                self.stamp({0: 1, 1: 2, 2: 3, 3: 27, 4: 4, 5: 28, 6: 29, 7: 5}[c])
                A("s_barrier")
            at(base - 9, sync)
            for k in range(self.o["pause"][c]): at(base + 7 + 8 * (k & 1) * self.o["psplit"], "s_nop 15")
            for sx in range(2):
                st = 2 * c + sx
                for t in range(4):
                    for p, x in zip(wpos[t], wread(st, t)): at(16 * st + p, self.ds(x, "w%d_%d" % (st, t)))
                    at(16 * st + xpos[t], self.ds(xread(st, t), "x%d_%d" % (st, t)))
            def xd(c=c):
                A("s_cmp_eq_u32 s%d, %d" % (self.sCX, c))
                if self.o["xdo"]: A("s_cbranch_scc1 L_xd_%s%d" % (name, c))
                else:
                    A("s_cbranch_scc0 L_nx_%s%d" % (name, c))
                    hi, lo = self.slot(c) >> 16, self.slot(c) & 0xffff
                    for n in range(4): A("ds_read_b64 %s, v%d offset:%d" % (v(self.xdf + 2 * n, 2), self.axd[hi][n & 1], lo + 2048 * (n >> 1)))
                A.label("L_nx_%s%d" % (name, c))
            at(base + (3 if nw == 1 else 4), xd)
            dm = self.chunk_dmas(c + 2) if c + 2 < 8 else tail[c - 6]
            if c == 7 and name == "s" and self.o["late7"]: last = dm; dm = []
            pos = list(self.o["dpos"][nw - 1])
            ne = early_n[c] if early_n else 0
            if ne:
                for i in range(ne): dm.insert({1: (4,), 2: (2, 7), 3: (2, 5, 8), 4: (2, 5, 8, 11)}[ne][i], ex.pop(0))
                pos = [-7 + (30 * i) // len(dm) for i in range(len(dm))]
            if c == 6 and early_n:
                assert not ex
                for i, x in enumerate(self.wo_reads(0)): at(base - 8 + (28 * i) // 32, self.ds(x, "wor"))
            if c == 0:
                k = self.o["d0"]; pos = [22 - 2 * (k - i) for i in range(k)] + [22] * (len(dm) - k)
            pos = [max(-8, pos[0] - 3)] * max(0, len(dm) - len(pos)) + pos
            prev = -8
            for i, x in enumerate(dm):
                p = pos[i]
                if isinstance(x, tuple):
                    for k, y in enumerate(x[0]): at(base + max(prev, p - len(x[0]) + k), y)
                    at(base + p, x[1])
                else: at(base + p, x)
                prev = p
        m0_, m1_, nm = self.o["mid"]
        if name == "s": nm = min(nm, self.o["smid"])
        if self.o["gmid"]: fill = gf + fill; gf = []
        if self.o["glate"]:
            gc, g0, g1 = self.o["glate"]
            def rows():
                for k in range(2):
                    A("buffer_load_dwordx4 %s, v%d, %s, 0 offen%s" % (v(self.gx + 4 * k, 4), self.vg, self.X, " offset:2048" if k else "")); self.vm.issue("grow")
            at(gc, rows)
            at(g0, lambda: self.vm.wait("grow"))
            for i, x in enumerate(gf[3:]): at(g0 + ((g1 - g0) * i) // len(gf), x)
            gf = gf[:3]
        if self.o["qat"] and (name == "a" or self.o["qmode"] == 2): at(self.o["qat"], lambda: warm("q"))
        if name == "s" and self.o["wat"]:
            def w2():
                for srd in (self.WO, self.CIM, self.CRE)[:self.o["wn"]]:
                    A("buffer_load_dword v%d, v%d, %s, 0 offen" % (self.vJunk, self.vW2, srd)); self.vm.issue("junk")
            at(self.o["wat"], w2)
        nm = min(nm, len(fill)); midl = fill[len(fill) - nm:]; fill = fill[:len(fill) - nm]
        for i, x in enumerate(midl): at(m0_ + ((m1_ - m0_) * i) // nm, x)
        fl = gf + fill
        for n in range(-9, 256):
            if n >= 0:
                st, k = n >> 4, n & 15
                if k == 0: self.lg.wait("x%d_1" % st)
                elif k == 2: self.lg.wait("x%d_3" % st)
                elif k & 3 == 0: self.lg.wait("w%d_%d" % (st, k >> 2))
                mfma(st, k >> 2, k & 3)
            g_ = gap.pop(n, [])
            if -1 <= n < 22:
                k = -(-len(fl) // (22 - n))
                assert "par" not in self.vm.q
                g_ = g_ + fl[:k]; fl = fl[k:]
            self.emit(g_)
        assert not fl and not gap, gap
        self.last = last
        if self.o["late7"] == 1: self.emit(last); self.last = []
        self.stamp(6)

    def ssm(self):
        A, V, S = self.A, self.V, self.S
        t0, t1, t2, t3 = self.t0, self.t1, self.t2, self.t3
        vt = V(); vu = V()
        for q in (self.vUT, self.vTr): V.rel(q)
        self.nG1 = 2; self.vG1 = V(8, 4)
        ax = [[V(), V()], [V(), V()]]; ab = [[V(), V()], [V(), V()]]
        Q = lambda: V(4, 2)
        F = []
        for fam, sel in ((ax, t3), (ab, t2)):
            F.append("v_lshl_add_u32 v%d, s%d, 13, v%d" % (fam[0][0], sel, self.vBase))
            F.append("v_xor_b32 v%d, 64, v%d" % (fam[0][1], fam[0][0]))
            for sx in range(2): F.append("v_add_u32 v%d, 0x10000, v%d" % (fam[1][sx], fam[0][sx]))
        m0_, m1_, mw = S(2, 2), S(2, 2), S(2, 2)
        F.append("s_mov_b32 s%d, 0xffff0000" % m0_); F.append("s_mov_b32 s%d, 0xffff0000" % (m0_ + 1))
        F.append("s_mov_b32 s%d, 0" % m1_); F.append("s_mov_b32 s%d, -1" % (m1_ + 1))
        F.append("s_sub_u32 s%d, 0, s%d" % (mw, t3)); F.append("s_mov_b32 s%d, s%d" % (mw + 1, mw))
        Sk = V(2)
        F.append("v_lshrrev_b32 v%d, 2, v0" % vt)
        F.append("v_xor_b32 v%d, v0, v%d" % (vt, vt))
        F.append("v_and_b32 v%d, 12, v%d" % (vt, vt))
        F.append("v_and_or_b32 v%d, v0, 2, v%d" % (vt, vt))
        F.append("v_cmp_eq_u32 vcc, 0, v%d" % vt)
        F.append("v_cmp_eq_u32 s[%d:%d], 2, v%d" % (self.sMk, self.sMk + 1, vt))
        F.append("v_bfe_i32 v%d, v0, 0, 1" % vu)
        F.append("v_xor_b32 v%d, 0xffff, v%d" % (vu, vu))
        F.append("v_cndmask_b32 v%d, 0, v%d, vcc" % (Sk, vu))
        F.append("v_cndmask_b32 v%d, 0, v%d, s[%d:%d]" % (Sk + 1, vu, self.sMk, self.sMk + 1))
        vEs = V(); vXa = V(); ea = [V() for _ in range(4)]; et = [V() for _ in range(4)]
        F.append("s_lshl1_add_u32 s%d, s%d, s%d" % (t0, self.sJ, t2))
        F.append("s_lshl_b32 s%d, s%d, 12" % (t0, t0))
        F.append("s_add_u32 s%d, s%d, %d" % (t0, t0, WS_E))
        F.append("s_add_u32 s68, s48, s%d" % t0); F.append("s_addc_u32 s69, s49, 0")
        self.bits(F, vt, None, ((0, 4, 4),))
        F.append("v_lshl_add_u32 v%d, s%d, 8, v%d" % (vEs, self.sR, vt))
        F.append("v_lshl_add_u32 v%d, s%d, 8, v%d" % (vXa, self.sW, vt))
        F.append("v_lshl_add_u32 v%d, s%d, 6, v%d" % (vXa, self.sP9, vXa))
        F.append("v_xor_b32 v%d, %d, v%d" % (vXa, L_R1 + 32768, vXa))
        self.bits(F, ea[0], None, ((4, 2, 8),))
        F.append("v_sub_u32 v%d, v%d, v%d" % (ea[0], vEs, ea[0]))
        F.append("v_subrev_u32 v%d, 256, v%d" % (ea[0], ea[0]))
        F.append("v_and_b32 v%d, 0xb0, v0" % vt)
        F.append("v_cmp_eq_u32 vcc, 0x80, v%d" % vt)
        F.append("v_add_u32 v%d, s%d, v%d" % (vu, t0, vEs))
        F.append("v_mov_b32 v%d, 0x%x" % (vt, HUGE))
        for k in range(1, 4): F.append("v_subrev_u32 v%d, %d, v%d" % (ea[k], 1024 * k, ea[0]))
        for k in range(4): F.append("v_ashrrev_i32 v%d, 31, v%d" % (et[k], ea[k]))
        F.append("v_cndmask_b32 v%d, v%d, v%d, vcc" % (vEs, vt, vEs))
        F.append("v_cndmask_b32 v%d, v%d, v%d, vcc" % (self.vPf, self.vPf, vu))
        if self.o["wat"]:
            self.vW2 = V()
            if self.o["wl2"]:
                F.append("s_lshr_b32 s%d, s2, 6" % t0); F.append("s_and_b32 s%d, s%d, 3" % (t1, self.sJ)); F.append("s_lshl2_add_u32 s%d, s%d, s%d" % (t0, t0, t1))
                F.append("v_lshl_add_u32 v%d, s%d, 8, v0" % (self.vW2, t0))
            else:
                F.append("s_lshl3_add_u32 s%d, s%d, s%d" % (t0, self.sR, self.sJ))
                F.append("v_lshrrev_b32 v%d, 3, v0" % self.vW2)
                F.append("v_lshl_add_u32 v%d, s%d, 5, v%d" % (self.vW2, t0, self.vW2))
            F.append("v_lshlrev_b32 v%d, 7, v%d" % (self.vW2, self.vW2))
        sH = [S() for _ in range(4)]
        F.append("s_mul_i32 s%d, s%d, %d" % (t0, self.sRW, 2 * RT_STRIDE))
        F.append("s_and_b32 s%d, s%d, 4" % (t1, self.sJ)); F.append("s_add_u32 s%d, s%d, s%d" % (t1, t1, self.sJ))
        F.append("s_lshl1_add_u32 s%d, s%d, s%d" % (t1, t1, t2)); F.append("s_lshl_b32 s%d, s%d, 11" % (t1, t1))
        F.append("s_add_u32 s%d, s%d, s%d" % (t0, t0, t1))
        for tau in range(2):
            for comp in range(2):
                F.append("s_add_u32 s%d, s%d, %d" % (sH[2 * tau + comp], t0, WS_A + tau * RT_STRIDE + comp * 16384))
        self.emit(F)
        F = []
        pre, pim, pdt = self.ppar
        lam, cf, mu, l16, l32, l64, L4, Lg, x16, x32 = [Q() for _ in range(10)]
        al = [Q(), Q()]
        ta, tb, tc = self.acc[0], self.acc[0] + 4, self.acc[0] + 8
        P2 = lambda r: v(r, 2)
        for q in (pre, pim, pdt):
            for b in range(2): F.append("v_lshlrev_b32 v%d, 16, v%d" % (q + b, q + b))
        for b in range(2): F.append("v_mul_f32 v%d, %s, v%d" % (pdt + b, LOG2E, pdt + b))
        for b in range(2): F.append("v_exp_f32 v%d, v%d" % (pdt + b, pdt + b))
        F.append("v_pk_mul_f32 %s, %s, %s" % (P2(tb), P2(pre), P2(pre)))
        for b in range(2): F.append("v_cvt_pk_bf16_f32 v%d, 0, v%d" % (pdt + b, pdt + b))
        F.append("v_pk_fma_f32 %s, %s, %s, %s" % (P2(tb), P2(pim), P2(pim), P2(tb)))
        F.append("v_pk_mul_f32 %s, %s, %s" % (P2(ta), P2(pdt), P2(pre)))
        F.append("v_pk_mul_f32 %s, %s, %s" % (P2(ta + 2), P2(pdt), P2(pim)))
        for b in range(2): F.append("v_mul_f32 v%d, %s, v%d" % (ta + b, LOG2E, ta + b))
        for b in range(2): F.append("v_mul_f32 v%d, 0.15915494, v%d" % (ta + 2 + b, ta + 2 + b))
        for b in range(2): F.append("v_exp_f32 v%d, v%d" % (ta + b, ta + b))
        for b in range(2): F.append("v_rndne_f32 v%d, v%d" % (tb + 2 + b, ta + 2 + b))
        for b in range(2): F.append("v_sub_f32 v%d, v%d, v%d" % (ta + 2 + b, ta + 2 + b, tb + 2 + b))
        for b in range(2): F.append("v_rcp_f32 v%d, v%d" % (tb + b, tb + b))
        for b in range(2): F.append("v_cos_f32 v%d, v%d" % (lam + b, ta + 2 + b))
        for b in range(2): F.append("v_sin_f32 v%d, v%d" % (lam + 2 + b, ta + 2 + b))
        F.append("v_pk_add_f32 %s, %s, %s" % (P2(tb), P2(tb), P2(tb)))
        for k in (0, 2): F.append("v_pk_mul_f32 %s, %s, %s" % (P2(lam + k), P2(lam + k), P2(ta)))
        for b in range(2): F.append("v_add_f32 v%d, -1.0, v%d" % (ta + b, lam + b))
        F.append("v_pk_mul_f32 %s, %s, %s" % (P2(cf), P2(ta), P2(pre)))
        F.append("v_pk_mul_f32 %s, %s, %s" % (P2(cf + 2), P2(lam + 2), P2(pre)))
        F.append("v_pk_fma_f32 %s, %s, %s, %s" % (P2(cf), P2(lam + 2), P2(pim), P2(cf)))
        F.append("v_pk_fma_f32 %s, %s, %s, %s neg_lo:[1,0,0] neg_hi:[1,0,0]" % (P2(cf + 2), P2(ta), P2(pim), P2(cf + 2)))
        for k in (0, 2): F.append("v_pk_mul_f32 %s, %s, %s" % (P2(cf + k), P2(cf + k), P2(tb)))
        chain = [lam, ta, tb, mu, l16, l32, l64, ta, tb, L4]
        for x_, y_ in zip(chain, chain[1:]):
            F.append("v_pk_mul_f32 %s, %s, %s" % (P2(y_), P2(x_), P2(x_)))
            F.append("v_pk_mul_f32 %s, %s, %s" % (P2(y_ + 2), P2(x_), P2(x_ + 2)))
            F.append("v_pk_fma_f32 %s, %s, %s, %s neg_lo:[1,0,0] neg_hi:[1,0,0]" % (P2(y_), P2(x_ + 2), P2(x_ + 2), P2(y_)))
            F.append("v_pk_add_f32 %s, %s, %s" % (P2(y_ + 2), P2(y_ + 2), P2(y_ + 2)))
        def sel(out, d, src, mk, one):
            for k in range(4): out.append("v_cndmask_b32 v%d, %s, v%d, s[%d:%d]" % (d + k, "1.0" if (one and k < 2) else "0", src + k, mk, mk + 1))
        sel(F, ta, ta, m0_, 1); sel(F, tb, tb, m1_, 1)
        self.pmul(F, Lg, ta, tb)
        sel(F, x16, l16, m0_, 1); sel(F, x32, l32, m1_, 1); sel(F, ta, l64, mw, 1)
        self.pmul(F, tb, x16, x32); self.pmul(F, tc, tb, ta)
        for b in range(2):
            self.cmul(F, al[b], al[b] + 2, cf + b, cf + 2 + b, tc + b, tc + 2 + b)
            self.cmul(F, al[b] + 1, al[b] + 3, mu + b, mu + 2 + b, al[b], al[b] + 2)
        U = [[V(16, 4), V(16, 4)], [V(16, 4), V(16, 4)]]
        def lds(fam, st, off):
            tot = self.slot(st >> 1) + off
            return fam[tot >> 16][st & 1], tot & 0xffff
        xread = lambda st, t: "ds_read_b128 %s, v%d offset:%d" % ((a(64 + 32 * (st & 1) + 4 * t, 4),) + lds(ax, st, 2048 * t))
        wread = lambda st, t: ["ds_read_b128 %s, v%d offset:%d" % ((a(64 + 32 * (st & 1) + 16 + 4 * t, 4),) + lds(ab, st, 16384 + 4096 * (t & 1) + 2048 * (t >> 1)))]
        def mfma(st, t, x):
            self.mf(U[t & 1][t >> 1] + 4 * x, a(64 + 32 * (st & 1) + 4 * x, 4), a(64 + 32 * (st & 1) + 16 + 4 * t, 4), "0" if st == 0 else None)
        c1 = self.c_dmas(1, L_R1); c0 = self.c_dmas(0, L_R0)
        early = self.o["early"][0]
        sl = self.o["ssm"]
        if early:
            a1 = c1[:8]; ld = self.wo_dmas(1) + c0[:8] + c1[8:] + c0[8:]
        else:
            a1 = self.wo_dmas(0); ld = c1[:8] + c0[:8] + c1[8:] + self.wo_dmas(1) + c0[8:]
        assert sl[0] <= 8 and sl[0] + sl[1] <= 16 and sum(sl[:5]) >= 24
        def take(n):
            out = ld[:n]; del ld[:n]
            return out
        self.p1_loop("s", xread, wread, mfma, [([] if self.o["glate"] else [self.g_loads]) + a1, take(sl[0])], F)
        for q in self.ppar: V.rel(q, 2)
        for fam in (ax, ab):
            for row in fam:
                for q in row: V.rel(q)
        for q in self.vw + self.vx: V.rel(q)
        pr = lambda b, m: (U[0][b] + 2 * m, U[1][b] + 2 * m)
        T = self.acc[0]; T2 = self.acc[1]
        E = [[T, T + 4], [T + 8, T + 12]]
        o = []
        for b in range(2):
            cur = pr(b, 0)
            for m in range(1, 8):
                self.pmul(o, E[b][m & 1], lam, cur, pr(b, m), b); cur = E[b][m & 1]
        Ev = [E[0][1], E[1][1]]
        Fe, Fo, Ge, Go = T, T + 8, T2, T2 + 4
        Wv, W0, e = T2 + 8, T2 + 12, Q()
        for b in range(2): self.cmul(o, Fe + b, Fe + 2 + b, mu + b, mu + 2 + b, Ev[b], Ev[b] + 2, Ev[b] + 1, Ev[b] + 3)
        def split(out, x, y, w):
            for k in (0, 2): out.append("v_pk_mov_b32 %s, %s, %s op_sel:[0,1]" % (P2(y + k), P2(x + k), P2(x + k)))
            for k in range(4): out.append("v_permlane%d_swap_b32 v%d, v%d" % (w, x + k, y + k))
        split(o, Fe, Fo, 16)
        self.pmul(o, Ge, l16, Fe, Fo)
        split(o, Ge, Go, 32)
        self.pmul(o, Wv, l32, Ge, Go)
        k = self.o["l7at"]
        self.emit(o[:k] + weave(o[k:64], self.last) + o[64:])
        A("ds_write_b128 v%d, %s" % (vXa, v(Wv, 4)))
        A("v_and_b32 v%d, 0xfffffdff, v%d" % (vXa, vXa))
        tt = (t0, t1, t2, t3)
        for k in range(4): A("s_mov_b32 s%d, 0x%x" % (tt[k], 0x07060500 + k))
        self.vm.wait("wo0")
        A("s_waitcnt lgkmcnt(0)")
        A("s_barrier")
        A("ds_read_b128 %s, v%d" % (v(W0, 4), vXa))
        A("s_waitcnt lgkmcnt(0)"); self.lg.zero(False)
        o = []
        self.pmul(o, e, l64, W0, Wv)
        for k in range(4): o.append("v_perm_b32 v%d, v%d, v%d, s%d" % (e + k, e + k, self.vTag, tt[k]))
        self.emit(o)
        A("buffer_store_dwordx4 %s, v%d, %s, 0 offen sc1" % (v(e, 4), vEs, self.ER)); self.vm.issue("est")
        if self.o["glate"]: self.g_loads()
        self.stamp(7)
        W = ["s_bfe_u32 s%d, s%d, 0x%x" % (tt[k], self.sTag, 0x80000 + 8 * k) for k in range(4)]
        be = [l16, l32]
        sel(W, W0, W0, mw, 0); sel(W, Ge, Ge, m1_, 0); sel(W, Fe, Fe, m0_, 0)
        self.pmul(W, Go, x32, W0, Ge)
        self.pmul(W, Fo, x16, Go, Fe)
        for b in range(2):
            self.cmul(W, be[b], be[b] + 2, cf + b, cf + 2 + b, Fo + b, Fo + 2 + b)
            self.cmul(W, Wv, Wv + 1, mu + b, mu + 2 + b, Fo + b, Fo + 2 + b, Ev[b], Ev[b] + 2)
            self.cmul(W, be[b] + 1, be[b] + 3, cf + b, cf + 2 + b, Wv, Wv + 1)
        for b in range(2):
            s2 = " op_sel:[1,0]" if b else " op_sel_hi:[0,1]"; s3 = " op_sel:[1,0,0]" if b else " op_sel_hi:[0,1,1]"
            for m in range(8):
                ur, ui = pr(b, m)
                W.append("v_pk_mul_f32 %s, %s, %s%s" % (P2(W0), P2(cf + 2), P2(ur), s2))
                W.append("v_pk_mul_f32 %s, %s, %s%s" % (P2(ur), P2(cf), P2(ur), s2))
                W.append("v_pk_fma_f32 %s, %s, %s, %s%s neg_lo:[1,0,0] neg_hi:[1,0,0]" % (P2(ur), P2(cf + 2), P2(ui), P2(ur), s3))
                W.append("v_pk_fma_f32 %s, %s, %s, %s%s" % (P2(ui), P2(cf), P2(ui), P2(W0), s3))
        self.emit(weave(W, take(sl[1]), [] if early else self.wo_reads(0)))
        self.stamp(22)
        er = T2
        def eloads():
            for i in range(4): A("buffer_load_dwordx4 %s, v%d, %s, 0 offen sc1" % (v(er + 4 * i, 4), ea[i], self.ER)); self.vm.issue("er")
        if self.o["efirst"]: eloads()
        self.g_check("ssm", vt)
        Sm = self.vG1
        for x in range(4): A("v_sub_f32 v%d, 1.0, v%d" % (Sm + 2 * x, Sm + 2 * x))
        for x in range(4): A("v_cvt_pk_bf16_f32 v%d, v%d, v%d" % (Sm + 2 * x, Sm + 2 * x, Sm + 2 * x))
        for x in range(4):
            A("v_and_b32 v%d, v%d, v%d" % (Sm + 2 * x + 1, Sk + 1, Sm + 2 * x))
            A("v_and_b32 v%d, v%d, v%d" % (Sm + 2 * x, Sk, Sm + 2 * x))
        bar_late = early and sum(sl[:4]) <= 16
        if not bar_late:
            A("s_waitcnt lgkmcnt(0)")
            A("s_barrier")
        self.emit(take(sl[2]))
        self.stamp(8); self.stamp(24)
        df = self.o["efirst"]
        if df:
            self.vm.wait("er")
            A("s_branch L_echk")
        q = list(self.vm.q)
        A.label("L_epoll")
        eloads()
        if df:
            A("s_waitcnt vmcnt(0)"); A.label("L_echk")
        for i in range(4):
            if not df: A("s_waitcnt vmcnt(%d)" % (3 - i))
            for k in range(4): A("v_bitop3_b32 v%d, v%d, v%d, s%d bitop3:0xd2" % (er + 4 * i + k, er + 4 * i + k, et[i], tt[k]))
            if i == 0: A("v_or_b32 v%d, v%d, v%d" % (vt, er, er + 1))
            else: A("v_or3_b32 v%d, v%d, v%d, v%d" % (vt, vt, er + 4 * i, er + 4 * i + 1))
            A("v_or3_b32 v%d, v%d, v%d, v%d" % (vt, vt, er + 4 * i + 2, er + 4 * i + 3))
        self.vm.q = q if df else []
        A("v_and_b32 v%d, 0xff, v%d" % (vt, vt))
        A("v_cmp_ne_u32 vcc, 0, v%d" % vt)
        self.poll_tail("L_epoll")
        self.stamp(9)
        dD = take(sl[3])
        o = []
        for i in range(2, -1, -1): self.pmul(o, er + 4 * i, L4, er + 4 * i + 4, er + 4 * i)
        cs = T; c2 = T + 4
        self.pmul(o, cs, Lg, er)
        for w_ in (16, 32):
            split(o, cs, c2, w_)
            for k in (0, 2): o.append("v_pk_add_f32 %s, %s, %s" % (P2(cs + k), P2(cs + k), P2(c2 + k)))
        for b in range(2): self.pmul(o, be[b], cs, al[b], be[b], b)
        self.emit(o)
        P1 = [mu, l64]; P1b = [x16, x32]; Pq = [self.vXD, self.vXD + 8]
        cur = [be[0], be[1]]
        def finish(x):
            out = []
            D = self.acc[x & 1]
            for comp in (1, 0):
                q = Pq[x & 1] + 4 * comp
                for k in range(4): out.append("v_cvt_pk_bf16_f32 v%d, v%d, v%d" % (q + k, D + 8 * comp + 2 * k, D + 8 * comp + 2 * k + 1))
                def st(q=q, comp=comp):
                    A("buffer_store_dwordx4 %s, v%d, %s, s%d offen%s sc1" % (v(q, 4), self.vFr, self.WS, sH[2 * (x >> 1) + comp], " offset:1024" if x & 1 else ""))
                    self.vm.issue("ast")
                out.append(st)
            return out
        pend = []
        for x in range(4):
            pk_ = (P1, P1b)[x & 1]
            for b in range(2):
                o = []
                for m in (2 * x, 2 * x + 1):
                    self.pmul(o, pr(b, m), lam, cur[b], pr(b, m), b); cur[b] = pr(b, m)
                for comp in (1, 0):
                    ng = "-" if comp else ""
                    for h in range(2):
                        r_ = U[comp][b] + 4 * x + 2 * h
                        o.append("v_cvt_pk_bf16_f32 v%d, %sv%d, %sv%d" % (pk_[b] + 2 * comp + h, ng, r_, ng, r_ + 1))
                self.emit(o[:2] + pend[:1] + o[2:5] + pend[1:] + o[5:])
                if x == 0 or (x == 1 and b == 0):
                    k = -(-len(dD) // (3 - 2 * x - b)); self.emit(dD[:k]); dD = dD[k:]
                pend = [(lambda comp=comp, b=b, x=x, pk_=pk_: self.mf(self.acc[x & 1] + 8 * comp + 4 * b, v(pk_[b] + 2 * comp, 2), v(Sm + 2 * x, 2), "0", 16)) for comp in (1, 0)]
            if x == 3: self.emit(pend)
            if x: self.emit(finish(x - 1))
        self.emit(finish(3))
        self.stamp(10)
        if bar_late: A("s_barrier")
        self.emit(weave(self.p2_addr(L_R1, self.p_vt, self.p_vu) + self.skip_term(), take(sl[4])))
        self.flag()
        self.vm.wait("c1")
        A("s_barrier")
        self.emit(take(sl[5]))
        for n in range(self.o["clead"]): self.crd(n)
        if self.o["hpw"] == 1: self.vm.wait("flag")
        self.hpoll()
        self.h_wait("s")
        return self.p2_first(ld)

    def att(self):
        A, V, S = self.A, self.V, self.S
        t0, t1, t2, t3 = self.t0, self.t1, self.t2, self.t3
        vt = V(); vu = V()
        for q in self.ppar: V.rel(q, 2)
        self.nG1 = 1; self.vG1 = V(4, 4)
        ax = [[[V(), V()], [V(), V()]] for _ in range(2)]
        akv = [[V(), V()], [V(), V()]]; aq = [V() for _ in range(4)]; vq = [V(), V()]
        sM2 = S(); sKV = [S() for _ in range(4)]; sOo = S(); sEps = S(); sC0 = S()
        vKs = V(); xw = V(); xr = V(); zx = V(); zr = V(); c10 = V(); c01 = V(); ones = V(4, 4); cl = V(2)
        kw = V(); zw = V(); rk = V(); rz = V()
        F = []
        F.append("v_lshl_add_u32 v%d, s%d, 12, v%d" % (ax[0][0][0], self.sW, self.vBase))
        F.append("v_xor_b32 v%d, 64, v%d" % (ax[0][0][1], ax[0][0][0]))
        for sx in range(2): F.append("v_xor_b32 v%d, 4096, v%d" % (ax[1][0][sx], ax[0][0][sx]))
        for lt in range(2):
            for sx in range(2): F.append("v_add_u32 v%d, 0x10000, v%d" % (ax[lt][1][sx], ax[lt][0][sx]))
        F.append("v_and_b32 v%d, 64, v0" % vt)
        F.append("v_xor_b32 v%d, v%d, v%d" % (akv[0][0], vt, self.vTr))
        F.append("v_xor_b32 v%d, 32, v%d" % (akv[0][1], akv[0][0]))
        for b in range(2): F.append("v_add_u32 v%d, 0x10000, v%d" % (akv[1][b], akv[0][b]))
        if self.o["kvw"]:
            F.append("s_lshl2_add_u32 s%d, s%d, s%d" % (t0, self.sJ, self.sW)); F.append("s_lshl4_add_u32 s%d, s%d, s%d" % (t0, t0, self.sR))
            F.append("s_lshl_b32 s%d, s%d, 10" % (t0, t0)); F.append("s_add_u32 s%d, s%d, %d" % (t0, t0, WS_KV))
            F.append("v_and_b32 v%d, 1, v0" % vt); F.append("v_cmp_eq_u32 vcc, 0, v%d" % vt)
            F.append("v_add_u32 v%d, s%d, v%d" % (vt, t0, self.vFr)); F.append("s_nop 0")
            F.append("v_cndmask_b32 v%d, v%d, v%d, vcc" % (self.vPf, self.vPf, vt))
        self.emit(F)
        F = []
        F.append("s_lshr_b32 s%d, s%d, 1" % (t3, self.sW)); F.append("s_and_b32 s%d, s%d, 1" % (t2, self.sW))
        F.append("v_lshl_add_u32 v%d, s%d, 8, v%d" % (self.vG1a, t2, self.vG1a))
        F.append("v_add_u32 v%d, %d, v%d" % (aq[0], L_R1, self.vTr))
        for t in range(1, 4): F.append("v_xor_b32 v%d, %d, v%d" % (aq[t], 32 * t, aq[0]))
        self.bits(F, vt, vu, ((3, 2, 0), (6, 1, 2), (5, 1, 3), (7, 1, 5)))
        F.append("v_mul_u32_u24 v%d, 3072, v%d" % (vt, vt))
        F.append("v_lshl_add_u32 v%d, s%d, 7, v%d" % (vt, self.sJ, vt))
        F.append("v_add_u32 v%d, v%d, v%d" % (vq[0], vt, self.vUT))
        F.append("v_add_u32 v%d, %d, v%d" % (vq[1], 16 * 3072 - 1024, vq[0]))
        F.append("s_lshl_b32 s%d, s%d, 11" % (sM2, self.sW))
        F.append("s_sub_u32 s%d, s%d, s%d" % (sC0, self.sCT, self.sCX))
        F.append("s_lshl2_add_u32 s%d, s%d, s%d" % (t0, self.sJ, self.sW))
        F.append("s_lshl_b32 s%d, s%d, 14" % (t0, t0))
        F.append("s_add_u32 s%d, s%d, %d" % (t0, t0, WS_KV))
        F.append("s_and_b32 s%d, s%d, %d" % (t1, self.sR, 12 if self.o["kown"] else 0)); F.append("s_lshl_b32 s%d, s%d, 10" % (t1, t1))
        F.append("s_add_u32 s%d, s%d, s%d" % (sKV[0], t0, t1))
        for i in range(1, 4): F.append("s_xor_b32 s%d, s%d, %d" % (sKV[i], sKV[0], 4096 * i))
        F.append("s_and_b32 s%d, s%d, %d" % (t1, self.sR, 3 if self.o["kown"] else 15))
        F.append("v_lshl_add_u32 v%d, s%d, 10, v%d" % (vKs, t1, self.vFr))
        F.append("v_lshl_add_u32 v%d, s%d, 11, v%d" % (xw, self.sW, self.vL16))
        F.append("v_add_u32 v%d, %d, v%d" % (xw, L_SP, xw))
        F.append("v_lshl_add_u32 v%d, s%d, 10, v%d" % (xr, t3, xw))
        F.append("v_and_b32 v%d, 0xffffefff, v%d" % (xr, xr))
        F.append("v_lshrrev_b32 v%d, 2, v%d" % (zx, xw)); F.append("v_add_u32 v%d, %d, v%d" % (zx, L_SP + 8192 - L_SP // 4, zx))
        F.append("v_lshrrev_b32 v%d, 2, v%d" % (zr, xr)); F.append("v_add_u32 v%d, %d, v%d" % (zr, L_SP + 8192 - L_SP // 4, zr))
        F.append("v_mov_b32 v%d, 0x3f80" % c10); F.append("v_mov_b32 v%d, 0x3f800000" % c01)
        for i in range(4): F.append("v_mov_b32 v%d, 0x3f803f80" % (ones + i))
        F.append("v_mov_b32 v%d, %s" % (cl, LOG2E))
        F.append("s_mov_b32 s%d, 0x358637bd" % sEps)
        KB = L_R1 + 7 * 8192; ZB = KB + 2048
        F.append("s_lshl1_add_u32 s%d, s%d, s%d" % (t0, t2, t3))
        F.append("v_lshrrev_b32 v%d, 1, v%d" % (rk, self.vL16)); F.append("v_add_u32 v%d, %d, v%d" % (rk, KB, rk))
        F.append("v_lshl_add_u32 v%d, s%d, 9, v%d" % (kw, t0, rk))
        self.bits(F, zw, None, ((0, 4, 1),)); F.append("v_add_u32 v%d, %d, v%d" % (zw, ZB, zw))
        F.append("v_lshl_add_u32 v%d, s%d, 9, v%d" % (zw, t0, zw))
        self.bits(F, rz, None, ((4, 2, 3),)); F.append("v_add_u32 v%d, %d, v%d" % (rz, ZB, rz))
        F.append("s_lshl1_add_u32 s%d, s%d, s%d" % (t0, self.sRW, t2))
        F.append("s_mul_i32 s%d, s%d, %d" % (t0, t0, RT_STRIDE))
        F.append("s_lshl_b32 s%d, s%d, 12" % (t1, self.sJ)); F.append("s_add_u32 s%d, s%d, s%d" % (t0, t0, t1))
        F.append("s_add_u32 s%d, s%d, %d" % (sOo, t0, WS_A + 65536))
        F += self.p2_addr(L_R0, vt, vu)
        KV = [V(16, 4) for _ in range(4)]
        def xf(st, x): return a(128 + 8 * st + 4 * x, 4) if x < 2 else a(64 + 32 * (st & 1) + 4 * x, 4)
        def xread(st, x):
            tot = self.slot(st >> 1) + 2048 * (x & 1)
            return "ds_read_b128 %s, v%d offset:%d" % (xf(st, x), ax[x >> 1][tot >> 16][st & 1], tot & 0xffff)
        def wread(st, t):
            out = []
            for h in range(2):
                tot = self.slot(st >> 1) + 16384 + 8192 * (t >> 1) + 4096 * (st & 1) + 2048 * h
                out.append("ds_read_b64_tr_b16 %s, v%d offset:%d" % (a(64 + 32 * (st & 1) + 16 + 4 * t + 2 * h, 2), akv[tot >> 16][t & 1], tot & 0xffff))
            return out
        def mfma(st, t, x):
            self.mf(KV[t] + 4 * x, xf(st, x), a(64 + 32 * (st & 1) + 16 + 4 * t, 4), "0" if st == 0 else None)
        wq = []
        for c in range(8):
            for i in range(2):
                pre = [] if i else ["s_add_u32 m0, s%d, %d" % (sM2, L_R1 + c * 8192), "s_add_u32 s%d, s%d, %d" % (t0, sC0, c),
                                    "s_and_b32 s%d, s%d, 7" % (t0, t0), "s_mul_i32 s%d, s%d, %d" % (t0, t0, 64 * 3072)]
                wq.append((pre, (lambda i=i: self.dma(vq[i], self.WA, "s%d" % t0, 1024 * i, "wq"))))
        self.p1_loop("a", xread, wread, mfma, [([] if self.o["glate"] else [self.g_loads]) + wq[:8], wq[8:]], F)
        for lt in range(2):
            for row in ax[lt]:
                for q in row: V.rel(q)
        for q in akv[0] + akv[1] + vq + self.vx + self.vw + [self.vUT, self.vTr]: V.rel(q)
        tmp = V(8, 4)
        def phi(src, dst):
            out = []
            for k0 in range(0, 8, 4):
                for k in range(k0, k0 + 4):
                    out.append("v_pk_mul_f32 %s, %s, %s op_sel_hi:[0,1]" % (v(tmp + 2 * (k & 3), 2), v(cl, 2), v(src + 2 * k, 2)))
                for k in range(k0, k0 + 4):
                    for h in range(2):
                        out.append("v_exp_f32 v%d, v%d clamp" % (tmp + 2 * (k & 3) + h, tmp + 2 * (k & 3) + h))
                        out.append("v_max_f32 v%d, s%d, v%d" % (src + 2 * k + h, sEps, src + 2 * k + h))
                for k in range(k0, k0 + 4):
                    out.append("v_pk_add_f32 %s, %s, %s" % (v(src + 2 * k, 2), v(src + 2 * k, 2), v(tmp + 2 * (k & 3), 2)))
                for k in range(k0, k0 + 4):
                    out.append("v_cvt_pk_bf16_f32 v%d, v%d, v%d" % (dst + k, src + 2 * k, src + 2 * k + 1))
            return out
        pk = [V(8, 4), V(8, 4)]; pv = [V(8, 4), V(8, 4)]; Tk = self.acc[0]; Tz = self.acc[0] + 8
        W = []
        for b in range(2):
            ph = phi(KV[b], pk[b])
            for kk in range(2):
                W += ph[28 * kk:28 * kk + 28]
                for k in range(4 * kk, 4 * kk + 4): W.append("v_cvt_pk_bf16_f32 v%d, v%d, v%d" % (pv[b] + k, KV[2 + b] + 2 * k, KV[2 + b] + 2 * k + 1))
                z = None if kk else "0"
                W.append(lambda b=b, kk=kk, z=z: self.mf(Tz + 4 * b, v(ones, 4), v(pk[b] + 4 * kk, 4), z))
                W.append(lambda b=b, kk=kk, z=z: self.mf(Tk + 4 * b, v(pk[b] + 4 * kk, 4), v(pv[b] + 4 * kk, 4), z))
        W.insert(80, "ds_write_b128 v%d, %s" % (xw, v(Tk, 4)))
        cf_ = self.c_dmas(1, L_R0); n = self.o["att_b"]
        self.emit(weave(W[:100], cf_[:n]) + W[100:]); cf_ = cf_[n:]
        Uu = self.acc[1]
        def qread(n, h):
            return self.ds("ds_read_b64_tr_b16 %s, v%d offset:%d" % (a(64 + 4 * (n % 8) + 2 * h, 2), aq[2 * (n >> 5) + (n & 1)], ((n >> 1) & 15) * 4096 + h * 2048), "q%d" % n)
        A("v_mov_b32 v%d, v%d" % (Uu + 15, self.vTag))
        A("ds_write2st64_b32 v%d, v%d, v%d offset0:0 offset1:1" % (zx, Tz, Tz + 4))
        A("ds_write_b128 v%d, %s offset:1024" % (xw, v(Tk + 4, 4)))
        A("s_waitcnt vmcnt(%d) lgkmcnt(0)" % self.vm.need("wq")); self.lg.zero(False)
        A("s_barrier")
        self.ds("ds_read_b128 %s, v%d" % (v(Uu, 4), xr), "x0")()
        self.ds("ds_read_b128 %s, v%d offset:4096" % (v(Uu + 4, 4), xr), "x0")()
        self.ds("ds_read2st64_b32 %s, v%d offset0:0 offset1:4" % (v(Uu + 8, 2), zr), "x1")()
        for n in range(4):
            for h in range(2): qread(n, h)()
        self.lg.wait("x0")
        A("v_pk_add_f32 %s, %s, %s" % (v(Uu, 2), v(Uu, 2), v(Uu + 4, 2)))
        A("v_pk_add_f32 %s, %s, %s" % (v(Uu + 2, 2), v(Uu + 2, 2), v(Uu + 6, 2)))
        A("v_cvt_pk_bf16_f32 v%d, v%d, v%d" % (Uu + 12, Uu, Uu + 1))
        A("v_cvt_pk_bf16_f32 v%d, v%d, v%d" % (Uu + 13, Uu + 2, Uu + 3))
        self.lg.wait("x1")
        A("v_add_f32 v%d, v%d, v%d" % (Uu + 14, Uu + 8, Uu + 9))
        A("buffer_store_dwordx4 %s, v%d, %s, s%d offen sc1" % (v(Uu + 12, 4), vKs, self.WS, sKV[0])); self.vm.issue("kst")
        self.stamp(7)
        if self.o["glate"]: self.g_loads()
        Qt = self.acc
        rec = KV
        acc = V(6, 2)
        def gl(n):
            A("buffer_load_dwordx4 %s, v%d, %s, s%d offen%s sc1" % (v(rec[n >> 2] + 4 * (n & 3), 4), self.vFr, self.WS, sKV[n >> 2], " offset:%d" % (1024 * (n & 3)) if n & 3 else ""))
            self.vm.issue("r%d" % n)
        early = self.o["early"][1]
        ld = cf_ + self.wo_dmas(1 if early else 0)
        gls = [([], (lambda n=n: gl(n))) for n in range(16)]
        ph0 = phi(Qt[0], pk[0])
        for st in range(32):
            if st == min(len(cf_), self.o["att_g"]): A("s_barrier")
            cur = gls.pop(0) if (st >= self.o["att_g"] and gls) else (ld.pop(0) if ld else None)
            self.lg.wait("q%d" % (2 * st + 1))
            for k in range(4):
                n = 2 * st + (k >> 1)
                self.mf(Qt[st >> 4] + 4 * k, a(64 + 4 * (n % 8), 4), a(128 + 8 * (st & 15) + 4 * (k & 1), 4), "0" if st & 15 == 0 else None)
                if n + 4 < 64: qread(n + 4, k & 1)()
                if cur and k < 2: self.emit(cur[0][k:k + 1])
                if cur and k == 2: cur[1]()
                if st >= 18: self.emit(ph0[:1]); ph0 = ph0[1:]
            if st == 15: self.stamp(22)
        assert not ld and not ph0
        A("s_barrier")
        self.stamp(8)
        self.g_check("att", vt)
        late = self.c_dmas(0, L_R1); nc = self.o["att_c1"]
        ph1 = phi(Qt[1], pk[1]); p1, p2_ = self.o["ph1"]
        self.emit(weave(ph1[:p1], gls + late[:nc])); late = late[nc:]
        self.stamp(24)
        for i in range(5): A("v_mov_b32 v%d, 0" % (acc + i))
        for gq in range(4):
            self.vm.wait("r%d" % (4 * gq + 3))
            A.label("L_kchk%d" % gq)
            A("v_xor_b32 v%d, v%d, v%d" % (vt, rec[gq] + 3, self.vTag))
            for n in range(1, 4): A("v_bitop3_b32 v%d, v%d, v%d, v%d bitop3:0xf6" % (vt, vt, rec[gq] + 4 * n + 3, self.vTag))
            A("v_cmp_ne_u32 vcc, 0, v%d" % vt)
            A("s_cmp_lg_u64 vcc, 0")
            A("s_cbranch_scc1 L_kre%d" % gq)
            A.label("L_kgo%d" % gq)
            for n in range(4):
                q = rec[gq] + 4 * n
                A("v_dot2c_f32_bf16 v%d, v%d, v%d" % (acc, q, c10))
                A("v_dot2c_f32_bf16 v%d, v%d, v%d" % (acc + 1, q, c01))
                A("v_dot2c_f32_bf16 v%d, v%d, v%d" % (acc + 2, q + 1, c10))
                A("v_dot2c_f32_bf16 v%d, v%d, v%d" % (acc + 3, q + 1, c01))
                A("v_add_f32 v%d, v%d, v%d" % (acc + 4, acc + 4, q + 2))
        def kre():
            q = list(self.vm.q)
            for gq in range(4):
                A.label("L_kre%d" % gq)
                self.cap()
                A("s_cbranch_scc0 L_kgo%d" % gq)
                for n in range(4 * gq, 16 if self.o["kall"] else 4 * gq + 4): gl(n)
                A("s_waitcnt vmcnt(0)")
                A("s_branch L_kchk%d" % gq)
            self.vm.q = q
        self.stamp(9)
        A("v_cvt_pk_bf16_f32 v%d, v%d, v%d" % (acc, acc, acc + 1))
        A("v_cvt_pk_bf16_f32 v%d, v%d, v%d" % (acc + 1, acc + 2, acc + 3))
        A("v_cvt_pk_bf16_f32 v%d, v%d, v%d" % (acc + 4, acc + 4, acc + 4))
        A("ds_write_b64 v%d, %s" % (kw, v(acc, 2)))
        A("ds_write_b16 v%d, v%d" % (zw, acc + 4))
        n2 = self.o["att_c2"]
        self.emit(ph1[p1:p2_])
        self.vm.wait("c1"); self.vm.wait("wo0")
        A("s_waitcnt lgkmcnt(0)")
        A("s_barrier")
        for h in range(4):
            A("ds_read_b64 %s, v%d offset:%d" % (v(pv[1] + 2 * h, 2), rz, 512 * h))
            A("ds_read_b64 %s, v%d offset:%d" % (v(pv[0] + 2 * h, 2), rk, 512 * h))
        def omf(f):
            hp, a1 = f >> 1, f & 1
            out = []
            for part in (1, 0):
                for h in range(2):
                    out.append(lambda part=part, h=h: self.mf(rec[f] + 8 * (1 - part) + 4 * h, v(pv[part] + 4 * hp + 2 * h, 2), v(pk[hp] + 4 * h + 2 * a1, 2), "0", 16))
            return out
        def ofin(f):
            d = rec[f]; out = []
            for h in range(2): out.append("v_add_f32 v%d, s%d, v%d" % (d + 4 * h, sEps, d + 4 * h))
            for h in range(2): out.append("v_rcp_f32 v%d, v%d" % (d + 4 * h, d + 4 * h))
            for h in range(2): out.append("v_mul_f32 v%d, v%d, v%d" % (d + 4 * h, d + 4 * h, self.vG1 + 2 * (f & 1)))
            for k in range(4): out.append("v_pk_mul_f32 %s, %s, %s op_sel_hi:[0,1]" % (v(d + 8 + 2 * k, 2), v(d + 4 * (k >> 1), 2), v(d + 8 + 2 * k, 2)))
            for k in range(4): out.append("v_cvt_pk_bf16_f32 v%d, v%d, v%d" % (d + k, d + 8 + 2 * k, d + 9 + 2 * k))
            def st():
                A("buffer_store_dwordx4 %s, v%d, %s, s%d offen%s sc1" % (v(d, 4), self.vFr, self.WS, sOo, " offset:%d" % (1024 * f) if f else "")); self.vm.issue("ast")
            out.append(st)
            return out
        self.emit(weave(ph1[p2_:], late[:n2]) if ph1[p2_:] else late[:n2]); late = late[n2:]
        assert len(late) >= 2
        A("s_waitcnt lgkmcnt(4)")
        self.emit(omf(0) + omf(1))
        A("s_waitcnt lgkmcnt(0)"); self.lg.zero(False)
        self.emit(weave(ofin(0), omf(2)) + weave(ofin(1), omf(3)) + ofin(2) + ofin(3))
        self.stamp(10)
        self.emit(weave(self.skip_term(), [] if early else self.wo_reads(0), late[:-2]))
        A("s_waitcnt lgkmcnt(0)")
        A("s_barrier")
        late = late[-2:] + ([] if early else self.wo_dmas(1)); n = self.o["att_e"]; n2 = self.o["att_f"]
        self.emit(late[:n])
        for k in range(self.o["clead"]): self.crd(k)
        self.hpoll()
        self.flag()
        self.emit(late[n:n2])
        self.h_wait("a", kre)
        return self.p2_first(late[n2:])

    def retry(self, sreg):
        if not self.o["lflag"]: return
        A = self.A
        A("s_and_b32 s%d, s%d, 3" % (self.t2, self.sCap))
        A("s_cselect_b32 s%d, 0, s%d" % (self.t2, self.sLX))
        A("s_xor_b32 s%d, s%d, s%d" % (sreg, sreg, self.t2))

    def hpoll(self):
        self.A("buffer_load_dword v%d, v%d, %s, s%d offen sc1" % (self.vJunk, self.vf, self.WS, self.sFH)); self.vm.issue("hp")

    def flag(self):
        self.vm.wait("ast")
        if self.o["lflag"]:
            self.A("buffer_store_dword v%d, v%d, %s, s%d offen" % (self.vTag, self.vFlag, self.WS, self.sLF)); self.vm.issue("lflag")
        self.A("buffer_store_dword v%d, v%d, %s, 0 offen sc1" % (self.vTag, self.vFlag, self.WS)); self.vm.issue("flag")
        self.stamp(11)

    def p2_regs(self, V):
        self.p_vt = V(); self.p_vu = V()
        self.cb = V(32, 4)
        self.of = V(64, 4)
    def crd(self, n):
        st, t = n >> 2, n & 3
        r_ = self.ac[t >> 1][st & 1]
        if st in (8, 9) and t & 1 == 0: self.A("v_xor_b32 v%d, 0x10000, v%d" % (r_, r_))
        self.A("ds_read_b128 %s, v%d offset:%d" % (v(self.cb + 4 * (n % 8), 4), r_, ((st >> 1) & 3) * 8192 + (t & 1) * 2048)); self.lg.issue("c%d" % n)
    def hld(self, f):
        A = self.A
        if f & 3 == 0: A("s_xor_b32 s%d, s%d, %d" % (self.t0, self.sH, ((f >> 2) ^ 4) * 4096))
        A("buffer_load_dwordx4 %s, v%d, %s, s%d offen%s sc1" % (a(128 + 4 * f, 4), self.vFr, self.WS, self.t0, " offset:%d" % (1024 * (f & 3)) if f & 3 else "")); self.vm.issue("h%d" % f)
    def cstep(self, st, ld):
        A = self.A
        CL = self.o["clead"]
        ld = list(ld); many = len(ld) > 2
        for k in range(8):
            t, a1 = k >> 1, k & 1
            if k == 0: self.wait2("h%d" % (2 * st + 1), "c%d" % (4 * st + 1))
            if k == 4: self.wait2(None, "c%d" % (4 * st + 3))
            off = 8 * a1 + 4 * (t & 1)
            c = None if st else (v(self.vXD + off, 4) if t < 2 else "0")
            self.mf(self.acc[t >> 1] + off, v(self.cb + 4 * ((4 * st + t) % 8), 4), a(128 + 8 * st + 4 * a1, 4), c)
            if a1:
                if 4 * st + CL + t == 32:
                    assert not [x for x in self.vm.q if x[0] in "cw"]
                    A("s_barrier")
                if 4 * st + CL + t < 64: self.crd(4 * st + CL + t)
            else:
                n = -(-len(ld) // (4 - t)) if (many or t & 1 == 0) else 0
                self.emit(ld[:n]); ld = ld[n:]
        assert not ld
    def h_wait(self, name, aside=None):
        A = self.A
        self.vm.wait("hp")
        self.stamp(12)
        A("s_branch L_hchk" + name)
        if aside: aside()
        A.label("L_hpoll" + name)
        self.retry(self.sFH)
        A("buffer_load_dword v%d, v%d, %s, s%d offen sc1" % (self.vJunk, self.vf, self.WS, self.sFH))
        A("s_waitcnt vmcnt(0)")
        A.label("L_hchk" + name)
        A("v_cmp_ne_u32 vcc, s%d, v%d" % (self.sTag, self.vJunk))
        self.poll_tail("L_hpoll" + name)
        self.stamp(13)
    def p2_first(self, extra):
        LA = self.o["LA"]; ns = LA // 2 + 1
        for f in range(LA): self.hld(f)
        q = list(extra) + [(lambda f=f: self.hld(f)) for f in range(LA, LA + 2 * ns)]
        n = len(q); done = 0
        for st in range(ns):
            to = -(-n * (st + 1) // ns)
            self.cstep(st, q[done:to]); done = to
        return list(self.vm.q), list(self.lg.q)

    def p2(self):
        A = self.A
        vt, vu, of = self.p_vt, self.p_vu, self.of
        acc, sO = self.acc, self.sO
        def old(n):
            if n & 3 == 0: A("s_xor_b32 s%d, s%d, %d" % (self.t1, sO, 1024 * n))
            A("buffer_load_dwordx4 %s, v%d, %s, s%d offen%s sc1" % (v(of + 4 * n, 4), self.vFr, self.WS, self.t1, " offset:%d" % (1024 * (n & 3)) if n & 3 else "")); self.vm.issue("o%d" % n)
        def opoll():
            A("buffer_load_dword v%d, v%d, %s, s%d offen sc1" % (vt, self.vf, self.WS, self.sFO)); self.vm.issue("op")
        LA = self.o["LA"]; s1 = LA // 2 + 1; s0 = 16 - LA // 2
        opoll()
        for st in range(s1, s0): self.cstep(st, [(lambda f=f: self.hld(f)) for f in (2 * st + LA, 2 * st + LA + 1)])
        self.vm.wait("op")
        A("v_cmp_ne_u32 vcc, s%d, v%d" % (self.sTag, vt))
        A("s_cmp_lg_u64 vcc, 0")
        A("s_cbranch_scc1 L_slow")
        qv, ql = list(self.vm.q), list(self.lg.q)
        for st in range(s0, 16): self.cstep(st, [(lambda n=n: old(n)) for n in (2 * (st - s0), 2 * (st - s0) + 1)])
        self.stamp(14); self.stamp(15)
        A.label("L_join")
        q2 = list(self.vm.q)
        vr = self.vr; vr1, ra, rb, rc, rd = [self.cb + k for k in range(5)]
        side = ["s_movk_i32 s%d, 4096" % self.t2, "s_mov_b32 s%d, 0x10000" % self.t3, "s_mov_b32 s%d, 0x11000" % self.t0, "v_xor_b32 v%d, 128, v%d" % (vr1, vr)]
        self.bits(side, ra, rb, ((0, 3, 5), (0, 2, 8), (2, 1, 10)))
        self.bits(side, rb, None, ((3, 3, 4),))
        side += ["v_xor_b32 v%d, v%d, v%d" % (ra, ra, rb), "v_and_b32 v%d, 0xfffff000, v%d" % (rb, vr), "v_add_u32 v%d, v%d, v%d" % (rc, ra, rb),
                 "v_xor_b32 v%d, 128, v%d" % (rd, rc), "v_xor_b32 v%d, 8192, v%d" % (ra, rc), "v_xor_b32 v%d, 8192, v%d" % (rb, rd)]
        seq = [(st, (k >> 1) ^ 2, k & 1) for st in range(8) for k in range(8)]
        nl = self.o["olead"]
        seq = seq[:64 - 8 * nl] + [x for x in seq[64 - 8 * nl:] if x[1] >= 2] + [x for x in seq[64 - 8 * nl:] if x[1] < 2]
        seq = seq[:60] + sorted(seq[60:], key=lambda x: x[2])
        wr = ["ds_write_b128 v%d, %s offset:%d" % ((vr, vr1)[q & 1], v(acc[1] + 4 * q, 4), 1024 * q) for q in (0, 2, 1, 3)]
        wr += [None] * self.o["owait"] + ["s_waitcnt lgkmcnt(0)\ns_barrier"]
        wr += ["ds_read_b128 %s, v%d offset:%d" % (v(of + 4 * q, 4), (ra, rb)[q & 1], 2048 * (q >> 1)) for q in range(4)]
        w1 = self.wo_reads(1); wb = []
        for (st, t, a1) in seq:
            if st >= 4: wb.append((w1[8 * (st - 4) + 2 * t + a1], "wb%d_%d" % (st, t)))
        wb = wb[:28] + sorted(wb[28:], key=lambda x: x[1])
        self.lg.q = []
        for n, (st, t, a1) in enumerate(seq):
            if n == 64 - 4 * nl + 4 and not wb: self.lg.zero()
            self.wait2("o%d" % (2 * st + 1), "wb%d_%d" % (st, t | 1))
            self.mf(acc[t >> 1] + 8 * a1 + 4 * (t & 1), a(16 * st + 4 * t, 4), v(of + 8 * st + 4 * a1, 4))
            if n & 3 == 0 and LA + (n >> 2) < 16: old(LA + (n >> 2))
            if n & 3 and wb:
                x, tg = wb.pop(0); A(x); self.lg.issue(tg)
            if (n & 3 == 0 and LA + (n >> 2) >= 16 or not wb) and side: self.emit(side[:2]); side = side[2:]
            if n >= 64 - 4 * nl + 4 and wr:
                x = wr.pop(0)
                if x: A(x)
        self.emit([x for x in wr if x])
        self.stamp(16)
        assert not side
        for a1 in range(2):
            for q in (2 * a1, 2 * a1 + 1): A("ds_write_b128 v%d, %s offset:%d" % ((vr, vr1)[q & 1], v(acc[0] + 4 * q, 4), 32768 + 1024 * q))
            for q in (2 * a1, 2 * a1 + 1): A("ds_read_b128 %s, v%d offset:%d" % (v(acc[1] + 4 * q, 4), (rc, rd)[q & 1], 32768 + 2048 * a1))
        for q in range(4):
            own = acc[1] + 4 * q
            A("s_waitcnt lgkmcnt(%d)" % (5, 4, 1, 0)[q])
            for k in (0, 2): A("v_pk_add_f32 %s, %s, %s" % (v(own + k, 2), v(own + k, 2), v(of + 4 * q + k, 2)))
            A("buffer_store_dwordx4 %s, v%d, %s, %s offen%s" % (v(own, 4), self.vOut, self.OUT, ("0", "s%d" % self.t3, "s%d" % self.t2, "s%d" % self.t0)[q], self.o["outaux"]))
        A("s_cmp_eq_u32 s2, %d" % (255 ^ (2 * self.o["rx"])))
        A("s_cbranch_scc0 L_fin")
        A("v_mov_b32 v%d, s%d" % (vt, self.sE))
        A("v_mov_b32 v%d, 0" % vu)
        A("buffer_store_dword v%d, v%d, %s, 0 offen" % (vt, vu, self.WS))
        A.label("L_fin")
        if self.o["stamps"]:
            if self.o["stamps"] != 2: A("s_waitcnt vmcnt(0)")
            self.stamp(17)
            A("v_lshlrev_b32 v%d, 2, v0" % vu)
            A("s_lshl_b32 s%d, s2, 10" % self.t0); A("s_add_u32 s%d, s%d, %d" % (self.t0, self.t0, WS_STAMP))
            A("buffer_store_dword v%d, v%d, %s, s%d offen" % (self.vStamp, vu, self.WS, self.t0))
        A("s_endpgm")
        A.label("L_slow")
        self.vm.q, self.lg.q = qv, ql
        for st in range(s0, 16): self.cstep(st, [])
        self.stamp(14)
        A.label("L_opoll")
        self.retry(self.sFO)
        opoll()
        A("s_waitcnt vmcnt(0)")
        A("v_cmp_ne_u32 vcc, s%d, v%d" % (self.sTag, vt))
        self.poll_tail("L_opoll")
        self.vm.zero(False)
        self.stamp(15)
        for n in range(LA): old(n)
        assert self.vm.q == q2, (self.vm.q, q2)
        A("s_branch L_join")

    def gen(self):
        A = self.A
        kernel_head(A, NAME)
        self.prologue()
        V0, S0, q0 = self.V.clone(), self.S.clone(), list(self.vm.q)
        self.p2_regs(V0.clone())
        st1 = self.ssm()
        A("s_branch L_p2")
        A.label("L_att")
        self.V, self.S, self.vm.q, self.lg.q = V0.clone(), S0.clone(), list(q0), []
        st2 = self.att()
        assert st1 == st2, (st1, st2)
        A.label("L_p2")
        self.p2()
        A.label("L_end")
        A("s_endpgm")
        body, n = hazard.fix(A.l)
        head = open("cdna_kernels/%s.s.ref" % NAME[:-7]).read().split("; Override launch")[0] if self.o.get("head", True) else ""
        out = head + "; @launch grid=(256,1,1) block=(256,1,1) lds=163840\n"
        out += '.amdgcn_target "amdgcn-amd-amdhsa--gfx950"\n.text\n'
        if self.o["pad"] >= 0:
            out += "; start the kernel at the top of a 4 KB page (instruction fetch stalls at page crossings)\n.p2align 12\n.fill %d, 4, 0xbf800000\n" % (64 * self.o["pad"])
        out += "\n".join(body) + "\n"
        out += '.section .rodata,"a"\n.p2align 6\n' + kernel_desc(NAME, 512, 256)
        if self.o["hop"]: out = self.link_stubs(out)
        return out

    def link_stubs(self, out):
        import re, subprocess, tempfile
        d = tempfile.mkdtemp()
        open(d + "/a.s", "w").write(re.sub(r"@CHAIN(\w)\d+@", r"L_back\1", out))
        subprocess.run(["clang", "-x", "assembler", "-target", "amdgcn-amd-amdhsa", "-mcpu=gfx950", "-c", d + "/a.s", "-o", d + "/a.o"], check=True)
        dis = subprocess.run(["llvm-objdump", "-d", "--mcpu=gfx950", d + "/a.o"], capture_output=True, text=True).stdout
        dis = dis[dis.index("<%s>:" % NAME):]
        sizes = [4 * len(m.group(1).split()) for m in re.finditer(r"// [0-9A-F]{12}: ((?:[0-9A-F]{8} ?)+)", dis)]
        lines = out.split("\n"); res = []; k = 0; pc = 0; on = False; sec = None; tg = {"s": [], "a": []}; page = 0
        def put(roles):
            nm = "L_pg%d" % len(res)
            res.append(nm + ":"); res.append("    s_cbranch_execz L_back" + ("x" if len(roles) > 1 else roles))
            for r in roles: tg[r].append(nm)
        for l in lines:
            t = l.strip()
            if t == NAME + ":": on = True
            if t.startswith(".section"): on = False
            ins = on and t and not t.startswith((";", ".")) and not t.endswith(":")
            if ins and (pc >> 12) > page:
                page = pc >> 12
                if sec: put(sec); pc += 4
            res.append(l)
            if t in ("L_backs:", "L_backa:"): sec = t[-2]
            if t in ("L_att:", "L_slow:"): sec = None
            if t == "L_p2:":
                sec = "sa"; put("s"); pc += 4
            if ins: pc += sizes[k]; k += 1
        assert k == len(sizes), (k, len(sizes))
        out = "\n".join(res)
        for r in "sa":
            t = list(tg[r])
            while len(t) > 4:
                x = t.pop(); y = t[len(t) - 4]
                assert y not in tg["a" if r == "s" else "s"]
                out = out.replace(y + ":\n    s_cbranch_execz L_back" + r, y + ":\n    s_cbranch_execz " + x)
            for w in range(4): out = out.replace("@CHAIN%s%d@" % (r, w), t[w] if w < len(t) else "L_back" + r)
        return out

if __name__ == "__main__":
    if len(sys.argv) > 1:
        for arg in sys.argv[1:]:
            nm, _, kv = arg.partition(":")
            o = eval("dict(%s)" % kv)
            open(nm, "w").write(K(stamps=(1 if "_st" in nm else 2 if "_lt" in nm else 0), head=False, **o).gen())
    else:
        open("k.s", "w").write(K().gen())
        open("k_st.s", "w").write(K(stamps=True).gen())
```

```python
import sys
from asmlib import Asm, v, a, s, kernel_head, kernel_desc
import hazard

NAME = "gated_mix__linear_attn_block__ssm_conv_s5__prompt_kernel"
WS_EPOCH, WS_G, WS_FH, WS_FO, WS_E, WS_KV, WS_A = 0, 0x1000, 0x10000, 0x20000, 0x30000, 0x40000, 0x100000
WS_LF = 0xc0000
WS_STAMP = 0x1000000
SPILL = 0x800000
RT_STRIDE = 98304
HUGE = 0x20000000
L_R0, L_R1, L_SP = 0, 65536, 131072
LOG2E = "0x3fb8aa3b"
P_X, P_WQKV, P_WO, P_LRE, P_LIM, P_BRE, P_BIM = 4, 6, 8, 12, 14, 16, 18
P_CRE, P_CIM, P_LDT, P_DSK, P_GW, P_OUT, P_WS = 20, 22, 24, 26, 28, 30, 34

DOC = '''; One launch, 256 workgroups (one per CU, all co-resident), 4 waves each. Emitted by a hand-written generator script.
;   ATT workgroups: k, v for 4 heads, partial phi(k)^T v and sum phi(k) -> d_ws, q, sum of the 16 partials,
'''

class Alloc:
    def __init__(self, regs):
        self.free = set(regs)
    def __call__(self, n=1, al=1):
        if n > 1 and al == 1: al = 2
        for b in sorted(self.free, reverse=(n <= 2)):
            if b % al == 0 and all(b + i in self.free for i in range(n)):
                for i in range(n): self.free.discard(b + i)
                return b
        raise RuntimeError("out of registers")
    def rel(self, b, n=1):
        for i in range(n):
            assert b + i not in self.free
            self.free.add(b + i)
    def clone(self):
        return Alloc(self.free)

class Cnt:
    def __init__(self, A, name, mx):
        self.A = A; self.name = name; self.mx = mx; self.q = []
    def issue(self, tag): self.q.append(tag)
    def need(self, tag):
        idx = [i for i, t in enumerate(self.q) if t == tag]
        if not idx: return None
        n = len(self.q) - 1 - idx[-1]
        self.q = self.q[idx[-1] + 1:]
        return min(n, self.mx)
    def wait(self, tag):
        n = self.need(tag)
        if n is not None: self.A("s_waitcnt %s(%d)" % (self.name, n))
    def zero(self, emit=True):
        if emit: self.A("s_waitcnt %s(0)" % self.name)
        self.q = []

def weave(main, *side):
    out = [[x] for x in main]
    for sd in side:
        n = len(sd)
        for k, x in enumerate(sd):
            out[min(len(main) - 1, (k * len(main)) // n)].append(x)
    return [y for x in out for y in x]

class K:
    def __init__(self, **opt):
        self.o = dict(stamps=0, pollcap=400000, order='gpq8', third=('w4h4', 'w4h4'), nf=(80, 60), d0=8, hop=1, pad=13, xrot=6, j3=1, qpf=1,
                      ssm=(8, 8, 0, 0, 8, 8), late7=1, att_b=8, att_g=16, att_c1=8, att_c2=6, att_e=2, att_f=10,
                      hpw=1, defer=8, g3=0, ahead=(0, 0), a2=8, att_7=8, amid=999, aoff=0, alead=0, rx=0, kall=0, kown=1, kvw=0, smid=999, wat=0, wn=3, wl2=0, qmode=0, ph1=(28, 40), efirst=1, clead=6, glate=None, xmul=6, qat=88, wfirst=0, mid=(100, 104, 200), wopar=1, gmid=0, pause=(0,) * 8, psplit=1, dfirst=0, lflag=0, l7at=0, early=(None, None), xdo=1, olead=4, owait=3, dpos=((-6, -2, 2, 6, 10, 14, 18, 22), (-6, -2, 2, 6, 10, 14, 18, 22)), outaux=' sc1 nt', LA=10, dbg='')
        self.o.update(opt)
        self.A = Asm()
        self.vm = Cnt(self.A, "vmcnt", 62)
        self.lg = Cnt(self.A, "lgkmcnt", 14)
        self.V = Alloc(range(1, 256))
        self.S = Alloc([3] + list(range(72, 102)))

    def stamp(self, idx):
        if not self.o["stamps"]: return
        if self.o["stamps"] == 2 and idx != 17: return
        A = self.A
        A("s_memrealtime s[%d:%d]" % (self.sT, self.sT + 1))
        A("s_memtime s[%d:%d]" % (self.sT2, self.sT2 + 1))
        A("s_waitcnt lgkmcnt(0)")
        self.lg.zero(False)
        A("v_writelane_b32 v%d, s%d, %d" % (self.vStamp, self.sT, idx))
        A("v_writelane_b32 v%d, s%d, %d" % (self.vStamp, self.sT2, 32 + idx))
    def dma(self, vo, srd, so, imm, tag):
        self.A("buffer_load_dwordx4 v%d, %s, %s offen%s lds" % (vo, srd, so, " offset:%d" % imm if imm else ""))
        self.vm.issue(tag)
    def ds(self, text, tag):
        return lambda: (self.A(text), self.lg.issue(tag))
    def mf(self, d, x, y, c=None, k=32):
        self.A("v_mfma_f32_16x16x%d_bf16 %s, %s, %s, %s" % (k, v(d, 4), x, y, v(d, 4) if c is None else c))
    def cmul(self, out, dr, di, ar, ai, br, bi, cr=None, ci=None):
        if cr is None:
            out.append("v_mul_f32 v%d, v%d, v%d" % (dr, ar, br))
            out.append("v_mul_f32 v%d, v%d, v%d" % (di, ar, bi))
        else:
            out.append("v_fma_f32 v%d, v%d, v%d, v%d" % (dr, ar, br, cr))
            out.append("v_fma_f32 v%d, v%d, v%d, v%d" % (di, ar, bi, ci))
        out.append("v_fma_f32 v%d, -v%d, v%d, v%d" % (dr, ai, bi, dr))
        out.append("v_fmac_f32 v%d, v%d, v%d" % (di, ai, br))
    def pmul(self, out, d, x, y, c=None, sel=None):
        q = lambda z: (z, z + 2) if isinstance(z, int) else z
        d, x, y = q(d), q(x), q(y)
        m3 = "" if sel is None else (" op_sel:[1,0,0]" if sel else " op_sel_hi:[0,1,1]")
        m2 = "" if sel is None else (" op_sel:[1,0]" if sel else " op_sel_hi:[0,1]")
        for k in range(2):
            if c is None: out.append("v_pk_mul_f32 %s, %s, %s%s" % (v(d[k], 2), v(x[0], 2), v(y[k], 2), m2))
            else: out.append("v_pk_fma_f32 %s, %s, %s, %s%s" % (v(d[k], 2), v(x[0], 2), v(y[k], 2), v(q(c)[k], 2), m3))
        out.append("v_pk_fma_f32 %s, %s, %s, %s%s neg_lo:[1,0,0] neg_hi:[1,0,0]" % (v(d[0], 2), v(x[1], 2), v(y[1], 2), v(d[0], 2), m3))
        out.append("v_pk_fma_f32 %s, %s, %s, %s%s" % (v(d[1], 2), v(x[1], 2), v(y[0], 2), v(d[1], 2), m3))
    def emit(self, lst):
        for x in lst:
            if isinstance(x, tuple):
                self.emit(x[0]); x[1]()
            elif callable(x): x()
            else: self.A(x)
    def cap(self):
        A = self.A
        A("s_sub_u32 s%d, s%d, 1" % (self.sCap, self.sCap))
        A("s_cselect_b64 vcc, 0, vcc")
        A("s_cselect_b32 s%d, 0, s%d" % (self.sCap, self.sCap))
        A("s_cmp_lg_u64 vcc, 0")
    def poll_tail(self, lab):
        self.cap()
        self.A("s_cbranch_scc1 %s" % lab)
    def bits(self, out, d, tmp, spec, src="v0"):
        for n, (bit, w, sh) in enumerate(spec):
            if n == 0:
                if bit == sh: out.append("v_and_b32 v%d, 0x%x, %s" % (d, ((1 << w) - 1) << bit, src))
                else:
                    out.append("v_bfe_u32 v%d, %s, %d, %d" % (d, src, bit, w))
                    if sh: out.append("v_lshlrev_b32 v%d, %d, v%d" % (d, sh, d))
            else:
                out.append("v_bfe_u32 v%d, %s, %d, %d" % (tmp, src, bit, w))
                out.append("v_lshl_or_b32 v%d, v%d, %d, v%d" % (d, tmp, sh, d))
    def wait2(self, vtag, ltag):
        n1 = self.vm.need(vtag) if vtag else None
        n2 = self.lg.need(ltag) if ltag else None
        w = " ".join(x for x in ("" if n1 is None else "vmcnt(%d)" % n1, "" if n2 is None else "lgkmcnt(%d)" % n2) if x)
        if w: self.A("s_waitcnt " + w)

    def slot(self, c):
        return ((c + 2) % 4) * 32768
    def chunk_dmas(self, c):
        slot = self.slot(c); tag = "ch%d" % c
        L = []
        nx0 = ["s_mul_i32 s%d, s%d, s%d" % (self.sO2, self.sCh, self.sWst)]
        nx1 = ["s_lshl_b32 s%d, s%d, 7" % (self.sO1, self.sCh)]
        nx2 = ["s_add_u32 s%d, s%d, 1" % (self.sCh, self.sCh)]; nx3 = ["s_and_b32 s%d, s%d, 7" % (self.sCh, self.sCh)]
        for n in range(4):
            pre = [] if n & 1 else ["s_add_u32 m0, s%d, %d" % (self.sM, slot + 16384 + (n >> 1) * 4096)] + (nx1 if n else nx0)
            L.append((pre, (lambda n=n: self.dma(self.vw[n], (self.WA, self.WB)[n >> 1], "s%d" % self.sO2, 2048 * (n & 1), tag))))
        for n in range(4):
            pre = [] if n & 1 else ["s_add_u32 m0, s%d, %d" % (self.sM, slot + (n >> 1) * 4096)] + (nx3 if n else nx2)
            L.append((pre, (lambda n=n: self.dma(self.vx[n >> 1], self.X, "s%d" % self.sO1, 2048 * (n & 1), tag))))
        return L
    def wo_dmas(self, half):
        L = []
        for n in range(8):
            aa, b = n >> 2, n & 3
            pre = [] if b else ["s_add_u32 m0, s%d, %d" % (self.sMW, L_SP + aa * 4096), "s_xor_b32 s%d, s%d, %d" % (self.sO1, self.sP17, (half * 128 + aa * 32) * 1024)]
            L.append((pre, (lambda b=b: self.dma(self.vo[b], self.WO, "s%d" % self.sO1, 1024 * b, "wo%d" % half))))
        return L
    def wo_stag(self):
        L = []
        t0 = self.sLX
        for n in range(8):
            pre = ["s_add_u32 s%d, s%d, 1024" % (self.sSt, self.sSt), "s_and_b32 s%d, s%d, 0x1c00" % (self.sSt, self.sSt),
                   "s_add_u32 m0, s%d, s%d" % (self.sSt, self.sMW2), "s_lshl3_add_u32 s%d, s%d, s%d" % (t0, self.sSt, self.sP17)]
            L.append((pre, (lambda: self.dma(self.vo[0], self.WO, "s%d" % t0, 0, "wo0"))))
        return L
    def c_dmas(self, comp, region, mreg=None):
        L = []; mreg = mreg or self.sMC
        for idx in range(8):
            for i in range(2):
                pre = [] if i else ["s_xor_b32 m0, s%d, %d" % (mreg, region + idx * 8192), "s_xor_b32 s%d, s%d, %d" % (self.sO1, self.sP9, idx * 128)]
                L.append((pre, (lambda i=i: self.dma(self.vc[i], (self.CRE, self.CIM)[comp], "s%d" % self.sO1, 2048 * i, "c%d" % comp))))
        return L
    def wo_reads(self, half):
        L = []
        for n in range(4):
            for t in range(4):
                for h in range(2):
                    L.append("ds_read_b64_tr_b16 %s, v%d offset:%d" % (a(64 * half + 16 * n + 4 * t + 2 * h, 2), self.aw[t], n * 4096 + h * 2048))
        return L

    def prologue(self):
        A, V, S = self.A, self.V, self.S
        self.X, self.WA, self.WB, self.WS = "s[36:39]", "s[40:43]", "s[44:47]", "s[48:51]"
        self.CRE, self.CIM, self.WO, self.OUT, self.ER = "s[52:55]", "s[56:59]", "s[60:63]", "s[64:67]", "s[68:71]"
        self.sT = S(2, 2); self.sT2 = S(2, 2); self.sMk = S(2, 2)
        self.sR, self.sJ, self.sRole, self.sW, self.sCT, self.sRH = [S() for _ in range(6)]
        self.sM, self.sCh, self.sO1, self.sO2, self.sTag, self.sE, self.sWst, self.sN2, self.sCX = [S() for _ in range(9)]
        self.t0, self.t1, self.t2, self.t3 = [S() for _ in range(4)]
        t0, t1, t2, t3 = self.t0, self.t1, self.t2, self.t3
        sR, sJ, sW, sCT, sRH, sRole = self.sR, self.sJ, self.sW, self.sCT, self.sRH, self.sRole
        vt = V(); vu = V()
        self.vJunk = V(); self.vL16 = V()
        vp = V(); vd = V(); vg = V()
        A("s_cmp_ge_u32 s2, 256")
        A("s_cbranch_scc1 L_end")
        A("s_load_dwordx16 s[4:19], s[0:1], 0")
        A("s_load_dwordx16 s[20:35], s[0:1], 64")
        if self.o["stamps"]:
            self.vStamp = V()
            A("s_memrealtime s[%d:%d]" % (self.sT, self.sT + 1))
            A("s_memtime s[%d:%d]" % (self.sT2, self.sT2 + 1))
        A("s_getpc_b64 s[%d:%d]" % (self.sMk, self.sMk + 1))
        A.label("L_pc")
        A("s_and_b32 s%d, s2, 0xf8" % t0)
        A("v_lshrrev_b32 v%d, 5, v0" % vt)
        A("v_add_lshl_u32 v%d, s%d, v%d, 7" % (vt, t0, vt))
        A("v_min_u32 v%d, L_end-L_pc, v%d" % (vt, vt))
        A("v_lshrrev_b32 v%d, 6, v0" % vu)
        A("global_load_dword v%d, v%d, s[%d:%d]" % (self.vJunk, vt, self.sMk, self.sMk + 1)); self.vm.issue("junk")
        A("v_readfirstlane_b32 s%d, v%d" % (sW, vu))
        A("s_and_b32 s%d, s2, 1" % sRH)
        A("s_bfe_u32 s%d, s2, 0x20001" % t0)
        if self.o["rx"]: A("s_xor_b32 s%d, s%d, %d" % (t0, t0, self.o["rx"]))
        A("s_lshr_b32 s%d, s2, 6" % t1)
        A("s_lshl2_add_u32 s%d, s%d, s%d" % (sR, t0, t1))
        A("s_bfe_u32 s%d, s2, 0x20003" % t0)
        A("s_lshl2_add_u32 s%d, s%d, s%d" % (sJ, sRH, t0))
        A("s_bfe_u32 s%d, s2, 0x10005" % sRole)
        A("s_lshl3_add_u32 s%d, s%d, s%d" % (t0, sRole, sJ))
        A("s_lshl2_add_u32 s%d, s%d, s%d" % (self.sN2, t0, sW))
        A("s_cmp_eq_u32 s%d, %d" % (t0, 11 if self.o["j3"] else 99))
        A("s_cselect_b32 s%d, s%d, 0" % (t1, t1))
        if self.o["glate"]:
            A("s_mul_i32 s%d, s2, %d" % (t0, self.o["xmul"]))
            A("s_and_b32 s%d, s%d, %d" % (t0, t0, self.o["xrot"]))
            A("s_lshl1_add_u32 s%d, s%d, s%d" % (self.sCh, t1, t0))
            A("s_and_b32 s%d, s%d, 7" % (self.sCh, self.sCh))
        else:
            A("s_lshl1_add_u32 s%d, s%d, s2" % (self.sCh, t1))
            A("s_and_b32 s%d, s%d, %d" % (self.sCh, self.sCh, self.o["xrot"]))
        A("v_and_b32 v%d, 63, v0" % self.vL16)
        A("v_lshlrev_b32 v%d, 4, v%d" % (self.vL16, self.vL16))
        A("s_and_b32 s%d, s%d, 0x3e" % (t0, self.sN2))
        A("s_add_u32 s%d, s%d, s%d" % (t0, t0, self.sN2))
        A("s_lshl_b32 s%d, s%d, 7" % (t1, sR))
        A("s_add_u32 s%d, s%d, s%d" % (t0, t0, t1))
        A("v_lshl_add_u32 v%d, s%d, 10, v%d" % (vg, t0, self.vL16))
        A("s_mul_i32 s42, s%d, 0x100000" % sRole); A("s_add_u32 s42, s42, 0x80000"); A("s_mov_b32 s46, s42")
        A("s_mul_i32 s%d, s%d, %d" % (self.sWst, sRole, 64 * 3072 - 128)); A("s_add_u32 s%d, s%d, 128" % (self.sWst, self.sWst))
        A("s_mul_i32 s%d, s%d, %d" % (t2, sRole, 32 * 3072))
        A("s_lshl_b32 s%d, s%d, 13" % (t3, sRole)); A("s_add_u32 s%d, s%d, 2048" % (t3, t3))
        A("s_mov_b32 s38, 0x200000")
        for b in (36, 40, 44): A("s_mov_b32 s%d, 0x20000" % (b + 3))
        A("s_mul_i32 s%d, s%d, 0x1400" % (self.sM, sW))
        A("s_and_b32 s%d, s%d, 0x2400" % (self.sM, self.sM))
        vUA = V(); vUT = V()
        self.vx = [V() for _ in range(2)]; self.vw = [V() for _ in range(4)]
        o = []
        o.append("v_lshrrev_b32 v%d, 4, v0" % vt)
        o.append("v_xor_b32 v%d, v0, v%d" % (vt, vt))
        self.bits(o, vUA, vu, ((0, 3, 4),), "v%d" % vt)
        o.append("v_lshrrev_b32 v%d, 3, v0" % vt)
        o.append("v_and_b32 v%d, 6, v%d" % (vt, vt))
        o.append("v_xor_b32 v%d, v0, v%d" % (vt, vt))
        self.bits(o, vUT, vu, ((0, 3, 4),), "v%d" % vt)
        w0 = self.vw[0]; w1 = self.vw[1]
        self.bits(o, vt, vu, ((3, 2, 0), (5, 2, 3)))
        o.append("v_lshrrev_b32 v%d, 7, v0" % vu)
        o.append("v_lshl_or_b32 v%d, v%d, 5, v%d" % (w0, vu, vt))
        o.append("v_lshl_add_u32 v%d, s%d, 6, v%d" % (w0, sJ, w0))
        o.append("v_lshl_add_u32 v%d, v%d, 10, v%d" % (w0, w0, vUA))
        o.append("v_mul_u32_u24 v%d, 3072, v%d" % (vt, vt))
        o.append("v_lshl_add_u32 v%d, v%d, 10, v%d" % (vt, vu, vt))
        o.append("s_lshl_b32 s%d, s%d, 7" % (t0, sJ))
        o.append("s_add_u32 s%d, s%d, 1024" % (t0, t0))
        o.append("s_cmp_eq_u32 s%d, 0" % sRole)
        o.append("s_cselect_b64 vcc, -1, 0")
        o.append("v_add3_u32 v%d, v%d, s%d, v%d" % (vt, vt, t0, vUT))
        o.append("v_cndmask_b32 v%d, v%d, v%d, vcc" % (w0, vt, w0))
        o.append("v_add_u32 v%d, s%d, v%d" % (w1, t3, w0))
        o.append("v_add_u32 v%d, s%d, v%d" % (self.vw[2], t2, w0))
        o.append("v_add_u32 v%d, s%d, v%d" % (self.vw[3], t2, w1))
        x0 = self.vx[0]
        self.bits(o, x0, vu, ((3, 1, 3), (4, 1, 0), (5, 3, 4)))
        o.append("v_lshl_add_u32 v%d, s%d, 7, v%d" % (x0, sR, x0))
        o.append("v_lshl_add_u32 v%d, v%d, 10, v%d" % (x0, x0, vUA))
        o.append("v_add_u32 v%d, 4096, v%d" % (self.vx[1], x0))
        self.emit(o)
        self.ppar = [V(2), V(2), V(2)]; self.vDs = V(4, 2); self.gx = self.vXD = V(16, 4)
        A("s_mov_b32 s%d, s%d" % (self.sCX, self.sCh))
        A("s_waitcnt lgkmcnt(0)")
        A("s_cselect_b64 s[40:41], s[%d:%d], s[%d:%d]" % (P_BRE, P_BRE + 1, P_WQKV, P_WQKV + 1))
        A("s_cselect_b64 s[44:45], s[%d:%d], s[%d:%d]" % (P_BIM, P_BIM + 1, P_WQKV, P_WQKV + 1))
        A("s_mov_b64 s[36:37], s[%d:%d]" % (P_X, P_X + 1))
        if self.o["stamps"]: A("v_writelane_b32 v%d, s%d, 0\nv_writelane_b32 v%d, s%d, 32" % (self.vStamp, self.sT, self.vStamp, self.sT2))
        self.stamp(18)
        e0, e1 = self.chunk_dmas(0), self.chunk_dmas(1)
        self.early = e0 + e1
        if self.o["wfirst"]:
            inc = [e0[4][0][1], e0[6][0][1]]; shl = e0[2][0][1]
            e1[0] = (inc + e1[0][0], e1[0][1]); e1[2] = (e1[2][0][:1], e1[2][1])
            e0[4] = (e0[4][0][:1], e0[4][1]); e0[6] = (e0[6][0][:1], e0[6][1])
            e1[4] = ([shl] + e1[4][0], e1[4][1])
            self.early = e0[:4] + e1[:4] + e0[4:] + e1[4:]
        for tok in self.o["order"]:
            if tok == "g":
                A("global_load_dwordx4 %s, v%d, s[%d:%d]" % (v(self.gx, 4), vg, P_X, P_X + 1)); self.vm.issue("par")
                A("global_load_dwordx4 %s, v%d, s[%d:%d] offset:2048" % (v(self.gx + 4, 4), vg, P_X, P_X + 1)); self.vm.issue("par")
            elif tok == "p":
                A("s_bfe_u32 s%d, s2, 0x30003" % sCT)
                A("s_bfe_u32 s%d, s2, 0x10006" % t0)
                A("s_lshl_b32 s%d, s%d, 2" % (t0, t0))
                A("s_xor_b32 s%d, s%d, s%d" % (sCT, sCT, t0))
                o = []
                self.bits(o, vp, vu, ((6, 1, 6), (0, 2, 1), (2, 2, 4)))
                o.append("v_lshl_add_u32 v%d, s%d, 7, v%d" % (vp, sJ, vp))
                self.bits(o, vd, vu, ((4, 2, 3), (7, 1, 6)))
                o.append("v_lshl_add_u32 v%d, s%d, 7, v%d" % (vd, sCT, vd))
                self.emit(o)
            elif tok == "q":
                A("global_load_dwordx4 %s, v%d, s[%d:%d]" % (v(self.gx + 8, 4), self.vL16, P_GW, P_GW + 1)); self.vm.issue("par")
                for b in range(2):
                    A("global_load_dwordx2 %s, v%d, s[%d:%d] offset:%d" % (v(self.vDs + 2 * b, 2), vd, P_DSK, P_DSK + 1, 32 * b)); self.vm.issue("par")
                A("s_cmp_eq_u32 s%d, 0" % sRole)
                A("s_cbranch_scc0 L_nopar")
                for q, p in zip(self.ppar, (P_LRE, P_LIM, P_LDT)):
                    for b in range(2): A("global_load_ushort v%d, v%d, s[%d:%d] offset:%d" % (q + b, vp, p, p + 1, 8 * b))
                A.label("L_nopar")
                assert len(self.early) == 16
            else:
                n = int(tok)
                self.emit(self.early[:n]); self.early = self.early[n:]
        self.stamp(19)
        A("s_load_dword s%d, s[%d:%d], 0" % (self.sE, P_WS, P_WS + 1))
        o = []
        o.append("s_sub_u32 s%d, s%d, s%d" % (self.sCX, sCT, self.sCX))
        o.append("s_and_b32 s%d, s%d, 7" % (self.sCX, self.sCX))
        for b, p, n in ((48, P_WS, 0x10000000), (52, P_CRE, 0x80000), (56, P_CIM, 0x80000), (60, P_WO, 0x80000), (64, P_OUT, 0x400000)):
            o.append("s_mov_b64 s[%d:%d], s[%d:%d]" % (b, b + 1, p, p + 1))
            o.append("s_mov_b32 s%d, 0x%x" % (b + 2, n))
        o.append("s_mov_b32 s70, 4096")
        for b in range(48, 72, 4): o.append("s_mov_b32 s%d, 0x20000" % (b + 3))
        self.emit(o)
        for q in range(4, 34): S.rel(q) if q not in (P_WQKV, P_WQKV + 1) else None
        self.vTag, self.vBase, self.vFlag, self.vG1a, self.vG2a, self.vf, self.vr, self.vOut, self.vPf, self.vFr, self.vTr = [V() for _ in range(11)]
        self.vo = [V() for _ in range(4)]; self.vc = [V() for _ in range(2)]
        self.aw = [V() for _ in range(4)]; self.ac = [[V(), V()], [V(), V()]]; self.axd = [[V(), V()], [V(), V()]]
        self.vG2 = V(4, 4); self.xdf = V(8, 4); self.acc = [V(16, 4), V(16, 4)]
        self.sMW, self.sMC, self.sRT, self.sRW, self.sCap, self.sP9, self.sP17, self.sH, self.sO, self.sFH, self.sFO = [S() for _ in range(11)]
        o = []
        o.append("s_mov_b32 s%d, %d" % (self.sCap, self.o["pollcap"]))
        o.append("s_lshr_b32 s%d, s%d, 1" % (t3, sW))
        o.append("s_and_b32 s%d, s%d, 1" % (t2, sW))
        o.append("s_lshl1_add_u32 s%d, s%d, s%d" % (self.sRW, sR, t3))
        o.append("s_lshl1_add_u32 s%d, s%d, s%d" % (t1, sR, sRH))
        o.append("s_lshl1_add_u32 s%d, s%d, s%d" % (self.sRT, t1, t2))
        xd0 = self.axd[0][0]
        o.append("v_bfe_u32 v%d, v0, 1, 3" % vt)
        o.append("v_bfe_u32 v%d, v0, 4, 2" % vu)
        o.append("v_xor_b32 v%d, v%d, v%d" % (self.vBase, vt, vu))
        o.append("v_bfe_u32 v%d, v0, 5, 1" % vu)
        o.append("v_xor_b32 v%d, v%d, v%d" % (xd0, vt, vu))
        self.bits(o, vu, None, ((0, 4, 7),))
        o.append("v_lshl_add_u32 v%d, v%d, 4, v%d" % (self.vBase, self.vBase, vu))
        o.append("v_lshl_add_u32 v%d, v%d, 4, v%d" % (xd0, xd0, vu))
        o.append("v_bfe_u32 v%d, v0, 4, 1" % vu)
        o.append("v_lshl_or_b32 v%d, v%d, 3, v%d" % (xd0, vu, xd0))
        o.append("s_and_b32 s%d, s%d, 3" % (t0, self.sRT))
        o.append("s_lshl_b32 s%d, s%d, 6" % (t0, t0))
        o.append("s_add_u32 s%d, s%d, s%d" % (t0, t0, t3))
        o.append("s_lshl_b32 s%d, s%d, 6" % (t0, t0))
        o.append("v_xor_b32 v%d, s%d, v%d" % (xd0, t0, xd0))
        o.append("v_xor_b32 v%d, 32, v%d" % (self.axd[0][1], xd0))
        for e in range(2): o.append("v_add_u32 v%d, 0x10000, v%d" % (self.axd[1][e], self.axd[0][e]))
        self.bits(o, self.vTr, vu, ((2, 4, 7), (0, 2, 3), (3, 2, 5)))
        o.append("s_mul_i32 s%d, s%d, %d" % (t0, t3, 16384 + 64))
        o.append("s_add_u32 s%d, s%d, %d" % (t0, t0, L_SP))
        o.append("v_xor_b32 v%d, s%d, v%d" % (self.aw[0], t0, self.vTr))
        for t in range(1, 4): o.append("v_xor_b32 v%d, %d, v%d" % (self.aw[t], 32 * t, self.aw[0]))
        o.append("s_lshl_b32 s%d, s%d, 13" % (self.sMW, sW))
        self.sSt, self.sMW2, self.sLF, self.sLX = S(), S(), S(), S()
        o.append("s_lshl_b32 s%d, s2, 10" % self.sSt)
        o.append("s_add_u32 s%d, s%d, %d" % (self.sMW2, self.sMW, L_SP))
        o.append("s_lshr_b32 s%d, s2, 7" % t0)
        o.append("s_andn2_b32 s%d, s%d, s%d" % (self.sP17, t0, sRole))
        o.append("s_lshl_b32 s%d, s%d, 9" % (self.sP9, t0 if self.o["alead"] else self.sP17))
        o.append("s_lshl_b32 s%d, s%d, 17" % (self.sP17, self.sP17))
        self.bits(o, vu, vt, ((3, 3, 0), (6, 1, 6), (7, 1, 8)))
        o.append("v_lshl_add_u32 v%d, v%d, 10, v%d" % (vu, vu, vUT))
        o.append("v_lshl_add_u32 v%d, s%d, 7, v%d" % (self.vo[0], sCT, vu))
        for b in range(1, 4): o.append("v_add_u32 v%d, %d, v%d" % (self.vo[b], 7168 * b, self.vo[0]))
        o.append("s_lshl2_add_u32 s%d, s%d, s%d" % (self.sMC, t3, t2))
        o.append("s_lshl_b32 s%d, s%d, 10" % (self.sMC, self.sMC))
        o.append("s_lshl_b32 s%d, s%d, 6" % (t0, self.sP9))
        o.append("s_add_u32 s%d, s%d, s%d" % (self.sMC, self.sMC, t0))
        self.bits(o, vt, vu, ((3, 4, 0), (7, 1, 5)))
        o.append("v_lshl_add_u32 v%d, s%d, 6, v%d" % (vt, sCT, vt))
        o.append("v_lshl_add_u32 v%d, v%d, 10, v%d" % (self.vc[0], vt, vUA))
        o.append("v_add_u32 v%d, %d, v%d" % (self.vc[1], 16384 - 2048, self.vc[0]))
        self.bits(o, vu, None, ((0, 4, 4),))
        o.append("v_add_u32 v%d, %d, v%d" % (vu, WS_G, vu))
        o.append("v_lshl_add_u32 v%d, s%d, 9, v%d" % (self.vG1a, self.sRW, vu))
        o.append("v_lshl_add_u32 v%d, s%d, 8, v%d" % (self.vG2a, self.sRT, vu))
        o.append("v_and_b32 v%d, 56, v0" % vt)
        o.append("v_cmp_eq_u32 vcc, 24, v%d" % vt)
        o.append("v_add_u32 v%d, %d, v%d" % (vt, SPILL - 384, self.vL16))
        o.append("s_nop 0")
        o.append("v_cndmask_b32 v%d, v%d, v%d, vcc" % (self.vFr, self.vL16, vt))
        vWq = self.vWq = V()
        if self.o["qmode"] == 2:
            o.append("s_lshr_b32 s%d, s2, 3" % t0)
            self.bits(o, vWq, vu, ((2, 2, 0), (6, 2, 2)))
            o.append("v_lshl_add_u32 v%d, s%d, 4, v%d" % (vWq, t0, vWq))
        else:
            o.append("s_lshr_b32 s%d, s2, 6" % t0); o.append("s_and_b32 s%d, s%d, 3" % (t1, sJ)); o.append("s_lshl2_add_u32 s%d, s%d, s%d" % (t0, t0, t1))
            self.bits(o, vWq, vu, ((2, 3, 0), (6, 2, 3)))
            o.append("v_lshl_add_u32 v%d, s%d, 5, v%d" % (vWq, t0, vWq))
        o.append("v_mul_u32_u24 v%d, 24, v%d" % (vWq, vWq))
        o.append("v_and_or_b32 v%d, v0, 3, v%d" % (vWq, vWq))
        o.append("v_lshl_add_u32 v%d, s%d, 2, v%d" % (vWq, sRH, vWq))
        o.append("v_lshlrev_b32 v%d, 7, v%d" % (vWq, vWq))
        o.append("s_lshl4_add_u32 s%d, s%d, s%d" % (t0, sR, sJ))
        o.append("s_lshl_b32 s%d, s%d, 8" % (t0, t0))
        o.append("s_add_u32 s%d, s%d, %d" % (t0, t0, WS_FH))
        self.bits(o, self.vPf, vu, ((6, 1, 7), (7, 1, 11)))
        o.append("v_add_u32 v%d, s%d, v%d" % (self.vPf, t0, self.vPf))
        o.append("v_lshl_add_u32 v%d, s%d, 16, v%d" % (self.vPf, sRole, self.vPf))
        self.bits(o, self.vFlag, None, ((0, 5, 2),))
        o.append("v_add_u32 v%d, v%d, v%d" % (self.vFlag, self.vFlag, self.vPf))
        if self.o["lflag"]:
            o.append("v_bfe_u32 v%d, v0, 5, 1" % vu)
            o.append("v_mul_u32_u24 v%d, 0x%x, v%d" % (vu, WS_LF, vu))
            o.append("v_add_u32 v%d, v%d, v%d" % (self.vPf, vu, self.vPf))
        self.emit(o)
        self.vUT = vUT
        for q in (vt, vu, vUA, vp, vd): V.rel(q)
        self.vg = vg
        A("s_cmp_eq_u32 s%d, 0" % sRole)
        A("s_cbranch_scc0 L_att")

    def p2_addr(self, first, vt, vu):
        t0, t1, t3 = self.t0, self.t1, self.t3
        o = []
        o.append("s_lshr_b32 s%d, s%d, 1" % (t3, self.sW))
        o.append("s_lshr_b32 s%d, s%d, 1" % (t1, self.sRT))
        o.append("s_lshl1_add_u32 s%d, s%d, s%d" % (t0, t1, t3))
        self.bits(o, self.vf, None, ((0, 3, 7),))
        o.append("v_lshl_add_u32 v%d, s%d, 10, v%d" % (self.vf, t0, self.vf))
        o.append("s_mov_b32 s%d, %d" % (self.sFO, WS_FO)); o.append("s_mov_b32 s%d, %d" % (self.sFH, WS_FH))
        if self.o["lflag"]:
            o.append("s_mov_b32 s%d, %d" % (self.sLF, WS_LF))
            o.append(lambda: (self.A("s_cmp_eq_u32 s%d, s%d" % (t3, self.sRH)), self.A("s_cselect_b32 s%d, s%d, 0" % (self.sLX, self.sLF))))
            o.append("s_add_u32 s%d, s%d, s%d" % (self.sFH, self.sFH, self.sLX))
            o.append("s_add_u32 s%d, s%d, s%d" % (self.sFO, self.sFO, self.sLX))
        o.append("s_mul_i32 s%d, s%d, %d" % (t0, self.sRT, RT_STRIDE))
        o.append("s_lshl_b32 s%d, s%d, 14" % (self.sO, t3))
        o.append("s_lshl1_add_u32 s%d, s%d, s%d" % (self.sH, self.sO, t0))
        o.append("s_add_u32 s%d, s%d, %d" % (self.sH, self.sH, WS_A + (16384 if (first or not self.o["alead"]) else 0)))
        o.append("s_add_u32 s%d, s%d, s%d" % (self.sO, self.sO, t0))
        o.append("s_add_u32 s%d, s%d, %d" % (self.sO, self.sO, WS_A + 65536))
        if first: o.append("s_lshl4_add_u32 s%d, s%d, s%d" % (self.sO, self.sP9, self.sO))
        if self.o["g3"]:
            o.append("s_lshl_b32 s%d, s%d, 6" % (self.sSt, self.sP9)); o.append("s_add_u32 s%d, s%d, 0x10000" % (self.sSt, self.sSt))
        else: o.append("s_mov_b32 s%d, 0x10000" % self.sSt)
        o.append("s_mul_i32 s%d, s%d, %d" % (t0, t3, 32768 + 4096))
        if first: o.append("s_add_u32 s%d, s%d, %d" % (t0, t0, first))
        o.append("v_add_u32 v%d, s%d, v%d" % (self.ac[0][0], t0, self.vBase))
        o.append("v_xor_b32 v%d, 64, v%d" % (self.ac[0][1], self.ac[0][0]))
        for sx in range(2): o.append("v_xor_b32 v%d, 4096, v%d" % (self.ac[1][sx], self.ac[0][sx]))
        self.bits(o, vt, None, ((4, 2, 5),))
        o.append("v_xor_b32 v%d, v%d, v%d" % (vt, vt, self.vL16))
        o.append("v_lshl_add_u32 v%d, s%d, 12, v%d" % (self.vr, self.sW, vt))
        if first: o.append("v_add_u32 v%d, %d, v%d" % (self.vr, first, self.vr))
        self.bits(o, vt, vu, ((3, 1, 3), (4, 1, 0), (5, 1, 4), (6, 1, 2)))
        o.append("v_lshl_add_u32 v%d, s%d, 6, v%d" % (vt, t1, vt))
        self.bits(o, vu, None, ((0, 3, 4),))
        o.append("v_lshl_add_u32 v%d, v%d, 11, v%d" % (vt, vt, vu))
        o.append("s_lshl1_add_u32 s%d, s%d, s%d" % (t0, self.sCT, t3))
        o.append("v_lshl_add_u32 v%d, s%d, 7, v%d" % (self.vOut, t0, vt))
        return o

    def skip_term(self):
        xd = self.vXD; dm = self.of; og = self.of + 8
        W = []
        for a1 in range(2): W.append("v_sub_f32 v%d, 1.0, v%d" % (og + a1, self.vG2 + 2 * a1))
        for k in range(4):
            W.append("v_and_b32 v%d, 0xffff, v%d" % (dm + 2 * k, self.vDs + k))
            W.append("v_and_b32 v%d, 0xffff0000, v%d" % (dm + 2 * k + 1, self.vDs + k))
        for a1 in range(2): W.append("v_cvt_pk_bf16_f32 v%d, 0, v%d" % (og + a1, og + a1))
        for n in range(16): W.append("v_dot2_f32_bf16 v%d, v%d, v%d, 0" % (xd + n, self.xdf + (n >> 1), dm + (n & 7)))
        for q in range(8): W.append("v_pk_mul_f32 %s, %s, %s %s" % (v(xd + 2 * q, 2), v(og, 2), v(xd + 2 * q, 2), "op_sel:[1,0]" if q >> 2 else "op_sel_hi:[0,1]"))
        return W

    def gate_fill(self):
        V = self.V
        F = []
        t0, t1 = self.S(), self.S()
        gx = self.gx; g = gx + 12; vt = self.V()
        F.append("s_add_u32 s%d, s%d, 1" % (self.sE, self.sE))
        F.append("s_mul_i32 s%d, s%d, 0x9e3779b1" % (self.sTag, self.sE))
        F.append("v_mov_b32 v%d, s%d" % (self.vTag, self.sTag))
        F.append("v_mov_b32 v%d, 0" % g); F.append("v_mov_b32 v%d, 0" % (g + 2))
        for i in range(4):
            F.append("v_dot2c_f32_bf16 v%d, v%d, v%d" % (g, gx + i, gx + 8 + i))
            F.append("v_dot2c_f32_bf16 v%d, v%d, v%d" % (g + 2, gx + 4 + i, gx + 8 + i))
        side = ["v_mov_b32 v%d, v%d" % (g + 1, self.vTag), "v_mov_b32 v%d, v%d" % (g + 3, self.vTag), "v_cmp_eq_u32 vcc, 0x3f0, v%d" % self.vL16,
                "v_mov_b32 v%d, 0x%x" % (vt, HUGE)]
        side.append("s_and_b32 s%d, s%d, 32" % (t0, self.sN2))
        for bit, w_, sh in ((1, 1, 4), (3, 2, 2), (0, 1, 1), (2, 1, 0)):
            side.append("s_bfe_u32 s%d, s%d, 0x%x" % (t1, self.sN2, (w_ << 16) | bit))
            side.append(("s_lshl%d_add_u32" % sh if sh else "s_add_u32") + " s%d, s%d, s%d" % (t0, t1, t0))
        side.append("v_cndmask_b32 v%d, v%d, 0, vcc" % (vt, vt))
        side.append("s_lshl_b32 s%d, s%d, 10" % (t1, self.sR))
        side.append("s_lshl4_add_u32 s%d, s%d, s%d" % (t0, t0, t1))
        side.append("s_add_u32 s%d, s%d, %d" % (t0, t0, WS_G))
        F += side[:3]; side = side[3:]
        for md in ("row_shr:1 row_mask:0xf", "row_shr:2 row_mask:0xf", "row_shr:4 row_mask:0xf", "row_shr:8 row_mask:0xf", "row_bcast:15 row_mask:0xa", "row_bcast:31 row_mask:0xc"):
            for q in (g, g + 2): F.append("v_add_f32_dpp v%d, v%d, v%d %s bank_mask:0xf" % (q, q, q, md))
            F += side[:2]; side = side[2:]
        for q in (g, g + 2): F.append("v_mul_f32 v%d, 0xbfb8aa3b, v%d" % (q, q))
        for q in (g, g + 2): F.append("v_exp_f32 v%d, v%d" % (q, q))
        for q in (g, g + 2): F.append("v_add_f32 v%d, 1.0, v%d" % (q, q))
        for q in (g, g + 2): F.append("v_rcp_f32 v%d, v%d" % (q, q))
        F += side
        for q in (g, g + 2): F.append("v_cvt_pk_bf16_f32 v%d, 0, v%d" % (q, q))
        def st():
            self.A("buffer_store_dwordx4 %s, v%d, %s, s%d offen sc1" % (v(g, 4), vt, self.WS, t0)); self.vm.issue("gst")
        F.append(st)
        return F

    def g_loads(self):
        for k in range(self.nG1):
            self.A("buffer_load_dwordx4 %s, v%d, %s, 0 offen%s sc1" % (v(self.vG1 + 4 * k, 4), self.vG1a, self.WS, " offset:256" if k else "")); self.vm.issue("g")
        self.A("buffer_load_dwordx4 %s, v%d, %s, 0 offen sc1" % (v(self.vG2, 4), self.vG2a, self.WS)); self.vm.issue("g")

    def g_check(self, name, vt):
        A = self.A
        self.vm.wait("g")
        A.label("L_gchk_" + name)
        A("v_xor_b32 v%d, v%d, v%d" % (vt, self.vG2 + 1, self.vTag))
        for q in [self.vG2 + 3] + [self.vG1 + 1 + 2 * k for k in range(2 * self.nG1)]:
            A("v_bitop3_b32 v%d, v%d, v%d, v%d bitop3:0xf6" % (vt, vt, q, self.vTag))
        A("v_cmp_ne_u32 vcc, 0, v%d" % vt)
        self.cap()
        A("s_cbranch_scc0 L_gok_" + name)
        q = list(self.vm.q)
        self.g_loads(); A("s_waitcnt vmcnt(0)")
        self.vm.q = q
        A("s_branch L_gchk_" + name)
        A.label("L_gok_" + name)

    def hop(self, name):
        if not self.o["hop"]: return
        A = self.A
        A("s_mov_b64 exec, 0")
        for w in range(3):
            A("s_cmp_eq_u32 s%d, %d" % (self.sW, w))
            A("s_cbranch_scc1 @CHAIN%s%d@" % (name, w))
        A("s_branch @CHAIN%s3@" % name)
        if name == "s":
            A.label("L_backx")
            A("s_cmp_eq_u32 s%d, 0" % self.sRole)
            A("s_cbranch_scc0 L_backa")
        A.label("L_back" + name)
        A("s_mov_b64 exec, -1")

    def p1_loop(self, name, xread, wread, mfma, tail, fill):
        A = self.A
        def warm(tok):
            if tok == "w": A("global_load_dword v%d, v%d, s[48:49]" % (self.vJunk, self.vPf))
            else: A("global_load_dword v%d, v%d, s[%d:%d]" % (self.vJunk, self.vWq, P_WQKV, P_WQKV + 1))
            self.vm.issue("junk")
        self.stamp(20)
        early = list(self.early)
        gf = self.gate_fill()
        for tok in self.o["third"][name == "a"]:
            if tok in "wq": warm(tok)
            elif tok == "G":
                A("s_waitcnt vmcnt(%d) lgkmcnt(0)" % (len(self.vm.q) - self.vm.q.index("ch0")))
                self.emit(gf); gf = []
            elif tok == "f":
                if name == "s": A("s_waitcnt vmcnt(%d)" % (len(self.vm.q) - self.vm.q.index("ch0")))
                k = min(self.o["nf"][name == "a"], len(fill))
                self.emit(fill[:k]); fill = fill[k:]
            elif tok == "h": self.hop(name)
            else: self.emit(early[:int(tok)]); early = early[int(tok):]
        assert not early
        self.stamp(21)
        if self.o["xdo"]:
            A("s_branch L_loop" + name)
            for c in range(8):
                A.label("L_xd_%s%d" % (name, c))
                hi, lo = self.slot(c) >> 16, self.slot(c) & 0xffff
                for n in range(4): A("ds_read_b64 %s, v%d offset:%d" % (v(self.xdf + 2 * n, 2), self.axd[hi][n & 1], lo + 2048 * (n >> 1)))
                A("s_branch L_nx_%s%d" % (name, c))
            A.label("L_loop" + name)
        gap = {}
        def at(n, x): gap.setdefault(n, []).append(x)
        nw = len(wread(0, 0))
        wpos = {1: ((-8,), (-3,), (0,), (4,)), 2: ((-8, -7), (-2, -1), (1, 2), (5, 6))}[nw]
        dpos = {1: (-2, 2, 6, -1 + 8 + 3), 2: (0, 3, 4, 7)}[nw]
        xpos = [-8 + nw + i for i in range(4)]
        last = []
        early_n = self.o["early"][name == "a"]; ex = self.wo_stag()
        ah = self.o["ahead"][name == "a"]
        drain = (0, 6, 7) + (tuple(range(ah, 6)) if ah else ())
        wpe = {1: ((-8,), (-3,), (0,), (1,)), 2: ((-8, -7), (-2, -1), (0, 1), (2, 3))}[nw]
        for c in range(8):
            base = 32 * c
            def sync(c=c):
                n1 = self.vm.need("ch%d" % c)
                if c == 6 and early_n and "wo0" in self.vm.q: n1 = self.vm.need("wo0")
                if c in drain:
                    A("s_waitcnt vmcnt(%d) lgkmcnt(0)" % n1); self.lg.zero(False)
                else: A("s_waitcnt vmcnt(%d)" % n1)
                self.stamp({0: 1, 1: 2, 2: 3, 3: 27, 4: 4, 5: 28, 6: 29, 7: 5}[c])
                A("s_barrier")
            at(base - 9, sync)
            for k in range(self.o["pause"][c]): at(base + 7 + 8 * (k & 1) * self.o["psplit"], "s_nop 15")
            for sx in range(2):
                st = 2 * c + sx
                for t in range(4):
                    for p, x in zip((wpe if (sx and c + 1 in drain) else wpos)[t], wread(st, t)): at(16 * st + p, self.ds(x, "w%d_%d" % (st, t)))
                    at(16 * st + xpos[t], self.ds(xread(st, t), "x%d_%d" % (st, t)))
            def xd(c=c):
                A("s_cmp_eq_u32 s%d, %d" % (self.sCX, c))
                if self.o["xdo"]: A("s_cbranch_scc1 L_xd_%s%d" % (name, c))
                else:
                    A("s_cbranch_scc0 L_nx_%s%d" % (name, c))
                    hi, lo = self.slot(c) >> 16, self.slot(c) & 0xffff
                    for n in range(4): A("ds_read_b64 %s, v%d offset:%d" % (v(self.xdf + 2 * n, 2), self.axd[hi][n & 1], lo + 2048 * (n >> 1)))
                A.label("L_nx_%s%d" % (name, c))
            at(base + (3 if nw == 1 else 4), xd)
            la = 3 if (ah and c > ah) else 2
            dm = self.chunk_dmas(c + la) if c + la < 8 else tail[c + la - 8]
            if ah and c == ah:
                dm = dm + self.chunk_dmas(c + 3)
                nm = min(len(fill), self.o["smid" if name == "s" else "amid"])
                blk = weave(fill[len(fill) - nm:], dm[4:12]); fill = fill[:len(fill) - nm]
                at(base + 7, lambda blk=blk: self.emit(blk))
                dm = dm[:4] + dm[12:]
            if c == 7 and name == "s" and self.o["g3"]: last = tail[-1]
            elif c == 7 and name == "s" and self.o["late7"]: last = dm; dm = []
            pos = list(self.o["dpos"][nw - 1])
            ne = early_n[c] if early_n else 0
            if ne:
                for i in range(ne): dm.insert({1: (4,), 2: (2, 7), 3: (2, 5, 8), 4: (2, 5, 8, 11)}[ne][i], ex.pop(0))
                pos = [-7 + (30 * i) // len(dm) for i in range(len(dm))]
            if c == 6 and early_n:
                assert not ex
                for i, x in enumerate(self.wo_reads(0)): at(base - 8 + (28 * i) // 32, self.ds(x, "wor"))
            if c == 0:
                k = self.o["d0"]; pos = [22 - 2 * (k - i) for i in range(k)] + [22] * (len(dm) - k)
            pos = [max(-8, pos[0] - 3)] * max(0, len(dm) - len(pos)) + pos
            prev = -8
            for i, x in enumerate(dm):
                p = pos[i]
                if isinstance(x, tuple):
                    for k, y in enumerate(x[0]): at(base + max(prev, p - len(x[0]) + k), y)
                    at(base + p, x[1])
                else: at(base + p, x)
                prev = p
        m0_, m1_, nm = self.o["mid"]
        nm = 0 if ah else min(nm, self.o["smid" if name == "s" else "amid"])
        if name == "a": m0_ += self.o["aoff"]; m1_ += self.o["aoff"]
        if self.o["gmid"]: fill = gf + fill; gf = []
        if self.o["glate"]:
            gc, g0, g1 = self.o["glate"]
            def rows():
                for k in range(2):
                    A("buffer_load_dwordx4 %s, v%d, %s, 0 offen%s" % (v(self.gx + 4 * k, 4), self.vg, self.X, " offset:2048" if k else "")); self.vm.issue("grow")
            at(gc, rows)
            at(g0, lambda: self.vm.wait("grow"))
            for i, x in enumerate(gf[3:]): at(g0 + ((g1 - g0) * i) // len(gf), x)
            gf = gf[:3]
        if self.o["qat"] and (name == "a" or self.o["qmode"] == 2): at(self.o["qat"], lambda: warm("q"))
        if name == "s" and self.o["wat"]:
            def w2():
                for srd in (self.WO, self.CIM, self.CRE)[:self.o["wn"]]:
                    A("buffer_load_dword v%d, v%d, %s, 0 offen" % (self.vJunk, self.vW2, srd)); self.vm.issue("junk")
            at(self.o["wat"], w2)
        nm = min(nm, len(fill)); midl = fill[len(fill) - nm:]; fill = fill[:len(fill) - nm]
        for i, x in enumerate(midl): at(m0_ + ((m1_ - m0_) * i) // nm, x)
        fl = gf + fill
        nd = self.o["defer"]
        self.deferred = [(lambda k=k: (self.lg.wait("w15_%d" % (k >> 2)), mfma(15, k >> 2, k & 3))) for k in range(16 - nd, 16)]
        for n in range(-9, 256 - nd):
            if n >= 0:
                st, k = n >> 4, n & 15
                if k == 0: self.lg.wait("x%d_1" % st)
                elif k == 2: self.lg.wait("x%d_3" % st)
                elif k & 3 == 0: self.lg.wait("w%d_%d" % (st, k >> 2))
                mfma(st, k >> 2, k & 3)
            g_ = gap.pop(n, [])
            if -1 <= n < 22:
                k = -(-len(fl) // (22 - n))
                assert "par" not in self.vm.q
                g_ = g_ + fl[:k]; fl = fl[k:]
            self.emit(g_)
        assert not fl and not gap, gap
        self.last = last
        if self.o["late7"] == 1 and not nd: self.emit(last); self.last = []
        self.stamp(6)

    def ssm(self):
        A, V, S = self.A, self.V, self.S
        t0, t1, t2, t3 = self.t0, self.t1, self.t2, self.t3
        vt = V(); vu = V()
        for q in (self.vUT, self.vTr): V.rel(q)
        self.nG1 = 2; self.vG1 = V(8, 4)
        ax = [[V(), V()], [V(), V()]]; ab = [[V(), V()], [V(), V()]]
        Q = lambda: V(4, 2)
        F = []
        for fam, sel in ((ax, t3), (ab, t2)):
            F.append("v_lshl_add_u32 v%d, s%d, 13, v%d" % (fam[0][0], sel, self.vBase))
            F.append("v_xor_b32 v%d, 64, v%d" % (fam[0][1], fam[0][0]))
            for sx in range(2): F.append("v_add_u32 v%d, 0x10000, v%d" % (fam[1][sx], fam[0][sx]))
        m0_, m1_, mw = S(2, 2), S(2, 2), S(2, 2)
        F.append("s_mov_b32 s%d, 0xffff0000" % m0_); F.append("s_mov_b32 s%d, 0xffff0000" % (m0_ + 1))
        F.append("s_mov_b32 s%d, 0" % m1_); F.append("s_mov_b32 s%d, -1" % (m1_ + 1))
        F.append("s_sub_u32 s%d, 0, s%d" % (mw, t3)); F.append("s_mov_b32 s%d, s%d" % (mw + 1, mw))
        Sk = V(2)
        F.append("v_lshrrev_b32 v%d, 2, v0" % vt)
        F.append("v_xor_b32 v%d, v0, v%d" % (vt, vt))
        F.append("v_and_b32 v%d, 12, v%d" % (vt, vt))
        F.append("v_and_or_b32 v%d, v0, 2, v%d" % (vt, vt))
        F.append("v_cmp_eq_u32 vcc, 0, v%d" % vt)
        F.append("v_cmp_eq_u32 s[%d:%d], 2, v%d" % (self.sMk, self.sMk + 1, vt))
        F.append("v_bfe_i32 v%d, v0, 0, 1" % vu)
        F.append("v_xor_b32 v%d, 0xffff, v%d" % (vu, vu))
        F.append("v_cndmask_b32 v%d, 0, v%d, vcc" % (Sk, vu))
        F.append("v_cndmask_b32 v%d, 0, v%d, s[%d:%d]" % (Sk + 1, vu, self.sMk, self.sMk + 1))
        vEs = V(); vXa = V(); ea = [V() for _ in range(4)]; et = [V() for _ in range(4)]
        F.append("s_lshl1_add_u32 s%d, s%d, s%d" % (t0, self.sJ, t2))
        F.append("s_lshl_b32 s%d, s%d, 12" % (t0, t0))
        F.append("s_add_u32 s%d, s%d, %d" % (t0, t0, WS_E))
        F.append("s_add_u32 s68, s48, s%d" % t0); F.append("s_addc_u32 s69, s49, 0")
        self.bits(F, vt, None, ((0, 4, 4),))
        F.append("v_lshl_add_u32 v%d, s%d, 8, v%d" % (vEs, self.sR, vt))
        F.append("v_lshl_add_u32 v%d, s%d, 8, v%d" % (vXa, self.sW, vt))
        F.append("v_lshl_add_u32 v%d, s%d, 6, v%d" % (vXa, self.sP9, vXa))
        F.append("v_xor_b32 v%d, %d, v%d" % (vXa, L_R1 + 32768, vXa))
        self.bits(F, ea[0], None, ((4, 2, 8),))
        F.append("v_sub_u32 v%d, v%d, v%d" % (ea[0], vEs, ea[0]))
        F.append("v_subrev_u32 v%d, 256, v%d" % (ea[0], ea[0]))
        F.append("v_and_b32 v%d, 0xb0, v0" % vt)
        F.append("v_cmp_eq_u32 vcc, 0x80, v%d" % vt)
        F.append("v_add_u32 v%d, s%d, v%d" % (vu, t0, vEs))
        F.append("v_mov_b32 v%d, 0x%x" % (vt, HUGE))
        for k in range(1, 4): F.append("v_subrev_u32 v%d, %d, v%d" % (ea[k], 1024 * k, ea[0]))
        for k in range(4): F.append("v_ashrrev_i32 v%d, 31, v%d" % (et[k], ea[k]))
        F.append("v_cndmask_b32 v%d, v%d, v%d, vcc" % (vEs, vt, vEs))
        F.append("v_cndmask_b32 v%d, v%d, v%d, vcc" % (self.vPf, self.vPf, vu))
        if self.o["wat"]:
            self.vW2 = V()
            if self.o["wl2"]:
                F.append("s_lshr_b32 s%d, s2, 6" % t0); F.append("s_and_b32 s%d, s%d, 3" % (t1, self.sJ)); F.append("s_lshl2_add_u32 s%d, s%d, s%d" % (t0, t0, t1))
                F.append("v_lshl_add_u32 v%d, s%d, 8, v0" % (self.vW2, t0))
            else:
                F.append("s_lshl3_add_u32 s%d, s%d, s%d" % (t0, self.sR, self.sJ))
                F.append("v_lshrrev_b32 v%d, 3, v0" % self.vW2)
                F.append("v_lshl_add_u32 v%d, s%d, 5, v%d" % (self.vW2, t0, self.vW2))
            F.append("v_lshlrev_b32 v%d, 7, v%d" % (self.vW2, self.vW2))
        sH = [S() for _ in range(4)]
        F.append("s_mul_i32 s%d, s%d, %d" % (t0, self.sRW, 2 * RT_STRIDE))
        F.append("s_and_b32 s%d, s%d, 4" % (t1, self.sJ)); F.append("s_add_u32 s%d, s%d, s%d" % (t1, t1, self.sJ))
        F.append("s_lshl1_add_u32 s%d, s%d, s%d" % (t1, t1, t2)); F.append("s_lshl_b32 s%d, s%d, 11" % (t1, t1))
        F.append("s_add_u32 s%d, s%d, s%d" % (t0, t0, t1))
        for tau in range(2):
            for comp in range(2):
                F.append("s_add_u32 s%d, s%d, %d" % (sH[2 * tau + comp], t0, WS_A + tau * RT_STRIDE + comp * 16384))
        self.emit(F)
        F = []
        pre, pim, pdt = self.ppar
        lam, cf, mu, l16, l32, l64, L4, Lg, x16, x32 = [Q() for _ in range(10)]
        al = [Q(), Q()]
        ta, tb, tc = self.acc[0], self.acc[0] + 4, self.acc[0] + 8
        P2 = lambda r: v(r, 2)
        for q in (pre, pim, pdt):
            for b in range(2): F.append("v_lshlrev_b32 v%d, 16, v%d" % (q + b, q + b))
        for b in range(2): F.append("v_mul_f32 v%d, %s, v%d" % (pdt + b, LOG2E, pdt + b))
        for b in range(2): F.append("v_exp_f32 v%d, v%d" % (pdt + b, pdt + b))
        F.append("v_pk_mul_f32 %s, %s, %s" % (P2(tb), P2(pre), P2(pre)))
        for b in range(2): F.append("v_cvt_pk_bf16_f32 v%d, 0, v%d" % (pdt + b, pdt + b))
        F.append("v_pk_fma_f32 %s, %s, %s, %s" % (P2(tb), P2(pim), P2(pim), P2(tb)))
        F.append("v_pk_mul_f32 %s, %s, %s" % (P2(ta), P2(pdt), P2(pre)))
        F.append("v_pk_mul_f32 %s, %s, %s" % (P2(ta + 2), P2(pdt), P2(pim)))
        for b in range(2): F.append("v_mul_f32 v%d, %s, v%d" % (ta + b, LOG2E, ta + b))
        for b in range(2): F.append("v_mul_f32 v%d, 0.15915494, v%d" % (ta + 2 + b, ta + 2 + b))
        for b in range(2): F.append("v_exp_f32 v%d, v%d" % (ta + b, ta + b))
        for b in range(2): F.append("v_rndne_f32 v%d, v%d" % (tb + 2 + b, ta + 2 + b))
        for b in range(2): F.append("v_sub_f32 v%d, v%d, v%d" % (ta + 2 + b, ta + 2 + b, tb + 2 + b))
        for b in range(2): F.append("v_rcp_f32 v%d, v%d" % (tb + b, tb + b))
        for b in range(2): F.append("v_cos_f32 v%d, v%d" % (lam + b, ta + 2 + b))
        for b in range(2): F.append("v_sin_f32 v%d, v%d" % (lam + 2 + b, ta + 2 + b))
        F.append("v_pk_add_f32 %s, %s, %s" % (P2(tb), P2(tb), P2(tb)))
        for k in (0, 2): F.append("v_pk_mul_f32 %s, %s, %s" % (P2(lam + k), P2(lam + k), P2(ta)))
        for b in range(2): F.append("v_add_f32 v%d, -1.0, v%d" % (ta + b, lam + b))
        F.append("v_pk_mul_f32 %s, %s, %s" % (P2(cf), P2(ta), P2(pre)))
        F.append("v_pk_mul_f32 %s, %s, %s" % (P2(cf + 2), P2(lam + 2), P2(pre)))
        F.append("v_pk_fma_f32 %s, %s, %s, %s" % (P2(cf), P2(lam + 2), P2(pim), P2(cf)))
        F.append("v_pk_fma_f32 %s, %s, %s, %s neg_lo:[1,0,0] neg_hi:[1,0,0]" % (P2(cf + 2), P2(ta), P2(pim), P2(cf + 2)))
        for k in (0, 2): F.append("v_pk_mul_f32 %s, %s, %s" % (P2(cf + k), P2(cf + k), P2(tb)))
        chain = [lam, ta, tb, mu, l16, l32, l64, ta, tb, L4]
        for x_, y_ in zip(chain, chain[1:]):
            F.append("v_pk_mul_f32 %s, %s, %s" % (P2(y_), P2(x_), P2(x_)))
            F.append("v_pk_mul_f32 %s, %s, %s" % (P2(y_ + 2), P2(x_), P2(x_ + 2)))
            F.append("v_pk_fma_f32 %s, %s, %s, %s neg_lo:[1,0,0] neg_hi:[1,0,0]" % (P2(y_), P2(x_ + 2), P2(x_ + 2), P2(y_)))
            F.append("v_pk_add_f32 %s, %s, %s" % (P2(y_ + 2), P2(y_ + 2), P2(y_ + 2)))
        def sel(out, d, src, mk, one):
            for k in range(4): out.append("v_cndmask_b32 v%d, %s, v%d, s[%d:%d]" % (d + k, "1.0" if (one and k < 2) else "0", src + k, mk, mk + 1))
        sel(F, ta, ta, m0_, 1); sel(F, tb, tb, m1_, 1)
        self.pmul(F, Lg, ta, tb)
        sel(F, x16, l16, m0_, 1); sel(F, x32, l32, m1_, 1); sel(F, ta, l64, mw, 1)
        self.pmul(F, tb, x16, x32); self.pmul(F, tc, tb, ta)
        for b in range(2):
            self.cmul(F, al[b], al[b] + 2, cf + b, cf + 2 + b, tc + b, tc + 2 + b)
            self.cmul(F, al[b] + 1, al[b] + 3, mu + b, mu + 2 + b, al[b], al[b] + 2)
        U = [[V(16, 4), V(16, 4)], [V(16, 4), V(16, 4)]]
        def lds(fam, st, off):
            tot = self.slot(st >> 1) + off
            return fam[tot >> 16][st & 1], tot & 0xffff
        xread = lambda st, t: "ds_read_b128 %s, v%d offset:%d" % ((a(64 + 32 * (st & 1) + 4 * t, 4),) + lds(ax, st, 2048 * t))
        wread = lambda st, t: ["ds_read_b128 %s, v%d offset:%d" % ((a(64 + 32 * (st & 1) + 16 + 4 * t, 4),) + lds(ab, st, 16384 + 4096 * (t & 1) + 2048 * (t >> 1)))]
        def mfma(st, t, x):
            self.mf(U[t & 1][t >> 1] + 4 * x, a(64 + 32 * (st & 1) + 4 * x, 4), a(64 + 32 * (st & 1) + 16 + 4 * t, 4), "0" if st == 0 else None)
        c1 = self.c_dmas(1, L_R1); c0 = self.c_dmas(0, L_R0, self.sMW2 if self.o["g3"] else None)
        if self.o["g3"]: F.append("s_and_b32 s%d, s%d, 0x7fff" % (self.sMW2, self.sMC))
        early = self.o["early"][0]
        sl = self.o["ssm"]
        if early:
            a1 = c1[:8]; ld = self.wo_dmas(1) + c0[:8] + c1[8:] + c0[8:]
        else:
            a1 = self.wo_dmas(0); ld = c1[:8] + c0[:8] + c1[8:] + self.wo_dmas(1) + c0[8:]
        if self.o["alead"]:
            ld = c1 + self.wo_dmas(1) + c0
            assert sl[0] + sl[1] <= 8 and sum(sl[:5]) >= 16
        else: assert sl[0] <= 8 and sl[0] + sl[1] <= 16 and sum(sl[:5]) >= 24
        def take(n):
            out = ld[:n]; del ld[:n]
            return out
        gl_ = [] if self.o["glate"] else [self.g_loads]
        if self.o["ahead"][0]:
            k = self.o["a2"]; x_ = take(sl[0]); tl = [gl_ + a1, x_[:k], x_[k:]]
            if self.o["g3"]: tl.append(take(sl[1])); sl = (sl[0], 0) + tuple(sl[2:])
        else: tl = [gl_ + a1, take(sl[0])]
        self.p1_loop("s", xread, wread, mfma, tl, F)
        for q in self.ppar: V.rel(q, 2)
        for fam in (ax, ab):
            for row in fam:
                for q in row: V.rel(q)
        for q in self.vw + self.vx: V.rel(q)
        pr = lambda b, m: (U[0][b] + 2 * m, U[1][b] + 2 * m)
        T = self.acc[0]; T2 = self.acc[1]
        E = [[T, T + 4], [T + 8, T + 12]]
        o = []
        for b in range(2):
            cur = pr(b, 0)
            for m in range(1, 8):
                self.pmul(o, E[b][m & 1], lam, cur, pr(b, m), b); cur = E[b][m & 1]
        Ev = [E[0][1], E[1][1]]
        Fe, Fo, Ge, Go = T, T + 8, T2, T2 + 4
        Wv, W0, e = T2 + 8, T2 + 12, Q()
        for b in range(2): self.cmul(o, Fe + b, Fe + 2 + b, mu + b, mu + 2 + b, Ev[b], Ev[b] + 2, Ev[b] + 1, Ev[b] + 3)
        def split(out, x, y, w):
            for k in (0, 2): out.append("v_pk_mov_b32 %s, %s, %s op_sel:[0,1]" % (P2(y + k), P2(x + k), P2(x + k)))
            for k in range(4): out.append("v_permlane%d_swap_b32 v%d, v%d" % (w, x + k, y + k))
        split(o, Fe, Fo, 16)
        self.pmul(o, Ge, l16, Fe, Fo)
        split(o, Ge, Go, 32)
        self.pmul(o, Wv, l32, Ge, Go)
        k = self.o["l7at"]
        d = self.deferred
        if d: self.emit(d[:4] + weave(o[:16], d[4:]) + (self.last + o[16:] if k == 0 else o[16:k] + weave(o[k:64], self.last) + o[64:]))
        else: self.emit(o[:k] + weave(o[k:64], self.last) + o[64:])
        A("ds_write_b128 v%d, %s" % (vXa, v(Wv, 4)))
        A("v_and_b32 v%d, 0xfffffdff, v%d" % (vXa, vXa))
        tt = (t0, t1, t2, t3)
        for k in range(4): A("s_mov_b32 s%d, 0x%x" % (tt[k], 0x07060500 + k))
        self.vm.wait("wo0")
        A("s_waitcnt lgkmcnt(0)")
        A("s_barrier")
        A("ds_read_b128 %s, v%d" % (v(W0, 4), vXa))
        A("s_waitcnt lgkmcnt(0)"); self.lg.zero(False)
        o = []
        self.pmul(o, e, l64, W0, Wv)
        for k in range(4): o.append("v_perm_b32 v%d, v%d, v%d, s%d" % (e + k, e + k, self.vTag, tt[k]))
        self.emit(o)
        A("buffer_store_dwordx4 %s, v%d, %s, 0 offen sc1" % (v(e, 4), vEs, self.ER)); self.vm.issue("est")
        if self.o["glate"]: self.g_loads()
        self.stamp(7)
        W = ["s_bfe_u32 s%d, s%d, 0x%x" % (tt[k], self.sTag, 0x80000 + 8 * k) for k in range(4)]
        be = [l16, l32]
        sel(W, W0, W0, mw, 0); sel(W, Ge, Ge, m1_, 0); sel(W, Fe, Fe, m0_, 0)
        self.pmul(W, Go, x32, W0, Ge)
        self.pmul(W, Fo, x16, Go, Fe)
        for b in range(2):
            self.cmul(W, be[b], be[b] + 2, cf + b, cf + 2 + b, Fo + b, Fo + 2 + b)
            self.cmul(W, Wv, Wv + 1, mu + b, mu + 2 + b, Fo + b, Fo + 2 + b, Ev[b], Ev[b] + 2)
            self.cmul(W, be[b] + 1, be[b] + 3, cf + b, cf + 2 + b, Wv, Wv + 1)
        for b in range(2):
            s2 = " op_sel:[1,0]" if b else " op_sel_hi:[0,1]"; s3 = " op_sel:[1,0,0]" if b else " op_sel_hi:[0,1,1]"
            for m in range(8):
                ur, ui = pr(b, m)
                W.append("v_pk_mul_f32 %s, %s, %s%s" % (P2(W0), P2(cf + 2), P2(ur), s2))
                W.append("v_pk_mul_f32 %s, %s, %s%s" % (P2(ur), P2(cf), P2(ur), s2))
                W.append("v_pk_fma_f32 %s, %s, %s, %s%s neg_lo:[1,0,0] neg_hi:[1,0,0]" % (P2(ur), P2(cf + 2), P2(ui), P2(ur), s3))
                W.append("v_pk_fma_f32 %s, %s, %s, %s%s" % (P2(ui), P2(cf), P2(ui), P2(W0), s3))
        self.emit(weave(W, take(sl[1]), [] if early else self.wo_reads(0)))
        self.stamp(22)
        er = T2
        def eloads():
            for i in range(4): A("buffer_load_dwordx4 %s, v%d, %s, 0 offen sc1" % (v(er + 4 * i, 4), ea[i], self.ER)); self.vm.issue("er")
        if self.o["efirst"]: eloads()
        self.g_check("ssm", vt)
        Sm = self.vG1
        for x in range(4): A("v_sub_f32 v%d, 1.0, v%d" % (Sm + 2 * x, Sm + 2 * x))
        for x in range(4): A("v_cvt_pk_bf16_f32 v%d, v%d, v%d" % (Sm + 2 * x, Sm + 2 * x, Sm + 2 * x))
        for x in range(4):
            A("v_and_b32 v%d, v%d, v%d" % (Sm + 2 * x + 1, Sk + 1, Sm + 2 * x))
            A("v_and_b32 v%d, v%d, v%d" % (Sm + 2 * x, Sk, Sm + 2 * x))
        bar_late = early and sum(sl[:4]) <= 16
        if not bar_late:
            A("s_waitcnt lgkmcnt(0)")
            A("s_barrier")
        self.emit(take(sl[2]))
        self.stamp(8); self.stamp(24)
        df = self.o["efirst"]
        if df:
            self.vm.wait("er")
            A("s_branch L_echk")
        q = list(self.vm.q)
        A.label("L_epoll")
        eloads()
        if df:
            A("s_waitcnt vmcnt(0)"); A.label("L_echk")
        for i in range(4):
            if not df: A("s_waitcnt vmcnt(%d)" % (3 - i))
            for k in range(4): A("v_bitop3_b32 v%d, v%d, v%d, s%d bitop3:0xd2" % (er + 4 * i + k, er + 4 * i + k, et[i], tt[k]))
            if i == 0: A("v_or_b32 v%d, v%d, v%d" % (vt, er, er + 1))
            else: A("v_or3_b32 v%d, v%d, v%d, v%d" % (vt, vt, er + 4 * i, er + 4 * i + 1))
            A("v_or3_b32 v%d, v%d, v%d, v%d" % (vt, vt, er + 4 * i + 2, er + 4 * i + 3))
        self.vm.q = q if df else []
        A("v_and_b32 v%d, 0xff, v%d" % (vt, vt))
        A("v_cmp_ne_u32 vcc, 0, v%d" % vt)
        self.poll_tail("L_epoll")
        self.stamp(9)
        dD = take(sl[3])
        o = []
        for i in range(2, -1, -1): self.pmul(o, er + 4 * i, L4, er + 4 * i + 4, er + 4 * i)
        cs = T; c2 = T + 4
        self.pmul(o, cs, Lg, er)
        for w_ in (16, 32):
            split(o, cs, c2, w_)
            for k in (0, 2): o.append("v_pk_add_f32 %s, %s, %s" % (P2(cs + k), P2(cs + k), P2(c2 + k)))
        for b in range(2): self.pmul(o, be[b], cs, al[b], be[b], b)
        self.emit(o)
        P1 = [mu, l64]; P1b = [x16, x32]; Pq = [self.vXD, self.vXD + 8]
        cur = [be[0], be[1]]
        def finish(x):
            out = []
            D = self.acc[x & 1]
            for comp in (1, 0):
                q = Pq[x & 1] + 4 * comp
                for k in range(4): out.append("v_cvt_pk_bf16_f32 v%d, v%d, v%d" % (q + k, D + 8 * comp + 2 * k, D + 8 * comp + 2 * k + 1))
                def st(q=q, comp=comp):
                    A("buffer_store_dwordx4 %s, v%d, %s, s%d offen%s sc1" % (v(q, 4), self.vFr, self.WS, sH[2 * (x >> 1) + comp], " offset:1024" if x & 1 else ""))
                    self.vm.issue("ast")
                out.append(st)
            return out
        pend = []
        for x in range(4):
            pk_ = (P1, P1b)[x & 1]
            for b in range(2):
                o = []
                for m in (2 * x, 2 * x + 1):
                    self.pmul(o, pr(b, m), lam, cur[b], pr(b, m), b); cur[b] = pr(b, m)
                for comp in (1, 0):
                    ng = "-" if comp else ""
                    for h in range(2):
                        r_ = U[comp][b] + 4 * x + 2 * h
                        o.append("v_cvt_pk_bf16_f32 v%d, %sv%d, %sv%d" % (pk_[b] + 2 * comp + h, ng, r_, ng, r_ + 1))
                self.emit(o[:2] + pend[:1] + o[2:5] + pend[1:] + o[5:])
                if x == 0 or (x == 1 and b == 0):
                    k = -(-len(dD) // (3 - 2 * x - b)); self.emit(dD[:k]); dD = dD[k:]
                pend = [(lambda comp=comp, b=b, x=x, pk_=pk_: self.mf(self.acc[x & 1] + 8 * comp + 4 * b, v(pk_[b] + 2 * comp, 2), v(Sm + 2 * x, 2), "0", 16)) for comp in (1, 0)]
            if x == 3: self.emit(pend)
            if x: self.emit(finish(x - 1))
        self.emit(finish(3))
        self.stamp(10)
        if bar_late: A("s_barrier")
        self.emit(weave(self.p2_addr(L_R1, self.p_vt, self.p_vu) + self.skip_term(), take(sl[4])))
        self.flag()
        self.vm.wait("c1")
        A("s_barrier")
        self.emit(take(sl[5]))
        for n in range(self.o["clead"]): self.crd(n)
        if self.o["hpw"] == 1: self.vm.wait("flag")
        self.hpoll()
        self.h_wait("s")
        return self.p2_first(ld)

    def att(self):
        A, V, S = self.A, self.V, self.S
        t0, t1, t2, t3 = self.t0, self.t1, self.t2, self.t3
        vt = V(); vu = V()
        for q in self.ppar: V.rel(q, 2)
        self.nG1 = 1; self.vG1 = V(4, 4)
        ax = [[[V(), V()], [V(), V()]] for _ in range(2)]
        akv = [[V(), V()], [V(), V()]]; aq = [V() for _ in range(4)]; vq = [V(), V()]
        sM2 = S(); sKV = [S() for _ in range(4)]; sOo = S(); sEps = S(); sC0 = S()
        vKs = V(); xw = V(); xr = V(); zx = V(); zr = V(); c10 = V(); c01 = V(); ones = V(4, 4); cl = V(2)
        kw = V(); zw = V(); rk = V(); rz = V()
        F = []
        F.append("v_lshl_add_u32 v%d, s%d, 12, v%d" % (ax[0][0][0], self.sW, self.vBase))
        F.append("v_xor_b32 v%d, 64, v%d" % (ax[0][0][1], ax[0][0][0]))
        for sx in range(2): F.append("v_xor_b32 v%d, 4096, v%d" % (ax[1][0][sx], ax[0][0][sx]))
        for lt in range(2):
            for sx in range(2): F.append("v_add_u32 v%d, 0x10000, v%d" % (ax[lt][1][sx], ax[lt][0][sx]))
        F.append("v_and_b32 v%d, 64, v0" % vt)
        F.append("v_xor_b32 v%d, v%d, v%d" % (akv[0][0], vt, self.vTr))
        F.append("v_xor_b32 v%d, 32, v%d" % (akv[0][1], akv[0][0]))
        for b in range(2): F.append("v_add_u32 v%d, 0x10000, v%d" % (akv[1][b], akv[0][b]))
        if self.o["kvw"]:
            F.append("s_lshl2_add_u32 s%d, s%d, s%d" % (t0, self.sJ, self.sW)); F.append("s_lshl4_add_u32 s%d, s%d, s%d" % (t0, t0, self.sR))
            F.append("s_lshl_b32 s%d, s%d, 10" % (t0, t0)); F.append("s_add_u32 s%d, s%d, %d" % (t0, t0, WS_KV))
            F.append("v_and_b32 v%d, 1, v0" % vt); F.append("v_cmp_eq_u32 vcc, 0, v%d" % vt)
            F.append("v_add_u32 v%d, s%d, v%d" % (vt, t0, self.vFr)); F.append("s_nop 0")
            F.append("v_cndmask_b32 v%d, v%d, v%d, vcc" % (self.vPf, self.vPf, vt))
        self.emit(F)
        F = []
        F.append("s_lshr_b32 s%d, s%d, 1" % (t3, self.sW)); F.append("s_and_b32 s%d, s%d, 1" % (t2, self.sW))
        F.append("v_lshl_add_u32 v%d, s%d, 8, v%d" % (self.vG1a, t2, self.vG1a))
        F.append("v_add_u32 v%d, %d, v%d" % (aq[0], L_R1, self.vTr))
        for t in range(1, 4): F.append("v_xor_b32 v%d, %d, v%d" % (aq[t], 32 * t, aq[0]))
        self.bits(F, vt, vu, ((3, 2, 0), (6, 1, 2), (5, 1, 3), (7, 1, 5)))
        F.append("v_mul_u32_u24 v%d, 3072, v%d" % (vt, vt))
        F.append("v_lshl_add_u32 v%d, s%d, 7, v%d" % (vt, self.sJ, vt))
        F.append("v_add_u32 v%d, v%d, v%d" % (vq[0], vt, self.vUT))
        F.append("v_add_u32 v%d, %d, v%d" % (vq[1], 16 * 3072 - 1024, vq[0]))
        F.append("s_lshl_b32 s%d, s%d, 11" % (sM2, self.sW))
        F.append("s_sub_u32 s%d, s%d, s%d" % (sC0, self.sCT, self.sCX))
        F.append("s_lshl2_add_u32 s%d, s%d, s%d" % (t0, self.sJ, self.sW))
        F.append("s_lshl_b32 s%d, s%d, 14" % (t0, t0))
        F.append("s_add_u32 s%d, s%d, %d" % (t0, t0, WS_KV))
        F.append("s_and_b32 s%d, s%d, %d" % (t1, self.sR, 12 if self.o["kown"] else 0)); F.append("s_lshl_b32 s%d, s%d, 10" % (t1, t1))
        F.append("s_add_u32 s%d, s%d, s%d" % (sKV[0], t0, t1))
        for i in range(1, 4): F.append("s_xor_b32 s%d, s%d, %d" % (sKV[i], sKV[0], 4096 * i))
        F.append("s_and_b32 s%d, s%d, %d" % (t1, self.sR, 3 if self.o["kown"] else 15))
        F.append("v_lshl_add_u32 v%d, s%d, 10, v%d" % (vKs, t1, self.vFr))
        F.append("v_lshl_add_u32 v%d, s%d, 11, v%d" % (xw, self.sW, self.vL16))
        al = self.o["alead"]; XB = L_R0 if al else L_SP
        if XB: F.append("v_add_u32 v%d, %d, v%d" % (xw, XB, xw))
        F.append("v_lshl_add_u32 v%d, s%d, 10, v%d" % (xr, t3, xw))
        F.append("v_and_b32 v%d, 0xffffefff, v%d" % (xr, xr))
        F.append("v_lshrrev_b32 v%d, 2, v%d" % (zx, xw)); F.append("v_add_u32 v%d, %d, v%d" % (zx, XB + 8192 - XB // 4, zx))
        F.append("v_lshrrev_b32 v%d, 2, v%d" % (zr, xr)); F.append("v_add_u32 v%d, %d, v%d" % (zr, XB + 8192 - XB // 4, zr))
        F.append("v_mov_b32 v%d, 0x3f80" % c10); F.append("v_mov_b32 v%d, 0x3f800000" % c01)
        for i in range(4): F.append("v_mov_b32 v%d, 0x3f803f80" % (ones + i))
        F.append("v_mov_b32 v%d, %s" % (cl, LOG2E))
        F.append("s_mov_b32 s%d, 0x358637bd" % sEps)
        KB = L_R1 + 7 * 8192; ZB = KB + 2048
        F.append("s_lshl1_add_u32 s%d, s%d, s%d" % (t0, t2, t3))
        F.append("v_lshrrev_b32 v%d, 1, v%d" % (rk, self.vL16)); F.append("v_add_u32 v%d, %d, v%d" % (rk, KB, rk))
        if al:
            F.append("s_lshl_b32 s%d, s%d, 6" % (t1, self.sP9)); F.append("v_xor_b32 v%d, s%d, v%d" % (rk, t1, rk))
        F.append("v_lshl_add_u32 v%d, s%d, 9, v%d" % (kw, t0, rk))
        self.bits(F, zw, None, ((0, 4, 1),)); F.append("v_add_u32 v%d, %d, v%d" % (zw, ZB, zw))
        F.append("v_lshl_add_u32 v%d, s%d, 9, v%d" % (zw, t0, zw))
        self.bits(F, rz, None, ((4, 2, 3),)); F.append("v_add_u32 v%d, %d, v%d" % (rz, ZB, rz))
        if al:
            for q in (zw, rz): F.append("v_xor_b32 v%d, s%d, v%d" % (q, t1, q))
        F.append("s_lshl1_add_u32 s%d, s%d, s%d" % (t0, self.sRW, t2))
        F.append("s_mul_i32 s%d, s%d, %d" % (t0, t0, RT_STRIDE))
        F.append("s_lshl_b32 s%d, s%d, 12" % (t1, self.sJ)); F.append("s_add_u32 s%d, s%d, s%d" % (t0, t0, t1))
        F.append("s_add_u32 s%d, s%d, %d" % (sOo, t0, WS_A + 65536))
        F += self.p2_addr(L_R0, vt, vu)
        KV = [V(16, 4) for _ in range(4)]
        def xf(st, x): return a(128 + 8 * st + 4 * x, 4) if x < 2 else a(64 + 32 * (st & 1) + 4 * x, 4)
        def xread(st, x):
            tot = self.slot(st >> 1) + 2048 * (x & 1)
            return "ds_read_b128 %s, v%d offset:%d" % (xf(st, x), ax[x >> 1][tot >> 16][st & 1], tot & 0xffff)
        def wread(st, t):
            out = []
            for h in range(2):
                tot = self.slot(st >> 1) + 16384 + 8192 * (t >> 1) + 4096 * (st & 1) + 2048 * h
                out.append("ds_read_b64_tr_b16 %s, v%d offset:%d" % (a(64 + 32 * (st & 1) + 16 + 4 * t + 2 * h, 2), akv[tot >> 16][t & 1], tot & 0xffff))
            return out
        def mfma(st, t, x):
            self.mf(KV[t] + 4 * x, xf(st, x), a(64 + 32 * (st & 1) + 16 + 4 * t, 4), "0" if st == 0 else None)
        wq = []
        for c in range(8):
            for i in range(2):
                pre = [] if i else ["s_add_u32 m0, s%d, %d" % (sM2, L_R1 + c * 8192), "s_add_u32 s%d, s%d, %d" % (t0, sC0, c),
                                    "s_and_b32 s%d, s%d, 7" % (t0, t0), "s_mul_i32 s%d, s%d, %d" % (t0, t0, 64 * 3072)]
                wq.append((pre, (lambda i=i: self.dma(vq[i], self.WA, "s%d" % t0, 1024 * i, "wq"))))
        gl_ = [] if self.o["glate"] else [self.g_loads]
        cf_ = self.c_dmas(1, L_R0); n7 = self.o["att_7"] if self.o["ahead"][1] else 0
        tl = [gl_ + wq[:8], wq[8:], cf_[:n7]]; cf_ = cf_[n7:]
        self.p1_loop("a", xread, wread, mfma, tl, F)
        for lt in range(2):
            for row in ax[lt]:
                for q in row: V.rel(q)
        for q in akv[0] + akv[1] + vq + self.vx + self.vw + [self.vUT, self.vTr]: V.rel(q)
        tmp = V(8, 4)
        def phi(src, dst):
            out = []
            for k0 in range(0, 8, 4):
                for k in range(k0, k0 + 4):
                    out.append("v_pk_mul_f32 %s, %s, %s op_sel_hi:[0,1]" % (v(tmp + 2 * (k & 3), 2), v(cl, 2), v(src + 2 * k, 2)))
                for k in range(k0, k0 + 4):
                    for h in range(2):
                        out.append("v_exp_f32 v%d, v%d clamp" % (tmp + 2 * (k & 3) + h, tmp + 2 * (k & 3) + h))
                        out.append("v_max_f32 v%d, s%d, v%d" % (src + 2 * k + h, sEps, src + 2 * k + h))
                for k in range(k0, k0 + 4):
                    out.append("v_pk_add_f32 %s, %s, %s" % (v(src + 2 * k, 2), v(src + 2 * k, 2), v(tmp + 2 * (k & 3), 2)))
                for k in range(k0, k0 + 4):
                    out.append("v_cvt_pk_bf16_f32 v%d, v%d, v%d" % (dst + k, src + 2 * k, src + 2 * k + 1))
            return out
        pk = [V(8, 4), V(8, 4)]; pv = [V(8, 4), V(8, 4)]; Tk = self.acc[0]; Tz = self.acc[0] + 8
        W = []
        for b in range(2):
            ph = phi(KV[b], pk[b])
            for kk in range(2):
                W += ph[28 * kk:28 * kk + 28]
                for k in range(4 * kk, 4 * kk + 4): W.append("v_cvt_pk_bf16_f32 v%d, v%d, v%d" % (pv[b] + k, KV[2 + b] + 2 * k, KV[2 + b] + 2 * k + 1))
                z = None if kk else "0"
                W.append(lambda b=b, kk=kk, z=z: self.mf(Tz + 4 * b, v(ones, 4), v(pk[b] + 4 * kk, 4), z))
                W.append(lambda b=b, kk=kk, z=z: self.mf(Tk + 4 * b, v(pk[b] + 4 * kk, 4), v(pv[b] + 4 * kk, 4), z))
        W.insert(80, "ds_write_b128 v%d, %s" % (xw, v(Tk, 4)))
        n = max(0, self.o["att_b"] - n7)
        if al: cf_ = self.wo_dmas(0) + self.c_dmas(0, L_R0)
        d = self.deferred
        self.emit(d[:2] + weave(W[:24], d[2:]) + weave(W[24:100], cf_[:n]) + W[100:]); cf_ = cf_[n:]
        Uu = self.acc[1]
        def qread(n, h):
            return self.ds("ds_read_b64_tr_b16 %s, v%d offset:%d" % (a(64 + 4 * (n % 8) + 2 * h, 2), aq[2 * (n >> 5) + (n & 1)], ((n >> 1) & 15) * 4096 + h * 2048), "q%d" % n)
        A("v_mov_b32 v%d, v%d" % (Uu + 15, self.vTag))
        A("ds_write2st64_b32 v%d, v%d, v%d offset0:0 offset1:1" % (zx, Tz, Tz + 4))
        A("ds_write_b128 v%d, %s offset:1024" % (xw, v(Tk + 4, 4)))
        A("s_waitcnt vmcnt(%d) lgkmcnt(0)" % self.vm.need("wq")); self.lg.zero(False)
        A("s_barrier")
        self.ds("ds_read_b128 %s, v%d" % (v(Uu, 4), xr), "x0")()
        self.ds("ds_read_b128 %s, v%d offset:4096" % (v(Uu + 4, 4), xr), "x0")()
        self.ds("ds_read2st64_b32 %s, v%d offset0:0 offset1:4" % (v(Uu + 8, 2), zr), "x1")()
        for n in range(4):
            for h in range(2): qread(n, h)()
        self.lg.wait("x0")
        A("v_pk_add_f32 %s, %s, %s" % (v(Uu, 2), v(Uu, 2), v(Uu + 4, 2)))
        A("v_pk_add_f32 %s, %s, %s" % (v(Uu + 2, 2), v(Uu + 2, 2), v(Uu + 6, 2)))
        A("v_cvt_pk_bf16_f32 v%d, v%d, v%d" % (Uu + 12, Uu, Uu + 1))
        A("v_cvt_pk_bf16_f32 v%d, v%d, v%d" % (Uu + 13, Uu + 2, Uu + 3))
        self.lg.wait("x1")
        A("v_add_f32 v%d, v%d, v%d" % (Uu + 14, Uu + 8, Uu + 9))
        A("buffer_store_dwordx4 %s, v%d, %s, s%d offen sc1" % (v(Uu + 12, 4), vKs, self.WS, sKV[0])); self.vm.issue("kst")
        self.stamp(7)
        if self.o["glate"]: self.g_loads()
        Qt = self.acc
        rec = KV
        acc = V(6, 2)
        def gl(n):
            A("buffer_load_dwordx4 %s, v%d, %s, s%d offen%s sc1" % (v(rec[n >> 2] + 4 * (n & 3), 4), self.vFr, self.WS, sKV[n >> 2], " offset:%d" % (1024 * (n & 3)) if n & 3 else ""))
            self.vm.issue("r%d" % n)
        early = self.o["early"][1]
        ld = cf_ + ([] if al else self.wo_dmas(1 if early else 0))
        gls = [([], (lambda n=n: gl(n))) for n in range(16)]
        ph0 = phi(Qt[0], pk[0])
        for st in range(32):
            if st == (0 if al else min(len(cf_), self.o["att_g"])): A("s_barrier")
            cur = gls.pop(0) if (st >= self.o["att_g"] and gls) else (ld.pop(0) if ld else None)
            self.lg.wait("q%d" % (2 * st + 1))
            for k in range(4):
                n = 2 * st + (k >> 1)
                self.mf(Qt[st >> 4] + 4 * k, a(64 + 4 * (n % 8), 4), a(128 + 8 * (st & 15) + 4 * (k & 1), 4), "0" if st & 15 == 0 else None)
                if n + 4 < 64: qread(n + 4, k & 1)()
                if cur and k < 2: self.emit(cur[0][k:k + 1])
                if cur and k == 2: cur[1]()
                if st >= 18: self.emit(ph0[:1]); ph0 = ph0[1:]
            if st == 15: self.stamp(22)
        assert not ld and not ph0
        A("s_barrier")
        self.stamp(8)
        self.g_check("att", vt)
        late = self.c_dmas(1 if al else 0, L_R1); nc = self.o["att_c1"]
        ph1 = phi(Qt[1], pk[1]); p1, p2_ = self.o["ph1"]
        self.emit(weave(ph1[:p1], gls + late[:nc])); late = late[nc:]
        self.stamp(24)
        for i in range(5): A("v_mov_b32 v%d, 0" % (acc + i))
        A("v_mov_b32 v%d, s%d" % (ones, sEps))
        for gq in range(4):
            self.vm.wait("r%d" % (4 * gq + 3))
            A.label("L_kchk%d" % gq)
            A("v_xor_b32 v%d, v%d, v%d" % (vt, rec[gq] + 3, self.vTag))
            for n in range(1, 4): A("v_bitop3_b32 v%d, v%d, v%d, v%d bitop3:0xf6" % (vt, vt, rec[gq] + 4 * n + 3, self.vTag))
            A("v_cmp_ne_u32 vcc, 0, v%d" % vt)
            A("s_cmp_lg_u64 vcc, 0")
            A("s_cbranch_scc1 L_kre%d" % gq)
            A.label("L_kgo%d" % gq)
            for n in range(4):
                q = rec[gq] + 4 * n
                A("v_dot2c_f32_bf16 v%d, v%d, v%d" % (acc, q, c10))
                A("v_dot2c_f32_bf16 v%d, v%d, v%d" % (acc + 1, q, c01))
                A("v_dot2c_f32_bf16 v%d, v%d, v%d" % (acc + 2, q + 1, c10))
                A("v_dot2c_f32_bf16 v%d, v%d, v%d" % (acc + 3, q + 1, c01))
                A("v_add_f32 v%d, v%d, v%d" % (acc + 4, acc + 4, q + 2))
        def kre():
            q = list(self.vm.q)
            for gq in range(4):
                A.label("L_kre%d" % gq)
                self.cap()
                A("s_cbranch_scc0 L_kgo%d" % gq)
                for n in range(4 * gq, 16 if self.o["kall"] else 4 * gq + 4): gl(n)
                A("s_waitcnt vmcnt(0)")
                A("s_branch L_kchk%d" % gq)
            self.vm.q = q
        self.stamp(9)
        A("v_cvt_pk_bf16_f32 v%d, v%d, v%d" % (acc, acc, acc + 1))
        A("v_cvt_pk_bf16_f32 v%d, v%d, v%d" % (acc + 1, acc + 2, acc + 3))
        A("v_cvt_pk_bf16_f32 v%d, v%d, v%d" % (acc + 4, acc + 4, acc + 4))
        A("ds_write_b64 v%d, %s" % (kw, v(acc, 2)))
        A("ds_write_b16 v%d, v%d" % (zw, acc + 4))
        n2 = self.o["att_c2"]
        self.emit(ph1[p1:p2_])
        self.vm.wait("c0" if al else "c1"); self.vm.wait("wo0")
        A("s_waitcnt lgkmcnt(0)")
        A("s_barrier")
        for h in range(4):
            A("ds_read_b64 %s, v%d offset:%d" % (v(pv[1] + 2 * h, 2), rz, 512 * h))
            A("ds_read_b64 %s, v%d offset:%d" % (v(pv[0] + 2 * h, 2), rk, 512 * h))
        def omf(f):
            hp, a1 = f >> 1, f & 1
            out = []
            for part in (1, 0):
                for h in range(2):
                    out.append(lambda part=part, h=h: self.mf(rec[f] + 8 * (1 - part) + 4 * h, v(pv[part] + 4 * hp + 2 * h, 2), v(pk[hp] + 4 * h + 2 * a1, 2), v(ones, 4) if part else "0", 16))
            return out
        def ofin(f):
            d = rec[f]; out = []
            for h in range(2): out.append("v_rcp_f32 v%d, v%d" % (d + 4 * h, d + 4 * h))
            for h in range(2): out.append("v_mul_f32 v%d, v%d, v%d" % (d + 4 * h, d + 4 * h, self.vG1 + 2 * (f & 1)))
            for k in range(4): out.append("v_pk_mul_f32 %s, %s, %s op_sel_hi:[0,1]" % (v(d + 8 + 2 * k, 2), v(d + 4 * (k >> 1), 2), v(d + 8 + 2 * k, 2)))
            for k in range(4): out.append("v_cvt_pk_bf16_f32 v%d, v%d, v%d" % (d + k, d + 8 + 2 * k, d + 9 + 2 * k))
            def st():
                A("buffer_store_dwordx4 %s, v%d, %s, s%d offen%s sc1" % (v(d, 4), self.vFr, self.WS, sOo, " offset:%d" % (1024 * f) if f else "")); self.vm.issue("ast")
            out.append(st)
            return out
        self.emit(weave(ph1[p2_:], late[:n2]) if ph1[p2_:] else late[:n2]); late = late[n2:]
        assert len(late) >= 2
        A("s_waitcnt lgkmcnt(4)")
        self.emit(omf(0) + omf(1))
        A("s_waitcnt lgkmcnt(0)"); self.lg.zero(False)
        self.emit(weave(ofin(0), omf(2)) + weave(ofin(1), omf(3)) + ofin(2) + ofin(3))
        self.stamp(10)
        self.emit(weave(self.skip_term(), [] if early else self.wo_reads(0), late[:-2]))
        A("s_waitcnt lgkmcnt(0)")
        A("s_barrier")
        late = late[-2:] + ([] if early else self.wo_dmas(1)); n = self.o["att_e"]; n2 = self.o["att_f"]
        self.emit(late[:n])
        for k in range(self.o["clead"]): self.crd(k)
        self.hpoll()
        self.flag()
        self.emit(late[n:n2])
        self.h_wait("a", kre)
        return self.p2_first(late[n2:])

    def retry(self, sreg):
        if not self.o["lflag"]: return
        A = self.A
        A("s_and_b32 s%d, s%d, 3" % (self.t2, self.sCap))
        A("s_cselect_b32 s%d, 0, s%d" % (self.t2, self.sLX))
        A("s_xor_b32 s%d, s%d, s%d" % (sreg, sreg, self.t2))

    def hpoll(self):
        self.A("buffer_load_dword v%d, v%d, %s, s%d offen sc1" % (self.vJunk, self.vf, self.WS, self.sFH)); self.vm.issue("hp")

    def flag(self):
        self.vm.wait("ast")
        if self.o["lflag"]:
            self.A("buffer_store_dword v%d, v%d, %s, s%d offen" % (self.vTag, self.vFlag, self.WS, self.sLF)); self.vm.issue("lflag")
        self.A("buffer_store_dword v%d, v%d, %s, 0 offen sc1" % (self.vTag, self.vFlag, self.WS)); self.vm.issue("flag")
        self.stamp(11)

    def p2_regs(self, V):
        self.p_vt = V(); self.p_vu = V()
        self.cb = V(32, 4)
        self.of = V(64, 4)
    def crd(self, n):
        st, t = n >> 2, n & 3
        r_ = self.ac[t >> 1][st & 1]
        if st in (8, 9) and t & 1 == 0: self.A("v_xor_b32 v%d, s%d, v%d" % (r_, self.sSt, r_))
        self.A("ds_read_b128 %s, v%d offset:%d" % (v(self.cb + 4 * (n % 8), 4), r_, ((st >> 1) & 3) * 8192 + (t & 1) * 2048)); self.lg.issue("c%d" % n)
    def fr(self, f):
        if "H" not in self.o["dbg"]: return self.vFr
        return (self.vG1a, self.vG2a)[(f >> 1) & 1]
    def hld(self, f):
        A = self.A
        if f & 3 == 0: A("s_xor_b32 s%d, s%d, %d" % (self.t0, self.sH, (f >> 2) * 4096))
        A("buffer_load_dwordx4 %s, v%d, %s, s%d offen%s sc1" % (a(128 + 4 * f, 4), self.fr(f), self.WS, self.t0, " offset:%d" % (1024 * (f & 3)) if f & 3 else "")); self.vm.issue("h%d" % f)
    def cstep(self, st, ld):
        A = self.A
        CL = self.o["clead"]
        ld = list(ld); many = len(ld) > 2
        for k in range(8):
            t, a1 = k >> 1, k & 1
            if k == 0: self.wait2("h%d" % (2 * st + 1), "c%d" % (4 * st + 1))
            if k == 4: self.wait2(None, "c%d" % (4 * st + 3))
            off = 8 * a1 + 4 * (t & 1)
            c = None if st else (v(self.vXD + off, 4) if t < 2 else "0")
            self.mf(self.acc[t >> 1] + off, v(self.cb + 4 * ((4 * st + t) % 8), 4), a(128 + 8 * st + 4 * a1, 4), c)
            if a1:
                if 4 * st + CL + t == 32:
                    assert not [x for x in self.vm.q if x[0] in "cw"]
                    A("s_barrier")
                if 4 * st + CL + t < 64: self.crd(4 * st + CL + t)
            else:
                n = -(-len(ld) // (4 - t)) if (many or t & 1 == 0) else 0
                self.emit(ld[:n]); ld = ld[n:]
        assert not ld
    def h_wait(self, name, aside=None):
        A = self.A
        self.vm.wait("hp")
        self.stamp(12)
        A("s_branch L_hchk" + name)
        if aside: aside()
        A.label("L_hpoll" + name)
        self.retry(self.sFH)
        A("buffer_load_dword v%d, v%d, %s, s%d offen sc1" % (self.vJunk, self.vf, self.WS, self.sFH))
        A("s_waitcnt vmcnt(0)")
        A.label("L_hchk" + name)
        A("v_cmp_ne_u32 vcc, s%d, v%d" % (self.sTag, self.vJunk))
        self.poll_tail("L_hpoll" + name)
        self.stamp(13)
    def p2_first(self, extra):
        if "H" in self.o["dbg"]:
            self.A("s_and_b32 s%d, s%d, 1" % (self.t2, self.sCT)); self.A("s_lshl_b32 s%d, s%d, 29" % (self.t2, self.t2))
            self.A("v_add_u32 v%d, s%d, v%d" % (self.vG1a, self.t2, self.vFr)); self.A("v_xor_b32 v%d, 0x20000000, v%d" % (self.vG2a, self.vG1a))
        LA = self.o["LA"]; ns = LA // 2 + 1
        for f in range(LA): self.hld(f)
        q = list(extra) + [(lambda f=f: self.hld(f)) for f in range(LA, LA + 2 * ns)]
        n = len(q); done = 0
        for st in range(ns):
            to = -(-n * (st + 1) // ns)
            self.cstep(st, q[done:to]); done = to
        return list(self.vm.q), list(self.lg.q)

    def p2(self):
        A = self.A
        vt, vu, of = self.p_vt, self.p_vu, self.of
        acc, sO = self.acc, self.sO
        def old(n):
            if n & 3 == 0: A("s_xor_b32 s%d, s%d, %d" % (self.t1, sO, 1024 * n))
            A("buffer_load_dwordx4 %s, v%d, %s, s%d offen%s sc1" % (v(of + 4 * n, 4), self.fr(n), self.WS, self.t1, " offset:%d" % (1024 * (n & 3)) if n & 3 else "")); self.vm.issue("o%d" % n)
        def opoll():
            A("buffer_load_dword v%d, v%d, %s, s%d offen sc1" % (vt, self.vf, self.WS, self.sFO)); self.vm.issue("op")
        LA = self.o["LA"]; s1 = LA // 2 + 1; s0 = 16 - LA // 2
        opoll()
        for st in range(s1, s0): self.cstep(st, [(lambda f=f: self.hld(f)) for f in (2 * st + LA, 2 * st + LA + 1)])
        self.vm.wait("op")
        A("v_cmp_ne_u32 vcc, s%d, v%d" % (self.sTag, vt))
        A("s_cmp_lg_u64 vcc, 0")
        A("s_cbranch_scc1 L_slow")
        qv, ql = list(self.vm.q), list(self.lg.q)
        for st in range(s0, 16): self.cstep(st, [(lambda n=n: old(n)) for n in (2 * (st - s0), 2 * (st - s0) + 1)])
        self.stamp(14); self.stamp(15)
        A.label("L_join")
        q2 = list(self.vm.q)
        vr = self.vr; vr1, ra, rb, rc, rd = [self.cb + k for k in range(5)]
        side = ["s_movk_i32 s%d, 4096" % self.t2, "s_mov_b32 s%d, 0x10000" % self.t3, "s_mov_b32 s%d, 0x11000" % self.t0, "v_xor_b32 v%d, 128, v%d" % (vr1, vr)]
        self.bits(side, ra, rb, ((0, 3, 5), (0, 2, 8), (2, 1, 10)))
        self.bits(side, rb, None, ((3, 3, 4),))
        side += ["v_xor_b32 v%d, v%d, v%d" % (ra, ra, rb), "v_and_b32 v%d, 0xfffff000, v%d" % (rb, vr), "v_add_u32 v%d, v%d, v%d" % (rc, ra, rb),
                 "v_xor_b32 v%d, 128, v%d" % (rd, rc), "v_xor_b32 v%d, 8192, v%d" % (ra, rc), "v_xor_b32 v%d, 8192, v%d" % (rb, rd)]
        seq = [(st, (k >> 1) ^ 2, k & 1) for st in range(8) for k in range(8)]
        nl = self.o["olead"]
        seq = seq[:64 - 8 * nl] + [x for x in seq[64 - 8 * nl:] if x[1] >= 2] + [x for x in seq[64 - 8 * nl:] if x[1] < 2]
        seq = seq[:60] + sorted(seq[60:], key=lambda x: x[2])
        wr = ["ds_write_b128 v%d, %s offset:%d" % ((vr, vr1)[q & 1], v(acc[1] + 4 * q, 4), 1024 * q) for q in (0, 2, 1, 3)]
        wr += [None] * self.o["owait"] + ["s_waitcnt lgkmcnt(0)\ns_barrier"]
        wr += ["ds_read_b128 %s, v%d offset:%d" % (v(of + 4 * q, 4), (ra, rb)[q & 1], 2048 * (q >> 1)) for q in range(4)]
        w1 = self.wo_reads(1); wb = []
        for (st, t, a1) in seq:
            if st >= 4: wb.append((w1[8 * (st - 4) + 2 * t + a1], "wb%d_%d" % (st, t)))
        wb = wb[:28] + sorted(wb[28:], key=lambda x: x[1])
        self.lg.q = []
        for n, (st, t, a1) in enumerate(seq):
            if n == 64 - 4 * nl + 4 and not wb: self.lg.zero()
            self.wait2("o%d" % (2 * st + 1), "wb%d_%d" % (st, t | 1))
            self.mf(acc[t >> 1] + 8 * a1 + 4 * (t & 1), a(16 * st + 4 * t, 4), v(of + 8 * st + 4 * a1, 4))
            if n & 3 == 0 and LA + (n >> 2) < 16: old(LA + (n >> 2))
            if n & 3 and wb:
                x, tg = wb.pop(0); A(x); self.lg.issue(tg)
            if (n & 3 == 0 and LA + (n >> 2) >= 16 or not wb) and side: self.emit(side[:2]); side = side[2:]
            if n >= 64 - 4 * nl + 4 and wr:
                x = wr.pop(0)
                if x: A(x)
        self.emit([x for x in wr if x])
        self.stamp(16)
        assert not side
        for a1 in range(2):
            for q in (2 * a1, 2 * a1 + 1): A("ds_write_b128 v%d, %s offset:%d" % ((vr, vr1)[q & 1], v(acc[0] + 4 * q, 4), 32768 + 1024 * q))
            for q in (2 * a1, 2 * a1 + 1): A("ds_read_b128 %s, v%d offset:%d" % (v(acc[1] + 4 * q, 4), (rc, rd)[q & 1], 32768 + 2048 * a1))
        for q in range(4):
            own = acc[1] + 4 * q
            A("s_waitcnt lgkmcnt(%d)" % (5, 4, 1, 0)[q])
            for k in (0, 2): A("v_pk_add_f32 %s, %s, %s" % (v(own + k, 2), v(own + k, 2), v(of + 4 * q + k, 2)))
            A("buffer_store_dwordx4 %s, v%d, %s, %s offen%s" % (v(own, 4), self.vOut, self.OUT, ("0", "s%d" % self.t3, "s%d" % self.t2, "s%d" % self.t0)[q], self.o["outaux"]))
        A("s_cmp_eq_u32 s2, %d" % (255 ^ (2 * self.o["rx"])))
        A("s_cbranch_scc0 L_fin")
        A("v_mov_b32 v%d, s%d" % (vt, self.sE))
        A("v_mov_b32 v%d, 0" % vu)
        A("buffer_store_dword v%d, v%d, %s, 0 offen sc1" % (vt, vu, self.WS))
        A.label("L_fin")
        if self.o["stamps"]:
            if self.o["stamps"] != 2: A("s_waitcnt vmcnt(0)")
            self.stamp(17)
            A("v_lshlrev_b32 v%d, 2, v0" % vu)
            A("s_lshl_b32 s%d, s2, 10" % self.t0); A("s_add_u32 s%d, s%d, %d" % (self.t0, self.t0, WS_STAMP))
            A("buffer_store_dword v%d, v%d, %s, s%d offen" % (self.vStamp, vu, self.WS, self.t0))
        A("s_endpgm")
        A.label("L_slow")
        self.vm.q, self.lg.q = qv, ql
        for st in range(s0, 16): self.cstep(st, [])
        self.stamp(14)
        A.label("L_opoll")
        self.retry(self.sFO)
        opoll()
        A("s_waitcnt vmcnt(0)")
        A("v_cmp_ne_u32 vcc, s%d, v%d" % (self.sTag, vt))
        self.poll_tail("L_opoll")
        self.vm.zero(False)
        self.stamp(15)
        for n in range(LA): old(n)
        assert self.vm.q == q2, (self.vm.q, q2)
        A("s_branch L_join")

    def gen(self):
        A = self.A
        kernel_head(A, NAME)
        self.prologue()
        V0, S0, q0 = self.V.clone(), self.S.clone(), list(self.vm.q)
        self.p2_regs(V0.clone())
        st1 = self.ssm()
        A("s_branch L_p2")
        A.label("L_att")
        self.V, self.S, self.vm.q, self.lg.q = V0.clone(), S0.clone(), list(q0), []
        st2 = self.att()
        assert st1 == st2, (st1, st2)
        A.label("L_p2")
        self.p2()
        A.label("L_end")
        A("s_endpgm")
        if self.o.get("jit"):
            out_ = []; k = 0; on = False
            for l in A.l:
                t = l.strip()
                site = on and (t == "s_barrier" or t.startswith(("buffer_store", "ds_write")) or (t.endswith(" lds") and k % 3 == 0))
                def dly():
                    nonlocal k
                    k += 1
                    out_.extend(["    s_bitcmp1_b32 s%d, %d" % (self.sT + (k >> 5 & 1), k & 31), "    s_cbranch_scc0 L_jit%d" % k, "    s_sleep %d" % (3 + (k * 7 + self.o["jit"]) % 23), "L_jit%d:" % k])
                if site: dly()
                elif on and t.endswith(" lds"): k += 1
                out_.append(l)
                if on and t == "s_barrier": dly()
                if t.startswith("s_load_dword s%d," % self.sE):
                    on = True
                    out_.extend(["    s_lshl2_add_u32 s%d, s2, s%d" % (self.sT, self.sW), "    s_add_u32 s%d, s%d, %d" % (self.sT, self.sT, self.o["jit"] * 1000),
                                 "    s_mul_i32 s%d, s%d, 0x9e3779b1" % (self.sT, self.sT), "    s_lshr_b32 s%d, s%d, 15" % (self.sT + 1, self.sT),
                                 "    s_xor_b32 s%d, s%d, s%d" % (self.sT, self.sT, self.sT + 1), "    s_mul_i32 s%d, s%d, 0x85ebca6b" % (self.sT, self.sT),
                                 "    s_mul_i32 s%d, s%d, 0xc2b2ae35" % (self.sT + 1, self.sT), "    s_lshr_b32 s%d, s%d, 13" % (self.sT2, self.sT + 1),
                                 "    s_and_b32 s%d, s%d, s%d" % (self.sT, self.sT, self.sT2), "    s_lshr_b32 s%d, s%d, 3" % (self.sT2, self.sT + 1),
                                 "    s_and_b32 s%d, s%d, s%d" % (self.sT + 1, self.sT + 1, self.sT2)])
            A.l = out_
        body, n = hazard.fix(A.l)
        head = open("cdna_kernels/%s.s.ref" % NAME[:-7]).read().split("; Override launch")[0] if self.o.get("head", True) else ""
        out = head + "; @launch grid=(256,1,1) block=(256,1,1) lds=163840\n"
        out += '.amdgcn_target "amdgcn-amd-amdhsa--gfx950"\n' + DOC + '.text\n'
        if self.o["pad"] >= 0:
            out += "; start the kernel at the top of a 4 KB page (instruction fetch stalls at page crossings)\n.p2align 12\n.fill %d, 4, 0xbf810000\n" % (64 * self.o["pad"])
        out += "\n".join(body) + "\n"
        out += '.section .rodata,"a"\n.p2align 6\n' + kernel_desc(NAME, 512, 256)
        if self.o["hop"]: out = self.link_stubs(out)
        return out

    def link_stubs(self, out):
        import re, subprocess, tempfile
        d = tempfile.mkdtemp()
        open(d + "/a.s", "w").write(re.sub(r"@CHAIN(\w)\d+@", r"L_back\1", out))
        subprocess.run(["clang", "-x", "assembler", "-target", "amdgcn-amd-amdhsa", "-mcpu=gfx950", "-c", d + "/a.s", "-o", d + "/a.o"], check=True)
        dis = subprocess.run(["llvm-objdump", "-d", "--mcpu=gfx950", d + "/a.o"], capture_output=True, text=True).stdout
        dis = dis[dis.index("<%s>:" % NAME):]
        sizes = [4 * len(m.group(1).split()) for m in re.finditer(r"// [0-9A-F]{12}: ((?:[0-9A-F]{8} ?)+)", dis)]
        lines = out.split("\n"); res = []; k = 0; pc = 0; on = False; sec = None; tg = {"s": [], "a": []}; page = 0
        def put(roles):
            nm = "L_pg%d" % len(res)
            res.append(nm + ":"); res.append("    s_cbranch_execz L_back" + ("x" if len(roles) > 1 else roles))
            for r in roles: tg[r].append(nm)
        for l in lines:
            t = l.strip()
            if t == NAME + ":": on = True
            if t.startswith(".section"): on = False
            ins = on and t and not t.startswith((";", ".")) and not t.endswith(":")
            if ins and (pc >> 12) > page:
                page = pc >> 12
                if sec: put(sec); pc += 4
            res.append(l)
            if t in ("L_backs:", "L_backa:"): sec = t[-2]
            if t in ("L_att:", "L_slow:"): sec = None
            if t == "L_p2:":
                sec = "sa"; put("s"); pc += 4
            if ins: pc += sizes[k]; k += 1
        assert k == len(sizes), (k, len(sizes))
        out = "\n".join(res)
        for r in "sa":
            t = list(tg[r])
            while len(t) > 4:
                x = t.pop(); y = t[len(t) - 4]
                assert y not in tg["a" if r == "s" else "s"]
                out = out.replace(y + ":\n    s_cbranch_execz L_back" + r, y + ":\n    s_cbranch_execz " + x)
            for w in range(4): out = out.replace("@CHAIN%s%d@" % (r, w), t[w] if w < len(t) else "L_back" + r)
        return out

if __name__ == "__main__":
    if len(sys.argv) > 1:
        for arg in sys.argv[1:]:
            nm, _, kv = arg.partition(":")
            o = eval("dict(%s)" % kv)
            open(nm, "w").write(K(stamps=(1 if "_st" in nm else 2 if "_lt" in nm else 0), head=False, **o).gen())
    else:
        open("k.s", "w").write(K().gen())
        open("k_st.s", "w").write(K(stamps=True).gen())
```

```python
import sys
from asmlib import Asm, v, a, s, kernel_head, kernel_desc
import hazard

NAME = "gated_mix__linear_attn_block__ssm_conv_s5__prompt_kernel"
WS_EPOCH, WS_G, WS_FH, WS_FO, WS_E, WS_KV, WS_A = 0, 0x1000, 0x10000, 0x20000, 0x30000, 0x40000, 0x100000
WS_LF = 0xc0000
WS_STAMP = 0x1000000
SPILL = 0x800000
RT_STRIDE = 98304
HUGE = 0x20000000
L_R0, L_R1, L_SP = 0, 65536, 131072
LOG2E = "0x3fb8aa3b"
P_X, P_WQKV, P_WO, P_LRE, P_LIM, P_BRE, P_BIM = 4, 6, 8, 12, 14, 16, 18
P_CRE, P_CIM, P_LDT, P_DSK, P_GW, P_OUT, P_WS = 20, 22, 24, 26, 28, 30, 34

DOC = '''; One launch, 256 workgroups (one per CU, all co-resident), 4 waves each. Emitted by a hand-written generator script.
;   ATT workgroups: k, v for 4 heads, partial phi(k)^T v and sum phi(k) -> d_ws, q, sum of the 16 partials,
'''

class Alloc:
    def __init__(self, regs):
        self.free = set(regs)
    def __call__(self, n=1, al=1):
        if n > 1 and al == 1: al = 2
        for b in sorted(self.free, reverse=(n <= 2)):
            if b % al == 0 and all(b + i in self.free for i in range(n)):
                for i in range(n): self.free.discard(b + i)
                return b
        raise RuntimeError("out of registers")
    def rel(self, b, n=1):
        for i in range(n):
            assert b + i not in self.free
            self.free.add(b + i)
    def clone(self):
        return Alloc(self.free)

class Cnt:
    def __init__(self, A, name, mx):
        self.A = A; self.name = name; self.mx = mx; self.q = []
    def issue(self, tag): self.q.append(tag)
    def need(self, tag):
        idx = [i for i, t in enumerate(self.q) if t == tag]
        if not idx: return None
        n = len(self.q) - 1 - idx[-1]
        self.q = self.q[idx[-1] + 1:]
        return min(n, self.mx)
    def wait(self, tag):
        n = self.need(tag)
        if n is not None: self.A("s_waitcnt %s(%d)" % (self.name, n))
    def zero(self, emit=True):
        if emit: self.A("s_waitcnt %s(0)" % self.name)
        self.q = []

def weave(main, *side):
    out = [[x] for x in main]
    for sd in side:
        n = len(sd)
        for k, x in enumerate(sd):
            out[min(len(main) - 1, (k * len(main)) // n)].append(x)
    return [y for x in out for y in x]

class K:
    def __init__(self, **opt):
        self.o = dict(stamps=0, pollcap=400000, order='gpq8', third=('w4h4', 'w4h4'), nf=(80, 60), d0=8, hop=1, pad=13, xrot=6, j3=1, qpf=1,
                      ssm=(8, 8, 0, 0, 8, 8), late7=1, att_b=8, att_g=16, att_c1=8, att_c2=6, att_e=10, att_f=10,
                      hpw=1, defer=(0, 0), pkfix=1, g3=0, ahead=(0, 0), a2=8, att_7=8, amid=999, aoff=0, alead=0, rx=0, kall=0, kown=1, kvw=0, smid=999, wat=0, wn=3, wl2=0, qmode=0, ph1=(28, 40), efirst=1, clead=6, glate=None, xmul=6, qat=88, wfirst=0, mid=(100, 104, 200), wopar=1, gmid=0, pause=(0,) * 8, psplit=1, dfirst=0, lflag=0, l7at=0, early=(None, None), xdo=1, olead=4, owait=3, dpos=((-6, -2, 2, 6, 10, 14, 18, 22), (-6, -2, 2, 6, 10, 14, 18, 22)), outaux=' sc1 nt', LA=10, dbg='')
        self.o.update(opt)
        self.A = Asm()
        self.vm = Cnt(self.A, "vmcnt", 62)
        self.lg = Cnt(self.A, "lgkmcnt", 14)
        self.V = Alloc(range(1, 256))
        self.S = Alloc([3] + list(range(72, 102)))

    def stamp(self, idx):
        if not self.o["stamps"]: return
        if self.o["stamps"] == 2 and idx != 17: return
        A = self.A
        A("s_memrealtime s[%d:%d]" % (self.sT, self.sT + 1))
        A("s_memtime s[%d:%d]" % (self.sT2, self.sT2 + 1))
        A("s_waitcnt lgkmcnt(0)")
        self.lg.zero(False)
        A("v_writelane_b32 v%d, s%d, %d" % (self.vStamp, self.sT, idx))
        A("v_writelane_b32 v%d, s%d, %d" % (self.vStamp, self.sT2, 32 + idx))
    def dma(self, vo, srd, so, imm, tag):
        self.A("buffer_load_dwordx4 v%d, %s, %s offen%s lds" % (vo, srd, so, " offset:%d" % imm if imm else ""))
        self.vm.issue(tag)
    def ds(self, text, tag):
        return lambda: (self.A(text), self.lg.issue(tag))
    def mf(self, d, x, y, c=None, k=32):
        self.A("v_mfma_f32_16x16x%d_bf16 %s, %s, %s, %s" % (k, v(d, 4), x, y, v(d, 4) if c is None else c))
    def cmul(self, out, dr, di, ar, ai, br, bi, cr=None, ci=None):
        if cr is None:
            out.append("v_mul_f32 v%d, v%d, v%d" % (dr, ar, br))
            out.append("v_mul_f32 v%d, v%d, v%d" % (di, ar, bi))
        else:
            out.append("v_fma_f32 v%d, v%d, v%d, v%d" % (dr, ar, br, cr))
            out.append("v_fma_f32 v%d, v%d, v%d, v%d" % (di, ar, bi, ci))
        out.append("v_fma_f32 v%d, -v%d, v%d, v%d" % (dr, ai, bi, dr))
        out.append("v_fmac_f32 v%d, v%d, v%d" % (di, ai, br))
    def pmul(self, out, d, x, y, c=None, sel=None):
        q = lambda z: (z, z + 2) if isinstance(z, int) else z
        d, x, y = q(d), q(x), q(y)
        m3 = "" if sel is None else (" op_sel:[1,0,0]" if sel else " op_sel_hi:[0,1,1]")
        m2 = "" if sel is None else (" op_sel:[1,0]" if sel else " op_sel_hi:[0,1]")
        for k in range(2):
            if c is None: out.append("v_pk_mul_f32 %s, %s, %s%s" % (v(d[k], 2), v(x[0], 2), v(y[k], 2), m2))
            else: out.append("v_pk_fma_f32 %s, %s, %s, %s%s" % (v(d[k], 2), v(x[0], 2), v(y[k], 2), v(q(c)[k], 2), m3))
        out.append("v_pk_fma_f32 %s, %s, %s, %s%s neg_lo:[1,0,0] neg_hi:[1,0,0]" % (v(d[0], 2), v(x[1], 2), v(y[1], 2), v(d[0], 2), m3))
        out.append("v_pk_fma_f32 %s, %s, %s, %s%s" % (v(d[1], 2), v(x[1], 2), v(y[0], 2), v(d[1], 2), m3))
    def emit(self, lst):
        for x in lst:
            if isinstance(x, tuple):
                self.emit(x[0]); x[1]()
            elif callable(x): x()
            else: self.A(x)
    def cap(self):
        A = self.A
        A("s_sub_u32 s%d, s%d, 1" % (self.sCap, self.sCap))
        A("s_cselect_b64 vcc, 0, vcc")
        A("s_cselect_b32 s%d, 0, s%d" % (self.sCap, self.sCap))
        A("s_cmp_lg_u64 vcc, 0")
    def poll_tail(self, lab):
        self.cap()
        self.A("s_cbranch_scc1 %s" % lab)
    def bits(self, out, d, tmp, spec, src="v0"):
        for n, (bit, w, sh) in enumerate(spec):
            if n == 0:
                if bit == sh: out.append("v_and_b32 v%d, 0x%x, %s" % (d, ((1 << w) - 1) << bit, src))
                else:
                    out.append("v_bfe_u32 v%d, %s, %d, %d" % (d, src, bit, w))
                    if sh: out.append("v_lshlrev_b32 v%d, %d, v%d" % (d, sh, d))
            else:
                out.append("v_bfe_u32 v%d, %s, %d, %d" % (tmp, src, bit, w))
                out.append("v_lshl_or_b32 v%d, v%d, %d, v%d" % (d, tmp, sh, d))
    def wait2(self, vtag, ltag):
        n1 = self.vm.need(vtag) if vtag else None
        n2 = self.lg.need(ltag) if ltag else None
        w = " ".join(x for x in ("" if n1 is None else "vmcnt(%d)" % n1, "" if n2 is None else "lgkmcnt(%d)" % n2) if x)
        if w: self.A("s_waitcnt " + w)

    def slot(self, c):
        return ((c + 2) % 4) * 32768
    def chunk_dmas(self, c):
        slot = self.slot(c); tag = "ch%d" % c
        L = []
        nx0 = ["s_mul_i32 s%d, s%d, s%d" % (self.sO2, self.sCh, self.sWst)]
        nx1 = ["s_lshl_b32 s%d, s%d, 7" % (self.sO1, self.sCh)]
        nx2 = ["s_add_u32 s%d, s%d, 1" % (self.sCh, self.sCh)]; nx3 = ["s_and_b32 s%d, s%d, 7" % (self.sCh, self.sCh)]
        for n in range(4):
            pre = [] if n & 1 else ["s_add_u32 m0, s%d, %d" % (self.sM, slot + 16384 + (n >> 1) * 4096)] + (nx1 if n else nx0)
            L.append((pre, (lambda n=n: self.dma(self.vw[n], (self.WA, self.WB)[n >> 1], "s%d" % self.sO2, 2048 * (n & 1), tag))))
        for n in range(4):
            pre = [] if n & 1 else ["s_add_u32 m0, s%d, %d" % (self.sM, slot + (n >> 1) * 4096)] + (nx3 if n else nx2)
            L.append((pre, (lambda n=n: self.dma(self.vx[n >> 1], self.X, "s%d" % self.sO1, 2048 * (n & 1), tag))))
        return L
    def wo_dmas(self, half):
        L = []
        for n in range(8):
            aa, b = n >> 2, n & 3
            pre = [] if b else ["s_add_u32 m0, s%d, %d" % (self.sMW, L_SP + aa * 4096), "s_xor_b32 s%d, s%d, %d" % (self.sO1, self.sP17, (half * 128 + aa * 32) * 1024)]
            L.append((pre, (lambda b=b: self.dma(self.vo[b], self.WO, "s%d" % self.sO1, 1024 * b, "wo%d" % half))))
        return L
    def wo_stag(self):
        L = []
        t0 = self.sLX
        for n in range(8):
            pre = ["s_add_u32 s%d, s%d, 1024" % (self.sSt, self.sSt), "s_and_b32 s%d, s%d, 0x1c00" % (self.sSt, self.sSt),
                   "s_add_u32 m0, s%d, s%d" % (self.sSt, self.sMW2), "s_lshl3_add_u32 s%d, s%d, s%d" % (t0, self.sSt, self.sP17)]
            L.append((pre, (lambda: self.dma(self.vo[0], self.WO, "s%d" % t0, 0, "wo0"))))
        return L
    def c_dmas(self, comp, region, mreg=None):
        L = []; mreg = mreg or self.sMC
        for idx in range(8):
            for i in range(2):
                pre = [] if i else ["s_xor_b32 m0, s%d, %d" % (mreg, region + idx * 8192), "s_xor_b32 s%d, s%d, %d" % (self.sO1, self.sP9, idx * 128)]
                L.append((pre, (lambda i=i: self.dma(self.vc[i], (self.CRE, self.CIM)[comp], "s%d" % self.sO1, 2048 * i, "c%d" % comp))))
        return L
    def wo_reads(self, half):
        L = []
        for n in range(4):
            for t in range(4):
                for h in range(2):
                    L.append("ds_read_b64_tr_b16 %s, v%d offset:%d" % (a(64 * half + 16 * n + 4 * t + 2 * h, 2), self.aw[t], n * 4096 + h * 2048))
        return L

    def prologue(self):
        A, V, S = self.A, self.V, self.S
        self.X, self.WA, self.WB, self.WS = "s[36:39]", "s[40:43]", "s[44:47]", "s[48:51]"
        self.CRE, self.CIM, self.WO, self.OUT, self.ER = "s[52:55]", "s[56:59]", "s[60:63]", "s[64:67]", "s[68:71]"
        self.sT = S(2, 2); self.sT2 = S(2, 2); self.sMk = S(2, 2)
        self.sR, self.sJ, self.sRole, self.sW, self.sCT, self.sRH = [S() for _ in range(6)]
        self.sM, self.sCh, self.sO1, self.sO2, self.sTag, self.sE, self.sWst, self.sN2, self.sCX = [S() for _ in range(9)]
        self.t0, self.t1, self.t2, self.t3 = [S() for _ in range(4)]
        t0, t1, t2, t3 = self.t0, self.t1, self.t2, self.t3
        sR, sJ, sW, sCT, sRH, sRole = self.sR, self.sJ, self.sW, self.sCT, self.sRH, self.sRole
        vt = V(); vu = V()
        self.vJunk = V(); self.vL16 = V()
        vp = V(); vd = V(); vg = V()
        A("s_cmp_ge_u32 s2, 256")
        A("s_cbranch_scc1 L_end")
        A("s_load_dwordx16 s[4:19], s[0:1], 0")
        A("s_load_dwordx16 s[20:35], s[0:1], 64")
        if self.o["stamps"]:
            self.vStamp = V()
            A("s_memrealtime s[%d:%d]" % (self.sT, self.sT + 1))
            A("s_memtime s[%d:%d]" % (self.sT2, self.sT2 + 1))
        A("s_getpc_b64 s[%d:%d]" % (self.sMk, self.sMk + 1))
        A.label("L_pc")
        A("s_and_b32 s%d, s2, 0xf8" % t0)
        A("v_lshrrev_b32 v%d, 5, v0" % vt)
        A("v_add_lshl_u32 v%d, s%d, v%d, 7" % (vt, t0, vt))
        A("v_min_u32 v%d, L_end-L_pc, v%d" % (vt, vt))
        A("v_lshrrev_b32 v%d, 6, v0" % vu)
        A("global_load_dword v%d, v%d, s[%d:%d]" % (self.vJunk, vt, self.sMk, self.sMk + 1)); self.vm.issue("junk")
        A("v_readfirstlane_b32 s%d, v%d" % (sW, vu))
        A("s_and_b32 s%d, s2, 1" % sRH)
        A("s_bfe_u32 s%d, s2, 0x20001" % t0)
        if self.o["rx"]: A("s_xor_b32 s%d, s%d, %d" % (t0, t0, self.o["rx"]))
        A("s_lshr_b32 s%d, s2, 6" % t1)
        A("s_lshl2_add_u32 s%d, s%d, s%d" % (sR, t0, t1))
        A("s_bfe_u32 s%d, s2, 0x20003" % t0)
        A("s_lshl2_add_u32 s%d, s%d, s%d" % (sJ, sRH, t0))
        A("s_bfe_u32 s%d, s2, 0x10005" % sRole)
        A("s_lshl3_add_u32 s%d, s%d, s%d" % (t0, sRole, sJ))
        A("s_lshl2_add_u32 s%d, s%d, s%d" % (self.sN2, t0, sW))
        A("s_cmp_eq_u32 s%d, %d" % (t0, 11 if self.o["j3"] else 99))
        A("s_cselect_b32 s%d, s%d, 0" % (t1, t1))
        if self.o["glate"]:
            A("s_mul_i32 s%d, s2, %d" % (t0, self.o["xmul"]))
            A("s_and_b32 s%d, s%d, %d" % (t0, t0, self.o["xrot"]))
            A("s_lshl1_add_u32 s%d, s%d, s%d" % (self.sCh, t1, t0))
            A("s_and_b32 s%d, s%d, 7" % (self.sCh, self.sCh))
        else:
            A("s_lshl1_add_u32 s%d, s%d, s2" % (self.sCh, t1))
            A("s_and_b32 s%d, s%d, %d" % (self.sCh, self.sCh, self.o["xrot"]))
        A("v_and_b32 v%d, 63, v0" % self.vL16)
        A("v_lshlrev_b32 v%d, 4, v%d" % (self.vL16, self.vL16))
        A("s_and_b32 s%d, s%d, 0x3e" % (t0, self.sN2))
        A("s_add_u32 s%d, s%d, s%d" % (t0, t0, self.sN2))
        A("s_lshl_b32 s%d, s%d, 7" % (t1, sR))
        A("s_add_u32 s%d, s%d, s%d" % (t0, t0, t1))
        A("v_lshl_add_u32 v%d, s%d, 10, v%d" % (vg, t0, self.vL16))
        A("s_mul_i32 s42, s%d, 0x100000" % sRole); A("s_add_u32 s42, s42, 0x80000"); A("s_mov_b32 s46, s42")
        A("s_mul_i32 s%d, s%d, %d" % (self.sWst, sRole, 64 * 3072 - 128)); A("s_add_u32 s%d, s%d, 128" % (self.sWst, self.sWst))
        A("s_mul_i32 s%d, s%d, %d" % (t2, sRole, 32 * 3072))
        A("s_lshl_b32 s%d, s%d, 13" % (t3, sRole)); A("s_add_u32 s%d, s%d, 2048" % (t3, t3))
        A("s_mov_b32 s38, 0x200000")
        for b in (36, 40, 44): A("s_mov_b32 s%d, 0x20000" % (b + 3))
        A("s_mul_i32 s%d, s%d, 0x1400" % (self.sM, sW))
        A("s_and_b32 s%d, s%d, 0x2400" % (self.sM, self.sM))
        vUA = V(); vUT = V()
        self.vx = [V() for _ in range(2)]; self.vw = [V() for _ in range(4)]
        o = []
        o.append("v_lshrrev_b32 v%d, 4, v0" % vt)
        o.append("v_xor_b32 v%d, v0, v%d" % (vt, vt))
        self.bits(o, vUA, vu, ((0, 3, 4),), "v%d" % vt)
        o.append("v_lshrrev_b32 v%d, 3, v0" % vt)
        o.append("v_and_b32 v%d, 6, v%d" % (vt, vt))
        o.append("v_xor_b32 v%d, v0, v%d" % (vt, vt))
        self.bits(o, vUT, vu, ((0, 3, 4),), "v%d" % vt)
        w0 = self.vw[0]; w1 = self.vw[1]
        self.bits(o, vt, vu, ((3, 2, 0), (5, 2, 3)))
        o.append("v_lshrrev_b32 v%d, 7, v0" % vu)
        o.append("v_lshl_or_b32 v%d, v%d, 5, v%d" % (w0, vu, vt))
        o.append("v_lshl_add_u32 v%d, s%d, 6, v%d" % (w0, sJ, w0))
        o.append("v_lshl_add_u32 v%d, v%d, 10, v%d" % (w0, w0, vUA))
        o.append("v_mul_u32_u24 v%d, 3072, v%d" % (vt, vt))
        o.append("v_lshl_add_u32 v%d, v%d, 10, v%d" % (vt, vu, vt))
        o.append("s_lshl_b32 s%d, s%d, 7" % (t0, sJ))
        o.append("s_add_u32 s%d, s%d, 1024" % (t0, t0))
        o.append("s_cmp_eq_u32 s%d, 0" % sRole)
        o.append("s_cselect_b64 vcc, -1, 0")
        o.append("v_add3_u32 v%d, v%d, s%d, v%d" % (vt, vt, t0, vUT))
        o.append("v_cndmask_b32 v%d, v%d, v%d, vcc" % (w0, vt, w0))
        o.append("v_add_u32 v%d, s%d, v%d" % (w1, t3, w0))
        o.append("v_add_u32 v%d, s%d, v%d" % (self.vw[2], t2, w0))
        o.append("v_add_u32 v%d, s%d, v%d" % (self.vw[3], t2, w1))
        x0 = self.vx[0]
        self.bits(o, x0, vu, ((3, 1, 3), (4, 1, 0), (5, 3, 4)))
        o.append("v_lshl_add_u32 v%d, s%d, 7, v%d" % (x0, sR, x0))
        o.append("v_lshl_add_u32 v%d, v%d, 10, v%d" % (x0, x0, vUA))
        o.append("v_add_u32 v%d, 4096, v%d" % (self.vx[1], x0))
        self.emit(o)
        self.ppar = [V(2), V(2), V(2)]; self.vDs = V(4, 2); self.gx = self.vXD = V(16, 4)
        A("s_mov_b32 s%d, s%d" % (self.sCX, self.sCh))
        A("s_waitcnt lgkmcnt(0)")
        A("s_cselect_b64 s[40:41], s[%d:%d], s[%d:%d]" % (P_BRE, P_BRE + 1, P_WQKV, P_WQKV + 1))
        A("s_cselect_b64 s[44:45], s[%d:%d], s[%d:%d]" % (P_BIM, P_BIM + 1, P_WQKV, P_WQKV + 1))
        A("s_mov_b64 s[36:37], s[%d:%d]" % (P_X, P_X + 1))
        if self.o["stamps"]: A("v_writelane_b32 v%d, s%d, 0\nv_writelane_b32 v%d, s%d, 32" % (self.vStamp, self.sT, self.vStamp, self.sT2))
        self.stamp(18)
        e0, e1 = self.chunk_dmas(0), self.chunk_dmas(1)
        self.early = e0 + e1
        if self.o["wfirst"]:
            inc = [e0[4][0][1], e0[6][0][1]]; shl = e0[2][0][1]
            e1[0] = (inc + e1[0][0], e1[0][1]); e1[2] = (e1[2][0][:1], e1[2][1])
            e0[4] = (e0[4][0][:1], e0[4][1]); e0[6] = (e0[6][0][:1], e0[6][1])
            e1[4] = ([shl] + e1[4][0], e1[4][1])
            self.early = e0[:4] + e1[:4] + e0[4:] + e1[4:]
        for tok in self.o["order"]:
            if tok == "g":
                A("global_load_dwordx4 %s, v%d, s[%d:%d]" % (v(self.gx, 4), vg, P_X, P_X + 1)); self.vm.issue("par")
                A("global_load_dwordx4 %s, v%d, s[%d:%d] offset:2048" % (v(self.gx + 4, 4), vg, P_X, P_X + 1)); self.vm.issue("par")
            elif tok == "p":
                A("s_bfe_u32 s%d, s2, 0x30003" % sCT)
                A("s_bfe_u32 s%d, s2, 0x10006" % t0)
                A("s_lshl_b32 s%d, s%d, 2" % (t0, t0))
                A("s_xor_b32 s%d, s%d, s%d" % (sCT, sCT, t0))
                o = []
                self.bits(o, vp, vu, ((6, 1, 6), (0, 2, 1), (2, 2, 4)))
                o.append("v_lshl_add_u32 v%d, s%d, 7, v%d" % (vp, sJ, vp))
                self.bits(o, vd, vu, ((4, 2, 3), (7, 1, 6)))
                o.append("v_lshl_add_u32 v%d, s%d, 7, v%d" % (vd, sCT, vd))
                self.emit(o)
            elif tok == "q":
                A("global_load_dwordx4 %s, v%d, s[%d:%d]" % (v(self.gx + 8, 4), self.vL16, P_GW, P_GW + 1)); self.vm.issue("par")
                for b in range(2):
                    A("global_load_dwordx2 %s, v%d, s[%d:%d] offset:%d" % (v(self.vDs + 2 * b, 2), vd, P_DSK, P_DSK + 1, 32 * b)); self.vm.issue("par")
                A("s_cmp_eq_u32 s%d, 0" % sRole)
                A("s_cbranch_scc0 L_nopar")
                for q, p in zip(self.ppar, (P_LRE, P_LIM, P_LDT)):
                    for b in range(2): A("global_load_ushort v%d, v%d, s[%d:%d] offset:%d" % (q + b, vp, p, p + 1, 8 * b))
                A.label("L_nopar")
                assert len(self.early) == 16
            else:
                n = int(tok)
                self.emit(self.early[:n]); self.early = self.early[n:]
        self.stamp(19)
        A("s_load_dword s%d, s[%d:%d], 0" % (self.sE, P_WS, P_WS + 1))
        o = []
        o.append("s_sub_u32 s%d, s%d, s%d" % (self.sCX, sCT, self.sCX))
        o.append("s_and_b32 s%d, s%d, 7" % (self.sCX, self.sCX))
        for b, p, n in ((48, P_WS, 0x10000000), (52, P_CRE, 0x80000), (56, P_CIM, 0x80000), (60, P_WO, 0x80000), (64, P_OUT, 0x400000)):
            o.append("s_mov_b64 s[%d:%d], s[%d:%d]" % (b, b + 1, p, p + 1))
            o.append("s_mov_b32 s%d, 0x%x" % (b + 2, n))
        o.append("s_mov_b32 s70, 4096")
        for b in range(48, 72, 4): o.append("s_mov_b32 s%d, 0x20000" % (b + 3))
        self.emit(o)
        for q in range(4, 34): S.rel(q) if q not in (P_WQKV, P_WQKV + 1) else None
        self.vTag, self.vBase, self.vFlag, self.vG1a, self.vG2a, self.vf, self.vr, self.vOut, self.vPf, self.vFr, self.vTr = [V() for _ in range(11)]
        self.vo = [V() for _ in range(4)]; self.vc = [V() for _ in range(2)]
        self.aw = [V() for _ in range(4)]; self.ac = [[V(), V()], [V(), V()]]; self.axd = [[V(), V()], [V(), V()]]
        self.vG2 = V(4, 4); self.xdf = V(8, 4); self.acc = [V(16, 4), V(16, 4)]
        self.sMW, self.sMC, self.sRT, self.sRW, self.sCap, self.sP9, self.sP17, self.sH, self.sO, self.sFH, self.sFO = [S() for _ in range(11)]
        o = []
        o.append("s_mov_b32 s%d, %d" % (self.sCap, self.o["pollcap"]))
        o.append("s_lshr_b32 s%d, s%d, 1" % (t3, sW))
        o.append("s_and_b32 s%d, s%d, 1" % (t2, sW))
        o.append("s_lshl1_add_u32 s%d, s%d, s%d" % (self.sRW, sR, t3))
        o.append("s_lshl1_add_u32 s%d, s%d, s%d" % (t1, sR, sRH))
        o.append("s_lshl1_add_u32 s%d, s%d, s%d" % (self.sRT, t1, t2))
        xd0 = self.axd[0][0]
        o.append("v_bfe_u32 v%d, v0, 1, 3" % vt)
        o.append("v_bfe_u32 v%d, v0, 4, 2" % vu)
        o.append("v_xor_b32 v%d, v%d, v%d" % (self.vBase, vt, vu))
        o.append("v_bfe_u32 v%d, v0, 5, 1" % vu)
        o.append("v_xor_b32 v%d, v%d, v%d" % (xd0, vt, vu))
        self.bits(o, vu, None, ((0, 4, 7),))
        o.append("v_lshl_add_u32 v%d, v%d, 4, v%d" % (self.vBase, self.vBase, vu))
        o.append("v_lshl_add_u32 v%d, v%d, 4, v%d" % (xd0, xd0, vu))
        o.append("v_bfe_u32 v%d, v0, 4, 1" % vu)
        o.append("v_lshl_or_b32 v%d, v%d, 3, v%d" % (xd0, vu, xd0))
        o.append("s_and_b32 s%d, s%d, 3" % (t0, self.sRT))
        o.append("s_lshl_b32 s%d, s%d, 6" % (t0, t0))
        o.append("s_add_u32 s%d, s%d, s%d" % (t0, t0, t3))
        o.append("s_lshl_b32 s%d, s%d, 6" % (t0, t0))
        o.append("v_xor_b32 v%d, s%d, v%d" % (xd0, t0, xd0))
        o.append("v_xor_b32 v%d, 32, v%d" % (self.axd[0][1], xd0))
        for e in range(2): o.append("v_add_u32 v%d, 0x10000, v%d" % (self.axd[1][e], self.axd[0][e]))
        self.bits(o, self.vTr, vu, ((2, 4, 7), (0, 2, 3), (3, 2, 5)))
        o.append("s_mul_i32 s%d, s%d, %d" % (t0, t3, 16384 + 64))
        o.append("s_add_u32 s%d, s%d, %d" % (t0, t0, L_SP))
        o.append("v_xor_b32 v%d, s%d, v%d" % (self.aw[0], t0, self.vTr))
        for t in range(1, 4): o.append("v_xor_b32 v%d, %d, v%d" % (self.aw[t], 32 * t, self.aw[0]))
        o.append("s_lshl_b32 s%d, s%d, 13" % (self.sMW, sW))
        self.sSt, self.sMW2, self.sLF, self.sLX = S(), S(), S(), S()
        o.append("s_lshl_b32 s%d, s2, 10" % self.sSt)
        o.append("s_add_u32 s%d, s%d, %d" % (self.sMW2, self.sMW, L_SP))
        o.append("s_lshr_b32 s%d, s2, 7" % t0)
        o.append("s_andn2_b32 s%d, s%d, s%d" % (self.sP17, t0, sRole))
        o.append("s_lshl_b32 s%d, s%d, 9" % (self.sP9, t0 if self.o["alead"] else self.sP17))
        o.append("s_lshl_b32 s%d, s%d, 17" % (self.sP17, self.sP17))
        self.bits(o, vu, vt, ((3, 3, 0), (6, 1, 6), (7, 1, 8)))
        o.append("v_lshl_add_u32 v%d, v%d, 10, v%d" % (vu, vu, vUT))
        o.append("v_lshl_add_u32 v%d, s%d, 7, v%d" % (self.vo[0], sCT, vu))
        for b in range(1, 4): o.append("v_add_u32 v%d, %d, v%d" % (self.vo[b], 7168 * b, self.vo[0]))
        o.append("s_lshl2_add_u32 s%d, s%d, s%d" % (self.sMC, t3, t2))
        o.append("s_lshl_b32 s%d, s%d, 10" % (self.sMC, self.sMC))
        o.append("s_lshl_b32 s%d, s%d, 6" % (t0, self.sP9))
        o.append("s_add_u32 s%d, s%d, s%d" % (self.sMC, self.sMC, t0))
        self.bits(o, vt, vu, ((3, 4, 0), (7, 1, 5)))
        o.append("v_lshl_add_u32 v%d, s%d, 6, v%d" % (vt, sCT, vt))
        o.append("v_lshl_add_u32 v%d, v%d, 10, v%d" % (self.vc[0], vt, vUA))
        o.append("v_add_u32 v%d, %d, v%d" % (self.vc[1], 16384 - 2048, self.vc[0]))
        self.bits(o, vu, None, ((0, 4, 4),))
        o.append("v_add_u32 v%d, %d, v%d" % (vu, WS_G, vu))
        o.append("v_lshl_add_u32 v%d, s%d, 9, v%d" % (self.vG1a, self.sRW, vu))
        o.append("v_lshl_add_u32 v%d, s%d, 8, v%d" % (self.vG2a, self.sRT, vu))
        o.append("v_and_b32 v%d, 56, v0" % vt)
        o.append("v_cmp_eq_u32 vcc, 24, v%d" % vt)
        o.append("v_add_u32 v%d, %d, v%d" % (vt, SPILL - 384, self.vL16))
        o.append("s_nop 0")
        o.append("v_cndmask_b32 v%d, v%d, v%d, vcc" % (self.vFr, self.vL16, vt))
        vWq = self.vWq = V()
        if self.o["qmode"] == 2:
            o.append("s_lshr_b32 s%d, s2, 3" % t0)
            self.bits(o, vWq, vu, ((2, 2, 0), (6, 2, 2)))
            o.append("v_lshl_add_u32 v%d, s%d, 4, v%d" % (vWq, t0, vWq))
        else:
            o.append("s_lshr_b32 s%d, s2, 6" % t0); o.append("s_and_b32 s%d, s%d, 3" % (t1, sJ)); o.append("s_lshl2_add_u32 s%d, s%d, s%d" % (t0, t0, t1))
            self.bits(o, vWq, vu, ((2, 3, 0), (6, 2, 3)))
            o.append("v_lshl_add_u32 v%d, s%d, 5, v%d" % (vWq, t0, vWq))
        o.append("v_mul_u32_u24 v%d, 24, v%d" % (vWq, vWq))
        o.append("v_and_or_b32 v%d, v0, 3, v%d" % (vWq, vWq))
        o.append("v_lshl_add_u32 v%d, s%d, 2, v%d" % (vWq, sRH, vWq))
        o.append("v_lshlrev_b32 v%d, 7, v%d" % (vWq, vWq))
        o.append("s_lshl4_add_u32 s%d, s%d, s%d" % (t0, sR, sJ))
        o.append("s_lshl_b32 s%d, s%d, 8" % (t0, t0))
        o.append("s_add_u32 s%d, s%d, %d" % (t0, t0, WS_FH))
        self.bits(o, self.vPf, vu, ((6, 1, 7), (7, 1, 11)))
        o.append("v_add_u32 v%d, s%d, v%d" % (self.vPf, t0, self.vPf))
        o.append("v_lshl_add_u32 v%d, s%d, 16, v%d" % (self.vPf, sRole, self.vPf))
        self.bits(o, self.vFlag, None, ((0, 5, 2),))
        o.append("v_add_u32 v%d, v%d, v%d" % (self.vFlag, self.vFlag, self.vPf))
        if self.o["lflag"]:
            o.append("v_bfe_u32 v%d, v0, 5, 1" % vu)
            o.append("v_mul_u32_u24 v%d, 0x%x, v%d" % (vu, WS_LF, vu))
            o.append("v_add_u32 v%d, v%d, v%d" % (self.vPf, vu, self.vPf))
        self.emit(o)
        self.vUT = vUT
        for q in (vt, vu, vUA, vp, vd): V.rel(q)
        self.vg = vg
        A("s_cmp_eq_u32 s%d, 0" % sRole)
        A("s_cbranch_scc0 L_att")

    def p2_addr(self, first, vt, vu):
        t0, t1, t3 = self.t0, self.t1, self.t3
        o = []
        o.append("s_lshr_b32 s%d, s%d, 1" % (t3, self.sW))
        o.append("s_lshr_b32 s%d, s%d, 1" % (t1, self.sRT))
        o.append("s_lshl1_add_u32 s%d, s%d, s%d" % (t0, t1, t3))
        self.bits(o, self.vf, None, ((0, 3, 7),))
        o.append("v_lshl_add_u32 v%d, s%d, 10, v%d" % (self.vf, t0, self.vf))
        o.append("s_mov_b32 s%d, %d" % (self.sFO, WS_FO)); o.append("s_mov_b32 s%d, %d" % (self.sFH, WS_FH))
        if self.o["lflag"]:
            o.append("s_mov_b32 s%d, %d" % (self.sLF, WS_LF))
            o.append(lambda: (self.A("s_cmp_eq_u32 s%d, s%d" % (t3, self.sRH)), self.A("s_cselect_b32 s%d, s%d, 0" % (self.sLX, self.sLF))))
            o.append("s_add_u32 s%d, s%d, s%d" % (self.sFH, self.sFH, self.sLX))
            o.append("s_add_u32 s%d, s%d, s%d" % (self.sFO, self.sFO, self.sLX))
        o.append("s_mul_i32 s%d, s%d, %d" % (t0, self.sRT, RT_STRIDE))
        o.append("s_lshl_b32 s%d, s%d, 14" % (self.sO, t3))
        o.append("s_lshl1_add_u32 s%d, s%d, s%d" % (self.sH, self.sO, t0))
        o.append("s_add_u32 s%d, s%d, %d" % (self.sH, self.sH, WS_A + (16384 if (first or not self.o["alead"]) else 0)))
        o.append("s_add_u32 s%d, s%d, s%d" % (self.sO, self.sO, t0))
        o.append("s_add_u32 s%d, s%d, %d" % (self.sO, self.sO, WS_A + 65536))
        if first: o.append("s_lshl4_add_u32 s%d, s%d, s%d" % (self.sO, self.sP9, self.sO))
        if self.o["g3"]:
            o.append("s_lshl_b32 s%d, s%d, 6" % (self.sSt, self.sP9)); o.append("s_add_u32 s%d, s%d, 0x10000" % (self.sSt, self.sSt))
        else: o.append("s_mov_b32 s%d, 0x10000" % self.sSt)
        o.append("s_mul_i32 s%d, s%d, %d" % (t0, t3, 32768 + 4096))
        if first: o.append("s_add_u32 s%d, s%d, %d" % (t0, t0, first))
        o.append("v_add_u32 v%d, s%d, v%d" % (self.ac[0][0], t0, self.vBase))
        o.append("v_xor_b32 v%d, 64, v%d" % (self.ac[0][1], self.ac[0][0]))
        for sx in range(2): o.append("v_xor_b32 v%d, 4096, v%d" % (self.ac[1][sx], self.ac[0][sx]))
        self.bits(o, vt, None, ((4, 2, 5),))
        o.append("v_xor_b32 v%d, v%d, v%d" % (vt, vt, self.vL16))
        o.append("v_lshl_add_u32 v%d, s%d, 12, v%d" % (self.vr, self.sW, vt))
        if first: o.append("v_add_u32 v%d, %d, v%d" % (self.vr, first, self.vr))
        self.bits(o, vt, vu, ((3, 1, 3), (4, 1, 0), (5, 1, 4), (6, 1, 2)))
        o.append("v_lshl_add_u32 v%d, s%d, 6, v%d" % (vt, t1, vt))
        self.bits(o, vu, None, ((0, 3, 4),))
        o.append("v_lshl_add_u32 v%d, v%d, 11, v%d" % (vt, vt, vu))
        o.append("s_lshl1_add_u32 s%d, s%d, s%d" % (t0, self.sCT, t3))
        o.append("v_lshl_add_u32 v%d, s%d, 7, v%d" % (self.vOut, t0, vt))
        return o

    def skip_term(self):
        xd = self.vXD; dm = self.of; og = self.of + 8
        W = []
        for a1 in range(2): W.append("v_sub_f32 v%d, 1.0, v%d" % (og + a1, self.vG2 + 2 * a1))
        for k in range(4):
            W.append("v_and_b32 v%d, 0xffff, v%d" % (dm + 2 * k, self.vDs + k))
            W.append("v_and_b32 v%d, 0xffff0000, v%d" % (dm + 2 * k + 1, self.vDs + k))
        for a1 in range(2): W.append("v_cvt_pk_bf16_f32 v%d, 0, v%d" % (og + a1, og + a1))
        for n in range(16): W.append("v_dot2_f32_bf16 v%d, v%d, v%d, 0" % (xd + n, self.xdf + (n >> 1), dm + (n & 7)))
        for q in range(8): W.append("v_pk_mul_f32 %s, %s, %s %s" % (v(xd + 2 * q, 2), v(og, 2), v(xd + 2 * q, 2), "op_sel:[1,0]" if q >> 2 else "op_sel_hi:[0,1]"))
        return W

    def gate_fill(self):
        V = self.V
        F = []
        t0, t1 = self.S(), self.S()
        gx = self.gx; g = gx + 12; vt = self.V()
        F.append("s_add_u32 s%d, s%d, 1" % (self.sE, self.sE))
        F.append("s_mul_i32 s%d, s%d, 0x9e3779b1" % (self.sTag, self.sE))
        F.append("v_mov_b32 v%d, s%d" % (self.vTag, self.sTag))
        F.append("v_mov_b32 v%d, 0" % g); F.append("v_mov_b32 v%d, 0" % (g + 2))
        for i in range(4):
            F.append("v_dot2c_f32_bf16 v%d, v%d, v%d" % (g, gx + i, gx + 8 + i))
            F.append("v_dot2c_f32_bf16 v%d, v%d, v%d" % (g + 2, gx + 4 + i, gx + 8 + i))
        side = ["v_mov_b32 v%d, v%d" % (g + 1, self.vTag), "v_mov_b32 v%d, v%d" % (g + 3, self.vTag), "v_cmp_eq_u32 vcc, 0x3f0, v%d" % self.vL16,
                "v_mov_b32 v%d, 0x%x" % (vt, HUGE)]
        side.append("s_and_b32 s%d, s%d, 32" % (t0, self.sN2))
        for bit, w_, sh in ((1, 1, 4), (3, 2, 2), (0, 1, 1), (2, 1, 0)):
            side.append("s_bfe_u32 s%d, s%d, 0x%x" % (t1, self.sN2, (w_ << 16) | bit))
            side.append(("s_lshl%d_add_u32" % sh if sh else "s_add_u32") + " s%d, s%d, s%d" % (t0, t1, t0))
        side.append("v_cndmask_b32 v%d, v%d, 0, vcc" % (vt, vt))
        side.append("s_lshl_b32 s%d, s%d, 10" % (t1, self.sR))
        side.append("s_lshl4_add_u32 s%d, s%d, s%d" % (t0, t0, t1))
        side.append("s_add_u32 s%d, s%d, %d" % (t0, t0, WS_G))
        F += side[:3]; side = side[3:]
        for md in ("row_shr:1 row_mask:0xf", "row_shr:2 row_mask:0xf", "row_shr:4 row_mask:0xf", "row_shr:8 row_mask:0xf", "row_bcast:15 row_mask:0xa", "row_bcast:31 row_mask:0xc"):
            for q in (g, g + 2): F.append("v_add_f32_dpp v%d, v%d, v%d %s bank_mask:0xf" % (q, q, q, md))
            F += side[:2]; side = side[2:]
        for q in (g, g + 2): F.append("v_mul_f32 v%d, 0xbfb8aa3b, v%d" % (q, q))
        for q in (g, g + 2): F.append("v_exp_f32 v%d, v%d" % (q, q))
        for q in (g, g + 2): F.append("v_add_f32 v%d, 1.0, v%d" % (q, q))
        for q in (g, g + 2): F.append("v_rcp_f32 v%d, v%d" % (q, q))
        F += side
        for q in (g, g + 2): F.append("v_cvt_pk_bf16_f32 v%d, 0, v%d" % (q, q))
        def st():
            self.A("buffer_store_dwordx4 %s, v%d, %s, s%d offen sc1" % (v(g, 4), vt, self.WS, t0)); self.vm.issue("gst")
        F.append(st)
        return F

    def g_loads(self):
        for k in range(self.nG1):
            self.A("buffer_load_dwordx4 %s, v%d, %s, 0 offen%s sc1" % (v(self.vG1 + 4 * k, 4), self.vG1a, self.WS, " offset:256" if k else "")); self.vm.issue("g")
        self.A("buffer_load_dwordx4 %s, v%d, %s, 0 offen sc1" % (v(self.vG2, 4), self.vG2a, self.WS)); self.vm.issue("g")

    def g_check(self, name, vt):
        A = self.A
        self.vm.wait("g")
        A.label("L_gchk_" + name)
        A("v_xor_b32 v%d, v%d, v%d" % (vt, self.vG2 + 1, self.vTag))
        for q in [self.vG2 + 3] + [self.vG1 + 1 + 2 * k for k in range(2 * self.nG1)]:
            A("v_bitop3_b32 v%d, v%d, v%d, v%d bitop3:0xf6" % (vt, vt, q, self.vTag))
        A("v_cmp_ne_u32 vcc, 0, v%d" % vt)
        self.cap()
        A("s_cbranch_scc0 L_gok_" + name)
        q = list(self.vm.q)
        self.g_loads(); A("s_waitcnt vmcnt(0)")
        self.vm.q = q
        A("s_branch L_gchk_" + name)
        A.label("L_gok_" + name)

    def hop(self, name):
        if not self.o["hop"]: return
        A = self.A
        A("s_mov_b64 exec, 0")
        for w in range(3):
            A("s_cmp_eq_u32 s%d, %d" % (self.sW, w))
            A("s_cbranch_scc1 @CHAIN%s%d@" % (name, w))
        A("s_branch @CHAIN%s3@" % name)
        if name == "s":
            A.label("L_backx")
            A("s_cmp_eq_u32 s%d, 0" % self.sRole)
            A("s_cbranch_scc0 L_backa")
        A.label("L_back" + name)
        A("s_mov_b64 exec, -1")

    def p1_loop(self, name, xread, wread, mfma, tail, fill):
        A = self.A
        def warm(tok):
            if tok == "w": A("global_load_dword v%d, v%d, s[48:49]" % (self.vJunk, self.vPf))
            else: A("global_load_dword v%d, v%d, s[%d:%d]" % (self.vJunk, self.vWq, P_WQKV, P_WQKV + 1))
            self.vm.issue("junk")
        self.stamp(20)
        early = list(self.early)
        gf = self.gate_fill()
        for tok in self.o["third"][name == "a"]:
            if tok in "wq": warm(tok)
            elif tok == "G":
                A("s_waitcnt vmcnt(%d) lgkmcnt(0)" % (len(self.vm.q) - self.vm.q.index("ch0")))
                self.emit(gf); gf = []
            elif tok == "f":
                if name == "s": A("s_waitcnt vmcnt(%d)" % (len(self.vm.q) - self.vm.q.index("ch0")))
                k = min(self.o["nf"][name == "a"], len(fill))
                self.emit(fill[:k]); fill = fill[k:]
            elif tok == "h": self.hop(name)
            else: self.emit(early[:int(tok)]); early = early[int(tok):]
        assert not early
        self.stamp(21)
        if self.o["xdo"]:
            A("s_branch L_loop" + name)
            for c in range(8):
                A.label("L_xd_%s%d" % (name, c))
                hi, lo = self.slot(c) >> 16, self.slot(c) & 0xffff
                for n in range(4): A("ds_read_b64 %s, v%d offset:%d" % (v(self.xdf + 2 * n, 2), self.axd[hi][n & 1], lo + 2048 * (n >> 1)))
                A("s_branch L_nx_%s%d" % (name, c))
            A.label("L_loop" + name)
        gap = {}
        def at(n, x): gap.setdefault(n, []).append(x)
        nw = len(wread(0, 0))
        wpos = {1: ((-8,), (-3,), (0,), (4,)), 2: ((-8, -7), (-2, -1), (1, 2), (5, 6))}[nw]
        dpos = {1: (-2, 2, 6, -1 + 8 + 3), 2: (0, 3, 4, 7)}[nw]
        xpos = [-8 + nw + i for i in range(4)]
        last = []
        early_n = self.o["early"][name == "a"]; ex = self.wo_stag()
        ah = self.o["ahead"][name == "a"]
        drain = (0, 6, 7) + (tuple(range(ah, 6)) if ah else ())
        wpe = {1: ((-8,), (-3,), (0,), (1,)), 2: ((-8, -7), (-2, -1), (0, 1), (2, 3))}[nw]
        for c in range(8):
            base = 32 * c
            def sync(c=c):
                n1 = self.vm.need("ch%d" % c)
                if c == 6 and early_n and "wo0" in self.vm.q: n1 = self.vm.need("wo0")
                if c in drain:
                    A("s_waitcnt vmcnt(%d) lgkmcnt(0)" % n1); self.lg.zero(False)
                else: A("s_waitcnt vmcnt(%d)" % n1)
                self.stamp({0: 1, 1: 2, 2: 3, 3: 27, 4: 4, 5: 28, 6: 29, 7: 5}[c])
                A("s_barrier")
            at(base - 9, sync)
            for k in range(self.o["pause"][c]): at(base + 7 + 8 * (k & 1) * self.o["psplit"], "s_nop 15")
            for sx in range(2):
                st = 2 * c + sx
                for t in range(4):
                    for p, x in zip((wpe if (sx and c + 1 in drain) else wpos)[t], wread(st, t)): at(16 * st + p, self.ds(x, "w%d_%d" % (st, t)))
                    at(16 * st + xpos[t], self.ds(xread(st, t), "x%d_%d" % (st, t)))
            def xd(c=c):
                A("s_cmp_eq_u32 s%d, %d" % (self.sCX, c))
                if self.o["xdo"]: A("s_cbranch_scc1 L_xd_%s%d" % (name, c))
                else:
                    A("s_cbranch_scc0 L_nx_%s%d" % (name, c))
                    hi, lo = self.slot(c) >> 16, self.slot(c) & 0xffff
                    for n in range(4): A("ds_read_b64 %s, v%d offset:%d" % (v(self.xdf + 2 * n, 2), self.axd[hi][n & 1], lo + 2048 * (n >> 1)))
                A.label("L_nx_%s%d" % (name, c))
            at(base + (3 if nw == 1 else 4), xd)
            la = 3 if (ah and c > ah) else 2
            dm = self.chunk_dmas(c + la) if c + la < 8 else tail[c + la - 8]
            if ah and c == ah:
                dm = dm + self.chunk_dmas(c + 3)
                nm = min(len(fill), self.o["smid" if name == "s" else "amid"])
                blk = weave(fill[len(fill) - nm:], dm[4:12]); fill = fill[:len(fill) - nm]
                at(base + 7, lambda blk=blk: self.emit(blk))
                dm = dm[:4] + dm[12:]
            if c == 7 and name == "s" and self.o["g3"]: last = tail[-1]
            elif c == 7 and name == "s" and self.o["late7"] in (1, 2): last = dm; dm = []
            pos = list(self.o["dpos"][nw - 1])
            if c == 7 and name == "s" and self.o["late7"] > 2: pos = [31 - self.o["late7"] * (7 - i) for i in range(8)]
            ne = early_n[c] if early_n else 0
            if ne:
                for i in range(ne): dm.insert({1: (4,), 2: (2, 7), 3: (2, 5, 8), 4: (2, 5, 8, 11)}[ne][i], ex.pop(0))
                pos = [-7 + (30 * i) // len(dm) for i in range(len(dm))]
            if c == 6 and early_n:
                assert not ex
                for i, x in enumerate(self.wo_reads(0)): at(base - 8 + (28 * i) // 32, self.ds(x, "wor"))
            if c == 0:
                k = self.o["d0"]; pos = [22 - 2 * (k - i) for i in range(k)] + [22] * (len(dm) - k)
            pos = [max(-8, pos[0] - 3)] * max(0, len(dm) - len(pos)) + pos
            prev = -8
            for i, x in enumerate(dm):
                p = pos[i]
                if isinstance(x, tuple):
                    for k, y in enumerate(x[0]): at(base + max(prev, p - len(x[0]) + k), y)
                    at(base + p, x[1])
                else: at(base + p, x)
                prev = p
        m0_, m1_, nm = self.o["mid"]
        nm = 0 if ah else min(nm, self.o["smid" if name == "s" else "amid"])
        if name == "a": m0_ += self.o["aoff"]; m1_ += self.o["aoff"]
        if self.o["gmid"]: fill = gf + fill; gf = []
        if self.o["glate"]:
            gc, g0, g1 = self.o["glate"]
            def rows():
                for k in range(2):
                    A("buffer_load_dwordx4 %s, v%d, %s, 0 offen%s" % (v(self.gx + 4 * k, 4), self.vg, self.X, " offset:2048" if k else "")); self.vm.issue("grow")
            at(gc, rows)
            at(g0, lambda: self.vm.wait("grow"))
            for i, x in enumerate(gf[3:]): at(g0 + ((g1 - g0) * i) // len(gf), x)
            gf = gf[:3]
        if self.o["qat"] and (name == "a" or self.o["qmode"] == 2): at(self.o["qat"], lambda: warm("q"))
        if name == "s" and self.o["wat"]:
            def w2():
                for srd in (self.WO, self.CIM, self.CRE)[:self.o["wn"]]:
                    A("buffer_load_dword v%d, v%d, %s, 0 offen" % (self.vJunk, self.vW2, srd)); self.vm.issue("junk")
            at(self.o["wat"], w2)
        nm = min(nm, len(fill)); midl = fill[len(fill) - nm:]; fill = fill[:len(fill) - nm]
        for i, x in enumerate(midl): at(m0_ + ((m1_ - m0_) * i) // nm, x)
        fl = gf + fill
        nd = self.o["defer"][name == "a"]
        self.deferred = [(lambda k=k: (self.lg.wait("w15_%d" % (k >> 2)), mfma(15, k >> 2, k & 3))) for k in range(16 - nd, 16)]
        for n in range(-9, 256 - nd):
            if n >= 0:
                st, k = n >> 4, n & 15
                if k == 0: self.lg.wait("x%d_1" % st)
                elif k == 2: self.lg.wait("x%d_3" % st)
                elif k & 3 == 0: self.lg.wait("w%d_%d" % (st, k >> 2))
                mfma(st, k >> 2, k & 3)
            g_ = gap.pop(n, [])
            if -1 <= n < 22:
                k = -(-len(fl) // (22 - n))
                assert "par" not in self.vm.q
                g_ = g_ + fl[:k]; fl = fl[k:]
            self.emit(g_)
        assert not fl and not gap, gap
        self.last = last
        if self.o["late7"] == 1 and not nd: self.emit(last); self.last = []
        self.stamp(6)

    def ssm(self):
        A, V, S = self.A, self.V, self.S
        t0, t1, t2, t3 = self.t0, self.t1, self.t2, self.t3
        vt = V(); vu = V()
        for q in (self.vUT, self.vTr): V.rel(q)
        self.nG1 = 2; self.vG1 = V(8, 4)
        ax = [[V(), V()], [V(), V()]]; ab = [[V(), V()], [V(), V()]]
        Q = lambda: V(4, 2)
        F = []
        for fam, sel in ((ax, t3), (ab, t2)):
            F.append("v_lshl_add_u32 v%d, s%d, 13, v%d" % (fam[0][0], sel, self.vBase))
            F.append("v_xor_b32 v%d, 64, v%d" % (fam[0][1], fam[0][0]))
            for sx in range(2): F.append("v_add_u32 v%d, 0x10000, v%d" % (fam[1][sx], fam[0][sx]))
        m0_, m1_, mw = S(2, 2), S(2, 2), S(2, 2)
        F.append("s_mov_b32 s%d, 0xffff0000" % m0_); F.append("s_mov_b32 s%d, 0xffff0000" % (m0_ + 1))
        F.append("s_mov_b32 s%d, 0" % m1_); F.append("s_mov_b32 s%d, -1" % (m1_ + 1))
        F.append("s_sub_u32 s%d, 0, s%d" % (mw, t3)); F.append("s_mov_b32 s%d, s%d" % (mw + 1, mw))
        Sk = V(2)
        F.append("v_lshrrev_b32 v%d, 2, v0" % vt)
        F.append("v_xor_b32 v%d, v0, v%d" % (vt, vt))
        F.append("v_and_b32 v%d, 12, v%d" % (vt, vt))
        F.append("v_and_or_b32 v%d, v0, 2, v%d" % (vt, vt))
        F.append("v_cmp_eq_u32 vcc, 0, v%d" % vt)
        F.append("v_cmp_eq_u32 s[%d:%d], 2, v%d" % (self.sMk, self.sMk + 1, vt))
        F.append("v_bfe_i32 v%d, v0, 0, 1" % vu)
        F.append("v_xor_b32 v%d, 0xffff, v%d" % (vu, vu))
        F.append("v_cndmask_b32 v%d, 0, v%d, vcc" % (Sk, vu))
        F.append("v_cndmask_b32 v%d, 0, v%d, s[%d:%d]" % (Sk + 1, vu, self.sMk, self.sMk + 1))
        vEs = V(); vXa = V(); ea = [V() for _ in range(4)]; et = [V() for _ in range(4)]
        F.append("s_lshl1_add_u32 s%d, s%d, s%d" % (t0, self.sJ, t2))
        F.append("s_lshl_b32 s%d, s%d, 12" % (t0, t0))
        F.append("s_add_u32 s%d, s%d, %d" % (t0, t0, WS_E))
        F.append("s_add_u32 s68, s48, s%d" % t0); F.append("s_addc_u32 s69, s49, 0")
        self.bits(F, vt, None, ((0, 4, 4),))
        F.append("v_lshl_add_u32 v%d, s%d, 8, v%d" % (vEs, self.sR, vt))
        F.append("v_lshl_add_u32 v%d, s%d, 8, v%d" % (vXa, self.sW, vt))
        F.append("v_lshl_add_u32 v%d, s%d, 6, v%d" % (vXa, self.sP9, vXa))
        F.append("v_xor_b32 v%d, %d, v%d" % (vXa, L_R1 + 32768, vXa))
        self.bits(F, ea[0], None, ((4, 2, 8),))
        F.append("v_sub_u32 v%d, v%d, v%d" % (ea[0], vEs, ea[0]))
        F.append("v_subrev_u32 v%d, 256, v%d" % (ea[0], ea[0]))
        F.append("v_and_b32 v%d, 0xb0, v0" % vt)
        F.append("v_cmp_eq_u32 vcc, 0x80, v%d" % vt)
        F.append("v_add_u32 v%d, s%d, v%d" % (vu, t0, vEs))
        F.append("v_mov_b32 v%d, 0x%x" % (vt, HUGE))
        for k in range(1, 4): F.append("v_subrev_u32 v%d, %d, v%d" % (ea[k], 1024 * k, ea[0]))
        for k in range(4): F.append("v_ashrrev_i32 v%d, 31, v%d" % (et[k], ea[k]))
        F.append("v_cndmask_b32 v%d, v%d, v%d, vcc" % (vEs, vt, vEs))
        F.append("v_cndmask_b32 v%d, v%d, v%d, vcc" % (self.vPf, self.vPf, vu))
        if self.o["wat"]:
            self.vW2 = V()
            if self.o["wl2"]:
                F.append("s_lshr_b32 s%d, s2, 6" % t0); F.append("s_and_b32 s%d, s%d, 3" % (t1, self.sJ)); F.append("s_lshl2_add_u32 s%d, s%d, s%d" % (t0, t0, t1))
                F.append("v_and_b32 v%d, 0x%x, v0" % (self.vW2, {1: 0xff, 2: 0xdf, 3: 0xcf}[self.o["wl2"]]))
                F.append("v_lshl_add_u32 v%d, s%d, 8, v%d" % (self.vW2, t0, self.vW2))
            else:
                F.append("s_lshl3_add_u32 s%d, s%d, s%d" % (t0, self.sR, self.sJ))
                F.append("v_lshrrev_b32 v%d, 3, v0" % self.vW2)
                F.append("v_lshl_add_u32 v%d, s%d, 5, v%d" % (self.vW2, t0, self.vW2))
            F.append("v_lshlrev_b32 v%d, 7, v%d" % (self.vW2, self.vW2))
        sH = [S() for _ in range(4)]
        F.append("s_mul_i32 s%d, s%d, %d" % (t0, self.sRW, 2 * RT_STRIDE))
        F.append("s_and_b32 s%d, s%d, 4" % (t1, self.sJ)); F.append("s_add_u32 s%d, s%d, s%d" % (t1, t1, self.sJ))
        F.append("s_lshl1_add_u32 s%d, s%d, s%d" % (t1, t1, t2)); F.append("s_lshl_b32 s%d, s%d, 11" % (t1, t1))
        F.append("s_add_u32 s%d, s%d, s%d" % (t0, t0, t1))
        for tau in range(2):
            for comp in range(2):
                F.append("s_add_u32 s%d, s%d, %d" % (sH[2 * tau + comp], t0, WS_A + tau * RT_STRIDE + comp * 16384))
        self.emit(F)
        F = []
        pre, pim, pdt = self.ppar
        lam, cf, mu, l16, l32, l64, L4, Lg, x16, x32 = [Q() for _ in range(10)]
        al = [Q(), Q()]
        ta, tb, tc = self.acc[0], self.acc[0] + 4, self.acc[0] + 8
        P2 = lambda r: v(r, 2)
        for q in (pre, pim, pdt):
            for b in range(2): F.append("v_lshlrev_b32 v%d, 16, v%d" % (q + b, q + b))
        for b in range(2): F.append("v_mul_f32 v%d, %s, v%d" % (pdt + b, LOG2E, pdt + b))
        for b in range(2): F.append("v_exp_f32 v%d, v%d" % (pdt + b, pdt + b))
        F.append("v_pk_mul_f32 %s, %s, %s" % (P2(tb), P2(pre), P2(pre)))
        for b in range(2): F.append("v_cvt_pk_bf16_f32 v%d, 0, v%d" % (pdt + b, pdt + b))
        F.append("v_pk_fma_f32 %s, %s, %s, %s" % (P2(tb), P2(pim), P2(pim), P2(tb)))
        F.append("v_pk_mul_f32 %s, %s, %s" % (P2(ta), P2(pdt), P2(pre)))
        F.append("v_pk_mul_f32 %s, %s, %s" % (P2(ta + 2), P2(pdt), P2(pim)))
        for b in range(2): F.append("v_mul_f32 v%d, %s, v%d" % (ta + b, LOG2E, ta + b))
        for b in range(2): F.append("v_mul_f32 v%d, 0.15915494, v%d" % (ta + 2 + b, ta + 2 + b))
        for b in range(2): F.append("v_exp_f32 v%d, v%d" % (ta + b, ta + b))
        for b in range(2): F.append("v_rndne_f32 v%d, v%d" % (tb + 2 + b, ta + 2 + b))
        for b in range(2): F.append("v_sub_f32 v%d, v%d, v%d" % (ta + 2 + b, ta + 2 + b, tb + 2 + b))
        for b in range(2): F.append("v_rcp_f32 v%d, v%d" % (tb + b, tb + b))
        for b in range(2): F.append("v_cos_f32 v%d, v%d" % (lam + b, ta + 2 + b))
        for b in range(2): F.append("v_sin_f32 v%d, v%d" % (lam + 2 + b, ta + 2 + b))
        F.append("v_pk_add_f32 %s, %s, %s" % (P2(tb), P2(tb), P2(tb)))
        for k in (0, 2): F.append("v_pk_mul_f32 %s, %s, %s" % (P2(lam + k), P2(lam + k), P2(ta)))
        for b in range(2): F.append("v_add_f32 v%d, -1.0, v%d" % (ta + b, lam + b))
        F.append("v_pk_mul_f32 %s, %s, %s" % (P2(cf), P2(ta), P2(pre)))
        F.append("v_pk_mul_f32 %s, %s, %s" % (P2(cf + 2), P2(lam + 2), P2(pre)))
        F.append("v_pk_fma_f32 %s, %s, %s, %s" % (P2(cf), P2(lam + 2), P2(pim), P2(cf)))
        F.append("v_pk_fma_f32 %s, %s, %s, %s neg_lo:[1,0,0] neg_hi:[1,0,0]" % (P2(cf + 2), P2(ta), P2(pim), P2(cf + 2)))
        for k in (0, 2): F.append("v_pk_mul_f32 %s, %s, %s" % (P2(cf + k), P2(cf + k), P2(tb)))
        chain = [lam, ta, tb, mu, l16, l32, l64, ta, tb, L4]
        for x_, y_ in zip(chain, chain[1:]):
            F.append("v_pk_mul_f32 %s, %s, %s" % (P2(y_), P2(x_), P2(x_)))
            F.append("v_pk_mul_f32 %s, %s, %s" % (P2(y_ + 2), P2(x_), P2(x_ + 2)))
            F.append("v_pk_fma_f32 %s, %s, %s, %s neg_lo:[1,0,0] neg_hi:[1,0,0]" % (P2(y_), P2(x_ + 2), P2(x_ + 2), P2(y_)))
            F.append("v_pk_add_f32 %s, %s, %s" % (P2(y_ + 2), P2(y_ + 2), P2(y_ + 2)))
        def sel(out, d, src, mk, one):
            for k in range(4): out.append("v_cndmask_b32 v%d, %s, v%d, s[%d:%d]" % (d + k, "1.0" if (one and k < 2) else "0", src + k, mk, mk + 1))
        sel(F, ta, ta, m0_, 1); sel(F, tb, tb, m1_, 1)
        self.pmul(F, Lg, ta, tb)
        sel(F, x16, l16, m0_, 1); sel(F, x32, l32, m1_, 1); sel(F, ta, l64, mw, 1)
        self.pmul(F, tb, x16, x32); self.pmul(F, tc, tb, ta)
        for b in range(2):
            self.cmul(F, al[b], al[b] + 2, cf + b, cf + 2 + b, tc + b, tc + 2 + b)
            self.cmul(F, al[b] + 1, al[b] + 3, mu + b, mu + 2 + b, al[b], al[b] + 2)
        U = [[V(16, 4), V(16, 4)], [V(16, 4), V(16, 4)]]
        def lds(fam, st, off):
            tot = self.slot(st >> 1) + off
            return fam[tot >> 16][st & 1], tot & 0xffff
        xread = lambda st, t: "ds_read_b128 %s, v%d offset:%d" % ((a(64 + 32 * (st & 1) + 4 * t, 4),) + lds(ax, st, 2048 * t))
        wread = lambda st, t: ["ds_read_b128 %s, v%d offset:%d" % ((a(64 + 32 * (st & 1) + 16 + 4 * t, 4),) + lds(ab, st, 16384 + 4096 * (t & 1) + 2048 * (t >> 1)))]
        def mfma(st, t, x):
            self.mf(U[t & 1][t >> 1] + 4 * x, a(64 + 32 * (st & 1) + 4 * x, 4), a(64 + 32 * (st & 1) + 16 + 4 * t, 4), "0" if st == 0 else None)
        c1 = self.c_dmas(1, L_R1); c0 = self.c_dmas(0, L_R0, self.sMW2 if self.o["g3"] else None)
        if self.o["g3"]: F.append("s_and_b32 s%d, s%d, 0x7fff" % (self.sMW2, self.sMC))
        early = self.o["early"][0]
        sl = self.o["ssm"]
        if early:
            a1 = c1[:8]; ld = self.wo_dmas(1) + c0[:8] + c1[8:] + c0[8:]
        else:
            a1 = self.wo_dmas(0); ld = c1[:8] + c0[:8] + c1[8:] + self.wo_dmas(1) + c0[8:]
        if self.o["alead"]:
            ld = c1 + self.wo_dmas(1) + c0
            assert sl[0] + sl[1] <= 8 and sum(sl[:5]) >= 16
        else: assert sl[0] <= 8 and sl[0] + sl[1] <= 16 and sum(sl[:5]) >= 24
        def take(n):
            out = ld[:n]; del ld[:n]
            return out
        gl_ = [] if self.o["glate"] else [self.g_loads]
        if self.o["ahead"][0]:
            k = self.o["a2"]; x_ = take(sl[0]); tl = [gl_ + a1, x_[:k], x_[k:]]
            if self.o["g3"]: tl.append(take(sl[1])); sl = (sl[0], 0) + tuple(sl[2:])
        else: tl = [gl_ + a1, take(sl[0])]
        self.p1_loop("s", xread, wread, mfma, tl, F)
        for q in self.ppar: V.rel(q, 2)
        for fam in (ax, ab):
            for row in fam:
                for q in row: V.rel(q)
        for q in self.vw + self.vx: V.rel(q)
        pr = lambda b, m: (U[0][b] + 2 * m, U[1][b] + 2 * m)
        T = self.acc[0]; T2 = self.acc[1]
        E = [[T, T + 4], [T + 8, T + 12]]
        o = []
        for b in range(2):
            cur = pr(b, 0)
            for m in range(1, 8):
                self.pmul(o, E[b][m & 1], lam, cur, pr(b, m), b); cur = E[b][m & 1]
        Ev = [E[0][1], E[1][1]]
        Fe, Fo, Ge, Go = T, T + 8, T2, T2 + 4
        Wv, W0, e = T2 + 8, T2 + 12, Q()
        for b in range(2): self.cmul(o, Fe + b, Fe + 2 + b, mu + b, mu + 2 + b, Ev[b], Ev[b] + 2, Ev[b] + 1, Ev[b] + 3)
        def split(out, x, y, w):
            for k in (0, 2): out.append("v_pk_mov_b32 %s, %s, %s op_sel:[0,1]" % (P2(y + k), P2(x + k), P2(x + k)))
            for k in range(4): out.append("v_permlane%d_swap_b32 v%d, v%d" % (w, x + k, y + k))
        split(o, Fe, Fo, 16)
        self.pmul(o, Ge, l16, Fe, Fo)
        split(o, Ge, Go, 32)
        self.pmul(o, Wv, l32, Ge, Go)
        k = self.o["l7at"]
        d = self.deferred
        if d: self.emit(d[:4] + weave(o[:16], d[4:]) + (self.last + o[16:] if k == 0 else o[16:k] + weave(o[k:64], self.last) + o[64:]))
        else: self.emit(o[:k] + weave(o[k:64], self.last) + o[64:])
        A("ds_write_b128 v%d, %s" % (vXa, v(Wv, 4)))
        A("v_and_b32 v%d, 0xfffffdff, v%d" % (vXa, vXa))
        tt = (t0, t1, t2, t3)
        for k in range(4): A("s_mov_b32 s%d, 0x%x" % (tt[k], 0x07060500 + k))
        self.vm.wait("wo0")
        A("s_waitcnt lgkmcnt(0)")
        A("s_barrier")
        A("ds_read_b128 %s, v%d" % (v(W0, 4), vXa))
        A("s_waitcnt lgkmcnt(0)"); self.lg.zero(False)
        o = []
        self.pmul(o, e, l64, W0, Wv)
        for k in range(4): o.append("v_perm_b32 v%d, v%d, v%d, s%d" % (e + k, e + k, self.vTag, tt[k]))
        self.emit(o)
        A("buffer_store_dwordx4 %s, v%d, %s, 0 offen sc1" % (v(e, 4), vEs, self.ER)); self.vm.issue("est")
        if self.o["glate"]: self.g_loads()
        self.stamp(7)
        W = ["s_bfe_u32 s%d, s%d, 0x%x" % (tt[k], self.sTag, 0x80000 + 8 * k) for k in range(4)]
        be = [l16, l32]
        sel(W, W0, W0, mw, 0); sel(W, Ge, Ge, m1_, 0); sel(W, Fe, Fe, m0_, 0)
        self.pmul(W, Go, x32, W0, Ge)
        self.pmul(W, Fo, x16, Go, Fe)
        for b in range(2):
            self.cmul(W, be[b], be[b] + 2, cf + b, cf + 2 + b, Fo + b, Fo + 2 + b)
            self.cmul(W, Wv, Wv + 1, mu + b, mu + 2 + b, Fo + b, Fo + 2 + b, Ev[b], Ev[b] + 2)
            self.cmul(W, be[b] + 1, be[b] + 3, cf + b, cf + 2 + b, Wv, Wv + 1)
        for b in range(2):
            s2 = " op_sel:[1,0]" if b else " op_sel_hi:[0,1]"; s3 = " op_sel:[1,0,0]" if b else " op_sel_hi:[0,1,1]"
            for m in range(8):
                ur, ui = pr(b, m)
                W.append("v_pk_mul_f32 %s, %s, %s%s" % (P2(W0), P2(cf + 2), P2(ur), s2))
                W.append("v_pk_mul_f32 %s, %s, %s%s" % (P2(ur), P2(cf), P2(ur), s2))
                W.append("v_pk_fma_f32 %s, %s, %s, %s%s neg_lo:[1,0,0] neg_hi:[1,0,0]" % (P2(ur), P2(cf + 2), P2(ui), P2(ur), s3))
                W.append("v_pk_fma_f32 %s, %s, %s, %s%s" % (P2(ui), P2(cf), P2(ui), P2(W0), s3))
        self.emit(weave(W, take(sl[1]), [] if early else self.wo_reads(0)))
        self.stamp(22)
        er = T2
        def eloads():
            for i in range(4): A("buffer_load_dwordx4 %s, v%d, %s, 0 offen sc1" % (v(er + 4 * i, 4), ea[i], self.ER)); self.vm.issue("er")
        if self.o["efirst"]: eloads()
        self.g_check("ssm", vt)
        Sm = self.vG1
        for x in range(4): A("v_sub_f32 v%d, 1.0, v%d" % (Sm + 2 * x, Sm + 2 * x))
        for x in range(4): A("v_cvt_pk_bf16_f32 v%d, v%d, v%d" % (Sm + 2 * x, Sm + 2 * x, Sm + 2 * x))
        for x in range(4):
            A("v_and_b32 v%d, v%d, v%d" % (Sm + 2 * x + 1, Sk + 1, Sm + 2 * x))
            A("v_and_b32 v%d, v%d, v%d" % (Sm + 2 * x, Sk, Sm + 2 * x))
        bar_late = early and sum(sl[:4]) <= 16
        if not bar_late:
            A("s_waitcnt lgkmcnt(0)")
            A("s_barrier")
        self.emit(take(sl[2]))
        self.stamp(8); self.stamp(24)
        df = self.o["efirst"]
        if df:
            self.vm.wait("er")
            A("s_branch L_echk")
        q = list(self.vm.q)
        A.label("L_epoll")
        eloads()
        if df:
            A("s_waitcnt vmcnt(0)"); A.label("L_echk")
        for i in range(4):
            if not df: A("s_waitcnt vmcnt(%d)" % (3 - i))
            for k in range(4): A("v_bitop3_b32 v%d, v%d, v%d, s%d bitop3:0xd2" % (er + 4 * i + k, er + 4 * i + k, et[i], tt[k]))
            if i == 0: A("v_or_b32 v%d, v%d, v%d" % (vt, er, er + 1))
            else: A("v_or3_b32 v%d, v%d, v%d, v%d" % (vt, vt, er + 4 * i, er + 4 * i + 1))
            A("v_or3_b32 v%d, v%d, v%d, v%d" % (vt, vt, er + 4 * i + 2, er + 4 * i + 3))
        self.vm.q = q if df else []
        A("v_and_b32 v%d, 0xff, v%d" % (vt, vt))
        A("v_cmp_ne_u32 vcc, 0, v%d" % vt)
        self.poll_tail("L_epoll")
        self.stamp(9)
        dD = take(sl[3])
        o = []
        for i in range(2, -1, -1): self.pmul(o, er + 4 * i, L4, er + 4 * i + 4, er + 4 * i)
        cs = T; c2 = T + 4
        self.pmul(o, cs, Lg, er)
        for w_ in (16, 32):
            split(o, cs, c2, w_)
            for k in (0, 2): o.append("v_pk_add_f32 %s, %s, %s" % (P2(cs + k), P2(cs + k), P2(c2 + k)))
        for b in range(2): self.pmul(o, be[b], cs, al[b], be[b], b)
        self.emit(o)
        P1 = [mu, l64]; P1b = [x16, x32]; Pq = [self.vXD, self.vXD + 8]
        cur = [be[0], be[1]]
        def finish(x):
            out = []
            D = self.acc[x & 1]
            for comp in (1, 0):
                q = Pq[x & 1] + 4 * comp
                for k in range(4): out.append("v_cvt_pk_bf16_f32 v%d, v%d, v%d" % (q + k, D + 8 * comp + 2 * k, D + 8 * comp + 2 * k + 1))
                def st(q=q, comp=comp):
                    A("buffer_store_dwordx4 %s, v%d, %s, s%d offen%s sc1" % (v(q, 4), self.vFr, self.WS, sH[2 * (x >> 1) + comp], " offset:1024" if x & 1 else ""))
                    self.vm.issue("ast")
                out.append(st)
            return out
        pend = []
        for x in range(4):
            pk_ = (P1, P1b)[x & 1]
            for b in range(2):
                o = []
                for m in (2 * x, 2 * x + 1):
                    self.pmul(o, pr(b, m), lam, cur[b], pr(b, m), b); cur[b] = pr(b, m)
                for comp in (1, 0):
                    ng = "-" if comp else ""
                    for h in range(2):
                        r_ = U[comp][b] + 4 * x + 2 * h
                        o.append("v_cvt_pk_bf16_f32 v%d, %sv%d, %sv%d" % (pk_[b] + 2 * comp + h, ng, r_, ng, r_ + 1))
                self.emit(o[:8] + pend[:1] + o[8:10] + pend[1:] + o[10:] if self.o["pkfix"] else o[:2] + pend[:1] + o[2:5] + pend[1:] + o[5:])
                if x == 0 or (x == 1 and b == 0):
                    k = -(-len(dD) // (3 - 2 * x - b)); self.emit(dD[:k]); dD = dD[k:]
                pend = [(lambda comp=comp, b=b, x=x, pk_=pk_: self.mf(self.acc[x & 1] + 8 * comp + 4 * b, v(pk_[b] + 2 * comp, 2), v(Sm + 2 * x, 2), "0", 16)) for comp in (1, 0)]
            if x == 3 and self.o["pkfix"]:
                f_ = finish(2); self.emit(f_[:2] + pend[:1] + f_[2:4] + pend[1:] + f_[4:])
            else:
                if x == 3: self.emit(pend)
                if x: self.emit(finish(x - 1))
        self.emit(finish(3))
        self.stamp(10)
        if bar_late: A("s_barrier")
        self.emit(weave(self.p2_addr(L_R1, self.p_vt, self.p_vu) + self.skip_term(), take(sl[4])))
        self.flag()
        self.vm.wait("c1")
        A("s_barrier")
        self.emit(take(sl[5]))
        for n in range(self.o["clead"]): self.crd(n)
        if self.o["hpw"] == 1: self.vm.wait("flag")
        self.hpoll()
        self.h_wait("s")
        return self.p2_first(ld)

    def att(self):
        A, V, S = self.A, self.V, self.S
        t0, t1, t2, t3 = self.t0, self.t1, self.t2, self.t3
        vt = V(); vu = V()
        for q in self.ppar: V.rel(q, 2)
        self.nG1 = 1; self.vG1 = V(4, 4)
        ax = [[[V(), V()], [V(), V()]] for _ in range(2)]
        akv = [[V(), V()], [V(), V()]]; aq = [V() for _ in range(4)]; vq = [V(), V()]
        sM2 = S(); sKV = [S() for _ in range(4)]; sOo = S(); sEps = S(); sC0 = S()
        vKs = V(); xw = V(); xr = V(); zx = V(); zr = V(); c10 = V(); c01 = V(); ones = V(4, 4); cl = V(2)
        kw = V(); zw = V(); rk = V(); rz = V()
        F = []
        F.append("v_lshl_add_u32 v%d, s%d, 12, v%d" % (ax[0][0][0], self.sW, self.vBase))
        F.append("v_xor_b32 v%d, 64, v%d" % (ax[0][0][1], ax[0][0][0]))
        for sx in range(2): F.append("v_xor_b32 v%d, 4096, v%d" % (ax[1][0][sx], ax[0][0][sx]))
        for lt in range(2):
            for sx in range(2): F.append("v_add_u32 v%d, 0x10000, v%d" % (ax[lt][1][sx], ax[lt][0][sx]))
        F.append("v_and_b32 v%d, 64, v0" % vt)
        F.append("v_xor_b32 v%d, v%d, v%d" % (akv[0][0], vt, self.vTr))
        F.append("v_xor_b32 v%d, 32, v%d" % (akv[0][1], akv[0][0]))
        for b in range(2): F.append("v_add_u32 v%d, 0x10000, v%d" % (akv[1][b], akv[0][b]))
        if self.o["kvw"]:
            F.append("s_lshl2_add_u32 s%d, s%d, s%d" % (t0, self.sJ, self.sW)); F.append("s_lshl4_add_u32 s%d, s%d, s%d" % (t0, t0, self.sR))
            F.append("s_lshl_b32 s%d, s%d, 10" % (t0, t0)); F.append("s_add_u32 s%d, s%d, %d" % (t0, t0, WS_KV))
            F.append("v_and_b32 v%d, 1, v0" % vt); F.append("v_cmp_eq_u32 vcc, 0, v%d" % vt)
            F.append("v_add_u32 v%d, s%d, v%d" % (vt, t0, self.vFr)); F.append("s_nop 0")
            F.append("v_cndmask_b32 v%d, v%d, v%d, vcc" % (self.vPf, self.vPf, vt))
        self.emit(F)
        F = []
        F.append("s_lshr_b32 s%d, s%d, 1" % (t3, self.sW)); F.append("s_and_b32 s%d, s%d, 1" % (t2, self.sW))
        F.append("v_lshl_add_u32 v%d, s%d, 8, v%d" % (self.vG1a, t2, self.vG1a))
        F.append("v_add_u32 v%d, %d, v%d" % (aq[0], L_R1, self.vTr))
        for t in range(1, 4): F.append("v_xor_b32 v%d, %d, v%d" % (aq[t], 32 * t, aq[0]))
        self.bits(F, vt, vu, ((3, 2, 0), (6, 1, 2), (5, 1, 3), (7, 1, 5)))
        F.append("v_mul_u32_u24 v%d, 3072, v%d" % (vt, vt))
        F.append("v_lshl_add_u32 v%d, s%d, 7, v%d" % (vt, self.sJ, vt))
        F.append("v_add_u32 v%d, v%d, v%d" % (vq[0], vt, self.vUT))
        F.append("v_add_u32 v%d, %d, v%d" % (vq[1], 16 * 3072 - 1024, vq[0]))
        F.append("s_lshl_b32 s%d, s%d, 11" % (sM2, self.sW))
        F.append("s_sub_u32 s%d, s%d, s%d" % (sC0, self.sCT, self.sCX))
        F.append("s_lshl2_add_u32 s%d, s%d, s%d" % (t0, self.sJ, self.sW))
        F.append("s_lshl_b32 s%d, s%d, 14" % (t0, t0))
        F.append("s_add_u32 s%d, s%d, %d" % (t0, t0, WS_KV))
        F.append("s_and_b32 s%d, s%d, %d" % (t1, self.sR, 12 if self.o["kown"] else 0)); F.append("s_lshl_b32 s%d, s%d, 10" % (t1, t1))
        F.append("s_add_u32 s%d, s%d, s%d" % (sKV[0], t0, t1))
        for i in range(1, 4): F.append("s_xor_b32 s%d, s%d, %d" % (sKV[i], sKV[0], 4096 * i))
        F.append("s_and_b32 s%d, s%d, %d" % (t1, self.sR, 3 if self.o["kown"] else 15))
        F.append("v_lshl_add_u32 v%d, s%d, 10, v%d" % (vKs, t1, self.vFr))
        F.append("v_lshl_add_u32 v%d, s%d, 11, v%d" % (xw, self.sW, self.vL16))
        al = self.o["alead"]; XB = L_R0 if al else L_SP
        if XB: F.append("v_add_u32 v%d, %d, v%d" % (xw, XB, xw))
        F.append("v_lshl_add_u32 v%d, s%d, 10, v%d" % (xr, t3, xw))
        F.append("v_and_b32 v%d, 0xffffefff, v%d" % (xr, xr))
        F.append("v_lshrrev_b32 v%d, 2, v%d" % (zx, xw)); F.append("v_add_u32 v%d, %d, v%d" % (zx, XB + 8192 - XB // 4, zx))
        F.append("v_lshrrev_b32 v%d, 2, v%d" % (zr, xr)); F.append("v_add_u32 v%d, %d, v%d" % (zr, XB + 8192 - XB // 4, zr))
        F.append("v_mov_b32 v%d, 0x3f80" % c10); F.append("v_mov_b32 v%d, 0x3f800000" % c01)
        for i in range(4): F.append("v_mov_b32 v%d, 0x3f803f80" % (ones + i))
        F.append("v_mov_b32 v%d, %s" % (cl, LOG2E))
        F.append("s_mov_b32 s%d, 0x358637bd" % sEps)
        KB = L_R1 + 7 * 8192; ZB = KB + 2048
        F.append("s_lshl1_add_u32 s%d, s%d, s%d" % (t0, t2, t3))
        F.append("v_lshrrev_b32 v%d, 1, v%d" % (rk, self.vL16)); F.append("v_add_u32 v%d, %d, v%d" % (rk, KB, rk))
        if al:
            F.append("s_lshl_b32 s%d, s%d, 6" % (t1, self.sP9)); F.append("v_xor_b32 v%d, s%d, v%d" % (rk, t1, rk))
        F.append("v_lshl_add_u32 v%d, s%d, 9, v%d" % (kw, t0, rk))
        self.bits(F, zw, None, ((0, 4, 1),)); F.append("v_add_u32 v%d, %d, v%d" % (zw, ZB, zw))
        F.append("v_lshl_add_u32 v%d, s%d, 9, v%d" % (zw, t0, zw))
        self.bits(F, rz, None, ((4, 2, 3),)); F.append("v_add_u32 v%d, %d, v%d" % (rz, ZB, rz))
        if al:
            for q in (zw, rz): F.append("v_xor_b32 v%d, s%d, v%d" % (q, t1, q))
        F.append("s_lshl1_add_u32 s%d, s%d, s%d" % (t0, self.sRW, t2))
        F.append("s_mul_i32 s%d, s%d, %d" % (t0, t0, RT_STRIDE))
        F.append("s_lshl_b32 s%d, s%d, 12" % (t1, self.sJ)); F.append("s_add_u32 s%d, s%d, s%d" % (t0, t0, t1))
        F.append("s_add_u32 s%d, s%d, %d" % (sOo, t0, WS_A + 65536))
        F += self.p2_addr(L_R0, vt, vu)
        KV = [V(16, 4) for _ in range(4)]
        def xf(st, x): return a(128 + 8 * st + 4 * x, 4) if x < 2 else a(64 + 32 * (st & 1) + 4 * x, 4)
        def xread(st, x):
            tot = self.slot(st >> 1) + 2048 * (x & 1)
            return "ds_read_b128 %s, v%d offset:%d" % (xf(st, x), ax[x >> 1][tot >> 16][st & 1], tot & 0xffff)
        def wread(st, t):
            out = []
            for h in range(2):
                tot = self.slot(st >> 1) + 16384 + 8192 * (t >> 1) + 4096 * (st & 1) + 2048 * h
                out.append("ds_read_b64_tr_b16 %s, v%d offset:%d" % (a(64 + 32 * (st & 1) + 16 + 4 * t + 2 * h, 2), akv[tot >> 16][t & 1], tot & 0xffff))
            return out
        def mfma(st, t, x):
            self.mf(KV[t] + 4 * x, xf(st, x), a(64 + 32 * (st & 1) + 16 + 4 * t, 4), "0" if st == 0 else None)
        wq = []
        for c in range(8):
            for i in range(2):
                pre = [] if i else ["s_add_u32 m0, s%d, %d" % (sM2, L_R1 + c * 8192), "s_add_u32 s%d, s%d, %d" % (t0, sC0, c),
                                    "s_and_b32 s%d, s%d, 7" % (t0, t0), "s_mul_i32 s%d, s%d, %d" % (t0, t0, 64 * 3072)]
                wq.append((pre, (lambda i=i: self.dma(vq[i], self.WA, "s%d" % t0, 1024 * i, "wq"))))
        gl_ = [] if self.o["glate"] else [self.g_loads]
        cf_ = self.c_dmas(1, L_R0); n7 = self.o["att_7"] if self.o["ahead"][1] else 0
        tl = [gl_ + wq[:8], wq[8:], cf_[:n7]]; cf_ = cf_[n7:]
        self.p1_loop("a", xread, wread, mfma, tl, F)
        for lt in range(2):
            for row in ax[lt]:
                for q in row: V.rel(q)
        for q in akv[0] + akv[1] + vq + self.vx + self.vw + [self.vUT, self.vTr]: V.rel(q)
        tmp = V(8, 4)
        def phi(src, dst):
            out = []
            for k0 in range(0, 8, 4):
                for k in range(k0, k0 + 4):
                    out.append("v_pk_mul_f32 %s, %s, %s op_sel_hi:[0,1]" % (v(tmp + 2 * (k & 3), 2), v(cl, 2), v(src + 2 * k, 2)))
                for k in range(k0, k0 + 4):
                    for h in range(2):
                        out.append("v_exp_f32 v%d, v%d clamp" % (tmp + 2 * (k & 3) + h, tmp + 2 * (k & 3) + h))
                        out.append("v_max_f32 v%d, s%d, v%d" % (src + 2 * k + h, sEps, src + 2 * k + h))
                for k in range(k0, k0 + 4):
                    out.append("v_pk_add_f32 %s, %s, %s" % (v(src + 2 * k, 2), v(src + 2 * k, 2), v(tmp + 2 * (k & 3), 2)))
                for k in range(k0, k0 + 4):
                    out.append("v_cvt_pk_bf16_f32 v%d, v%d, v%d" % (dst + k, src + 2 * k, src + 2 * k + 1))
            return out
        pk = [V(8, 4), V(8, 4)]; pv = [V(8, 4), V(8, 4)]; Tk = self.acc[0]; Tz = self.acc[0] + 8
        W = []; d = self.deferred
        pend = d[2:]
        for b in range(2):
            ph = phi(KV[b], pk[b])
            for kk in range(2):
                g_ = ph[28 * kk:28 * kk + 28]
                W += g_[:4] + weave(g_[4:18], pend) + g_[18:]
                if b and kk: W.append("ds_write_b128 v%d, %s" % (xw, v(Tk, 4)))
                for k in range(4 * kk, 4 * kk + 4): W.append("v_cvt_pk_bf16_f32 v%d, v%d, v%d" % (pv[b] + k, KV[2 + b] + 2 * k, KV[2 + b] + 2 * k + 1))
                z = None if kk else "0"
                pend = [(lambda b=b, kk=kk, z=z: self.mf(Tz + 4 * b, v(ones, 4), v(pk[b] + 4 * kk, 4), z)),
                        (lambda b=b, kk=kk, z=z: self.mf(Tk + 4 * b, v(pk[b] + 4 * kk, 4), v(pv[b] + 4 * kk, 4), z))]
        W = W[:-2] + pend[:1] + W[-2:] + pend[1:]
        n = max(0, self.o["att_b"] - n7)
        if al: cf_ = self.wo_dmas(0) + self.c_dmas(0, L_R0)
        self.emit(d[:2] + W[:30] + weave(W[30:110], cf_[:n]) + W[110:]); cf_ = cf_[n:]
        Uu = self.acc[1]
        def qread(n, h):
            return self.ds("ds_read_b64_tr_b16 %s, v%d offset:%d" % (a(64 + 4 * (n % 8) + 2 * h, 2), aq[2 * (n >> 5) + (n & 1)], ((n >> 1) & 15) * 4096 + h * 2048), "q%d" % n)
        A("v_mov_b32 v%d, v%d" % (Uu + 15, self.vTag))
        A("ds_write2st64_b32 v%d, v%d, v%d offset0:0 offset1:1" % (zx, Tz, Tz + 4))
        A("ds_write_b128 v%d, %s offset:1024" % (xw, v(Tk + 4, 4)))
        A("s_waitcnt vmcnt(%d) lgkmcnt(0)" % self.vm.need("wq")); self.lg.zero(False)
        A("s_barrier")
        self.ds("ds_read_b128 %s, v%d" % (v(Uu, 4), xr), "x0")()
        self.ds("ds_read_b128 %s, v%d offset:4096" % (v(Uu + 4, 4), xr), "x0")()
        self.ds("ds_read2st64_b32 %s, v%d offset0:0 offset1:4" % (v(Uu + 8, 2), zr), "x1")()
        for n in range(4):
            for h in range(2): qread(n, h)()
        self.lg.wait("x0")
        A("v_pk_add_f32 %s, %s, %s" % (v(Uu, 2), v(Uu, 2), v(Uu + 4, 2)))
        A("v_pk_add_f32 %s, %s, %s" % (v(Uu + 2, 2), v(Uu + 2, 2), v(Uu + 6, 2)))
        A("v_cvt_pk_bf16_f32 v%d, v%d, v%d" % (Uu + 12, Uu, Uu + 1))
        A("v_cvt_pk_bf16_f32 v%d, v%d, v%d" % (Uu + 13, Uu + 2, Uu + 3))
        self.lg.wait("x1")
        A("v_add_f32 v%d, v%d, v%d" % (Uu + 14, Uu + 8, Uu + 9))
        A("buffer_store_dwordx4 %s, v%d, %s, s%d offen sc1" % (v(Uu + 12, 4), vKs, self.WS, sKV[0])); self.vm.issue("kst")
        self.stamp(7)
        if self.o["glate"]: self.g_loads()
        Qt = self.acc
        rec = KV
        acc = V(6, 2)
        def gl(n):
            A("buffer_load_dwordx4 %s, v%d, %s, s%d offen%s sc1" % (v(rec[n >> 2] + 4 * (n & 3), 4), self.vFr, self.WS, sKV[n >> 2], " offset:%d" % (1024 * (n & 3)) if n & 3 else ""))
            self.vm.issue("r%d" % n)
        early = self.o["early"][1]
        ld = cf_ + ([] if al else self.wo_dmas(1 if early else 0))
        gls = [([], (lambda n=n: gl(n))) for n in range(16)]
        ph0 = phi(Qt[0], pk[0])
        for st in range(32):
            if st == (0 if al else min(len(cf_), self.o["att_g"])): A("s_barrier")
            cur = gls.pop(0) if (st >= self.o["att_g"] and gls) else (ld.pop(0) if ld else None)
            self.lg.wait("q%d" % (2 * st + 1))
            for k in range(4):
                n = 2 * st + (k >> 1)
                self.mf(Qt[st >> 4] + 4 * k, a(64 + 4 * (n % 8), 4), a(128 + 8 * (st & 15) + 4 * (k & 1), 4), "0" if st & 15 == 0 else None)
                if n + 4 < 64: qread(n + 4, k & 1)()
                if cur and k < 2: self.emit(cur[0][k:k + 1])
                if cur and k == 2: cur[1]()
                if st >= 18 and ph0:
                    m_ = 4 if (ph0[0].startswith("v_pk") and self.o["pkfix"]) else 1
                    if not self.o["pkfix"] or k != 2 or m_ == 4 or st >= 30: self.emit(ph0[:m_]); ph0 = ph0[m_:]
            if st == 15: self.stamp(22)
        assert not ld and not ph0
        A("s_barrier")
        self.stamp(8)
        self.g_check("att", vt)
        late = self.c_dmas(1 if al else 0, L_R1); nc = self.o["att_c1"]
        ph1 = phi(Qt[1], pk[1]); p1, p2_ = self.o["ph1"]
        self.emit(weave(ph1[:p1], gls + late[:nc])); late = late[nc:]
        self.stamp(24)
        for i in range(5): A("v_mov_b32 v%d, 0" % (acc + i))
        A("v_mov_b32 v%d, s%d" % (ones, sEps))
        for gq in range(4):
            self.vm.wait("r%d" % (4 * gq + 3))
            A.label("L_kchk%d" % gq)
            A("v_xor_b32 v%d, v%d, v%d" % (vt, rec[gq] + 3, self.vTag))
            for n in range(1, 4): A("v_bitop3_b32 v%d, v%d, v%d, v%d bitop3:0xf6" % (vt, vt, rec[gq] + 4 * n + 3, self.vTag))
            A("v_cmp_ne_u32 vcc, 0, v%d" % vt)
            A("s_cmp_lg_u64 vcc, 0")
            A("s_cbranch_scc1 L_kre%d" % gq)
            A.label("L_kgo%d" % gq)
            for n in range(4):
                q = rec[gq] + 4 * n
                A("v_dot2c_f32_bf16 v%d, v%d, v%d" % (acc, q, c10))
                A("v_dot2c_f32_bf16 v%d, v%d, v%d" % (acc + 1, q, c01))
                A("v_dot2c_f32_bf16 v%d, v%d, v%d" % (acc + 2, q + 1, c10))
                A("v_dot2c_f32_bf16 v%d, v%d, v%d" % (acc + 3, q + 1, c01))
                A("v_add_f32 v%d, v%d, v%d" % (acc + 4, acc + 4, q + 2))
        def kre():
            q = list(self.vm.q)
            for gq in range(4):
                A.label("L_kre%d" % gq)
                self.cap()
                A("s_cbranch_scc0 L_kgo%d" % gq)
                for n in range(4 * gq, 16 if self.o["kall"] else 4 * gq + 4): gl(n)
                A("s_waitcnt vmcnt(0)")
                A("s_branch L_kchk%d" % gq)
            self.vm.q = q
        self.stamp(9)
        A("v_cvt_pk_bf16_f32 v%d, v%d, v%d" % (acc, acc, acc + 1))
        A("v_cvt_pk_bf16_f32 v%d, v%d, v%d" % (acc + 1, acc + 2, acc + 3))
        A("v_cvt_pk_bf16_f32 v%d, v%d, v%d" % (acc + 4, acc + 4, acc + 4))
        A("ds_write_b64 v%d, %s" % (kw, v(acc, 2)))
        A("ds_write_b16 v%d, v%d" % (zw, acc + 4))
        n2 = self.o["att_c2"]
        self.emit(ph1[p1:p2_])
        self.vm.wait("c0" if al else "c1"); self.vm.wait("wo0")
        A("s_waitcnt lgkmcnt(0)")
        A("s_barrier")
        for h in range(4):
            A("ds_read_b64 %s, v%d offset:%d" % (v(pv[1] + 2 * h, 2), rz, 512 * h))
            A("ds_read_b64 %s, v%d offset:%d" % (v(pv[0] + 2 * h, 2), rk, 512 * h))
        def omf(f):
            hp, a1 = f >> 1, f & 1
            out = []
            for part in (1, 0):
                for h in range(2):
                    out.append(lambda part=part, h=h: self.mf(rec[f] + 8 * (1 - part) + 4 * h, v(pv[part] + 4 * hp + 2 * h, 2), v(pk[hp] + 4 * h + 2 * a1, 2), v(ones, 4) if part else "0", 16))
            return out
        def ofin(f):
            d = rec[f]; out = []
            for h in range(2): out.append("v_rcp_f32 v%d, v%d" % (d + 4 * h, d + 4 * h))
            for h in range(2): out.append("v_mul_f32 v%d, v%d, v%d" % (d + 4 * h, d + 4 * h, self.vG1 + 2 * (f & 1)))
            for k in range(4): out.append("v_pk_mul_f32 %s, %s, %s op_sel_hi:[0,1]" % (v(d + 8 + 2 * k, 2), v(d + 4 * (k >> 1), 2), v(d + 8 + 2 * k, 2)))
            for k in range(4): out.append("v_cvt_pk_bf16_f32 v%d, v%d, v%d" % (d + k, d + 8 + 2 * k, d + 9 + 2 * k))
            def st():
                A("buffer_store_dwordx4 %s, v%d, %s, s%d offen%s sc1" % (v(d, 4), self.vFr, self.WS, sOo, " offset:%d" % (1024 * f) if f else "")); self.vm.issue("ast")
            out.append(st)
            return out
        self.emit(weave(ph1[p2_:], late[:n2]) if ph1[p2_:] else late[:n2]); late = late[n2:]
        assert len(late) >= 2
        A("s_waitcnt lgkmcnt(4)")
        self.emit(omf(0) + omf(1))
        A("s_waitcnt lgkmcnt(0)"); self.lg.zero(False)
        def mixo(f_, m_): return m_[:1] + f_[:1] + m_[1:2] + f_[1:8] + m_[2:3] + f_[8:10] + m_[3:] + f_[10:]
        self.emit(mixo(ofin(0), omf(2)) + mixo(ofin(1), omf(3)) + ofin(2) + ofin(3))
        self.stamp(10)
        self.emit(weave(self.skip_term(), [] if early else self.wo_reads(0), late[:-2]))
        A("s_waitcnt lgkmcnt(0)")
        A("s_barrier")
        late = late[-2:] + ([] if early else self.wo_dmas(1)); n = self.o["att_e"]; n2 = self.o["att_f"]
        self.emit(late[:n])
        for k in range(self.o["clead"]): self.crd(k)
        self.hpoll()
        self.flag()
        self.emit(late[n:n2])
        self.h_wait("a", kre)
        return self.p2_first(late[n2:])

    def retry(self, sreg):
        if not self.o["lflag"]: return
        A = self.A
        A("s_and_b32 s%d, s%d, 3" % (self.t2, self.sCap))
        A("s_cselect_b32 s%d, 0, s%d" % (self.t2, self.sLX))
        A("s_xor_b32 s%d, s%d, s%d" % (sreg, sreg, self.t2))

    def hpoll(self):
        self.A("buffer_load_dword v%d, v%d, %s, s%d offen sc1" % (self.vJunk, self.vf, self.WS, self.sFH)); self.vm.issue("hp")

    def flag(self):
        self.vm.wait("ast")
        if self.o["lflag"]:
            self.A("buffer_store_dword v%d, v%d, %s, s%d offen" % (self.vTag, self.vFlag, self.WS, self.sLF)); self.vm.issue("lflag")
        self.A("buffer_store_dword v%d, v%d, %s, 0 offen sc1" % (self.vTag, self.vFlag, self.WS)); self.vm.issue("flag")
        self.stamp(11)

    def p2_regs(self, V):
        self.p_vt = V(); self.p_vu = V()
        self.cb = V(32, 4)
        self.of = V(64, 4)
    def crd(self, n):
        st, t = n >> 2, n & 3
        r_ = self.ac[t >> 1][st & 1]
        if st in (8, 9) and t & 1 == 0: self.A("v_xor_b32 v%d, s%d, v%d" % (r_, self.sSt, r_))
        self.A("ds_read_b128 %s, v%d offset:%d" % (v(self.cb + 4 * (n % 8), 4), r_, ((st >> 1) & 3) * 8192 + (t & 1) * 2048)); self.lg.issue("c%d" % n)
    def fr(self, f):
        if "H" not in self.o["dbg"]: return self.vFr
        return (self.vG1a, self.vG2a)[(f >> 1) & 1]
    def hld(self, f):
        A = self.A
        if f & 3 == 0: A("s_xor_b32 s%d, s%d, %d" % (self.t0, self.sH, (f >> 2) * 4096))
        A("buffer_load_dwordx4 %s, v%d, %s, s%d offen%s sc1" % (a(128 + 4 * f, 4), self.fr(f), self.WS, self.t0, " offset:%d" % (1024 * (f & 3)) if f & 3 else "")); self.vm.issue("h%d" % f)
    def cstep(self, st, ld):
        A = self.A
        CL = self.o["clead"]
        ld = list(ld); many = len(ld) > 2
        for k in range(8):
            t, a1 = k >> 1, k & 1
            if k == 0: self.wait2("h%d" % (2 * st + 1), "c%d" % (4 * st + 1))
            if k == 4: self.wait2(None, "c%d" % (4 * st + 3))
            off = 8 * a1 + 4 * (t & 1)
            c = None if st else (v(self.vXD + off, 4) if t < 2 else "0")
            self.mf(self.acc[t >> 1] + off, v(self.cb + 4 * ((4 * st + t) % 8), 4), a(128 + 8 * st + 4 * a1, 4), c)
            if a1:
                if 4 * st + CL + t == 32:
                    assert not [x for x in self.vm.q if x[0] in "cw"]
                    A("s_barrier")
                if 4 * st + CL + t < 64: self.crd(4 * st + CL + t)
            else:
                n = -(-len(ld) // (4 - t)) if (many or t & 1 == 0) else 0
                self.emit(ld[:n]); ld = ld[n:]
        assert not ld
    def h_wait(self, name, aside=None):
        A = self.A
        self.vm.wait("hp")
        self.stamp(12)
        A("s_branch L_hchk" + name)
        if aside: aside()
        A.label("L_hpoll" + name)
        self.retry(self.sFH)
        A("buffer_load_dword v%d, v%d, %s, s%d offen sc1" % (self.vJunk, self.vf, self.WS, self.sFH))
        A("s_waitcnt vmcnt(0)")
        A.label("L_hchk" + name)
        A("v_cmp_ne_u32 vcc, s%d, v%d" % (self.sTag, self.vJunk))
        self.poll_tail("L_hpoll" + name)
        self.stamp(13)
    def p2_first(self, extra):
        if "H" in self.o["dbg"]:
            self.A("s_and_b32 s%d, s%d, 1" % (self.t2, self.sCT)); self.A("s_lshl_b32 s%d, s%d, 29" % (self.t2, self.t2))
            self.A("v_add_u32 v%d, s%d, v%d" % (self.vG1a, self.t2, self.vFr)); self.A("v_xor_b32 v%d, 0x20000000, v%d" % (self.vG2a, self.vG1a))
        LA = self.o["LA"]; ns = LA // 2 + 1
        for f in range(LA): self.hld(f)
        q = list(extra) + [(lambda f=f: self.hld(f)) for f in range(LA, LA + 2 * ns)]
        n = len(q); done = 0
        for st in range(ns):
            to = -(-n * (st + 1) // ns)
            self.cstep(st, q[done:to]); done = to
        return list(self.vm.q), list(self.lg.q)

    def p2(self):
        A = self.A
        vt, vu, of = self.p_vt, self.p_vu, self.of
        acc, sO = self.acc, self.sO
        def old(n):
            if n & 3 == 0: A("s_xor_b32 s%d, s%d, %d" % (self.t1, sO, 1024 * n))
            A("buffer_load_dwordx4 %s, v%d, %s, s%d offen%s sc1" % (v(of + 4 * n, 4), self.fr(n), self.WS, self.t1, " offset:%d" % (1024 * (n & 3)) if n & 3 else "")); self.vm.issue("o%d" % n)
        def opoll():
            A("buffer_load_dword v%d, v%d, %s, s%d offen sc1" % (vt, self.vf, self.WS, self.sFO)); self.vm.issue("op")
        LA = self.o["LA"]; s1 = LA // 2 + 1; s0 = 16 - LA // 2
        opoll()
        for st in range(s1, s0): self.cstep(st, [(lambda f=f: self.hld(f)) for f in (2 * st + LA, 2 * st + LA + 1)])
        self.vm.wait("op")
        A("v_cmp_ne_u32 vcc, s%d, v%d" % (self.sTag, vt))
        A("s_cmp_lg_u64 vcc, 0")
        A("s_cbranch_scc1 L_slow")
        qv, ql = list(self.vm.q), list(self.lg.q)
        for st in range(s0, 16): self.cstep(st, [(lambda n=n: old(n)) for n in (2 * (st - s0), 2 * (st - s0) + 1)])
        self.stamp(14); self.stamp(15)
        A.label("L_join")
        q2 = list(self.vm.q)
        vr = self.vr; vr1, ra, rb, rc, rd = [self.cb + k for k in range(5)]
        side = ["s_movk_i32 s%d, 4096" % self.t2, "s_mov_b32 s%d, 0x10000" % self.t3, "s_mov_b32 s%d, 0x11000" % self.t0, "v_xor_b32 v%d, 128, v%d" % (vr1, vr)]
        self.bits(side, ra, rb, ((0, 3, 5), (0, 2, 8), (2, 1, 10)))
        self.bits(side, rb, None, ((3, 3, 4),))
        side += ["v_xor_b32 v%d, v%d, v%d" % (ra, ra, rb), "v_and_b32 v%d, 0xfffff000, v%d" % (rb, vr), "v_add_u32 v%d, v%d, v%d" % (rc, ra, rb),
                 "v_xor_b32 v%d, 128, v%d" % (rd, rc), "v_xor_b32 v%d, 8192, v%d" % (ra, rc), "v_xor_b32 v%d, 8192, v%d" % (rb, rd)]
        seq = [(st, (k >> 1) ^ 2, k & 1) for st in range(8) for k in range(8)]
        nl = self.o["olead"]
        seq = seq[:64 - 8 * nl] + [x for x in seq[64 - 8 * nl:] if x[1] >= 2] + [x for x in seq[64 - 8 * nl:] if x[1] < 2]
        seq = seq[:60] + sorted(seq[60:], key=lambda x: x[2])
        wr = ["ds_write_b128 v%d, %s offset:%d" % ((vr, vr1)[q & 1], v(acc[1] + 4 * q, 4), 1024 * q) for q in (0, 2, 1, 3)]
        wr += [None] * self.o["owait"] + ["s_waitcnt lgkmcnt(0)\ns_barrier"]
        wr += ["ds_read_b128 %s, v%d offset:%d" % (v(of + 4 * q, 4), (ra, rb)[q & 1], 2048 * (q >> 1)) for q in range(4)]
        w1 = self.wo_reads(1); wb = []
        for (st, t, a1) in seq:
            if st >= 4: wb.append((w1[8 * (st - 4) + 2 * t + a1], "wb%d_%d" % (st, t)))
        wb = wb[:28] + sorted(wb[28:], key=lambda x: x[1])
        self.lg.q = []
        for n, (st, t, a1) in enumerate(seq):
            if n == 64 - 4 * nl + 4 and not wb: self.lg.zero()
            self.wait2("o%d" % (2 * st + 1), "wb%d_%d" % (st, t | 1))
            self.mf(acc[t >> 1] + 8 * a1 + 4 * (t & 1), a(16 * st + 4 * t, 4), v(of + 8 * st + 4 * a1, 4))
            if n & 3 == 0 and LA + (n >> 2) < 16: old(LA + (n >> 2))
            if n & 3 and wb:
                x, tg = wb.pop(0); A(x); self.lg.issue(tg)
            if (n & 3 == 0 and LA + (n >> 2) >= 16 or not wb) and side: self.emit(side[:2]); side = side[2:]
            if n >= 64 - 4 * nl + 4 and wr:
                x = wr.pop(0)
                if x: A(x)
        self.emit([x for x in wr if x])
        self.stamp(16)
        assert not side
        for a1 in range(2):
            for q in (2 * a1, 2 * a1 + 1): A("ds_write_b128 v%d, %s offset:%d" % ((vr, vr1)[q & 1], v(acc[0] + 4 * q, 4), 32768 + 1024 * q))
            for q in (2 * a1, 2 * a1 + 1): A("ds_read_b128 %s, v%d offset:%d" % (v(acc[1] + 4 * q, 4), (rc, rd)[q & 1], 32768 + 2048 * a1))
        for q in range(4):
            own = acc[1] + 4 * q
            A("s_waitcnt lgkmcnt(%d)" % (5, 4, 1, 0)[q])
            for k in (0, 2): A("v_pk_add_f32 %s, %s, %s" % (v(own + k, 2), v(own + k, 2), v(of + 4 * q + k, 2)))
            A("buffer_store_dwordx4 %s, v%d, %s, %s offen%s" % (v(own, 4), self.vOut, self.OUT, ("0", "s%d" % self.t3, "s%d" % self.t2, "s%d" % self.t0)[q], self.o["outaux"]))
        A("s_cmp_eq_u32 s2, %d" % (255 ^ (2 * self.o["rx"])))
        A("s_cbranch_scc0 L_fin")
        A("v_mov_b32 v%d, s%d" % (vt, self.sE))
        A("v_mov_b32 v%d, 0" % vu)
        A("buffer_store_dword v%d, v%d, %s, 0 offen sc1" % (vt, vu, self.WS))
        A.label("L_fin")
        if self.o["stamps"]:
            if self.o["stamps"] != 2: A("s_waitcnt vmcnt(0)")
            self.stamp(17)
            A("v_lshlrev_b32 v%d, 2, v0" % vu)
            A("s_lshl_b32 s%d, s2, 10" % self.t0); A("s_add_u32 s%d, s%d, %d" % (self.t0, self.t0, WS_STAMP))
            A("buffer_store_dword v%d, v%d, %s, s%d offen" % (self.vStamp, vu, self.WS, self.t0))
        A("s_endpgm")
        A.label("L_slow")
        self.vm.q, self.lg.q = qv, ql
        for st in range(s0, 16): self.cstep(st, [])
        self.stamp(14)
        A.label("L_opoll")
        self.retry(self.sFO)
        opoll()
        A("s_waitcnt vmcnt(0)")
        A("v_cmp_ne_u32 vcc, s%d, v%d" % (self.sTag, vt))
        self.poll_tail("L_opoll")
        self.vm.zero(False)
        self.stamp(15)
        for n in range(LA): old(n)
        assert self.vm.q == q2, (self.vm.q, q2)
        A("s_branch L_join")

    def gen(self):
        A = self.A
        kernel_head(A, NAME)
        self.prologue()
        V0, S0, q0 = self.V.clone(), self.S.clone(), list(self.vm.q)
        self.p2_regs(V0.clone())
        st1 = self.ssm()
        A("s_branch L_p2")
        A.label("L_att")
        self.V, self.S, self.vm.q, self.lg.q = V0.clone(), S0.clone(), list(q0), []
        st2 = self.att()
        assert st1 == st2, (st1, st2)
        A.label("L_p2")
        self.p2()
        A.label("L_end")
        A("s_endpgm")
        if self.o.get("jit"):
            out_ = []; k = 0; on = False
            for l in A.l:
                t = l.strip()
                site = on and (t == "s_barrier" or t.startswith(("buffer_store", "ds_write")) or (t.endswith(" lds") and k % 3 == 0))
                def dly():
                    nonlocal k
                    k += 1
                    out_.extend(["    s_bitcmp1_b32 s%d, %d" % (self.sT + (k >> 5 & 1), k & 31), "    s_cbranch_scc0 L_jit%d" % k, "    s_sleep %d" % (3 + (k * 7 + self.o["jit"]) % 23), "L_jit%d:" % k])
                if site: dly()
                elif on and t.endswith(" lds"): k += 1
                out_.append(l)
                if on and t == "s_barrier": dly()
                if t.startswith("s_load_dword s%d," % self.sE):
                    on = True
                    out_.extend(["    s_lshl2_add_u32 s%d, s2, s%d" % (self.sT, self.sW), "    s_add_u32 s%d, s%d, %d" % (self.sT, self.sT, self.o["jit"] * 1000),
                                 "    s_mul_i32 s%d, s%d, 0x9e3779b1" % (self.sT, self.sT), "    s_lshr_b32 s%d, s%d, 15" % (self.sT + 1, self.sT),
                                 "    s_xor_b32 s%d, s%d, s%d" % (self.sT, self.sT, self.sT + 1), "    s_mul_i32 s%d, s%d, 0x85ebca6b" % (self.sT, self.sT),
                                 "    s_mul_i32 s%d, s%d, 0xc2b2ae35" % (self.sT + 1, self.sT), "    s_lshr_b32 s%d, s%d, 13" % (self.sT2, self.sT + 1),
                                 "    s_and_b32 s%d, s%d, s%d" % (self.sT, self.sT, self.sT2), "    s_lshr_b32 s%d, s%d, 3" % (self.sT2, self.sT + 1),
                                 "    s_and_b32 s%d, s%d, s%d" % (self.sT + 1, self.sT + 1, self.sT2)])
            A.l = out_
        body, n = hazard.fix(A.l)
        head = open("cdna_kernels/%s.s.ref" % NAME[:-7]).read().split("; Override launch")[0] if self.o.get("head", True) else ""
        out = head + "; @launch grid=(256,1,1) block=(256,1,1) lds=163840\n"
        out += '.amdgcn_target "amdgcn-amd-amdhsa--gfx950"\n' + DOC + '.text\n'
        if self.o["pad"] >= 0:
            out += "; start the kernel at the top of a 4 KB page (instruction fetch stalls at page crossings)\n.p2align 12\n.fill %d, 4, 0xbf810000\n" % (64 * self.o["pad"])
        out += "\n".join(body) + "\n"
        out += '.section .rodata,"a"\n.p2align 6\n' + kernel_desc(NAME, 512, 256)
        if self.o["hop"]: out = self.link_stubs(out)
        return out

    def link_stubs(self, out):
        import re, subprocess, tempfile
        d = tempfile.mkdtemp()
        open(d + "/a.s", "w").write(re.sub(r"@CHAIN(\w)\d+@", r"L_back\1", out))
        subprocess.run(["clang", "-x", "assembler", "-target", "amdgcn-amd-amdhsa", "-mcpu=gfx950", "-c", d + "/a.s", "-o", d + "/a.o"], check=True)
        dis = subprocess.run(["llvm-objdump", "-d", "--mcpu=gfx950", d + "/a.o"], capture_output=True, text=True).stdout
        dis = dis[dis.index("<%s>:" % NAME):]
        sizes = [4 * len(m.group(1).split()) for m in re.finditer(r"// [0-9A-F]{12}: ((?:[0-9A-F]{8} ?)+)", dis)]
        lines = out.split("\n"); res = []; k = 0; pc = 0; on = False; sec = None; tg = {"s": [], "a": []}; page = 0
        def put(roles):
            nm = "L_pg%d" % len(res)
            res.append(nm + ":"); res.append("    s_cbranch_execz L_back" + ("x" if len(roles) > 1 else roles))
            for r in roles: tg[r].append(nm)
        for l in lines:
            t = l.strip()
            if t == NAME + ":": on = True
            if t.startswith(".section"): on = False
            ins = on and t and not t.startswith((";", ".")) and not t.endswith(":")
            if ins and (pc >> 12) > page:
                page = pc >> 12
                if sec: put(sec); pc += 4
            res.append(l)
            if t in ("L_backs:", "L_backa:"): sec = t[-2]
            if t in ("L_att:", "L_slow:"): sec = None
            if t == "L_p2:":
                sec = "sa"; put("s"); pc += 4
            if ins: pc += sizes[k]; k += 1
        assert k == len(sizes), (k, len(sizes))
        out = "\n".join(res)
        for r in "sa":
            t = list(tg[r])
            while len(t) > 4:
                x = t.pop(); y = t[len(t) - 4]
                assert y not in tg["a" if r == "s" else "s"]
                out = out.replace(y + ":\n    s_cbranch_execz L_back" + r, y + ":\n    s_cbranch_execz " + x)
            for w in range(4): out = out.replace("@CHAIN%s%d@" % (r, w), t[w] if w < len(t) else "L_back" + r)
        return out

if __name__ == "__main__":
    if len(sys.argv) > 1:
        for arg in sys.argv[1:]:
            nm, _, kv = arg.partition(":")
            o = eval("dict(%s)" % kv)
            open(nm, "w").write(K(stamps=(1 if "_st" in nm else 2 if "_lt" in nm else 0), head=False, **o).gen())
    else:
        open("k.s", "w").write(K().gen())
        open("k_st.s", "w").write(K(stamps=True).gen())
```

```python
import sys
from asmlib import Asm, v, a, s, kernel_head, kernel_desc
import hazard

NAME = "gated_mix__linear_attn_block__ssm_conv_s5__prompt_kernel"
WS_EPOCH, WS_G, WS_FH, WS_FO, WS_E, WS_KV, WS_A = 0, 0x1000, 0x10000, 0x20000, 0x30000, 0x40000, 0x100000
WS_LF = 0xc0000
WS_STAMP = 0x1000000
SPILL = 0x800000
RT_STRIDE = 98304
HUGE = 0x20000000
L_R0, L_R1, L_SP = 0, 65536, 131072
LOG2E = "0x3fb8aa3b"
P_X, P_WQKV, P_WO, P_LRE, P_LIM, P_BRE, P_BIM = 4, 6, 8, 12, 14, 16, 18
P_CRE, P_CIM, P_LDT, P_DSK, P_GW, P_OUT, P_WS = 20, 22, 24, 26, 28, 30, 34

DOC = '''; One launch, 256 workgroups (one per CU, all co-resident), 4 waves each. Emitted by a hand-written generator script.
;   ATT workgroups: k, v for 4 heads, partial phi(k)^T v and sum phi(k) -> d_ws, q, sum of the 16 partials,
; derived from an epoch word in d_ws (read on entry, advanced at the end), which only tells this launch's hand-offs
'''

class Alloc:
    def __init__(self, regs):
        self.free = set(regs)
    def __call__(self, n=1, al=1):
        if n > 1 and al == 1: al = 2
        for b in sorted(self.free, reverse=(n <= 2)):
            if b % al == 0 and all(b + i in self.free for i in range(n)):
                for i in range(n): self.free.discard(b + i)
                return b
        raise RuntimeError("out of registers")
    def rel(self, b, n=1):
        for i in range(n):
            assert b + i not in self.free
            self.free.add(b + i)
    def clone(self):
        return Alloc(self.free)

class Cnt:
    def __init__(self, A, name, mx):
        self.A = A; self.name = name; self.mx = mx; self.q = []
    def issue(self, tag): self.q.append(tag)
    def need(self, tag):
        idx = [i for i, t in enumerate(self.q) if t == tag]
        if not idx: return None
        n = len(self.q) - 1 - idx[-1]
        self.q = self.q[idx[-1] + 1:]
        return min(n, self.mx)
    def wait(self, tag):
        n = self.need(tag)
        if n is not None: self.A("s_waitcnt %s(%d)" % (self.name, n))
    def zero(self, emit=True):
        if emit: self.A("s_waitcnt %s(0)" % self.name)
        self.q = []

def weave(main, *side):
    out = [[x] for x in main]
    for sd in side:
        n = len(sd)
        for k, x in enumerate(sd):
            out[min(len(main) - 1, (k * len(main)) // n)].append(x)
    return [y for x in out for y in x]

class K:
    def __init__(self, **opt):
        self.o = dict(stamps=0, pollcap=400000, order='gpq8', third=('w4h4', 'w4h4'), nf=(80, 60), d0=8, hop=1, pad=13, xrot=6, j3=1, qpf=1,
                      ssm=(8, 8, 0, 0, 8, 8), late7=1, att_b=8, att_g=16, att_c1=8, att_c2=6, att_e=2, att_f=10,
                      hpw=1, seq=(0x76543210, 0x76541032, 0x76321054, 0x54321076), k3=0, w3=None, defer=(0, 0), pkfix=1, g3=0, ahead=(0, 0), a2=8, att_7=8, amid=999, aoff=0, alead=0, rx=0, kall=0, kown=1, kvw=0, smid=999, wat=0, wn=3, wl2=0, qmode=2, ph1=(28, 40), efirst=1, clead=6, glate=None, xmul=6, qat=88, wfirst=0, mid=(100, 104, 200), wopar=1, gmid=0, pause=(0,) * 8, psplit=1, dfirst=0, lflag=0, l7at=0, early=(None, None), xdo=1, olead=4, owait=3, dpos=((-6, -2, 2, 6, 10, 14, 18, 22), (-6, -2, 2, 6, 10, 14, 18, 22)), outaux=' sc1 nt', LA=10, dbg='')
        self.o.update(opt)
        self.A = Asm()
        self.vm = Cnt(self.A, "vmcnt", 62)
        self.lg = Cnt(self.A, "lgkmcnt", 14)
        self.V = Alloc(range(1, 256))
        self.S = Alloc([3] + list(range(72, 102)))

    def stamp(self, idx):
        if not self.o["stamps"]: return
        if self.o["stamps"] == 2 and idx != 17 and idx not in self.o.get("only", ()): return
        A = self.A
        A("s_memrealtime s[%d:%d]" % (self.sT, self.sT + 1))
        A("s_memtime s[%d:%d]" % (self.sT2, self.sT2 + 1))
        A("s_waitcnt lgkmcnt(0)")
        self.lg.zero(False)
        A("v_writelane_b32 v%d, s%d, %d" % (self.vStamp, self.sT, idx))
        A("v_writelane_b32 v%d, s%d, %d" % (self.vStamp, self.sT2, 32 + idx))
    def dma(self, vo, srd, so, imm, tag):
        self.A("buffer_load_dwordx4 v%d, %s, %s offen%s lds" % (vo, srd, so, " offset:%d" % imm if imm else ""))
        self.vm.issue(tag)
    def ds(self, text, tag):
        return lambda: (self.A(text), self.lg.issue(tag))
    def mf(self, d, x, y, c=None, k=32):
        self.A("v_mfma_f32_16x16x%d_bf16 %s, %s, %s, %s" % (k, v(d, 4), x, y, v(d, 4) if c is None else c))
    def cmul(self, out, dr, di, ar, ai, br, bi, cr=None, ci=None):
        if cr is None:
            out.append("v_mul_f32 v%d, v%d, v%d" % (dr, ar, br))
            out.append("v_mul_f32 v%d, v%d, v%d" % (di, ar, bi))
        else:
            out.append("v_fma_f32 v%d, v%d, v%d, v%d" % (dr, ar, br, cr))
            out.append("v_fma_f32 v%d, v%d, v%d, v%d" % (di, ar, bi, ci))
        out.append("v_fma_f32 v%d, -v%d, v%d, v%d" % (dr, ai, bi, dr))
        out.append("v_fmac_f32 v%d, v%d, v%d" % (di, ai, br))
    def pmul(self, out, d, x, y, c=None, sel=None):
        q = lambda z: (z, z + 2) if isinstance(z, int) else z
        d, x, y = q(d), q(x), q(y)
        m3 = "" if sel is None else (" op_sel:[1,0,0]" if sel else " op_sel_hi:[0,1,1]")
        m2 = "" if sel is None else (" op_sel:[1,0]" if sel else " op_sel_hi:[0,1]")
        for k in range(2):
            if c is None: out.append("v_pk_mul_f32 %s, %s, %s%s" % (v(d[k], 2), v(x[0], 2), v(y[k], 2), m2))
            else: out.append("v_pk_fma_f32 %s, %s, %s, %s%s" % (v(d[k], 2), v(x[0], 2), v(y[k], 2), v(q(c)[k], 2), m3))
        out.append("v_pk_fma_f32 %s, %s, %s, %s%s neg_lo:[1,0,0] neg_hi:[1,0,0]" % (v(d[0], 2), v(x[1], 2), v(y[1], 2), v(d[0], 2), m3))
        out.append("v_pk_fma_f32 %s, %s, %s, %s%s" % (v(d[1], 2), v(x[1], 2), v(y[0], 2), v(d[1], 2), m3))
    def emit(self, lst):
        for x in lst:
            if isinstance(x, tuple):
                self.emit(x[0]); x[1]()
            elif callable(x): x()
            else: self.A(x)
    def cap(self):
        A = self.A
        A("s_sub_u32 s%d, s%d, 1" % (self.sCap, self.sCap))
        A("s_cselect_b64 vcc, 0, vcc")
        A("s_cselect_b32 s%d, 0, s%d" % (self.sCap, self.sCap))
        A("s_cmp_lg_u64 vcc, 0")
    def poll_tail(self, lab):
        self.cap()
        self.A("s_cbranch_scc1 %s" % lab)
    def bits(self, out, d, tmp, spec, src="v0"):
        for n, (bit, w, sh) in enumerate(spec):
            if n == 0:
                if bit == sh: out.append("v_and_b32 v%d, 0x%x, %s" % (d, ((1 << w) - 1) << bit, src))
                else:
                    out.append("v_bfe_u32 v%d, %s, %d, %d" % (d, src, bit, w))
                    if sh: out.append("v_lshlrev_b32 v%d, %d, v%d" % (d, sh, d))
            else:
                out.append("v_bfe_u32 v%d, %s, %d, %d" % (tmp, src, bit, w))
                out.append("v_lshl_or_b32 v%d, v%d, %d, v%d" % (d, tmp, sh, d))
    def wait2(self, vtag, ltag):
        n1 = self.vm.need(vtag) if vtag else None
        n2 = self.lg.need(ltag) if ltag else None
        w = " ".join(x for x in ("" if n1 is None else "vmcnt(%d)" % n1, "" if n2 is None else "lgkmcnt(%d)" % n2) if x)
        if w: self.A("s_waitcnt " + w)

    def slot(self, c):
        return ((c + 2) % 4) * 32768
    def chunk_dmas(self, c):
        slot = self.slot(c); tag = "ch%d" % c
        L = []
        nx0 = ["s_mul_i32 s%d, s%d, s%d" % (self.sO2, self.sCh, self.sWst)]
        nx1 = ["s_lshl_b32 s%d, s%d, 7" % (self.sO1, self.sCh)]
        nx2 = ["s_bfe_u32 s%d, s%d, 0x%x" % (self.sCh, self.sSeq, 0x30000 + 4 * (c + 1))] if c < 7 else []; nx3 = []
        for n in range(4):
            pre = [] if n & 1 else ["s_add_u32 m0, s%d, %d" % (self.sM, slot + 16384 + (n >> 1) * 4096)] + (nx1 if n else nx0)
            L.append((pre, (lambda n=n: self.dma(self.vw[n], (self.WA, self.WB)[n >> 1], "s%d" % self.sO2, 2048 * (n & 1), tag))))
        for n in range(4):
            pre = [] if n & 1 else ["s_add_u32 m0, s%d, %d" % (self.sM, slot + (n >> 1) * 4096)] + (nx3 if n else nx2)
            L.append((pre, (lambda n=n: self.dma(self.vx[n >> 1], self.X, "s%d" % self.sO1, 2048 * (n & 1), tag))))
        return L
    def wo_dmas(self, half):
        L = []
        for n in range(8):
            aa, b = n >> 2, n & 3
            pre = [] if b else ["s_add_u32 m0, s%d, %d" % (self.sMW, L_SP + aa * 4096), "s_xor_b32 s%d, s%d, %d" % (self.sO1, self.sP17, (half * 128 + aa * 32) * 1024)]
            L.append((pre, (lambda b=b: self.dma(self.vo[b], self.WO, "s%d" % self.sO1, 1024 * b, "wo%d" % half))))
        return L
    def wo_stag(self):
        L = []
        t0 = self.sLX
        for n in range(8):
            pre = ["s_add_u32 s%d, s%d, 1024" % (self.sSt, self.sSt), "s_and_b32 s%d, s%d, 0x1c00" % (self.sSt, self.sSt),
                   "s_add_u32 m0, s%d, s%d" % (self.sSt, self.sMW2), "s_lshl3_add_u32 s%d, s%d, s%d" % (t0, self.sSt, self.sP17)]
            L.append((pre, (lambda: self.dma(self.vo[0], self.WO, "s%d" % t0, 0, "wo0"))))
        return L
    def c_dmas(self, comp, region, mreg=None):
        L = []; mreg = mreg or self.sMC
        for idx in range(8):
            for i in range(2):
                pre = [] if i else ["s_xor_b32 m0, s%d, %d" % (mreg, region + idx * 8192), "s_xor_b32 s%d, s%d, %d" % (self.sO1, self.sP9, idx * 128)]
                L.append((pre, (lambda i=i: self.dma(self.vc[i], (self.CRE, self.CIM)[comp], "s%d" % self.sO1, 2048 * i, "c%d" % comp))))
        return L
    def wo_reads(self, half):
        L = []
        for n in range(4):
            for t in range(4):
                for h in range(2):
                    L.append("ds_read_b64_tr_b16 %s, v%d offset:%d" % (a(64 * half + 16 * n + 4 * t + 2 * h, 2), self.aw[t], n * 4096 + h * 2048))
        return L

    def prologue(self):
        A, V, S = self.A, self.V, self.S
        self.X, self.WA, self.WB, self.WS = "s[36:39]", "s[40:43]", "s[44:47]", "s[48:51]"
        self.CRE, self.CIM, self.WO, self.OUT, self.ER = "s[52:55]", "s[56:59]", "s[60:63]", "s[64:67]", "s[68:71]"
        self.sT = S(2, 2); self.sT2 = S(2, 2); self.sMk = S(2, 2)
        self.sR, self.sJ, self.sRole, self.sW, self.sCT, self.sRH = [S() for _ in range(6)]
        self.sM, self.sCh, self.sO1, self.sO2, self.sTag, self.sE, self.sWst, self.sN2, self.sCX, self.sSeq = [S() for _ in range(10)]
        self.t0, self.t1, self.t2, self.t3 = [S() for _ in range(4)]
        t0, t1, t2, t3 = self.t0, self.t1, self.t2, self.t3
        sR, sJ, sW, sCT, sRH, sRole = self.sR, self.sJ, self.sW, self.sCT, self.sRH, self.sRole
        vt = V(); vu = V()
        self.vJunk = V(); self.vL16 = V()
        vp = V(); vd = V(); vg = V()
        A("s_cmp_ge_u32 s2, 256")
        A("s_cbranch_scc1 L_end")
        A("s_load_dwordx16 s[4:19], s[0:1], 0")
        A("s_load_dwordx16 s[20:35], s[0:1], 64")
        if self.o["stamps"]:
            self.vStamp = V()
            A("s_memrealtime s[%d:%d]" % (self.sT, self.sT + 1))
            A("s_memtime s[%d:%d]" % (self.sT2, self.sT2 + 1))
        A("s_getpc_b64 s[%d:%d]" % (self.sMk, self.sMk + 1))
        A.label("L_pc")
        A("s_and_b32 s%d, s2, 0xf8" % t0)
        A("v_lshrrev_b32 v%d, 5, v0" % vt)
        A("v_add_lshl_u32 v%d, s%d, v%d, 7" % (vt, t0, vt))
        A("v_min_u32 v%d, L_end-L_pc, v%d" % (vt, vt))
        A("v_lshrrev_b32 v%d, 6, v0" % vu)
        A("global_load_dword v%d, v%d, s[%d:%d]" % (self.vJunk, vt, self.sMk, self.sMk + 1)); self.vm.issue("junk")
        A("v_readfirstlane_b32 s%d, v%d" % (sW, vu))
        A("s_and_b32 s%d, s2, 1" % sRH)
        A("s_bfe_u32 s%d, s2, 0x20001" % t0)
        if self.o["rx"]: A("s_xor_b32 s%d, s%d, %d" % (t0, t0, self.o["rx"]))
        A("s_lshr_b32 s%d, s2, 6" % t1)
        A("s_lshl2_add_u32 s%d, s%d, s%d" % (sR, t0, t1))
        A("s_bfe_u32 s%d, s2, 0x20003" % t0)
        A("s_lshl2_add_u32 s%d, s%d, s%d" % (sJ, sRH, t0))
        A("s_bfe_u32 s%d, s2, 0x10005" % sRole)
        A("s_lshl3_add_u32 s%d, s%d, s%d" % (t0, sRole, sJ))
        A("s_lshl2_add_u32 s%d, s%d, s%d" % (self.sN2, t0, sW))
        A("s_cmp_eq_u32 s%d, %d" % (t0, 11 if self.o["j3"] else 99))
        A("s_cselect_b32 s%d, s%d, 0" % (t1, t1))
        sq = self.o["seq"]
        A("s_mov_b32 s%d, 0x%x" % (self.sSeq, sq[0]))
        for k in range(1, 4):
            A("s_cmp_eq_u32 s%d, %d" % (t1, k)); A("s_cselect_b32 s%d, 0x%x, s%d" % (self.sSeq, sq[k], self.sSeq))
        A("s_and_b32 s%d, s2, %d" % (t0, self.o["xrot"]))
        A("s_mul_i32 s%d, s%d, 0x11111111" % (t0, t0))
        A("s_add_u32 s%d, s%d, s%d" % (self.sSeq, self.sSeq, t0))
        A("s_and_b32 s%d, s%d, 7" % (self.sCh, self.sSeq))
        A("v_and_b32 v%d, 63, v0" % self.vL16)
        A("v_lshlrev_b32 v%d, 4, v%d" % (self.vL16, self.vL16))
        A("s_and_b32 s%d, s%d, 0x3e" % (t0, self.sN2))
        A("s_add_u32 s%d, s%d, s%d" % (t0, t0, self.sN2))
        A("s_lshl_b32 s%d, s%d, 7" % (t1, sR))
        A("s_add_u32 s%d, s%d, s%d" % (t0, t0, t1))
        A("v_lshl_add_u32 v%d, s%d, 10, v%d" % (vg, t0, self.vL16))
        A("s_mul_i32 s42, s%d, 0x100000" % sRole); A("s_add_u32 s42, s42, 0x80000"); A("s_mov_b32 s46, s42")
        A("s_mul_i32 s%d, s%d, %d" % (self.sWst, sRole, 64 * 3072 - 128)); A("s_add_u32 s%d, s%d, 128" % (self.sWst, self.sWst))
        A("s_mul_i32 s%d, s%d, %d" % (t2, sRole, 32 * 3072))
        A("s_lshl_b32 s%d, s%d, 13" % (t3, sRole)); A("s_add_u32 s%d, s%d, 2048" % (t3, t3))
        A("s_mov_b32 s38, 0x200000")
        for b in (36, 40, 44): A("s_mov_b32 s%d, 0x20000" % (b + 3))
        A("s_mul_i32 s%d, s%d, 0x1400" % (self.sM, sW))
        A("s_and_b32 s%d, s%d, 0x2400" % (self.sM, self.sM))
        vUA = V(); vUT = V()
        self.vx = [V() for _ in range(2)]; self.vw = [V() for _ in range(4)]
        o = []
        o.append("v_lshrrev_b32 v%d, 4, v0" % vt)
        o.append("v_xor_b32 v%d, v0, v%d" % (vt, vt))
        self.bits(o, vUA, vu, ((0, 3, 4),), "v%d" % vt)
        o.append("v_lshrrev_b32 v%d, 3, v0" % vt)
        o.append("v_and_b32 v%d, 6, v%d" % (vt, vt))
        o.append("v_xor_b32 v%d, v0, v%d" % (vt, vt))
        self.bits(o, vUT, vu, ((0, 3, 4),), "v%d" % vt)
        w0 = self.vw[0]; w1 = self.vw[1]
        self.bits(o, vt, vu, ((3, 2, 0), (5, 2, 3)))
        o.append("v_lshrrev_b32 v%d, 7, v0" % vu)
        o.append("v_lshl_or_b32 v%d, v%d, 5, v%d" % (w0, vu, vt))
        o.append("v_lshl_add_u32 v%d, s%d, 6, v%d" % (w0, sJ, w0))
        o.append("v_lshl_add_u32 v%d, v%d, 10, v%d" % (w0, w0, vUA))
        o.append("v_mul_u32_u24 v%d, 3072, v%d" % (vt, vt))
        o.append("v_lshl_add_u32 v%d, v%d, 10, v%d" % (vt, vu, vt))
        o.append("s_lshl_b32 s%d, s%d, 7" % (t0, sJ))
        o.append("s_add_u32 s%d, s%d, 1024" % (t0, t0))
        o.append("s_cmp_eq_u32 s%d, 0" % sRole)
        o.append("s_cselect_b64 vcc, -1, 0")
        o.append("v_add3_u32 v%d, v%d, s%d, v%d" % (vt, vt, t0, vUT))
        o.append("v_cndmask_b32 v%d, v%d, v%d, vcc" % (w0, vt, w0))
        o.append("v_add_u32 v%d, s%d, v%d" % (w1, t3, w0))
        o.append("v_add_u32 v%d, s%d, v%d" % (self.vw[2], t2, w0))
        o.append("v_add_u32 v%d, s%d, v%d" % (self.vw[3], t2, w1))
        x0 = self.vx[0]
        self.bits(o, x0, vu, ((3, 1, 3), (4, 1, 0), (5, 3, 4)))
        o.append("v_lshl_add_u32 v%d, s%d, 7, v%d" % (x0, sR, x0))
        o.append("v_lshl_add_u32 v%d, v%d, 10, v%d" % (x0, x0, vUA))
        o.append("v_add_u32 v%d, 4096, v%d" % (self.vx[1], x0))
        self.emit(o)
        self.ppar = [V(2), V(2), V(2)]; self.vDs = V(4, 2); self.gx = self.vXD = V(16, 4)
        A("s_waitcnt lgkmcnt(0)")
        A("s_cselect_b64 s[40:41], s[%d:%d], s[%d:%d]" % (P_BRE, P_BRE + 1, P_WQKV, P_WQKV + 1))
        A("s_cselect_b64 s[44:45], s[%d:%d], s[%d:%d]" % (P_BIM, P_BIM + 1, P_WQKV, P_WQKV + 1))
        A("s_mov_b64 s[36:37], s[%d:%d]" % (P_X, P_X + 1))
        if self.o["stamps"]: A("v_writelane_b32 v%d, s%d, 0\nv_writelane_b32 v%d, s%d, 32" % (self.vStamp, self.sT, self.vStamp, self.sT2))
        self.stamp(18)
        e0, e1 = self.chunk_dmas(0), self.chunk_dmas(1)
        self.early = e0 + e1
        if self.o["wfirst"]:
            inc = [e0[4][0][1], e0[6][0][1]]; shl = e0[2][0][1]
            e1[0] = (inc + e1[0][0], e1[0][1]); e1[2] = (e1[2][0][:1], e1[2][1])
            e0[4] = (e0[4][0][:1], e0[4][1]); e0[6] = (e0[6][0][:1], e0[6][1])
            e1[4] = ([shl] + e1[4][0], e1[4][1])
            self.early = e0[:4] + e1[:4] + e0[4:] + e1[4:]
        for tok in self.o["order"]:
            if tok == "g":
                A("global_load_dwordx4 %s, v%d, s[%d:%d]" % (v(self.gx, 4), vg, P_X, P_X + 1)); self.vm.issue("par")
                A("global_load_dwordx4 %s, v%d, s[%d:%d] offset:2048" % (v(self.gx + 4, 4), vg, P_X, P_X + 1)); self.vm.issue("par")
            elif tok == "p":
                A("s_bfe_u32 s%d, s2, 0x30003" % sCT)
                A("s_bfe_u32 s%d, s2, 0x10006" % t0)
                A("s_lshl_b32 s%d, s%d, 2" % (t0, t0))
                A("s_xor_b32 s%d, s%d, s%d" % (sCT, sCT, t0))
                o = []
                self.bits(o, vp, vu, ((6, 1, 6), (0, 2, 1), (2, 2, 4)))
                o.append("v_lshl_add_u32 v%d, s%d, 7, v%d" % (vp, sJ, vp))
                self.bits(o, vd, vu, ((4, 2, 3), (7, 1, 6)))
                o.append("v_lshl_add_u32 v%d, s%d, 7, v%d" % (vd, sCT, vd))
                self.emit(o)
            elif tok == "q":
                A("global_load_dwordx4 %s, v%d, s[%d:%d]" % (v(self.gx + 8, 4), self.vL16, P_GW, P_GW + 1)); self.vm.issue("par")
                for b in range(2):
                    A("global_load_dwordx2 %s, v%d, s[%d:%d] offset:%d" % (v(self.vDs + 2 * b, 2), vd, P_DSK, P_DSK + 1, 32 * b)); self.vm.issue("par")
                A("s_cmp_eq_u32 s%d, 0" % sRole)
                A("s_cbranch_scc0 L_nopar")
                for q, p in zip(self.ppar, (P_LRE, P_LIM, P_LDT)):
                    for b in range(2): A("global_load_ushort v%d, v%d, s[%d:%d] offset:%d" % (q + b, vp, p, p + 1, 8 * b))
                A.label("L_nopar")
                assert len(self.early) == 16
            else:
                n = int(tok)
                self.emit(self.early[:n]); self.early = self.early[n:]
        self.stamp(19)
        A("s_load_dword s%d, s[%d:%d], 0" % (self.sE, P_WS, P_WS + 1))
        o = []
        o.append("s_mul_i32 s%d, s%d, 0x11111111" % (t0, sCT))
        o.append("s_xor_b32 s%d, s%d, s%d" % (t0, t0, self.sSeq))
        o.append("s_and_b32 s%d, s%d, 0x77777777" % (t0, t0))
        o.append("s_add_u32 s%d, s%d, 0x77777777" % (t0, t0))
        o.append("s_andn2_b32 s%d, 0x88888888, s%d" % (t0, t0))
        o.append("s_ff1_i32_b32 s%d, s%d" % (t0, t0))
        o.append("s_lshr_b32 s%d, s%d, 2" % (self.sCX, t0))
        for b, p, n in ((48, P_WS, 0x10000000), (52, P_CRE, 0x80000), (56, P_CIM, 0x80000), (60, P_WO, 0x80000), (64, P_OUT, 0x400000)):
            o.append("s_mov_b64 s[%d:%d], s[%d:%d]" % (b, b + 1, p, p + 1))
            o.append("s_mov_b32 s%d, 0x%x" % (b + 2, n))
        o.append("s_mov_b32 s70, 4096")
        for b in range(48, 72, 4): o.append("s_mov_b32 s%d, 0x20000" % (b + 3))
        self.emit(o)
        for q in range(4, 34): S.rel(q) if q not in (P_WQKV, P_WQKV + 1) else None
        self.vTag, self.vBase, self.vFlag, self.vG1a, self.vG2a, self.vf, self.vr, self.vOut, self.vPf, self.vFr, self.vTr = [V() for _ in range(11)]
        self.vo = [V() for _ in range(4)]; self.vc = [V() for _ in range(2)]
        self.aw = [V() for _ in range(4)]; self.ac = [[V(), V()], [V(), V()]]; self.axd = [[V(), V()], [V(), V()]]
        self.vG2 = V(4, 4); self.xdf = V(8, 4); self.acc = [V(16, 4), V(16, 4)]
        self.sMW, self.sMC, self.sRT, self.sRW, self.sCap, self.sP9, self.sP17, self.sH, self.sO, self.sFH, self.sFO = [S() for _ in range(11)]
        o = []
        o.append("s_mov_b32 s%d, %d" % (self.sCap, self.o["pollcap"]))
        o.append("s_lshr_b32 s%d, s%d, 1" % (t3, sW))
        o.append("s_and_b32 s%d, s%d, 1" % (t2, sW))
        o.append("s_lshl1_add_u32 s%d, s%d, s%d" % (self.sRW, sR, t3))
        o.append("s_lshl1_add_u32 s%d, s%d, s%d" % (t1, sR, sRH))
        o.append("s_lshl1_add_u32 s%d, s%d, s%d" % (self.sRT, t1, t2))
        xd0 = self.axd[0][0]
        o.append("v_bfe_u32 v%d, v0, 1, 3" % vt)
        o.append("v_bfe_u32 v%d, v0, 4, 2" % vu)
        o.append("v_xor_b32 v%d, v%d, v%d" % (self.vBase, vt, vu))
        o.append("v_bfe_u32 v%d, v0, 5, 1" % vu)
        o.append("v_xor_b32 v%d, v%d, v%d" % (xd0, vt, vu))
        self.bits(o, vu, None, ((0, 4, 7),))
        o.append("v_lshl_add_u32 v%d, v%d, 4, v%d" % (self.vBase, self.vBase, vu))
        o.append("v_lshl_add_u32 v%d, v%d, 4, v%d" % (xd0, xd0, vu))
        o.append("v_bfe_u32 v%d, v0, 4, 1" % vu)
        o.append("v_lshl_or_b32 v%d, v%d, 3, v%d" % (xd0, vu, xd0))
        o.append("s_and_b32 s%d, s%d, 3" % (t0, self.sRT))
        o.append("s_lshl_b32 s%d, s%d, 6" % (t0, t0))
        o.append("s_add_u32 s%d, s%d, s%d" % (t0, t0, t3))
        o.append("s_lshl_b32 s%d, s%d, 6" % (t0, t0))
        o.append("v_xor_b32 v%d, s%d, v%d" % (xd0, t0, xd0))
        o.append("v_xor_b32 v%d, 32, v%d" % (self.axd[0][1], xd0))
        for e in range(2): o.append("v_add_u32 v%d, 0x10000, v%d" % (self.axd[1][e], self.axd[0][e]))
        self.bits(o, self.vTr, vu, ((2, 4, 7), (0, 2, 3), (3, 2, 5)))
        o.append("s_mul_i32 s%d, s%d, %d" % (t0, t3, 16384 + 64))
        o.append("s_add_u32 s%d, s%d, %d" % (t0, t0, L_SP))
        o.append("v_xor_b32 v%d, s%d, v%d" % (self.aw[0], t0, self.vTr))
        for t in range(1, 4): o.append("v_xor_b32 v%d, %d, v%d" % (self.aw[t], 32 * t, self.aw[0]))
        o.append("s_lshl_b32 s%d, s%d, 13" % (self.sMW, sW))
        self.sSt, self.sMW2, self.sLF, self.sLX = S(), S(), S(), S()
        o.append("s_lshl_b32 s%d, s2, 10" % self.sSt)
        o.append("s_add_u32 s%d, s%d, %d" % (self.sMW2, self.sMW, L_SP))
        o.append("s_lshr_b32 s%d, s2, 7" % t0)
        o.append("s_andn2_b32 s%d, s%d, s%d" % (self.sP17, t0, sRole))
        o.append("s_lshl_b32 s%d, s%d, 9" % (self.sP9, t0 if self.o["alead"] else self.sP17))
        o.append("s_lshl_b32 s%d, s%d, 17" % (self.sP17, self.sP17))
        self.bits(o, vu, vt, ((3, 3, 0), (6, 1, 6), (7, 1, 8)))
        o.append("v_lshl_add_u32 v%d, v%d, 10, v%d" % (vu, vu, vUT))
        o.append("v_lshl_add_u32 v%d, s%d, 7, v%d" % (self.vo[0], sCT, vu))
        for b in range(1, 4): o.append("v_add_u32 v%d, %d, v%d" % (self.vo[b], 7168 * b, self.vo[0]))
        o.append("s_lshl2_add_u32 s%d, s%d, s%d" % (self.sMC, t3, t2))
        o.append("s_lshl_b32 s%d, s%d, 10" % (self.sMC, self.sMC))
        o.append("s_lshl_b32 s%d, s%d, 6" % (t0, self.sP9))
        o.append("s_add_u32 s%d, s%d, s%d" % (self.sMC, self.sMC, t0))
        self.bits(o, vt, vu, ((3, 4, 0), (7, 1, 5)))
        o.append("v_lshl_add_u32 v%d, s%d, 6, v%d" % (vt, sCT, vt))
        o.append("v_lshl_add_u32 v%d, v%d, 10, v%d" % (self.vc[0], vt, vUA))
        o.append("v_add_u32 v%d, %d, v%d" % (self.vc[1], 16384 - 2048, self.vc[0]))
        self.bits(o, vu, None, ((0, 4, 4),))
        o.append("v_add_u32 v%d, %d, v%d" % (vu, WS_G, vu))
        o.append("v_lshl_add_u32 v%d, s%d, 9, v%d" % (self.vG1a, self.sRW, vu))
        o.append("v_lshl_add_u32 v%d, s%d, 8, v%d" % (self.vG2a, self.sRT, vu))
        o.append("v_and_b32 v%d, 56, v0" % vt)
        o.append("v_cmp_eq_u32 vcc, 24, v%d" % vt)
        o.append("v_add_u32 v%d, %d, v%d" % (vt, SPILL - 384, self.vL16))
        o.append("s_nop 0")
        o.append("v_cndmask_b32 v%d, v%d, v%d, vcc" % (self.vFr, self.vL16, vt))
        self.vK3 = self.vr; self.vW3 = self.vOut
        if self.o["k3"]:
            o.append("s_lshr_b32 s%d, s2, 3" % t0)
            self.bits(o, self.vK3, vu, ((1, 2, 0), (6, 2, 2)))
            o.append("v_lshl_add_u32 v%d, s%d, 4, v%d" % (self.vK3, t0, self.vK3))
            o.append("v_mul_u32_u24 v%d, 3, v%d" % (self.vK3, self.vK3))
            o.append("v_and_b32 v%d, 1, v0" % vu)
            o.append("v_add_lshl_u32 v%d, v%d, v%d, 10" % (self.vK3, self.vK3, vu))
            o.append("s_sub_u32 s%d, s%d, 1" % (t0, sRH))
            o.append("v_and_b32 v%d, s%d, v%d" % (self.vK3, t0, self.vK3))
        if self.o["w3"]:
            o.append("s_lshr_b32 s%d, s2, 6" % t0); o.append("s_and_b32 s%d, s%d, 3" % (t1, sJ)); o.append("s_lshl2_add_u32 s%d, s%d, s%d" % (t0, t0, t1))
            self.bits(o, self.vW3, vu, ((0, 3, 10), (6, 2, 13)))
            o.append("v_lshl_add_u32 v%d, s%d, 15, v%d" % (self.vW3, t0, self.vW3))
        vWq = self.vWq = V()
        if self.o["qmode"] == 2:
            o.append("s_lshr_b32 s%d, s2, 3" % t0)
            self.bits(o, vWq, vu, ((2, 2, 0), (6, 2, 2)))
            o.append("v_lshl_add_u32 v%d, s%d, 4, v%d" % (vWq, t0, vWq))
        else:
            o.append("s_lshr_b32 s%d, s2, 6" % t0); o.append("s_and_b32 s%d, s%d, 3" % (t1, sJ)); o.append("s_lshl2_add_u32 s%d, s%d, s%d" % (t0, t0, t1))
            self.bits(o, vWq, vu, ((2, 3, 0), (6, 2, 3)))
            o.append("v_lshl_add_u32 v%d, s%d, 5, v%d" % (vWq, t0, vWq))
        o.append("v_mul_u32_u24 v%d, 24, v%d" % (vWq, vWq))
        o.append("v_and_or_b32 v%d, v0, 3, v%d" % (vWq, vWq))
        o.append("v_lshl_add_u32 v%d, s%d, 2, v%d" % (vWq, sRH, vWq))
        o.append("v_lshlrev_b32 v%d, 7, v%d" % (vWq, vWq))
        o.append("s_lshl4_add_u32 s%d, s%d, s%d" % (t0, sR, sJ))
        o.append("s_lshl_b32 s%d, s%d, 8" % (t0, t0))
        o.append("s_add_u32 s%d, s%d, %d" % (t0, t0, WS_FH))
        self.bits(o, self.vPf, vu, ((6, 1, 7), (7, 1, 11)))
        o.append("v_add_u32 v%d, s%d, v%d" % (self.vPf, t0, self.vPf))
        o.append("v_lshl_add_u32 v%d, s%d, 16, v%d" % (self.vPf, sRole, self.vPf))
        self.bits(o, self.vFlag, None, ((0, 5, 2),))
        o.append("v_add_u32 v%d, v%d, v%d" % (self.vFlag, self.vFlag, self.vPf))
        if self.o["lflag"]:
            o.append("v_bfe_u32 v%d, v0, 5, 1" % vu)
            o.append("v_mul_u32_u24 v%d, 0x%x, v%d" % (vu, WS_LF, vu))
            o.append("v_add_u32 v%d, v%d, v%d" % (self.vPf, vu, self.vPf))
        self.emit(o)
        self.vUT = vUT
        for q in (vt, vu, vUA, vp, vd): V.rel(q)
        self.vg = vg
        A("s_cmp_eq_u32 s%d, 0" % sRole)
        A("s_cbranch_scc0 L_att")

    def p2_addr(self, first, vt, vu):
        t0, t1, t3 = self.t0, self.t1, self.t3
        o = []
        o.append("s_lshr_b32 s%d, s%d, 1" % (t3, self.sW))
        o.append("s_lshr_b32 s%d, s%d, 1" % (t1, self.sRT))
        o.append("s_lshl1_add_u32 s%d, s%d, s%d" % (t0, t1, t3))
        self.bits(o, self.vf, None, ((0, 3, 7),))
        o.append("v_lshl_add_u32 v%d, s%d, 10, v%d" % (self.vf, t0, self.vf))
        o.append("s_mov_b32 s%d, %d" % (self.sFO, WS_FO)); o.append("s_mov_b32 s%d, %d" % (self.sFH, WS_FH))
        if self.o["lflag"]:
            o.append("s_mov_b32 s%d, %d" % (self.sLF, WS_LF))
            o.append(lambda: (self.A("s_cmp_eq_u32 s%d, s%d" % (t3, self.sRH)), self.A("s_cselect_b32 s%d, s%d, 0" % (self.sLX, self.sLF))))
            o.append("s_add_u32 s%d, s%d, s%d" % (self.sFH, self.sFH, self.sLX))
            o.append("s_add_u32 s%d, s%d, s%d" % (self.sFO, self.sFO, self.sLX))
        o.append("s_mul_i32 s%d, s%d, %d" % (t0, self.sRT, RT_STRIDE))
        o.append("s_lshl_b32 s%d, s%d, 14" % (self.sO, t3))
        o.append("s_lshl1_add_u32 s%d, s%d, s%d" % (self.sH, self.sO, t0))
        o.append("s_add_u32 s%d, s%d, %d" % (self.sH, self.sH, WS_A + (16384 if (first or not self.o["alead"]) else 0)))
        o.append("s_add_u32 s%d, s%d, s%d" % (self.sO, self.sO, t0))
        o.append("s_add_u32 s%d, s%d, %d" % (self.sO, self.sO, WS_A + 65536))
        if first: o.append("s_lshl4_add_u32 s%d, s%d, s%d" % (self.sO, self.sP9, self.sO))
        if self.o["g3"]:
            o.append("s_lshl_b32 s%d, s%d, 6" % (self.sSt, self.sP9)); o.append("s_add_u32 s%d, s%d, 0x10000" % (self.sSt, self.sSt))
        else: o.append("s_mov_b32 s%d, 0x10000" % self.sSt)
        o.append("s_mul_i32 s%d, s%d, %d" % (t0, t3, 32768 + 4096))
        if first: o.append("s_add_u32 s%d, s%d, %d" % (t0, t0, first))
        o.append("v_add_u32 v%d, s%d, v%d" % (self.ac[0][0], t0, self.vBase))
        o.append("v_xor_b32 v%d, 64, v%d" % (self.ac[0][1], self.ac[0][0]))
        for sx in range(2): o.append("v_xor_b32 v%d, 4096, v%d" % (self.ac[1][sx], self.ac[0][sx]))
        self.bits(o, vt, None, ((4, 2, 5),))
        o.append("v_xor_b32 v%d, v%d, v%d" % (vt, vt, self.vL16))
        o.append("v_lshl_add_u32 v%d, s%d, 12, v%d" % (self.vr, self.sW, vt))
        if first: o.append("v_add_u32 v%d, %d, v%d" % (self.vr, first, self.vr))
        self.bits(o, vt, vu, ((3, 1, 3), (4, 1, 0), (5, 1, 4), (6, 1, 2)))
        o.append("v_lshl_add_u32 v%d, s%d, 6, v%d" % (vt, t1, vt))
        self.bits(o, vu, None, ((0, 3, 4),))
        o.append("v_lshl_add_u32 v%d, v%d, 11, v%d" % (vt, vt, vu))
        o.append("s_lshl1_add_u32 s%d, s%d, s%d" % (t0, self.sCT, t3))
        o.append("v_lshl_add_u32 v%d, s%d, 7, v%d" % (self.vOut, t0, vt))
        return o

    def skip_term(self):
        xd = self.vXD; dm = self.of; og = self.of + 8
        W = []
        for a1 in range(2): W.append("v_sub_f32 v%d, 1.0, v%d" % (og + a1, self.vG2 + 2 * a1))
        for k in range(4):
            W.append("v_and_b32 v%d, 0xffff, v%d" % (dm + 2 * k, self.vDs + k))
            W.append("v_and_b32 v%d, 0xffff0000, v%d" % (dm + 2 * k + 1, self.vDs + k))
        for a1 in range(2): W.append("v_cvt_pk_bf16_f32 v%d, 0, v%d" % (og + a1, og + a1))
        for n in range(16): W.append("v_dot2_f32_bf16 v%d, v%d, v%d, 0" % (xd + n, self.xdf + (n >> 1), dm + (n & 7)))
        for q in range(8): W.append("v_pk_mul_f32 %s, %s, %s %s" % (v(xd + 2 * q, 2), v(og, 2), v(xd + 2 * q, 2), "op_sel:[1,0]" if q >> 2 else "op_sel_hi:[0,1]"))
        return W

    def gate_fill(self):
        V = self.V
        F = []
        t0, t1 = self.S(), self.S()
        gx = self.gx; g = gx + 12; vt = self.V()
        F.append("s_add_u32 s%d, s%d, 1" % (self.sE, self.sE))
        F.append("s_mul_i32 s%d, s%d, 0x9e3779b1" % (self.sTag, self.sE))
        F.append("v_mov_b32 v%d, s%d" % (self.vTag, self.sTag))
        F.append("v_mov_b32 v%d, 0" % g); F.append("v_mov_b32 v%d, 0" % (g + 2))
        for i in range(4):
            F.append("v_dot2c_f32_bf16 v%d, v%d, v%d" % (g, gx + i, gx + 8 + i))
            F.append("v_dot2c_f32_bf16 v%d, v%d, v%d" % (g + 2, gx + 4 + i, gx + 8 + i))
        side = ["v_mov_b32 v%d, v%d" % (g + 1, self.vTag), "v_mov_b32 v%d, v%d" % (g + 3, self.vTag), "v_cmp_eq_u32 vcc, 0x3f0, v%d" % self.vL16,
                "v_mov_b32 v%d, 0x%x" % (vt, HUGE)]
        side.append("s_and_b32 s%d, s%d, 32" % (t0, self.sN2))
        for bit, w_, sh in ((1, 1, 4), (3, 2, 2), (0, 1, 1), (2, 1, 0)):
            side.append("s_bfe_u32 s%d, s%d, 0x%x" % (t1, self.sN2, (w_ << 16) | bit))
            side.append(("s_lshl%d_add_u32" % sh if sh else "s_add_u32") + " s%d, s%d, s%d" % (t0, t1, t0))
        side.append("v_cndmask_b32 v%d, v%d, 0, vcc" % (vt, vt))
        side.append("s_lshl_b32 s%d, s%d, 10" % (t1, self.sR))
        side.append("s_lshl4_add_u32 s%d, s%d, s%d" % (t0, t0, t1))
        side.append("s_add_u32 s%d, s%d, %d" % (t0, t0, WS_G))
        F += side[:3]; side = side[3:]
        for md in ("row_shr:1 row_mask:0xf", "row_shr:2 row_mask:0xf", "row_shr:4 row_mask:0xf", "row_shr:8 row_mask:0xf", "row_bcast:15 row_mask:0xa", "row_bcast:31 row_mask:0xc"):
            for q in (g, g + 2): F.append("v_add_f32_dpp v%d, v%d, v%d %s bank_mask:0xf" % (q, q, q, md))
            F += side[:2]; side = side[2:]
        for q in (g, g + 2): F.append("v_mul_f32 v%d, 0xbfb8aa3b, v%d" % (q, q))
        for q in (g, g + 2): F.append("v_exp_f32 v%d, v%d" % (q, q))
        for q in (g, g + 2): F.append("v_add_f32 v%d, 1.0, v%d" % (q, q))
        for q in (g, g + 2): F.append("v_rcp_f32 v%d, v%d" % (q, q))
        F += side
        for q in (g, g + 2): F.append("v_cvt_pk_bf16_f32 v%d, 0, v%d" % (q, q))
        def st():
            self.A("buffer_store_dwordx4 %s, v%d, %s, s%d offen sc1" % (v(g, 4), vt, self.WS, t0)); self.vm.issue("gst")
        F.append(st)
        return F

    def g_loads(self):
        for k in range(self.nG1):
            self.A("buffer_load_dwordx4 %s, v%d, %s, 0 offen%s sc1" % (v(self.vG1 + 4 * k, 4), self.vG1a, self.WS, " offset:256" if k else "")); self.vm.issue("g")
        self.A("buffer_load_dwordx4 %s, v%d, %s, 0 offen sc1" % (v(self.vG2, 4), self.vG2a, self.WS)); self.vm.issue("g")

    def g_check(self, name, vt):
        A = self.A
        self.vm.wait("g")
        A.label("L_gchk_" + name)
        A("v_xor_b32 v%d, v%d, v%d" % (vt, self.vG2 + 1, self.vTag))
        for q in [self.vG2 + 3] + [self.vG1 + 1 + 2 * k for k in range(2 * self.nG1)]:
            A("v_bitop3_b32 v%d, v%d, v%d, v%d bitop3:0xf6" % (vt, vt, q, self.vTag))
        A("v_cmp_ne_u32 vcc, 0, v%d" % vt)
        self.cap()
        A("s_cbranch_scc0 L_gok_" + name)
        q = list(self.vm.q)
        self.g_loads(); A("s_waitcnt vmcnt(0)")
        self.vm.q = q
        A("s_branch L_gchk_" + name)
        A.label("L_gok_" + name)

    def hop(self, name):
        if not self.o["hop"]: return
        A = self.A
        A("s_mov_b64 exec, 0")
        for w in range(3):
            A("s_cmp_eq_u32 s%d, %d" % (self.sW, w))
            A("s_cbranch_scc1 @CHAIN%s%d@" % (name, w))
        A("s_branch @CHAIN%s3@" % name)
        if name == "s":
            A.label("L_backx")
            A("s_cmp_eq_u32 s%d, 0" % self.sRole)
            A("s_cbranch_scc0 L_backa")
        A.label("L_back" + name)
        A("s_mov_b64 exec, -1")

    def p1_loop(self, name, xread, wread, mfma, tail, fill):
        A = self.A
        def warm(tok):
            if tok == "w": A("global_load_dword v%d, v%d, s[48:49]" % (self.vJunk, self.vPf))
            elif tok == "k": A("global_load_dword v%d, v%d, s[%d:%d] offset:1408" % (self.vJunk, self.vK3, P_WQKV, P_WQKV + 1))
            elif tok == "o": A("buffer_load_dword v%d, v%d, %s, 0 offen offset:384" % (self.vJunk, self.vW3, self.WO))
            else: A("global_load_dword v%d, v%d, s[%d:%d]" % (self.vJunk, self.vWq, P_WQKV, P_WQKV + 1))
            self.vm.issue("junk")
        self.stamp(20)
        early = list(self.early)
        gf = self.gate_fill()
        for tok in self.o["third"][name == "a"]:
            if tok in "wqk": warm(tok)
            elif tok == "G":
                A("s_waitcnt vmcnt(%d) lgkmcnt(0)" % (len(self.vm.q) - self.vm.q.index("ch0")))
                self.emit(gf); gf = []
            elif tok == "f":
                if name == "s": A("s_waitcnt vmcnt(%d)" % (len(self.vm.q) - self.vm.q.index("ch0")))
                k = min(self.o["nf"][name == "a"], len(fill))
                self.emit(fill[:k]); fill = fill[k:]
            elif tok == "h": self.hop(name)
            else: self.emit(early[:int(tok)]); early = early[int(tok):]
        assert not early
        self.stamp(21)
        if self.o["xdo"]:
            A("s_branch L_loop" + name)
            for c in range(8):
                A.label("L_xd_%s%d" % (name, c))
                hi, lo = self.slot(c) >> 16, self.slot(c) & 0xffff
                for n in range(4): A("ds_read_b64 %s, v%d offset:%d" % (v(self.xdf + 2 * n, 2), self.axd[hi][n & 1], lo + 2048 * (n >> 1)))
                A("s_branch L_nx_%s%d" % (name, c))
            A.label("L_loop" + name)
        gap = {}
        def at(n, x): gap.setdefault(n, []).append(x)
        nw = len(wread(0, 0))
        wpos = {1: ((-8,), (-3,), (0,), (4,)), 2: ((-8, -7), (-2, -1), (1, 2), (5, 6))}[nw]
        dpos = {1: (-2, 2, 6, -1 + 8 + 3), 2: (0, 3, 4, 7)}[nw]
        xpos = [-8 + nw + i for i in range(4)]
        last = []
        early_n = self.o["early"][name == "a"]; ex = self.wo_stag()
        ah = self.o["ahead"][name == "a"]
        drain = (0, 6, 7) + (tuple(range(ah, 6)) if ah else ())
        wpe = {1: ((-8,), (-3,), (0,), (1,)), 2: ((-8, -7), (-2, -1), (0, 1), (2, 3))}[nw]
        for c in range(8):
            base = 32 * c
            def sync(c=c):
                n1 = self.vm.need("ch%d" % c)
                if c == 6 and early_n and "wo0" in self.vm.q: n1 = self.vm.need("wo0")
                if c in drain:
                    A("s_waitcnt vmcnt(%d) lgkmcnt(0)" % n1); self.lg.zero(False)
                else: A("s_waitcnt vmcnt(%d)" % n1)
                self.stamp({0: 1, 1: 2, 2: 3, 3: 27, 4: 4, 5: 28, 6: 29, 7: 5}[c])
                A("s_barrier")
            at(base - 9, sync)
            for k in range(self.o["pause"][c]): at(base + 7 + 8 * (k & 1) * self.o["psplit"], "s_nop 15")
            for sx in range(2):
                st = 2 * c + sx
                for t in range(4):
                    for p, x in zip((wpe if (sx and c + 1 in drain) else wpos)[t], wread(st, t)): at(16 * st + p, self.ds(x, "w%d_%d" % (st, t)))
                    at(16 * st + xpos[t], self.ds(xread(st, t), "x%d_%d" % (st, t)))
            def xd(c=c):
                A("s_cmp_eq_u32 s%d, %d" % (self.sCX, c))
                if self.o["xdo"]: A("s_cbranch_scc1 L_xd_%s%d" % (name, c))
                else:
                    A("s_cbranch_scc0 L_nx_%s%d" % (name, c))
                    hi, lo = self.slot(c) >> 16, self.slot(c) & 0xffff
                    for n in range(4): A("ds_read_b64 %s, v%d offset:%d" % (v(self.xdf + 2 * n, 2), self.axd[hi][n & 1], lo + 2048 * (n >> 1)))
                A.label("L_nx_%s%d" % (name, c))
            at(base + (3 if nw == 1 else 4), xd)
            la = 3 if (ah and c > ah) else 2
            dm = self.chunk_dmas(c + la) if c + la < 8 else tail[c + la - 8]
            if ah and c == ah:
                dm = dm + self.chunk_dmas(c + 3)
                nm = min(len(fill), self.o["smid" if name == "s" else "amid"])
                blk = weave(fill[len(fill) - nm:], dm[4:12]); fill = fill[:len(fill) - nm]
                at(base + 7, lambda blk=blk: self.emit(blk))
                dm = dm[:4] + dm[12:]
            if c == 7 and name == "s" and self.o["g3"]: last = tail[-1]
            elif c == 7 and name == "s" and self.o["late7"] in (1, 2): last = dm; dm = []
            pos = list(self.o["dpos"][nw - 1])
            if c == 7 and name == "s" and self.o["late7"] > 2: pos = [31 - self.o["late7"] * (7 - i) for i in range(8)]
            ne = early_n[c] if early_n else 0
            if ne:
                for i in range(ne): dm.insert({1: (4,), 2: (2, 7), 3: (2, 5, 8), 4: (2, 5, 8, 11)}[ne][i], ex.pop(0))
                pos = [-7 + (30 * i) // len(dm) for i in range(len(dm))]
            if c == 6 and early_n:
                assert not ex
                for i, x in enumerate(self.wo_reads(0)): at(base - 8 + (28 * i) // 32, self.ds(x, "wor"))
            if c == 0:
                k = self.o["d0"]; pos = [22 - 2 * (k - i) for i in range(k)] + [22] * (len(dm) - k)
            pos = [max(-8, pos[0] - 3)] * max(0, len(dm) - len(pos)) + pos
            prev = -8
            for i, x in enumerate(dm):
                p = pos[i]
                if isinstance(x, tuple):
                    for k, y in enumerate(x[0]): at(base + max(prev, p - len(x[0]) + k), y)
                    at(base + p, x[1])
                else: at(base + p, x)
                prev = p
        m0_, m1_, nm = self.o["mid"]
        nm = 0 if ah else min(nm, self.o["smid" if name == "s" else "amid"])
        if name == "a": m0_ += self.o["aoff"]; m1_ += self.o["aoff"]
        if self.o["gmid"]: fill = gf + fill; gf = []
        if self.o["glate"]:
            gc, g0, g1 = self.o["glate"]
            def rows():
                for k in range(2):
                    A("buffer_load_dwordx4 %s, v%d, %s, 0 offen%s" % (v(self.gx + 4 * k, 4), self.vg, self.X, " offset:2048" if k else "")); self.vm.issue("grow")
            at(gc, rows)
            at(g0, lambda: self.vm.wait("grow"))
            for i, x in enumerate(gf[3:]): at(g0 + ((g1 - g0) * i) // len(gf), x)
            gf = gf[:3]
        if self.o["qat"] and self.o["qmode"] == 3:
            def wq3():
                A("s_cmp_eq_u32 s%d, 3" % self.sJ)
                A("s_cselect_b64 exec, %s" % ("1, -1" if name == "a" else "-1, 1"))
                warm("q")
                A("s_mov_b64 exec, -1")
            at(self.o["qat"], wq3)
        elif self.o["qat"] and (name == "a" or self.o["qmode"] == 2 or self.o["qmode"] == 1) and not (name == "a" and self.o["qmode"] == 1): at(self.o["qat"], lambda: warm("q"))
        if self.o["w3"] and name == self.o["w3"][0]: at(self.o["w3"][1], lambda: warm("o"))
        if name == "s" and self.o["wat"]:
            def w2():
                for srd in (self.WO, self.CIM, self.CRE)[:self.o["wn"]]:
                    A("buffer_load_dword v%d, v%d, %s, 0 offen" % (self.vJunk, self.vW2, srd)); self.vm.issue("junk")
            at(self.o["wat"], w2)
        nm = min(nm, len(fill)); midl = fill[len(fill) - nm:]; fill = fill[:len(fill) - nm]
        for i, x in enumerate(midl): at(m0_ + ((m1_ - m0_) * i) // nm, x)
        fl = gf + fill
        nd = self.o["defer"][name == "a"]
        self.deferred = [(lambda k=k: (self.lg.wait("w15_%d" % (k >> 2)), mfma(15, k >> 2, k & 3))) for k in range(16 - nd, 16)]
        for n in range(-9, 256 - nd):
            if n >= 0:
                st, k = n >> 4, n & 15
                if k == 0: self.lg.wait("x%d_1" % st)
                elif k == 2: self.lg.wait("x%d_3" % st)
                elif k & 3 == 0: self.lg.wait("w%d_%d" % (st, k >> 2))
                mfma(st, k >> 2, k & 3)
            g_ = gap.pop(n, [])
            if -1 <= n < 22:
                k = -(-len(fl) // (22 - n))
                assert "par" not in self.vm.q
                g_ = g_ + fl[:k]; fl = fl[k:]
            self.emit(g_)
        assert not fl and not gap, gap
        self.last = last
        if self.o["late7"] == 1 and not nd: self.emit(last); self.last = []
        self.stamp(6)

    def ssm(self):
        A, V, S = self.A, self.V, self.S
        t0, t1, t2, t3 = self.t0, self.t1, self.t2, self.t3
        vt = V(); vu = V()
        for q in (self.vUT, self.vTr): V.rel(q)
        self.nG1 = 2; self.vG1 = V(8, 4)
        ax = [[V(), V()], [V(), V()]]; ab = [[V(), V()], [V(), V()]]
        Q = lambda: V(4, 2)
        F = []
        for fam, sel in ((ax, t3), (ab, t2)):
            F.append("v_lshl_add_u32 v%d, s%d, 13, v%d" % (fam[0][0], sel, self.vBase))
            F.append("v_xor_b32 v%d, 64, v%d" % (fam[0][1], fam[0][0]))
            for sx in range(2): F.append("v_add_u32 v%d, 0x10000, v%d" % (fam[1][sx], fam[0][sx]))
        m0_, m1_, mw = S(2, 2), S(2, 2), S(2, 2)
        F.append("s_mov_b32 s%d, 0xffff0000" % m0_); F.append("s_mov_b32 s%d, 0xffff0000" % (m0_ + 1))
        F.append("s_mov_b32 s%d, 0" % m1_); F.append("s_mov_b32 s%d, -1" % (m1_ + 1))
        F.append("s_sub_u32 s%d, 0, s%d" % (mw, t3)); F.append("s_mov_b32 s%d, s%d" % (mw + 1, mw))
        Sk = V(2)
        F.append("v_lshrrev_b32 v%d, 2, v0" % vt)
        F.append("v_xor_b32 v%d, v0, v%d" % (vt, vt))
        F.append("v_and_b32 v%d, 12, v%d" % (vt, vt))
        F.append("v_and_or_b32 v%d, v0, 2, v%d" % (vt, vt))
        F.append("v_cmp_eq_u32 vcc, 0, v%d" % vt)
        F.append("v_cmp_eq_u32 s[%d:%d], 2, v%d" % (self.sMk, self.sMk + 1, vt))
        F.append("v_bfe_i32 v%d, v0, 0, 1" % vu)
        F.append("v_xor_b32 v%d, 0xffff, v%d" % (vu, vu))
        F.append("v_cndmask_b32 v%d, 0, v%d, vcc" % (Sk, vu))
        F.append("v_cndmask_b32 v%d, 0, v%d, s[%d:%d]" % (Sk + 1, vu, self.sMk, self.sMk + 1))
        vEs = V(); vXa = V(); ea = [V() for _ in range(4)]; et = [V() for _ in range(4)]
        F.append("s_lshl1_add_u32 s%d, s%d, s%d" % (t0, self.sJ, t2))
        F.append("s_lshl_b32 s%d, s%d, 12" % (t0, t0))
        F.append("s_add_u32 s%d, s%d, %d" % (t0, t0, WS_E))
        F.append("s_add_u32 s68, s48, s%d" % t0); F.append("s_addc_u32 s69, s49, 0")
        self.bits(F, vt, None, ((0, 4, 4),))
        F.append("v_lshl_add_u32 v%d, s%d, 8, v%d" % (vEs, self.sR, vt))
        F.append("v_lshl_add_u32 v%d, s%d, 8, v%d" % (vXa, self.sW, vt))
        F.append("v_lshl_add_u32 v%d, s%d, 6, v%d" % (vXa, self.sP9, vXa))
        F.append("v_xor_b32 v%d, %d, v%d" % (vXa, L_R1 + 32768, vXa))
        self.bits(F, ea[0], None, ((4, 2, 8),))
        F.append("v_sub_u32 v%d, v%d, v%d" % (ea[0], vEs, ea[0]))
        F.append("v_subrev_u32 v%d, 256, v%d" % (ea[0], ea[0]))
        F.append("v_and_b32 v%d, 0xb0, v0" % vt)
        F.append("v_cmp_eq_u32 vcc, 0x80, v%d" % vt)
        F.append("v_add_u32 v%d, s%d, v%d" % (vu, t0, vEs))
        F.append("v_mov_b32 v%d, 0x%x" % (vt, HUGE))
        for k in range(1, 4): F.append("v_subrev_u32 v%d, %d, v%d" % (ea[k], 1024 * k, ea[0]))
        for k in range(4): F.append("v_ashrrev_i32 v%d, 31, v%d" % (et[k], ea[k]))
        F.append("v_cndmask_b32 v%d, v%d, v%d, vcc" % (vEs, vt, vEs))
        F.append("v_cndmask_b32 v%d, v%d, v%d, vcc" % (self.vPf, self.vPf, vu))
        if self.o["wat"]:
            self.vW2 = V()
            if self.o["wl2"]:
                F.append("s_lshr_b32 s%d, s2, 6" % t0); F.append("s_and_b32 s%d, s%d, 3" % (t1, self.sJ)); F.append("s_lshl2_add_u32 s%d, s%d, s%d" % (t0, t0, t1))
                F.append("v_and_b32 v%d, 0x%x, v0" % (self.vW2, {1: 0xff, 2: 0xdf, 3: 0xcf}[self.o["wl2"]]))
                F.append("v_lshl_add_u32 v%d, s%d, 8, v%d" % (self.vW2, t0, self.vW2))
            else:
                F.append("s_lshl3_add_u32 s%d, s%d, s%d" % (t0, self.sR, self.sJ))
                F.append("v_lshrrev_b32 v%d, 3, v0" % self.vW2)
                F.append("v_lshl_add_u32 v%d, s%d, 5, v%d" % (self.vW2, t0, self.vW2))
            F.append("v_lshlrev_b32 v%d, 7, v%d" % (self.vW2, self.vW2))
        sH = [S() for _ in range(4)]
        F.append("s_mul_i32 s%d, s%d, %d" % (t0, self.sRW, 2 * RT_STRIDE))
        F.append("s_and_b32 s%d, s%d, 4" % (t1, self.sJ)); F.append("s_add_u32 s%d, s%d, s%d" % (t1, t1, self.sJ))
        F.append("s_lshl1_add_u32 s%d, s%d, s%d" % (t1, t1, t2)); F.append("s_lshl_b32 s%d, s%d, 11" % (t1, t1))
        F.append("s_add_u32 s%d, s%d, s%d" % (t0, t0, t1))
        for tau in range(2):
            for comp in range(2):
                F.append("s_add_u32 s%d, s%d, %d" % (sH[2 * tau + comp], t0, WS_A + tau * RT_STRIDE + comp * 16384))
        self.emit(F)
        F = []
        pre, pim, pdt = self.ppar
        lam, cf, mu, l16, l32, l64, L4, Lg, x16, x32 = [Q() for _ in range(10)]
        al = [Q(), Q()]
        ta, tb, tc = self.acc[0], self.acc[0] + 4, self.acc[0] + 8
        P2 = lambda r: v(r, 2)
        for q in (pre, pim, pdt):
            for b in range(2): F.append("v_lshlrev_b32 v%d, 16, v%d" % (q + b, q + b))
        for b in range(2): F.append("v_mul_f32 v%d, %s, v%d" % (pdt + b, LOG2E, pdt + b))
        for b in range(2): F.append("v_exp_f32 v%d, v%d" % (pdt + b, pdt + b))
        F.append("v_pk_mul_f32 %s, %s, %s" % (P2(tb), P2(pre), P2(pre)))
        for b in range(2): F.append("v_cvt_pk_bf16_f32 v%d, 0, v%d" % (pdt + b, pdt + b))
        F.append("v_pk_fma_f32 %s, %s, %s, %s" % (P2(tb), P2(pim), P2(pim), P2(tb)))
        F.append("v_pk_mul_f32 %s, %s, %s" % (P2(ta), P2(pdt), P2(pre)))
        F.append("v_pk_mul_f32 %s, %s, %s" % (P2(ta + 2), P2(pdt), P2(pim)))
        for b in range(2): F.append("v_mul_f32 v%d, %s, v%d" % (ta + b, LOG2E, ta + b))
        for b in range(2): F.append("v_mul_f32 v%d, 0.15915494, v%d" % (ta + 2 + b, ta + 2 + b))
        for b in range(2): F.append("v_exp_f32 v%d, v%d" % (ta + b, ta + b))
        for b in range(2): F.append("v_rndne_f32 v%d, v%d" % (tb + 2 + b, ta + 2 + b))
        for b in range(2): F.append("v_sub_f32 v%d, v%d, v%d" % (ta + 2 + b, ta + 2 + b, tb + 2 + b))
        for b in range(2): F.append("v_rcp_f32 v%d, v%d" % (tb + b, tb + b))
        for b in range(2): F.append("v_cos_f32 v%d, v%d" % (lam + b, ta + 2 + b))
        for b in range(2): F.append("v_sin_f32 v%d, v%d" % (lam + 2 + b, ta + 2 + b))
        F.append("v_pk_add_f32 %s, %s, %s" % (P2(tb), P2(tb), P2(tb)))
        for k in (0, 2): F.append("v_pk_mul_f32 %s, %s, %s" % (P2(lam + k), P2(lam + k), P2(ta)))
        for b in range(2): F.append("v_add_f32 v%d, -1.0, v%d" % (ta + b, lam + b))
        F.append("v_pk_mul_f32 %s, %s, %s" % (P2(cf), P2(ta), P2(pre)))
        F.append("v_pk_mul_f32 %s, %s, %s" % (P2(cf + 2), P2(lam + 2), P2(pre)))
        F.append("v_pk_fma_f32 %s, %s, %s, %s" % (P2(cf), P2(lam + 2), P2(pim), P2(cf)))
        F.append("v_pk_fma_f32 %s, %s, %s, %s neg_lo:[1,0,0] neg_hi:[1,0,0]" % (P2(cf + 2), P2(ta), P2(pim), P2(cf + 2)))
        for k in (0, 2): F.append("v_pk_mul_f32 %s, %s, %s" % (P2(cf + k), P2(cf + k), P2(tb)))
        chain = [lam, ta, tb, mu, l16, l32, l64, ta, tb, L4]
        for x_, y_ in zip(chain, chain[1:]):
            F.append("v_pk_mul_f32 %s, %s, %s" % (P2(y_), P2(x_), P2(x_)))
            F.append("v_pk_mul_f32 %s, %s, %s" % (P2(y_ + 2), P2(x_), P2(x_ + 2)))
            F.append("v_pk_fma_f32 %s, %s, %s, %s neg_lo:[1,0,0] neg_hi:[1,0,0]" % (P2(y_), P2(x_ + 2), P2(x_ + 2), P2(y_)))
            F.append("v_pk_add_f32 %s, %s, %s" % (P2(y_ + 2), P2(y_ + 2), P2(y_ + 2)))
        def sel(out, d, src, mk, one):
            for k in range(4): out.append("v_cndmask_b32 v%d, %s, v%d, s[%d:%d]" % (d + k, "1.0" if (one and k < 2) else "0", src + k, mk, mk + 1))
        sel(F, ta, ta, m0_, 1); sel(F, tb, tb, m1_, 1)
        self.pmul(F, Lg, ta, tb)
        sel(F, x16, l16, m0_, 1); sel(F, x32, l32, m1_, 1); sel(F, ta, l64, mw, 1)
        self.pmul(F, tb, x16, x32); self.pmul(F, tc, tb, ta)
        for b in range(2):
            self.cmul(F, al[b], al[b] + 2, cf + b, cf + 2 + b, tc + b, tc + 2 + b)
            self.cmul(F, al[b] + 1, al[b] + 3, mu + b, mu + 2 + b, al[b], al[b] + 2)
        U = [[V(16, 4), V(16, 4)], [V(16, 4), V(16, 4)]]
        def lds(fam, st, off):
            tot = self.slot(st >> 1) + off
            return fam[tot >> 16][st & 1], tot & 0xffff
        xread = lambda st, t: "ds_read_b128 %s, v%d offset:%d" % ((a(64 + 32 * (st & 1) + 4 * t, 4),) + lds(ax, st, 2048 * t))
        wread = lambda st, t: ["ds_read_b128 %s, v%d offset:%d" % ((a(64 + 32 * (st & 1) + 16 + 4 * t, 4),) + lds(ab, st, 16384 + 4096 * (t & 1) + 2048 * (t >> 1)))]
        def mfma(st, t, x):
            self.mf(U[t & 1][t >> 1] + 4 * x, a(64 + 32 * (st & 1) + 4 * x, 4), a(64 + 32 * (st & 1) + 16 + 4 * t, 4), "0" if st == 0 else None)
        c1 = self.c_dmas(1, L_R1); c0 = self.c_dmas(0, L_R0, self.sMW2 if self.o["g3"] else None)
        if self.o["g3"]: F.append("s_and_b32 s%d, s%d, 0x7fff" % (self.sMW2, self.sMC))
        early = self.o["early"][0]
        sl = self.o["ssm"]
        if early:
            a1 = c1[:8]; ld = self.wo_dmas(1) + c0[:8] + c1[8:] + c0[8:]
        else:
            a1 = self.wo_dmas(0); ld = c1[:8] + c0[:8] + c1[8:] + self.wo_dmas(1) + c0[8:]
        if self.o["alead"]:
            ld = c1 + self.wo_dmas(1) + c0
            assert sl[0] + sl[1] <= 8 and sum(sl[:5]) >= 16
        else: assert sl[0] <= 8 and sl[0] + sl[1] <= 16 and sum(sl[:5]) >= 24
        def take(n):
            out = ld[:n]; del ld[:n]
            return out
        gl_ = [] if self.o["glate"] else [self.g_loads]
        if self.o["ahead"][0]:
            k = self.o["a2"]; x_ = take(sl[0]); tl = [gl_ + a1, x_[:k], x_[k:]]
            if self.o["g3"]: tl.append(take(sl[1])); sl = (sl[0], 0) + tuple(sl[2:])
        else: tl = [gl_ + a1, take(sl[0])]
        self.p1_loop("s", xread, wread, mfma, tl, F)
        for q in self.ppar: V.rel(q, 2)
        for fam in (ax, ab):
            for row in fam:
                for q in row: V.rel(q)
        for q in self.vw + self.vx: V.rel(q)
        pr = lambda b, m: (U[0][b] + 2 * m, U[1][b] + 2 * m)
        T = self.acc[0]; T2 = self.acc[1]
        E = [[T, T + 4], [T + 8, T + 12]]
        o = []
        for b in range(2):
            cur = pr(b, 0)
            for m in range(1, 8):
                self.pmul(o, E[b][m & 1], lam, cur, pr(b, m), b); cur = E[b][m & 1]
        Ev = [E[0][1], E[1][1]]
        Fe, Fo, Ge, Go = T, T + 8, T2, T2 + 4
        Wv, W0, e = T2 + 8, T2 + 12, Q()
        for b in range(2): self.cmul(o, Fe + b, Fe + 2 + b, mu + b, mu + 2 + b, Ev[b], Ev[b] + 2, Ev[b] + 1, Ev[b] + 3)
        def split(out, x, y, w):
            for k in (0, 2): out.append("v_pk_mov_b32 %s, %s, %s op_sel:[0,1]" % (P2(y + k), P2(x + k), P2(x + k)))
            for k in range(4): out.append("v_permlane%d_swap_b32 v%d, v%d" % (w, x + k, y + k))
        split(o, Fe, Fo, 16)
        self.pmul(o, Ge, l16, Fe, Fo)
        split(o, Ge, Go, 32)
        self.pmul(o, Wv, l32, Ge, Go)
        k = self.o["l7at"]
        d = self.deferred
        if d: self.emit(d[:4] + weave(o[:16], d[4:]) + (self.last + o[16:] if k == 0 else o[16:k] + weave(o[k:64], self.last) + o[64:]))
        else: self.emit(o[:k] + weave(o[k:64], self.last) + o[64:])
        A("ds_write_b128 v%d, %s" % (vXa, v(Wv, 4)))
        A("v_and_b32 v%d, 0xfffffdff, v%d" % (vXa, vXa))
        tt = (t0, t1, t2, t3)
        for k in range(4): A("s_mov_b32 s%d, 0x%x" % (tt[k], 0x07060500 + k))
        self.vm.wait("wo0")
        A("s_waitcnt lgkmcnt(0)")
        A("s_barrier")
        A("ds_read_b128 %s, v%d" % (v(W0, 4), vXa))
        A("s_waitcnt lgkmcnt(0)"); self.lg.zero(False)
        o = []
        self.pmul(o, e, l64, W0, Wv)
        for k in range(4): o.append("v_perm_b32 v%d, v%d, v%d, s%d" % (e + k, e + k, self.vTag, tt[k]))
        self.emit(o)
        A("buffer_store_dwordx4 %s, v%d, %s, 0 offen sc1" % (v(e, 4), vEs, self.ER)); self.vm.issue("est")
        if self.o["glate"]: self.g_loads()
        self.stamp(7)
        W = ["s_bfe_u32 s%d, s%d, 0x%x" % (tt[k], self.sTag, 0x80000 + 8 * k) for k in range(4)]
        be = [l16, l32]
        sel(W, W0, W0, mw, 0); sel(W, Ge, Ge, m1_, 0); sel(W, Fe, Fe, m0_, 0)
        self.pmul(W, Go, x32, W0, Ge)
        self.pmul(W, Fo, x16, Go, Fe)
        for b in range(2):
            self.cmul(W, be[b], be[b] + 2, cf + b, cf + 2 + b, Fo + b, Fo + 2 + b)
            self.cmul(W, Wv, Wv + 1, mu + b, mu + 2 + b, Fo + b, Fo + 2 + b, Ev[b], Ev[b] + 2)
            self.cmul(W, be[b] + 1, be[b] + 3, cf + b, cf + 2 + b, Wv, Wv + 1)
        for b in range(2):
            s2 = " op_sel:[1,0]" if b else " op_sel_hi:[0,1]"; s3 = " op_sel:[1,0,0]" if b else " op_sel_hi:[0,1,1]"
            for m in range(8):
                ur, ui = pr(b, m)
                W.append("v_pk_mul_f32 %s, %s, %s%s" % (P2(W0), P2(cf + 2), P2(ur), s2))
                W.append("v_pk_mul_f32 %s, %s, %s%s" % (P2(ur), P2(cf), P2(ur), s2))
                W.append("v_pk_fma_f32 %s, %s, %s, %s%s neg_lo:[1,0,0] neg_hi:[1,0,0]" % (P2(ur), P2(cf + 2), P2(ui), P2(ur), s3))
                W.append("v_pk_fma_f32 %s, %s, %s, %s%s" % (P2(ui), P2(cf), P2(ui), P2(W0), s3))
        self.emit(weave(W, take(sl[1]), [] if early else self.wo_reads(0)))
        self.stamp(22)
        er = T2
        def eloads():
            for i in range(4): A("buffer_load_dwordx4 %s, v%d, %s, 0 offen sc1" % (v(er + 4 * i, 4), ea[i], self.ER)); self.vm.issue("er")
        if self.o["efirst"]: eloads()
        self.g_check("ssm", vt)
        Sm = self.vG1
        for x in range(4): A("v_sub_f32 v%d, 1.0, v%d" % (Sm + 2 * x, Sm + 2 * x))
        for x in range(4): A("v_cvt_pk_bf16_f32 v%d, v%d, v%d" % (Sm + 2 * x, Sm + 2 * x, Sm + 2 * x))
        for x in range(4):
            A("v_and_b32 v%d, v%d, v%d" % (Sm + 2 * x + 1, Sk + 1, Sm + 2 * x))
            A("v_and_b32 v%d, v%d, v%d" % (Sm + 2 * x, Sk, Sm + 2 * x))
        bar_late = early and sum(sl[:4]) <= 16
        if not bar_late:
            A("s_waitcnt lgkmcnt(0)")
            A("s_barrier")
        self.emit(take(sl[2]))
        self.stamp(8); self.stamp(24)
        df = self.o["efirst"]
        if df:
            self.vm.wait("er")
            A("s_branch L_echk")
        q = list(self.vm.q)
        A.label("L_epoll")
        eloads()
        if df:
            A("s_waitcnt vmcnt(0)"); A.label("L_echk")
        for i in range(4):
            if not df: A("s_waitcnt vmcnt(%d)" % (3 - i))
            for k in range(4): A("v_bitop3_b32 v%d, v%d, v%d, s%d bitop3:0xd2" % (er + 4 * i + k, er + 4 * i + k, et[i], tt[k]))
            if i == 0: A("v_or_b32 v%d, v%d, v%d" % (vt, er, er + 1))
            else: A("v_or3_b32 v%d, v%d, v%d, v%d" % (vt, vt, er + 4 * i, er + 4 * i + 1))
            A("v_or3_b32 v%d, v%d, v%d, v%d" % (vt, vt, er + 4 * i + 2, er + 4 * i + 3))
        self.vm.q = q if df else []
        A("v_and_b32 v%d, 0xff, v%d" % (vt, vt))
        A("v_cmp_ne_u32 vcc, 0, v%d" % vt)
        self.poll_tail("L_epoll")
        self.stamp(9)
        dD = take(sl[3])
        o = []
        for i in range(2, -1, -1): self.pmul(o, er + 4 * i, L4, er + 4 * i + 4, er + 4 * i)
        cs = T; c2 = T + 4
        self.pmul(o, cs, Lg, er)
        for w_ in (16, 32):
            split(o, cs, c2, w_)
            for k in (0, 2): o.append("v_pk_add_f32 %s, %s, %s" % (P2(cs + k), P2(cs + k), P2(c2 + k)))
        for b in range(2): self.pmul(o, be[b], cs, al[b], be[b], b)
        self.emit(o)
        P1 = [mu, l64]; P1b = [x16, x32]; Pq = [self.vXD, self.vXD + 8]
        cur = [be[0], be[1]]
        def finish(x):
            out = []
            D = self.acc[x & 1]
            for comp in (1, 0):
                q = Pq[x & 1] + 4 * comp
                for k in range(4): out.append("v_cvt_pk_bf16_f32 v%d, v%d, v%d" % (q + k, D + 8 * comp + 2 * k, D + 8 * comp + 2 * k + 1))
                def st(q=q, comp=comp):
                    A("buffer_store_dwordx4 %s, v%d, %s, s%d offen%s sc1" % (v(q, 4), self.vFr, self.WS, sH[2 * (x >> 1) + comp], " offset:1024" if x & 1 else ""))
                    self.vm.issue("ast")
                out.append(st)
            return out
        pend = []
        for x in range(4):
            pk_ = (P1, P1b)[x & 1]
            for b in range(2):
                o = []
                for m in (2 * x, 2 * x + 1):
                    self.pmul(o, pr(b, m), lam, cur[b], pr(b, m), b); cur[b] = pr(b, m)
                for comp in (1, 0):
                    ng = "-" if comp else ""
                    for h in range(2):
                        r_ = U[comp][b] + 4 * x + 2 * h
                        o.append("v_cvt_pk_bf16_f32 v%d, %sv%d, %sv%d" % (pk_[b] + 2 * comp + h, ng, r_, ng, r_ + 1))
                self.emit(o[:8] + pend[:1] + o[8:10] + pend[1:] + o[10:] if self.o["pkfix"] else o[:2] + pend[:1] + o[2:5] + pend[1:] + o[5:])
                if x == 0 or (x == 1 and b == 0):
                    k = -(-len(dD) // (3 - 2 * x - b)); self.emit(dD[:k]); dD = dD[k:]
                pend = [(lambda comp=comp, b=b, x=x, pk_=pk_: self.mf(self.acc[x & 1] + 8 * comp + 4 * b, v(pk_[b] + 2 * comp, 2), v(Sm + 2 * x, 2), "0", 16)) for comp in (1, 0)]
            if x == 3 and self.o["pkfix"]:
                f_ = finish(2); self.emit(f_[:2] + pend[:1] + f_[2:4] + pend[1:] + f_[4:])
            else:
                if x == 3: self.emit(pend)
                if x: self.emit(finish(x - 1))
        self.emit(finish(3))
        self.stamp(10)
        if bar_late: A("s_barrier")
        self.emit(weave(self.p2_addr(L_R1, self.p_vt, self.p_vu) + self.skip_term(), take(sl[4])))
        self.flag()
        self.vm.wait("c1")
        A("s_barrier")
        self.emit(take(sl[5]))
        for n in range(self.o["clead"]): self.crd(n)
        if self.o["hpw"] == 1: self.vm.wait("flag")
        self.hpoll()
        self.h_wait("s")
        return self.p2_first(ld)

    def att(self):
        A, V, S = self.A, self.V, self.S
        t0, t1, t2, t3 = self.t0, self.t1, self.t2, self.t3
        vt = V(); vu = V()
        for q in self.ppar: V.rel(q, 2)
        self.nG1 = 1; self.vG1 = V(4, 4)
        ax = [[[V(), V()], [V(), V()]] for _ in range(2)]
        akv = [[V(), V()], [V(), V()]]; aq = [V() for _ in range(4)]; vq = [V(), V()]
        sM2 = S(); sKV = [S() for _ in range(4)]; sOo = S(); sEps = S()
        vKs = V(); xw = V(); xr = V(); zx = V(); zr = V(); c10 = V(); c01 = V(); ones = V(4, 4); cl = V(2)
        kw = V(); zw = V(); rk = V(); rz = V()
        F = []
        F.append("v_lshl_add_u32 v%d, s%d, 12, v%d" % (ax[0][0][0], self.sW, self.vBase))
        F.append("v_xor_b32 v%d, 64, v%d" % (ax[0][0][1], ax[0][0][0]))
        for sx in range(2): F.append("v_xor_b32 v%d, 4096, v%d" % (ax[1][0][sx], ax[0][0][sx]))
        for lt in range(2):
            for sx in range(2): F.append("v_add_u32 v%d, 0x10000, v%d" % (ax[lt][1][sx], ax[lt][0][sx]))
        F.append("v_and_b32 v%d, 64, v0" % vt)
        F.append("v_xor_b32 v%d, v%d, v%d" % (akv[0][0], vt, self.vTr))
        F.append("v_xor_b32 v%d, 32, v%d" % (akv[0][1], akv[0][0]))
        for b in range(2): F.append("v_add_u32 v%d, 0x10000, v%d" % (akv[1][b], akv[0][b]))
        if self.o["kvw"]:
            F.append("s_lshl2_add_u32 s%d, s%d, s%d" % (t0, self.sJ, self.sW)); F.append("s_lshl4_add_u32 s%d, s%d, s%d" % (t0, t0, self.sR))
            F.append("s_lshl_b32 s%d, s%d, 10" % (t0, t0)); F.append("s_add_u32 s%d, s%d, %d" % (t0, t0, WS_KV))
            F.append("v_and_b32 v%d, 1, v0" % vt); F.append("v_cmp_eq_u32 vcc, 0, v%d" % vt)
            F.append("v_add_u32 v%d, s%d, v%d" % (vt, t0, self.vFr)); F.append("s_nop 0")
            F.append("v_cndmask_b32 v%d, v%d, v%d, vcc" % (self.vPf, self.vPf, vt))
        self.emit(F)
        F = []
        F.append("s_lshr_b32 s%d, s%d, 1" % (t3, self.sW)); F.append("s_and_b32 s%d, s%d, 1" % (t2, self.sW))
        F.append("v_lshl_add_u32 v%d, s%d, 8, v%d" % (self.vG1a, t2, self.vG1a))
        F.append("v_add_u32 v%d, %d, v%d" % (aq[0], L_R1, self.vTr))
        for t in range(1, 4): F.append("v_xor_b32 v%d, %d, v%d" % (aq[t], 32 * t, aq[0]))
        self.bits(F, vt, vu, ((3, 2, 0), (6, 1, 2), (5, 1, 3), (7, 1, 5)))
        F.append("v_mul_u32_u24 v%d, 3072, v%d" % (vt, vt))
        F.append("v_lshl_add_u32 v%d, s%d, 7, v%d" % (vt, self.sJ, vt))
        F.append("v_add_u32 v%d, v%d, v%d" % (vq[0], vt, self.vUT))
        F.append("v_add_u32 v%d, %d, v%d" % (vq[1], 16 * 3072 - 1024, vq[0]))
        F.append("s_lshl_b32 s%d, s%d, 11" % (sM2, self.sW))
        F.append("s_lshl2_add_u32 s%d, s%d, s%d" % (t0, self.sJ, self.sW))
        F.append("s_lshl_b32 s%d, s%d, 14" % (t0, t0))
        F.append("s_add_u32 s%d, s%d, %d" % (t0, t0, WS_KV))
        F.append("s_and_b32 s%d, s%d, %d" % (t1, self.sR, 12 if self.o["kown"] else 0)); F.append("s_lshl_b32 s%d, s%d, 10" % (t1, t1))
        F.append("s_add_u32 s%d, s%d, s%d" % (sKV[0], t0, t1))
        for i in range(1, 4): F.append("s_xor_b32 s%d, s%d, %d" % (sKV[i], sKV[0], 4096 * i))
        F.append("s_and_b32 s%d, s%d, %d" % (t1, self.sR, 3 if self.o["kown"] else 15))
        F.append("v_lshl_add_u32 v%d, s%d, 10, v%d" % (vKs, t1, self.vFr))
        F.append("v_lshl_add_u32 v%d, s%d, 11, v%d" % (xw, self.sW, self.vL16))
        al = self.o["alead"]; XB = L_R0 if al else L_SP
        if XB: F.append("v_add_u32 v%d, %d, v%d" % (xw, XB, xw))
        F.append("v_lshl_add_u32 v%d, s%d, 10, v%d" % (xr, t3, xw))
        F.append("v_and_b32 v%d, 0xffffefff, v%d" % (xr, xr))
        F.append("v_lshrrev_b32 v%d, 2, v%d" % (zx, xw)); F.append("v_add_u32 v%d, %d, v%d" % (zx, XB + 8192 - XB // 4, zx))
        F.append("v_lshrrev_b32 v%d, 2, v%d" % (zr, xr)); F.append("v_add_u32 v%d, %d, v%d" % (zr, XB + 8192 - XB // 4, zr))
        F.append("v_mov_b32 v%d, 0x3f80" % c10); F.append("v_mov_b32 v%d, 0x3f800000" % c01)
        for i in range(4): F.append("v_mov_b32 v%d, 0x3f803f80" % (ones + i))
        F.append("v_mov_b32 v%d, %s" % (cl, LOG2E))
        F.append("s_mov_b32 s%d, 0x358637bd" % sEps)
        KB = L_R1 + 7 * 8192; ZB = KB + 2048
        F.append("s_lshl1_add_u32 s%d, s%d, s%d" % (t0, t2, t3))
        F.append("v_lshrrev_b32 v%d, 1, v%d" % (rk, self.vL16)); F.append("v_add_u32 v%d, %d, v%d" % (rk, KB, rk))
        if al:
            F.append("s_lshl_b32 s%d, s%d, 6" % (t1, self.sP9)); F.append("v_xor_b32 v%d, s%d, v%d" % (rk, t1, rk))
        F.append("v_lshl_add_u32 v%d, s%d, 9, v%d" % (kw, t0, rk))
        self.bits(F, zw, None, ((0, 4, 1),)); F.append("v_add_u32 v%d, %d, v%d" % (zw, ZB, zw))
        F.append("v_lshl_add_u32 v%d, s%d, 9, v%d" % (zw, t0, zw))
        self.bits(F, rz, None, ((4, 2, 3),)); F.append("v_add_u32 v%d, %d, v%d" % (rz, ZB, rz))
        if al:
            for q in (zw, rz): F.append("v_xor_b32 v%d, s%d, v%d" % (q, t1, q))
        F.append("s_lshl1_add_u32 s%d, s%d, s%d" % (t0, self.sRW, t2))
        F.append("s_mul_i32 s%d, s%d, %d" % (t0, t0, RT_STRIDE))
        F.append("s_lshl_b32 s%d, s%d, 12" % (t1, self.sJ)); F.append("s_add_u32 s%d, s%d, s%d" % (t0, t0, t1))
        F.append("s_add_u32 s%d, s%d, %d" % (sOo, t0, WS_A + 65536))
        F += self.p2_addr(L_R0, vt, vu)
        KV = [V(16, 4) for _ in range(4)]
        def xf(st, x): return a(128 + 8 * st + 4 * x, 4) if x < 2 else a(64 + 32 * (st & 1) + 4 * x, 4)
        def xread(st, x):
            tot = self.slot(st >> 1) + 2048 * (x & 1)
            return "ds_read_b128 %s, v%d offset:%d" % (xf(st, x), ax[x >> 1][tot >> 16][st & 1], tot & 0xffff)
        def wread(st, t):
            out = []
            for h in range(2):
                tot = self.slot(st >> 1) + 16384 + 8192 * (t >> 1) + 4096 * (st & 1) + 2048 * h
                out.append("ds_read_b64_tr_b16 %s, v%d offset:%d" % (a(64 + 32 * (st & 1) + 16 + 4 * t + 2 * h, 2), akv[tot >> 16][t & 1], tot & 0xffff))
            return out
        def mfma(st, t, x):
            self.mf(KV[t] + 4 * x, xf(st, x), a(64 + 32 * (st & 1) + 16 + 4 * t, 4), "0" if st == 0 else None)
        wq = []
        for c in range(8):
            for i in range(2):
                pre = [] if i else ["s_add_u32 m0, s%d, %d" % (sM2, L_R1 + c * 8192), "s_bfe_u32 s%d, s%d, 0x%x" % (t0, self.sSeq, 0x30000 + 4 * c),
                                    "s_mul_i32 s%d, s%d, %d" % (t0, t0, 64 * 3072)]
                wq.append((pre, (lambda i=i: self.dma(vq[i], self.WA, "s%d" % t0, 1024 * i, "wq"))))
        gl_ = [] if self.o["glate"] else [self.g_loads]
        cf_ = self.c_dmas(1, L_R0); n7 = self.o["att_7"] if self.o["ahead"][1] else 0
        tl = [gl_ + wq[:8], wq[8:], cf_[:n7]]; cf_ = cf_[n7:]
        self.p1_loop("a", xread, wread, mfma, tl, F)
        for lt in range(2):
            for row in ax[lt]:
                for q in row: V.rel(q)
        for q in akv[0] + akv[1] + vq + self.vx + self.vw + [self.vUT, self.vTr]: V.rel(q)
        tmp = V(8, 4)
        def phi(src, dst):
            out = []
            for k0 in range(0, 8, 4):
                for k in range(k0, k0 + 4):
                    out.append("v_pk_mul_f32 %s, %s, %s op_sel_hi:[0,1]" % (v(tmp + 2 * (k & 3), 2), v(cl, 2), v(src + 2 * k, 2)))
                for k in range(k0, k0 + 4):
                    for h in range(2):
                        out.append("v_exp_f32 v%d, v%d clamp" % (tmp + 2 * (k & 3) + h, tmp + 2 * (k & 3) + h))
                        out.append("v_max_f32 v%d, s%d, v%d" % (src + 2 * k + h, sEps, src + 2 * k + h))
                for k in range(k0, k0 + 4):
                    out.append("v_pk_add_f32 %s, %s, %s" % (v(src + 2 * k, 2), v(src + 2 * k, 2), v(tmp + 2 * (k & 3), 2)))
                for k in range(k0, k0 + 4):
                    out.append("v_cvt_pk_bf16_f32 v%d, v%d, v%d" % (dst + k, src + 2 * k, src + 2 * k + 1))
            return out
        pk = [V(8, 4), V(8, 4)]; pv = [V(8, 4), V(8, 4)]; Tk = self.acc[0]; Tz = self.acc[0] + 8
        W = []; d = self.deferred
        pend = d[2:]
        for b in range(2):
            ph = phi(KV[b], pk[b])
            for kk in range(2):
                g_ = ph[28 * kk:28 * kk + 28]
                W += g_[:4] + weave(g_[4:18], pend) + g_[18:]
                if b and kk: W.append("ds_write_b128 v%d, %s" % (xw, v(Tk, 4)))
                for k in range(4 * kk, 4 * kk + 4): W.append("v_cvt_pk_bf16_f32 v%d, v%d, v%d" % (pv[b] + k, KV[2 + b] + 2 * k, KV[2 + b] + 2 * k + 1))
                z = None if kk else "0"
                pend = [(lambda b=b, kk=kk, z=z: self.mf(Tz + 4 * b, v(ones, 4), v(pk[b] + 4 * kk, 4), z)),
                        (lambda b=b, kk=kk, z=z: self.mf(Tk + 4 * b, v(pk[b] + 4 * kk, 4), v(pv[b] + 4 * kk, 4), z))]
        W = W[:-2] + pend[:1] + W[-2:] + pend[1:]
        n = max(0, self.o["att_b"] - n7)
        if al: cf_ = self.wo_dmas(0) + self.c_dmas(0, L_R0)
        self.emit(d[:2] + W[:30] + weave(W[30:110], cf_[:n]) + W[110:]); cf_ = cf_[n:]
        Uu = self.acc[1]
        def qread(n, h):
            return self.ds("ds_read_b64_tr_b16 %s, v%d offset:%d" % (a(64 + 4 * (n % 8) + 2 * h, 2), aq[2 * (n >> 5) + (n & 1)], ((n >> 1) & 15) * 4096 + h * 2048), "q%d" % n)
        A("v_mov_b32 v%d, v%d" % (Uu + 15, self.vTag))
        A("ds_write2st64_b32 v%d, v%d, v%d offset0:0 offset1:1" % (zx, Tz, Tz + 4))
        A("ds_write_b128 v%d, %s offset:1024" % (xw, v(Tk + 4, 4)))
        A("s_waitcnt vmcnt(%d) lgkmcnt(0)" % self.vm.need("wq")); self.lg.zero(False)
        A("s_barrier")
        self.ds("ds_read_b128 %s, v%d" % (v(Uu, 4), xr), "x0")()
        self.ds("ds_read_b128 %s, v%d offset:4096" % (v(Uu + 4, 4), xr), "x0")()
        self.ds("ds_read2st64_b32 %s, v%d offset0:0 offset1:4" % (v(Uu + 8, 2), zr), "x1")()
        for n in range(4):
            for h in range(2): qread(n, h)()
        self.lg.wait("x0")
        A("v_pk_add_f32 %s, %s, %s" % (v(Uu, 2), v(Uu, 2), v(Uu + 4, 2)))
        A("v_pk_add_f32 %s, %s, %s" % (v(Uu + 2, 2), v(Uu + 2, 2), v(Uu + 6, 2)))
        A("v_cvt_pk_bf16_f32 v%d, v%d, v%d" % (Uu + 12, Uu, Uu + 1))
        A("v_cvt_pk_bf16_f32 v%d, v%d, v%d" % (Uu + 13, Uu + 2, Uu + 3))
        self.lg.wait("x1")
        A("v_add_f32 v%d, v%d, v%d" % (Uu + 14, Uu + 8, Uu + 9))
        A("buffer_store_dwordx4 %s, v%d, %s, s%d offen sc1" % (v(Uu + 12, 4), vKs, self.WS, sKV[0])); self.vm.issue("kst")
        self.stamp(7)
        if self.o["glate"]: self.g_loads()
        Qt = self.acc
        rec = KV
        acc = V(6, 2)
        def gl(n):
            A("buffer_load_dwordx4 %s, v%d, %s, s%d offen%s sc1" % (v(rec[n >> 2] + 4 * (n & 3), 4), self.vFr, self.WS, sKV[n >> 2], " offset:%d" % (1024 * (n & 3)) if n & 3 else ""))
            self.vm.issue("r%d" % n)
        early = self.o["early"][1]
        ld = cf_ + ([] if al else self.wo_dmas(1 if early else 0))
        gls = [([], (lambda n=n: gl(n))) for n in range(16)]
        ph0 = phi(Qt[0], pk[0])
        for st in range(32):
            if st == (0 if al else min(len(cf_), self.o["att_g"])): A("s_barrier")
            cur = gls.pop(0) if (st >= self.o["att_g"] and gls) else (ld.pop(0) if ld else None)
            self.lg.wait("q%d" % (2 * st + 1))
            for k in range(4):
                n = 2 * st + (k >> 1)
                self.mf(Qt[st >> 4] + 4 * k, a(64 + 4 * (n % 8), 4), a(128 + 8 * (st & 15) + 4 * (k & 1), 4), "0" if st & 15 == 0 else None)
                if n + 4 < 64: qread(n + 4, k & 1)()
                if cur and k < 2: self.emit(cur[0][k:k + 1])
                if cur and k == 2: cur[1]()
                if st >= 18 and ph0:
                    m_ = 4 if (ph0[0].startswith("v_pk") and self.o["pkfix"]) else 1
                    if not self.o["pkfix"] or k != 2 or m_ == 4 or st >= 30: self.emit(ph0[:m_]); ph0 = ph0[m_:]
            if st == 15: self.stamp(22)
        assert not ld and not ph0
        A("s_barrier")
        self.stamp(8)
        self.g_check("att", vt)
        late = self.c_dmas(1 if al else 0, L_R1); nc = self.o["att_c1"]
        ph1 = phi(Qt[1], pk[1]); p1, p2_ = self.o["ph1"]
        self.emit(weave(ph1[:p1], gls + late[:nc])); late = late[nc:]
        self.stamp(24)
        for i in range(5): A("v_mov_b32 v%d, 0" % (acc + i))
        A("v_mov_b32 v%d, s%d" % (ones, sEps))
        for gq in range(4):
            self.vm.wait("r%d" % (4 * gq + 3))
            A.label("L_kchk%d" % gq)
            A("v_xor_b32 v%d, v%d, v%d" % (vt, rec[gq] + 3, self.vTag))
            for n in range(1, 4): A("v_bitop3_b32 v%d, v%d, v%d, v%d bitop3:0xf6" % (vt, vt, rec[gq] + 4 * n + 3, self.vTag))
            A("v_cmp_ne_u32 vcc, 0, v%d" % vt)
            A("s_cmp_lg_u64 vcc, 0")
            A("s_cbranch_scc1 L_kre%d" % gq)
            A.label("L_kgo%d" % gq)
            for n in range(4):
                q = rec[gq] + 4 * n
                A("v_dot2c_f32_bf16 v%d, v%d, v%d" % (acc, q, c10))
                A("v_dot2c_f32_bf16 v%d, v%d, v%d" % (acc + 1, q, c01))
                A("v_dot2c_f32_bf16 v%d, v%d, v%d" % (acc + 2, q + 1, c10))
                A("v_dot2c_f32_bf16 v%d, v%d, v%d" % (acc + 3, q + 1, c01))
                A("v_add_f32 v%d, v%d, v%d" % (acc + 4, acc + 4, q + 2))
        def kre():
            q = list(self.vm.q)
            for gq in range(4):
                A.label("L_kre%d" % gq)
                self.cap()
                A("s_cbranch_scc0 L_kgo%d" % gq)
                for n in range(4 * gq, 16 if self.o["kall"] else 4 * gq + 4): gl(n)
                A("s_waitcnt vmcnt(0)")
                A("s_branch L_kchk%d" % gq)
            self.vm.q = q
        self.stamp(9)
        A("v_cvt_pk_bf16_f32 v%d, v%d, v%d" % (acc, acc, acc + 1))
        A("v_cvt_pk_bf16_f32 v%d, v%d, v%d" % (acc + 1, acc + 2, acc + 3))
        A("v_cvt_pk_bf16_f32 v%d, v%d, v%d" % (acc + 4, acc + 4, acc + 4))
        A("ds_write_b64 v%d, %s" % (kw, v(acc, 2)))
        A("ds_write_b16 v%d, v%d" % (zw, acc + 4))
        n2 = self.o["att_c2"]
        self.emit(ph1[p1:p2_])
        self.vm.wait("c0" if al else "c1"); self.vm.wait("wo0")
        A("s_waitcnt lgkmcnt(0)")
        A("s_barrier")
        for h in range(4):
            A("ds_read_b64 %s, v%d offset:%d" % (v(pv[1] + 2 * h, 2), rz, 512 * h))
            A("ds_read_b64 %s, v%d offset:%d" % (v(pv[0] + 2 * h, 2), rk, 512 * h))
        def omf(f):
            hp, a1 = f >> 1, f & 1
            out = []
            for part in (1, 0):
                for h in range(2):
                    out.append(lambda part=part, h=h: self.mf(rec[f] + 8 * (1 - part) + 4 * h, v(pv[part] + 4 * hp + 2 * h, 2), v(pk[hp] + 4 * h + 2 * a1, 2), v(ones, 4) if part else "0", 16))
            return out
        def ofin(f):
            d = rec[f]; out = []
            for h in range(2): out.append("v_rcp_f32 v%d, v%d" % (d + 4 * h, d + 4 * h))
            for h in range(2): out.append("v_mul_f32 v%d, v%d, v%d" % (d + 4 * h, d + 4 * h, self.vG1 + 2 * (f & 1)))
            for k in range(4): out.append("v_pk_mul_f32 %s, %s, %s op_sel_hi:[0,1]" % (v(d + 8 + 2 * k, 2), v(d + 4 * (k >> 1), 2), v(d + 8 + 2 * k, 2)))
            for k in range(4): out.append("v_cvt_pk_bf16_f32 v%d, v%d, v%d" % (d + k, d + 8 + 2 * k, d + 9 + 2 * k))
            def st():
                A("buffer_store_dwordx4 %s, v%d, %s, s%d offen%s sc1" % (v(d, 4), self.vFr, self.WS, sOo, " offset:%d" % (1024 * f) if f else "")); self.vm.issue("ast")
            out.append(st)
            return out
        self.emit(weave(ph1[p2_:], late[:n2]) if ph1[p2_:] else late[:n2]); late = late[n2:]
        assert len(late) >= 2
        A("s_waitcnt lgkmcnt(4)")
        self.emit(omf(0) + omf(1))
        A("s_waitcnt lgkmcnt(0)"); self.lg.zero(False)
        def mixo(f_, m_): return m_[:1] + f_[:1] + m_[1:2] + f_[1:8] + m_[2:3] + f_[8:10] + m_[3:] + f_[10:]
        self.emit(mixo(ofin(0), omf(2)) + mixo(ofin(1), omf(3)) + ofin(2) + ofin(3))
        self.stamp(10)
        self.emit(weave(self.skip_term(), [] if early else self.wo_reads(0), late[:-2]))
        A("s_waitcnt lgkmcnt(0)")
        A("s_barrier")
        late = late[-2:] + ([] if early else self.wo_dmas(1)); n = self.o["att_e"]; n2 = self.o["att_f"]
        self.emit(late[:n])
        for k in range(self.o["clead"]): self.crd(k)
        self.hpoll()
        self.flag()
        self.emit(late[n:n2])
        self.h_wait("a", kre)
        return self.p2_first(late[n2:])

    def retry(self, sreg):
        if not self.o["lflag"]: return
        A = self.A
        A("s_and_b32 s%d, s%d, 3" % (self.t2, self.sCap))
        A("s_cselect_b32 s%d, 0, s%d" % (self.t2, self.sLX))
        A("s_xor_b32 s%d, s%d, s%d" % (sreg, sreg, self.t2))

    def hpoll(self):
        self.A("buffer_load_dword v%d, v%d, %s, s%d offen sc1" % (self.vJunk, self.vf, self.WS, self.sFH)); self.vm.issue("hp")

    def flag(self):
        self.vm.wait("ast")
        if self.o["lflag"]:
            self.A("buffer_store_dword v%d, v%d, %s, s%d offen" % (self.vTag, self.vFlag, self.WS, self.sLF)); self.vm.issue("lflag")
        self.A("buffer_store_dword v%d, v%d, %s, 0 offen sc1" % (self.vTag, self.vFlag, self.WS)); self.vm.issue("flag")
        self.stamp(11)

    def p2_regs(self, V):
        self.p_vt = V(); self.p_vu = V()
        self.cb = V(32, 4)
        self.of = V(64, 4)
    def crd(self, n):
        st, t = n >> 2, n & 3
        r_ = self.ac[t >> 1][st & 1]
        if st in (8, 9) and t & 1 == 0: self.A("v_xor_b32 v%d, s%d, v%d" % (r_, self.sSt, r_))
        self.A("ds_read_b128 %s, v%d offset:%d" % (v(self.cb + 4 * (n % 8), 4), r_, ((st >> 1) & 3) * 8192 + (t & 1) * 2048)); self.lg.issue("c%d" % n)
    def fr(self, f):
        if "H" not in self.o["dbg"]: return self.vFr
        return (self.vG1a, self.vG2a)[(f >> 1) & 1]
    def hld(self, f):
        A = self.A
        if f & 3 == 0: A("s_xor_b32 s%d, s%d, %d" % (self.t0, self.sH, (f >> 2) * 4096))
        A("buffer_load_dwordx4 %s, v%d, %s, s%d offen%s sc1" % (a(128 + 4 * f, 4), self.fr(f), self.WS, self.t0, " offset:%d" % (1024 * (f & 3)) if f & 3 else "")); self.vm.issue("h%d" % f)
    def cstep(self, st, ld):
        A = self.A
        CL = self.o["clead"]
        ld = list(ld); many = len(ld) > 2
        for k in range(8):
            t, a1 = k >> 1, k & 1
            if k == 0: self.wait2("h%d" % (2 * st + 1), "c%d" % (4 * st + 1))
            if k == 4: self.wait2(None, "c%d" % (4 * st + 3))
            off = 8 * a1 + 4 * (t & 1)
            c = None if st else (v(self.vXD + off, 4) if t < 2 else "0")
            self.mf(self.acc[t >> 1] + off, v(self.cb + 4 * ((4 * st + t) % 8), 4), a(128 + 8 * st + 4 * a1, 4), c)
            if a1:
                if 4 * st + CL + t == 32:
                    assert not [x for x in self.vm.q if x[0] in "cw"]
                    A("s_barrier")
                if 4 * st + CL + t < 64: self.crd(4 * st + CL + t)
            else:
                n = -(-len(ld) // (4 - t)) if (many or t & 1 == 0) else 0
                self.emit(ld[:n]); ld = ld[n:]
        assert not ld
    def h_wait(self, name, aside=None):
        A = self.A
        self.vm.wait("hp")
        self.stamp(12)
        A("s_branch L_hchk" + name)
        if aside: aside()
        A.label("L_hpoll" + name)
        self.retry(self.sFH)
        A("buffer_load_dword v%d, v%d, %s, s%d offen sc1" % (self.vJunk, self.vf, self.WS, self.sFH))
        A("s_waitcnt vmcnt(0)")
        A.label("L_hchk" + name)
        A("v_cmp_ne_u32 vcc, s%d, v%d" % (self.sTag, self.vJunk))
        self.poll_tail("L_hpoll" + name)
        self.stamp(13)
    def p2_first(self, extra):
        if "H" in self.o["dbg"]:
            self.A("s_and_b32 s%d, s%d, 1" % (self.t2, self.sCT)); self.A("s_lshl_b32 s%d, s%d, 29" % (self.t2, self.t2))
            self.A("v_add_u32 v%d, s%d, v%d" % (self.vG1a, self.t2, self.vFr)); self.A("v_xor_b32 v%d, 0x20000000, v%d" % (self.vG2a, self.vG1a))
        LA = self.o["LA"]; ns = LA // 2 + 1
        for f in range(LA): self.hld(f)
        q = list(extra) + [(lambda f=f: self.hld(f)) for f in range(LA, LA + 2 * ns)]
        n = len(q); done = 0
        for st in range(ns):
            to = -(-n * (st + 1) // ns)
            self.cstep(st, q[done:to]); done = to
        return list(self.vm.q), list(self.lg.q)

    def p2(self):
        A = self.A
        vt, vu, of = self.p_vt, self.p_vu, self.of
        acc, sO = self.acc, self.sO
        def old(n):
            if n & 3 == 0: A("s_xor_b32 s%d, s%d, %d" % (self.t1, sO, 1024 * n))
            A("buffer_load_dwordx4 %s, v%d, %s, s%d offen%s sc1" % (v(of + 4 * n, 4), self.fr(n), self.WS, self.t1, " offset:%d" % (1024 * (n & 3)) if n & 3 else "")); self.vm.issue("o%d" % n)
        def opoll():
            A("buffer_load_dword v%d, v%d, %s, s%d offen sc1" % (vt, self.vf, self.WS, self.sFO)); self.vm.issue("op")
        LA = self.o["LA"]; s1 = LA // 2 + 1; s0 = 16 - LA // 2
        opoll()
        for st in range(s1, s0): self.cstep(st, [(lambda f=f: self.hld(f)) for f in (2 * st + LA, 2 * st + LA + 1)])
        self.vm.wait("op")
        A("v_cmp_ne_u32 vcc, s%d, v%d" % (self.sTag, vt))
        A("s_cmp_lg_u64 vcc, 0")
        A("s_cbranch_scc1 L_slow")
        qv, ql = list(self.vm.q), list(self.lg.q)
        for st in range(s0, 16): self.cstep(st, [(lambda n=n: old(n)) for n in (2 * (st - s0), 2 * (st - s0) + 1)])
        self.stamp(14); self.stamp(15)
        A.label("L_join")
        q2 = list(self.vm.q)
        vr = self.vr; vr1, ra, rb, rc, rd = [self.cb + k for k in range(5)]
        side = ["s_movk_i32 s%d, 4096" % self.t2, "s_mov_b32 s%d, 0x10000" % self.t3, "s_mov_b32 s%d, 0x11000" % self.t0, "v_xor_b32 v%d, 128, v%d" % (vr1, vr)]
        self.bits(side, ra, rb, ((0, 3, 5), (0, 2, 8), (2, 1, 10)))
        self.bits(side, rb, None, ((3, 3, 4),))
        side += ["v_xor_b32 v%d, v%d, v%d" % (ra, ra, rb), "v_and_b32 v%d, 0xfffff000, v%d" % (rb, vr), "v_add_u32 v%d, v%d, v%d" % (rc, ra, rb),
                 "v_xor_b32 v%d, 128, v%d" % (rd, rc), "v_xor_b32 v%d, 8192, v%d" % (ra, rc), "v_xor_b32 v%d, 8192, v%d" % (rb, rd)]
        seq = [(st, (k >> 1) ^ 2, k & 1) for st in range(8) for k in range(8)]
        nl = self.o["olead"]
        seq = seq[:64 - 8 * nl] + [x for x in seq[64 - 8 * nl:] if x[1] >= 2] + [x for x in seq[64 - 8 * nl:] if x[1] < 2]
        seq = seq[:60] + sorted(seq[60:], key=lambda x: x[2])
        wr = ["ds_write_b128 v%d, %s offset:%d" % ((vr, vr1)[q & 1], v(acc[1] + 4 * q, 4), 1024 * q) for q in (0, 2, 1, 3)]
        wr += [None] * self.o["owait"] + ["s_waitcnt lgkmcnt(0)\ns_barrier"]
        wr += ["ds_read_b128 %s, v%d offset:%d" % (v(of + 4 * q, 4), (ra, rb)[q & 1], 2048 * (q >> 1)) for q in range(4)]
        w1 = self.wo_reads(1); wb = []
        for (st, t, a1) in seq:
            if st >= 4: wb.append((w1[8 * (st - 4) + 2 * t + a1], "wb%d_%d" % (st, t)))
        wb = wb[:28] + sorted(wb[28:], key=lambda x: x[1])
        self.lg.q = []
        for n, (st, t, a1) in enumerate(seq):
            if n == 64 - 4 * nl + 4 and not wb: self.lg.zero()
            self.wait2("o%d" % (2 * st + 1), "wb%d_%d" % (st, t | 1))
            self.mf(acc[t >> 1] + 8 * a1 + 4 * (t & 1), a(16 * st + 4 * t, 4), v(of + 8 * st + 4 * a1, 4))
            if n & 3 == 0 and LA + (n >> 2) < 16: old(LA + (n >> 2))
            if n & 3 and wb:
                x, tg = wb.pop(0); A(x); self.lg.issue(tg)
            if (n & 3 == 0 and LA + (n >> 2) >= 16 or not wb) and side: self.emit(side[:2]); side = side[2:]
            if n >= 64 - 4 * nl + 4 and wr:
                x = wr.pop(0)
                if x: A(x)
        self.emit([x for x in wr if x])
        self.stamp(16)
        assert not side
        for a1 in range(2):
            for q in (2 * a1, 2 * a1 + 1): A("ds_write_b128 v%d, %s offset:%d" % ((vr, vr1)[q & 1], v(acc[0] + 4 * q, 4), 32768 + 1024 * q))
            for q in (2 * a1, 2 * a1 + 1): A("ds_read_b128 %s, v%d offset:%d" % (v(acc[1] + 4 * q, 4), (rc, rd)[q & 1], 32768 + 2048 * a1))
        for q in range(4):
            own = acc[1] + 4 * q
            A("s_waitcnt lgkmcnt(%d)" % (5, 4, 1, 0)[q])
            for k in (0, 2): A("v_pk_add_f32 %s, %s, %s" % (v(own + k, 2), v(own + k, 2), v(of + 4 * q + k, 2)))
            A("buffer_store_dwordx4 %s, v%d, %s, %s offen%s" % (v(own, 4), self.vOut, self.OUT, ("0", "s%d" % self.t3, "s%d" % self.t2, "s%d" % self.t0)[q], self.o["outaux"]))
        A("s_cmp_eq_u32 s2, %d" % (255 ^ (2 * self.o["rx"])))
        A("s_cbranch_scc0 L_fin")
        A("v_mov_b32 v%d, s%d" % (vt, self.sE))
        A("v_mov_b32 v%d, 0" % vu)
        A("buffer_store_dword v%d, v%d, %s, 0 offen sc1" % (vt, vu, self.WS))
        A.label("L_fin")
        if self.o["stamps"]:
            if self.o["stamps"] != 2: A("s_waitcnt vmcnt(0)")
            self.stamp(17)
            A("v_lshlrev_b32 v%d, 2, v0" % vu)
            A("s_lshl_b32 s%d, s2, 10" % self.t0); A("s_add_u32 s%d, s%d, %d" % (self.t0, self.t0, WS_STAMP))
            A("buffer_store_dword v%d, v%d, %s, s%d offen" % (self.vStamp, vu, self.WS, self.t0))
        A("s_endpgm")
        A.label("L_slow")
        self.vm.q, self.lg.q = qv, ql
        for st in range(s0, 16): self.cstep(st, [])
        self.stamp(14)
        A.label("L_opoll")
        self.retry(self.sFO)
        opoll()
        A("s_waitcnt vmcnt(0)")
        A("v_cmp_ne_u32 vcc, s%d, v%d" % (self.sTag, vt))
        self.poll_tail("L_opoll")
        self.vm.zero(False)
        self.stamp(15)
        for n in range(LA): old(n)
        assert self.vm.q == q2, (self.vm.q, q2)
        A("s_branch L_join")

    def gen(self):
        A = self.A
        kernel_head(A, NAME)
        self.prologue()
        V0, S0, q0 = self.V.clone(), self.S.clone(), list(self.vm.q)
        self.p2_regs(V0.clone())
        st1 = self.ssm()
        A("s_branch L_p2")
        A.label("L_att")
        self.V, self.S, self.vm.q, self.lg.q = V0.clone(), S0.clone(), list(q0), []
        st2 = self.att()
        assert st1 == st2, (st1, st2)
        A.label("L_p2")
        self.p2()
        A.label("L_end")
        A("s_endpgm")
        if self.o.get("jit"):
            out_ = []; k = 0; on = False
            for l in A.l:
                t = l.strip()
                site = on and (t == "s_barrier" or t.startswith(("buffer_store", "ds_write")) or (t.endswith(" lds") and k % 3 == 0))
                def dly():
                    nonlocal k
                    k += 1
                    out_.extend(["    s_bitcmp1_b32 s%d, %d" % (self.sT + (k >> 5 & 1), k & 31), "    s_cbranch_scc0 L_jit%d" % k, "    s_sleep %d" % (3 + (k * 7 + self.o["jit"]) % 23), "L_jit%d:" % k])
                if site: dly()
                elif on and t.endswith(" lds"): k += 1
                out_.append(l)
                if on and t == "s_barrier": dly()
                if t.startswith("s_load_dword s%d," % self.sE):
                    on = True
                    out_.extend(["    s_lshl2_add_u32 s%d, s2, s%d" % (self.sT, self.sW), "    s_add_u32 s%d, s%d, %d" % (self.sT, self.sT, self.o["jit"] * 1000),
                                 "    s_mul_i32 s%d, s%d, 0x9e3779b1" % (self.sT, self.sT), "    s_lshr_b32 s%d, s%d, 15" % (self.sT + 1, self.sT),
                                 "    s_xor_b32 s%d, s%d, s%d" % (self.sT, self.sT, self.sT + 1), "    s_mul_i32 s%d, s%d, 0x85ebca6b" % (self.sT, self.sT),
                                 "    s_mul_i32 s%d, s%d, 0xc2b2ae35" % (self.sT + 1, self.sT), "    s_lshr_b32 s%d, s%d, 13" % (self.sT2, self.sT + 1),
                                 "    s_and_b32 s%d, s%d, s%d" % (self.sT, self.sT, self.sT2), "    s_lshr_b32 s%d, s%d, 3" % (self.sT2, self.sT + 1),
                                 "    s_and_b32 s%d, s%d, s%d" % (self.sT + 1, self.sT + 1, self.sT2)])
            A.l = out_
        body, n = hazard.fix(A.l)
        head = open("cdna_kernels/%s.s.ref" % NAME[:-7]).read().split("; Override launch")[0] if self.o.get("head", True) else ""
        out = head + "; @launch grid=(256,1,1) block=(256,1,1) lds=163840\n"
        out += '.amdgcn_target "amdgcn-amd-amdhsa--gfx950"\n' + DOC + '.text\n'
        if self.o["pad"] >= 0:
            out += "; start the kernel at the top of a 4 KB page (instruction fetch stalls at page crossings)\n.p2align 12\n.fill %d, 4, 0xbf810000\n" % (64 * self.o["pad"])
        out += "\n".join(body) + "\n"
        out += '.section .rodata,"a"\n.p2align 6\n' + kernel_desc(NAME, 512, 256)
        if self.o["hop"]: out = self.link_stubs(out)
        return out

    def link_stubs(self, out):
        import re, subprocess, tempfile
        d = tempfile.mkdtemp()
        open(d + "/a.s", "w").write(re.sub(r"@CHAIN(\w)\d+@", r"L_back\1", out))
        subprocess.run(["clang", "-x", "assembler", "-target", "amdgcn-amd-amdhsa", "-mcpu=gfx950", "-c", d + "/a.s", "-o", d + "/a.o"], check=True)
        dis = subprocess.run(["llvm-objdump", "-d", "--mcpu=gfx950", d + "/a.o"], capture_output=True, text=True).stdout
        dis = dis[dis.index("<%s>:" % NAME):]
        sizes = [4 * len(m.group(1).split()) for m in re.finditer(r"// [0-9A-F]{12}: ((?:[0-9A-F]{8} ?)+)", dis)]
        lines = out.split("\n"); res = []; k = 0; pc = 0; on = False; sec = None; tg = {"s": [], "a": []}; page = 0
        def put(roles):
            nm = "L_pg%d" % len(res)
            res.append(nm + ":"); res.append("    s_cbranch_execz L_back" + ("x" if len(roles) > 1 else roles))
            for r in roles: tg[r].append(nm)
        for l in lines:
            t = l.strip()
            if t == NAME + ":": on = True
            if t.startswith(".section"): on = False
            ins = on and t and not t.startswith((";", ".")) and not t.endswith(":")
            if ins and (pc >> 12) > page:
                page = pc >> 12
                if sec: put(sec); pc += 4
            res.append(l)
            if t in ("L_backs:", "L_backa:"): sec = t[-2]
            if t in ("L_att:", "L_slow:"): sec = None
            if t == "L_p2:":
                sec = "sa"; put("s"); pc += 4
            if ins: pc += sizes[k]; k += 1
        assert k == len(sizes), (k, len(sizes))
        out = "\n".join(res)
        for r in "sa":
            t = list(tg[r])
            while len(t) > 4:
                x = t.pop(); y = t[len(t) - 4]
                assert y not in tg["a" if r == "s" else "s"]
                out = out.replace(y + ":\n    s_cbranch_execz L_back" + r, y + ":\n    s_cbranch_execz " + x)
            for w in range(4): out = out.replace("@CHAIN%s%d@" % (r, w), t[w] if w < len(t) else "L_back" + r)
        return out

if __name__ == "__main__":
    if len(sys.argv) > 1:
        for arg in sys.argv[1:]:
            nm, _, kv = arg.partition(":")
            o = eval("dict(%s)" % kv)
            open(nm, "w").write(K(stamps=(1 if "_st" in nm else 2 if "_lt" in nm else 0), head=False, **o).gen())
    else:
        open("k.s", "w").write(K().gen())
        open("k_st.s", "w").write(K(stamps=True).gen())
```
